```python
import torch

def _softmax(x, axis=-1):
    return torch.softmax(x, dim=axis)
def _gelu(x):
    return torch.nn.functional.gelu(x, approximate="tanh")
def _silu(x):
    return torch.nn.functional.silu(x)
def _sigmoid(x):
    return torch.sigmoid(x)
def _layernorm(x, axis=-1, eps=1e-5):
    m = x.mean(dim=axis, keepdim=True)
    v = x.var(dim=axis, keepdim=True, unbiased=False)
    return (x - m) / torch.sqrt(v + eps)
def _scatter_add(tgt, idx, src, axis=0):
    return tgt.clone().index_add_(axis, idx, src)
def _segment_sum(src, seg, n):
    out = torch.zeros((n,) + src.shape[1:], dtype=src.dtype)
    return out.index_add_(0, seg, src)
def _pad(x, pw):
    flat = tuple(v for pair in reversed(pw) for v in pair)
    return torch.nn.functional.pad(x, flat)

kernel_name = 'parallel_sum__gqa_block_cached__dense_activation_silu__decode'

def setup_inputs():

    _w = (lambda a: (lambda t: t.to(torch.bfloat16) if t.is_floating_point() else t)(torch.as_tensor(a)))
    def _A_setup():
        B, Sq, D = 2, 1, 1024
        Hq, Hkv, Sk, Dh = 32, 4, 32768, 128
        assert Hq % Hkv == 0, (Hq, Hkv)
        return {
            "x": _w((lambda *s: torch.randn(*s, dtype=torch.bfloat16) * 0.05)(B, Sq, D)),
            "k_cache": _w((lambda *s: torch.randn(*s, dtype=torch.bfloat16) * 3.2)(B, Hkv, Sk, Dh)),
            "v_cache": _w((lambda *s: torch.randn(*s, dtype=torch.bfloat16) * 0.8)(B, Hkv, Sk, Dh)),
            "wq": _w((lambda *s: torch.randn(*s, dtype=torch.bfloat16) * 3.2)(D, Hq * Dh) * (D ** -0.5)),
            "wo": _w((lambda *s: torch.randn(*s, dtype=torch.bfloat16) * 0.8)(Hq * Dh, D) * ((Hq * Dh) ** -0.5)),
        }
    _A_in = _A_setup()

    def _B_setup():
        B, S, D, F = 2, 1, 1024, 3584
        return {
            "x": _w((lambda *s: torch.randn(*s, dtype=torch.bfloat16) * 0.05)(B, S, D)),
            "w1": _w((lambda *s: torch.randn(*s, dtype=torch.bfloat16) * 3.2)(D, F) * (D ** -0.5)),
            "w2": _w((lambda *s: torch.randn(*s, dtype=torch.bfloat16) * 0.4)(F, D) * (F ** -0.5)),
        }
    _B_in = _B_setup()

    return {
        "A_x": _A_in["x"],
        "A_k_cache": _A_in["k_cache"],
        "A_v_cache": _A_in["v_cache"],
        "A_wq": _A_in["wq"],
        "A_wo": _A_in["wo"],
        "B_x": _B_in["x"],
        "B_w1": _B_in["w1"],
        "B_w2": _B_in["w2"],
    }

def reference(A_x, A_k_cache, A_v_cache, A_wq, A_wo, B_x, B_w1, B_w2):
    def _A_ref(x, k_cache, v_cache, wq, wo):
        B, Sq, D = x.shape
        Hq, Dh = 32, 128
        Hkv = k_cache.shape[1]
        rep = Hq // Hkv
        q = (lambda x, *d: x.permute(*d))((x @ wq).reshape(B, Sq, Hq, Dh), 0, 2, 1, 3)
        k = (lambda x, n, axis: torch.repeat_interleave(x, n, dim=axis))(k_cache, rep, axis=1)
        v = (lambda x, n, axis: torch.repeat_interleave(x, n, dim=axis))(v_cache, rep, axis=1)
        scores = torch.einsum("bhqd,bhkd->bhqk", q, k) * (Dh ** -0.5)
        p = _softmax(scores, axis=-1)
        o = torch.einsum("bhqk,bhkd->bhqd", p, v)
        return (lambda x, *d: x.permute(*d))(o, 0, 2, 1, 3).reshape(B, Sq, Hq * Dh) @ wo

    def _B_ref(x, w1, w2):
        h = torch.einsum("bsd,df->bsf", x, w1)
        h = _silu(h)
        out = torch.einsum("bsf,fd->bsd", h, w2)
        return out

    x = A_x
    xn = _layernorm(x, axis=-1)
    return x + _A_ref(xn, A_k_cache, A_v_cache, A_wq, A_wo) + _B_ref(xn, B_w1, B_w2)
```

```python
import re

_VR = re.compile(r'(?<![a-z_0-9])v(\d+)(?![\d:\]])|(?<![a-z_0-9])v\[(\d+):(\d+)\]')
_SR = re.compile(r'(?<![a-z_0-9])s(\d+)(?![\d:\]])|(?<![a-z_0-9])s\[(\d+):(\d+)\]|\b(vcc|exec|m0)\b')
TRANS = ("v_exp_f32", "v_log_f32", "v_rcp_f32", "v_rsq_f32", "v_sqrt_f32", "v_sin_f32", "v_cos_f32")

def vregs(tok):
    out = []
    for m in _VR.finditer(tok):
        if m.group(1) is not None: out.append(int(m.group(1)))
        else: out.extend(range(int(m.group(2)), int(m.group(3)) + 1))
    return out
def sregs(tok):
    out = []
    for m in _SR.finditer(tok):
        if m.group(1) is not None: out.append("s%d" % int(m.group(1)))
        elif m.group(2) is not None: out.extend("s%d" % i for i in range(int(m.group(2)), int(m.group(3)) + 1))
        else: out.append(m.group(4))
    return out

class Emit:
    def __init__(self):
        self.lines = []
        self.pos = 0
        self.vw = {}
        self.mfma_dst = {}
        self.mfma_c = {}
        self.st_data = {}
        self.sw = {}
        self.snap = {}
        self.vm = []
        self.nvm = 0
        self.cond_depth = 0
    def _state(self):
        return (self.pos, dict(self.vw), dict(self.mfma_dst), dict(self.mfma_c), dict(self.st_data), dict(self.sw))
    def _merge(self, st):
        p0, vw, md, mc, sd, sw = st
        sh = self.pos - p0
        for k, (p, kind) in vw.items():
            q = p + sh
            if k not in self.vw or self.vw[k][0] < q or (self.vw[k][0] - q < 12 and kind.startswith("mfma") and not self.vw[k][1].startswith("mfma") and False):
                self.vw[k] = (q, kind)
        for k, (p, t) in md.items():
            q = p + sh
            if k not in self.mfma_dst or self.mfma_dst[k][0] < q: self.mfma_dst[k] = (q, t)
        for d, s in ((self.mfma_c, mc), (self.st_data, sd), (self.sw, sw)):
            for k, p in s.items():
                q = p + sh
                if k not in d or d[k] < q: d[k] = q
    def raw(self, s):
        self.lines.append(s)
    def comment(self, s):
        self.lines.append("; " + s)
    def label(self, name):
        for st in self.snap.get(name, []): self._merge(st)
        self.lines.append(name + ":")
    def nop(self, n):
        while n > 0:
            k = min(n, 16)
            self.lines.append("s_nop %d" % (k - 1)); self.pos += k; n -= k
    def __call__(self, text, tag=None):
        text = text.strip()
        mn = text.split()[0]
        rest = text[len(mn):]
        ops = [o.strip() for o in re.split(r',(?![^\[]*\])', rest)]
        need = 0
        def age_v(r):
            return self.pos - self.vw[r][0] if r in self.vw else 10**9
        def req(n_states, p):
            nonlocal need
            have = self.pos - p - 1
            if have < n_states: need = max(need, n_states - have)
        W, R, Rdpp, Rc, SRr, SW = [], [], [], [], [], []
        kind = "salu"
        if mn.startswith("v_mfma"):
            kind = "mfma"
            W = vregs(ops[0]); R = vregs(ops[1]) + vregs(ops[2]); Rc = vregs(ops[3].split()[0])
        elif mn.startswith("v_cmp"):
            kind = "valu"; SW = sregs(ops[0]); R = sum((vregs(o) for o in ops[1:]), []); SRr = sum((sregs(o) for o in ops[1:]), [])
        elif mn.startswith("v_readfirstlane") or mn.startswith("v_readlane"):
            kind = "rdlane"; SW = sregs(ops[0]); R = vregs(ops[1])
        elif mn.startswith("v_permlane"):
            kind = "permlane"; W = vregs(ops[0]) + vregs(ops[1]); R = list(W)
        elif mn.startswith("v_"):
            kind = "trans" if any(mn.startswith(t) for t in TRANS) else "valu"
            W = vregs(ops[0]); R = sum((vregs(o) for o in ops[1:]), []); SRr = sum((sregs(o) for o in ops[1:]), [])
            if mn.startswith("v_fmac") or mn.startswith("v_dot2c") or mn.startswith("v_writelane"): R += W
            if "_dpp" in mn or "row_" in text or "quad_perm" in text: Rdpp = vregs(ops[1]); R += W
            if mn.startswith("v_add_co") or mn.startswith("v_sub_co") or mn.startswith("v_addc_co"):
                SW = sregs(ops[1])
        elif mn.startswith("buffer_load") or mn.startswith("global_load"):
            kind = "vload"
            if " lds" in text: R = vregs(ops[0])
            else: W = vregs(ops[0]); R = vregs(ops[1])
            SRr = sum((sregs(o) for o in ops[1:]), [])
        elif mn.startswith("buffer_store") or mn.startswith("buffer_atomic"):
            kind = "vstore"; R = vregs(ops[0]) + vregs(ops[1]); SRr = sum((sregs(o) for o in ops[2:]), [])
            if mn.startswith("buffer_atomic") and "sc0" in text: W = vregs(ops[0])
        elif mn.startswith("global_store"):
            kind = "vstore"; R = vregs(ops[0]) + vregs(ops[1]); SRr = sum((sregs(o) for o in ops[2:]), [])
        elif mn.startswith("ds_read") or mn.startswith("ds_bpermute") or mn.startswith("ds_swizzle"):
            kind = "ds"; W = vregs(ops[0]); R = sum((vregs(o) for o in ops[1:]), [])
        elif mn.startswith("ds_"):
            kind = "ds"; R = sum((vregs(o) for o in ops), [])
        isvalu = kind in ("valu", "trans", "rdlane", "permlane")
        for r in set(R + W + Rc):
            if r in self.mfma_dst:
                p, t = self.mfma_dst[r]
                if kind == "mfma":
                    if r in R: req(8, p)
                    elif r in Rc:
                        if (Rc[0], Rc[-1]) != t: req(6, p)
                    if r in W and r not in Rc: req(8, p)
                elif kind != "salu": req(8, p)
        if kind == "mfma":
            for r in R + Rc:
                if r in self.vw and self.vw[r][1] in ("valu", "trans"): req(2, self.vw[r][0])
        for r in Rdpp:
            if r in self.vw and self.vw[r][1] in ("valu", "trans"): req(2, self.vw[r][0])
        if kind == "permlane":
            for r in R:
                if r in self.vw and self.vw[r][1] in ("valu", "trans"): req(2, self.vw[r][0])
        if kind == "rdlane":
            for r in R:
                if r in self.vw and self.vw[r][1] in ("valu", "trans"): req(1, self.vw[r][0])
        if kind in ("valu", "permlane", "rdlane", "mfma", "vstore", "ds", "vload"):
            for r in R + Rc:
                if r in self.vw and self.vw[r][1] == "trans": req(1, self.vw[r][0])
        if isvalu:
            for r in W:
                if r in self.mfma_c: req(3, self.mfma_c[r])
                if r in self.st_data: req(2, self.st_data[r])
            for s in SRr:
                if s in self.sw: req(2, self.sw[s])
            if mn.startswith("v_cndmask") and len(ops) == 3 and "vcc" in self.sw: req(2, self.sw["vcc"])
        if kind in ("vload", "ds"):
            for r in W:
                if r in self.st_data: req(1, self.st_data[r])
        if kind in ("vload", "vstore"):
            for s in SRr:
                if s in self.sw: req(5, self.sw[s])
        if need: self.nop(need)
        self.lines.append(text)
        p = self.pos
        if mn == "s_nop": self.pos += int(ops[0]) + 1
        else: self.pos += 1
        for r in W:
            self.mfma_dst.pop(r, None)
            if kind == "mfma":
                self.mfma_dst[r] = (p, (W[0], W[-1])); self.vw[r] = (p, "mfma")
            elif isvalu: self.vw[r] = (p, "trans" if kind == "trans" else "valu")
            else: self.vw[r] = (p, "other")
        if kind == "mfma":
            for r in Rc: self.mfma_c[r] = p
        if kind == "vstore" and ("x4" in mn or "x3" in mn):
            dat = vregs(ops[0]) if mn.startswith("buffer") else vregs(ops[1])
            for r in dat: self.st_data[r] = p
        for s in SW: self.sw[s] = p
        if kind == "salu":
            if mn.startswith("s_") and ops and ops[0]:
                for s in sregs(ops[0]): self.sw.pop(s, None)
            if mn.startswith("s_cbranch") or mn == "s_branch":
                self.snap.setdefault(ops[0], []).append(self._state())
        if kind in ("vload", "vstore"):
            self.nvm += 1
            self.vm.append((tag, self.cond_depth > 0))
    def wait_vm(self, tag, extra=""):
        last = max(i for i, (t, c) in enumerate(self.vm) if t == tag)
        n = sum(1 for (t, c) in self.vm[last + 1:] if (not c) or t == tag)
        n = min(n, 63)
        self("s_waitcnt vmcnt(%d)%s" % (n, extra))
    def wait_vm_idx(self, tag, k):
        idxs = [i for i, (t, c) in enumerate(self.vm) if t == tag]
        last = idxs[k]
        n = sum(1 for (t, c) in self.vm[last + 1:] if (not c) or t == tag)
        n = min(n, 63)
        self("s_waitcnt vmcnt(%d)" % n)
    def text(self):
        return "\n".join(self.lines) + "\n"
```

```python
import sys
from emit import Emit
KNAME = "parallel_sum__gqa_block_cached__dense_activation_silu__decode_kernel"

HEADER = open("parallel_sum__gqa_block_cached__dense_activation_silu__decode.s.ref").read().split("; Override launch geometry")[0]

WS_EPOCH = 0
WS_QP = 0x1000
QP_B = 7680 * 4
QP_KH = 2 * QP_B
WS_ML = 0x20000
WS_OP = 0x40000
WS_AP = 0x200000
WS_STAMP = 0x3F0000
WS_SIZE = 0x400000
L_REDA = 0
L_Q = 4096
L_MX = 6144
L_LS = 6400
L_OL = 6656
L_ORED = 8192
LDS_BYTES = L_ORED + 8 * 4096
V_LANE, V_K, V_V, V_UP, V_DN, V_T, V_ML, V_L, V_AL = 1, 2, 3, 4, 5, 6, 7, 8, 9
T0, T1, T2, T3, T4, T5 = 10, 11, 12, 13, 14, 15
ACC = 16
Q0, Q1 = 48, 52
P = 56
AD = 60
SC = 64
def SLOT(k): return 96 + 32 * k
S_W, S_TYPE, S_IDX, S_T = "s3", "s4", "s5", "s6"
S_LO, S_HI = "s8", "s9"
S_TI = ["s10", "s11", "s12", "s13"]
S_G2 = "s14"
S_CNT = "s15"
R_K, R_V, R_UP, R_DN, R_WS, R_X, R_OUT = "s[40:43]", "s[44:47]", "s[48:51]", "s[52:55]", "s[56:59]", "s[60:63]", "s[64:67]"
S_KV, S_UPB, S_RS, S_DNB = "s68", "s69", "s70", "s71"
S_LOG2E, S_SCALE, S_MASKH, S_HASF, S_HASU = "s82", "s83", "s84", "s85", "s86"
S_N8 = "s[88:89]"
POLL_LIMIT = 1 << 17

def vr(a, n=4): return f"v[{a}:{a+n-1}]"

def gen(INF=8, stamps=False, qpoll_after="K1", dn_pos="last"):
    e = Emit()
    lab = [0]
    def newlab(p):
        lab[0] += 1
        return f"L_{p}_{lab[0]}"
    nstamp = [0]
    def stamp():
        if not stamps: return
        k = nstamp[0]; nstamp[0] += 1
        e("s_memrealtime s[38:39]")
        e("s_waitcnt lgkmcnt(0)")
        e(f"v_writelane_b32 v0, s38, {k}")
    def throttle():
        if INF: e(f"s_waitcnt vmcnt({INF-1})")

    def dpp(op, d, a, b, ctl):
        e(f"{op}_dpp v{d}, v{a}, v{b} {ctl} row_mask:0xf bank_mask:0xf")
    def xlane(op, regs, tmps, steps):
        for st in steps:
            if st[0] == "r":
                for r in regs: dpp(op, r, r, r, f"row_ror:{st[1:]}")
            else:
                for r, t in zip(regs, tmps): e(f"v_mov_b32 v{t}, v{r}")
                for r, t in zip(regs, tmps): e(f"v_permlane{st[1:]}_swap_b32 v{r}, v{t}")
                for r, t in zip(regs, tmps): e(f"{op} v{r}, v{r}, v{t}")
    def tagcheck(g, tmp, first=True, accum=None):
        e(f"v_perm_b32 v{tmp}, v{g+1}, v{g}, {S_G2}")
        e(f"v_perm_b32 v{tmp+1}, v{g+3}, v{g+2}, {S_G2}")
        e(f"v_perm_b32 v{tmp}, v{tmp+1}, v{tmp}, {S_LO}")
        if first: e(f"v_xor_b32 v{accum}, v{tmp}, v{V_T}")
        else:
            e(f"v_xor_b32 v{tmp}, v{tmp}, v{V_T}")
            e(f"v_or_b32 v{accum}, v{accum}, v{tmp}")
    def tagput(dst, srcs):
        for i, s in enumerate(srcs): e(f"v_perm_b32 v{dst+i}, v{s}, v{V_T}, {S_TI[i]}")
    def poll(issue, check, waitfirst, name):
        Lr, Ld, Lx = newlab(name + "_retry"), newlab(name + "_done"), newlab(name + "_exit")
        waitfirst()
        check()
        e(f"v_cmp_ne_u32 vcc, 0, v{T5}")
        e(f"s_cbranch_vccz {Ld}")
        e(f"s_mov_b32 {S_CNT}, 0")
        e("s_mov_b64 s[80:81], exec")
        e.label(Lr)
        e("s_mov_b64 exec, vcc")
        e("s_nop 4")
        e.cond_depth += 1
        issue()
        e.cond_depth -= 1
        e("s_waitcnt vmcnt(0)")
        check()
        e(f"s_add_u32 {S_CNT}, {S_CNT}, 1")
        e(f"s_cmp_gt_u32 {S_CNT}, {POLL_LIMIT}")
        e(f"s_cbranch_scc1 {Lx}")
        e(f"v_cmp_ne_u32 vcc, 0, v{T5}")
        e(f"s_cbranch_vccnz {Lr}")
        e.label(Lx)
        e("s_mov_b64 exec, s[80:81]")
        e.label(Ld)

    e("s_cmp_ge_u32 s2, 256")
    e("s_cbranch_scc1 L_end")
    e("s_load_dwordx16 s[16:31], s[0:1], 0")
    e("s_load_dwordx4 s[32:35], s[0:1], 64")
    e("s_load_dwordx2 s[36:37], s[0:1], 80")
    e(f"v_lshrrev_b32 v{T0}, 6, v0")
    e(f"v_and_b32 v{V_LANE}, 63, v0")
    e(f"v_readfirstlane_b32 {S_W}, v{T0}")
    if stamps: e("v_mov_b32 v0, 0")
    stamp_first = True
    e(f"s_lshr_b32 {S_TYPE}, s2, 3"); e(f"s_and_b32 {S_TYPE}, {S_TYPE}, 1")
    e(f"s_lshr_b32 {S_IDX}, s2, 4"); e(f"s_lshl_b32 {S_IDX}, {S_IDX}, 3"); e("s_and_b32 s7, s2, 7"); e(f"s_or_b32 {S_IDX}, {S_IDX}, s7")
    e(f"s_mov_b32 {S_LO}, 0x05040100"); e(f"s_mov_b32 {S_HI}, 0x07060302")
    for i in range(4): e(f"s_mov_b32 {S_TI[i]}, 0x{0x07060500 + i:08x}")
    e(f"s_mov_b32 {S_G2}, 0x0c0c0400")
    e(f"s_mov_b32 {S_LOG2E}, 0x3fb8aa3b"); e(f"s_mov_b32 {S_SCALE}, 0x3db504f3"); e(f"s_mov_b32 {S_MASKH}, 0xffff0000")
    e("s_mov_b32 s88, 0x00ff00ff"); e("s_mov_b32 s89, 0x00ff00ff")
    e(f"v_lshlrev_b32 v{V_V}, 4, v{V_LANE}")
    e(f"v_bfe_u32 v{T0}, v{V_LANE}, 1, 1"); e(f"v_bfe_u32 v{T1}, v{V_LANE}, 2, 2")
    e(f"v_lshl_add_u32 v{T0}, v{T0}, 2, v{T1}"); e(f"v_lshlrev_b32 v{V_K}, 8, v{T0}")
    e(f"v_lshrrev_b32 v{T1}, 4, v{V_LANE}"); e(f"v_lshl_add_u32 v{V_K}, v{T1}, 5, v{V_K}")
    e(f"v_and_b32 v{T1}, 1, v{V_LANE}"); e(f"v_lshl_add_u32 v{V_K}, v{T1}, 4, v{V_K}")
    e(f"s_lshl_b32 {S_KV}, s2, 18"); e(f"s_lshl_b32 s7, {S_W}, 12"); e(f"s_add_u32 {S_KV}, {S_KV}, s7")
    e(f"s_cmp_eq_u32 {S_TYPE}, 1")
    e(f"s_cselect_b32 {S_RS}, 8, 7"); e(f"s_lshl_b32 {S_RS}, {S_RS}, 10")
    e(f"s_and_b32 s7, {S_IDX}, 1"); e("s_lshl_b32 s7, s7, 9"); e(f"s_lshl_b32 s72, {S_W}, 6"); e("s_add_u32 s72, s72, s7")
    e(f"s_mul_i32 {S_UPB}, s72, {S_RS}"); e(f"s_lshr_b32 s7, {S_IDX}, 1"); e("s_lshl_b32 s7, s7, 7"); e(f"s_add_u32 {S_UPB}, {S_UPB}, s7")
    e(f"s_lshl_b32 s73, {S_RS}, 3")
    e(f"v_lshrrev_b32 v{T0}, 3, v{V_LANE}"); e(f"v_mul_lo_u32 v{V_UP}, v{T0}, s73")
    e(f"v_and_b32 v{T1}, 7, v{V_LANE}"); e(f"v_lshl_add_u32 v{V_UP}, v{T1}, 4, v{V_UP}")
    e(f"v_lshlrev_b32 v{T2}, 4, v{T0}"); e("s_lshl_b32 s7, s72, 1"); e(f"v_add_u32 v{T2}, s7, v{T2}")
    e(f"v_lshlrev_b32 v{T3}, 5, v{V_LANE}")
    e(f"s_cmp_lt_u32 {S_IDX}, 112"); e("s_cselect_b32 s7, 1, 0")
    e(f"s_and_b32 {S_HASF}, s7, {S_TYPE}")
    e(f"s_or_b32 {S_HASU}, s7, {S_TYPE}")
    e(f"s_lshl_b32 {S_DNB}, {S_IDX}, 16"); e(f"s_lshl_b32 s7, {S_W}, 8"); e(f"s_add_u32 {S_DNB}, {S_DNB}, s7")
    e(f"s_cmp_eq_u32 {S_TYPE}, 1"); e("s_cselect_b32 s7, 14, 12")
    e(f"v_lshrrev_b32 v{T0}, 4, v{V_LANE}"); e(f"v_lshlrev_b32 v{V_DN}, s7, v{T0}")
    e(f"v_and_b32 v{T1}, 15, v{V_LANE}"); e(f"v_lshl_add_u32 v{V_DN}, v{T1}, 4, v{V_DN}")
    e("s_waitcnt lgkmcnt(0)")
    e("s_load_dword s6, s[36:37], 0")
    def srd(base, lo, hi, n):
        e(f"s_mov_b32 s{base}, {lo}"); e(f"s_mov_b32 s{base+1}, {hi}"); e(f"s_mov_b32 s{base+2}, {n}"); e(f"s_mov_b32 s{base+3}, 0x00020000")
    srd(60, "s16", "s17", 4096)
    XF, XR = SC, SC + 16
    for b in range(2):
        for hf in range(2):
            e(f"buffer_load_dwordx4 {vr(XF+8*b+4*hf)}, v{T3}, {R_X}, 0 offen offset:{b*2048+hf*16}", tag="xf")
    for b in range(2):
        e(f"buffer_load_dwordx4 {vr(XR+4*b)}, v{T2}, {R_X}, 0 offen offset:{b*2048}", tag="xr")
    e(f"s_cmp_eq_u32 {S_TYPE}, 1")
    e("s_cselect_b32 s48, s22, s28"); e("s_cselect_b32 s49, s23, s29"); e("s_cselect_b32 s50, 8, 7"); e("s_lshl_b32 s50, s50, 20")
    e("s_mov_b32 s51, 0x00020000")
    e(f"s_cmp_eq_u32 {S_HASU}, 0"); e("s_cselect_b32 s50, 0, s50")
    UPS = SLOT(4)
    e(f"s_mov_b32 s72, {S_UPB}")
    for i in range(8):
        e(f"buffer_load_dwordx4 {vr(UPS+4*i)}, v{V_UP}, {R_UP}, s72 offen nt", tag="up")
        if i < 7: e(f"s_add_u32 s72, s72, {S_RS}")
    srd(40, "s18", "s19", 64 << 20)
    srd(44, "s20", "s21", 64 << 20)
    srd(56, "s36", "s37", WS_SIZE)
    srd(64, "s32", "s33", 4096)
    e(f"s_cmp_eq_u32 {S_TYPE}, 1")
    e("s_cselect_b32 s52, s30, s24"); e("s_cselect_b32 s53, s31, s25"); e("s_cselect_b32 s54, 7, 8"); e("s_lshl_b32 s54, s54, 20")
    e("s_mov_b32 s55, 0x00020000")

    def kload(u, slot, i, thr=True):
        beta, t = i >> 1, i & 1
        if i % 4 == 0: e(f"s_add_u32 s74, {S_KV}, {(2*u + (beta >> 1)) * 32768}")
        if thr: throttle()
        e(f"buffer_load_dwordx4 {vr(SLOT(slot)+4*i)}, v{V_K}, {R_K}, s74 offen offset:{(beta&1)*2048 + t*128} nt", tag=f"k{u}")
    def vload(u, slot, j, thr=True):
        if j % 4 == 0: e(f"s_add_u32 s75, {S_KV}, {(2*u + (j >> 2)) * 32768}")
        if thr: throttle()
        e(f"buffer_load_dwordx4 {vr(SLOT(slot)+4*j)}, v{V_V}, {R_V}, s75 offen offset:{(j&3)*1024} nt", tag=f"v{u}")
    def issueK(u, slot, thr=True):
        for i in range(8): kload(u, slot, i, thr)
    def issueV(u, slot, thr=True):
        for j in range(8): vload(u, slot, j, thr)
    def issueDN(slot):
        for jj in range(8):
            e(f"s_cmp_eq_u32 {S_TYPE}, 1")
            e(f"s_cselect_b32 s76, {jj}, {(8*(jj&3) + (jj>>2))}")
            e("s_lshl_b32 s76, s76, 11")
            e(f"s_add_u32 s76, s76, {S_DNB}")
            throttle()
            e(f"buffer_load_dwordx4 {vr(SLOT(slot)+4*jj)}, v{V_DN}, {R_DN}, s76 offen nt", tag="dn")

    stamp()
    U = SLOT(3)
    e.wait_vm("xf")
    for b in range(2):
        for d in range(8):
            e(f"v_lshlrev_b32 v{U+16*b+2*d}, 16, v{XF+8*b+d}")
            e(f"v_and_b32 v{U+16*b+2*d+1}, {S_MASKH}, v{XF+8*b+d}")
    issueK(0, 0, thr=False)
    SUM = [T0, T1]; TMP = [T2, T3]
    for b in range(2): e(f"v_add_f32 v{SUM[b]}, v{U+16*b}, v{U+16*b+1}")
    for i in range(2, 16):
        for b in range(2): e(f"v_add_f32 v{SUM[b]}, v{SUM[b]}, v{U+16*b+i}")
    xlane("v_add_f32", SUM, TMP, ["r8", "r4", "r2", "r1", "p16", "p32"])
    for b in range(2): e(f"v_mul_f32 v{SUM[b]}, 0x3a800000, v{SUM[b]}")
    VAR = [T4, T5]
    for i in range(16):
        for b in range(2): e(f"v_sub_f32 v{U+16*b+i}, v{U+16*b+i}, v{SUM[b]}")
    for b in range(2): e(f"v_mul_f32 v{VAR[b]}, v{U+16*b}, v{U+16*b}")
    for i in range(1, 16):
        for b in range(2): e(f"v_fmac_f32 v{VAR[b]}, v{U+16*b+i}, v{U+16*b+i}")
    xlane("v_add_f32", VAR, TMP, ["r8", "r4", "r2", "r1", "p16", "p32"])
    for b in range(2): e(f"v_mul_f32 v{VAR[b]}, 0x3a800000, v{VAR[b]}")
    def rnd2(a, b_, tmp):
        e(f"v_cvt_pk_bf16_f32 v{tmp}, v{a}, v{b_}")
        e(f"v_lshlrev_b32 v{a}, 16, v{tmp}")
        e(f"v_and_b32 v{b_}, {S_MASKH}, v{tmp}")
    rnd2(SUM[0], SUM[1], T2)
    rnd2(VAR[0], VAR[1], T3)
    for b in range(2): e(f"v_add_f32 v{VAR[b]}, 0x3727c5ac, v{VAR[b]}")
    rnd2(VAR[0], VAR[1], T3)
    for b in range(2): e(f"v_sqrt_f32 v{VAR[b]}, v{VAR[b]}")
    rnd2(VAR[0], VAR[1], T3)
    for b in range(2): e(f"v_rcp_f32 v{VAR[b]}, v{VAR[b]}")
    XN = ACC + 16
    e.wait_vm("xr")
    for b in range(2):
        for d in range(4):
            e(f"v_lshlrev_b32 v{XN+8*b+2*d}, 16, v{XR+4*b+d}")
            e(f"v_and_b32 v{XN+8*b+2*d+1}, {S_MASKH}, v{XR+4*b+d}")
        for i in range(8): e(f"v_sub_f32 v{XN+8*b+i}, v{XN+8*b+i}, v{SUM[b]}")
        for d in range(4): rnd2(XN+8*b+2*d, XN+8*b+2*d+1, U+d)
        for i in range(8): e(f"v_mul_f32 v{XN+8*b+i}, v{XN+8*b+i}, v{VAR[b]}")
        for d in range(4): rnd2(XN+8*b+2*d, XN+8*b+2*d+1, U+d)
    e("s_waitcnt lgkmcnt(0)")
    e(f"s_mul_i32 {S_T}, {S_T}, 1664525"); e(f"s_add_u32 {S_T}, {S_T}, 1013904223")
    e(f"v_mov_b32 v{V_T}, {S_T}")
    stamp()
    for i in range(8):
        e.wait_vm_idx("up", i)
        for d in range(4):
            e(f"v_lshlrev_b32 v{U+2*d}, 16, v{UPS+4*i+d}")
            e(f"v_and_b32 v{U+2*d+1}, {S_MASKH}, v{UPS+4*i+d}")
        for b in range(2):
            for c in range(8):
                if i == 0: e(f"v_mul_f32 v{ACC+8*b+c}, v{U+c}, v{XN+8*b+i}")
                else: e(f"v_fmac_f32 v{ACC+8*b+c}, v{U+c}, v{XN+8*b+i}")
    stamp()
    issueV(0, 1)
    for c in range(8): e(f"v_permlane32_swap_b32 v{ACC+c}, v{ACC+8+c}")
    for c in range(8): e(f"v_add_f32 v{ACC+c}, v{ACC+c}, v{ACC+8+c}")
    for c in range(4): e(f"v_permlane16_swap_b32 v{ACC+c}, v{ACC+4+c}")
    for c in range(4): e(f"v_add_f32 v{ACC+c}, v{ACC+c}, v{ACC+4+c}")
    for c in range(4): dpp("v_add_f32", ACC+c, ACC+c, ACC+c, "row_ror:8")
    e(f"v_lshrrev_b32 v{T0}, 5, v{V_LANE}"); e(f"v_lshlrev_b32 v{T0}, 8, v{T0}")
    e(f"v_and_b32 v{T1}, 7, v{V_LANE}"); e(f"v_lshl_add_u32 v{T0}, v{T1}, 5, v{T0}")
    e(f"v_and_b32 v{T1}, 16, v{V_LANE}"); e(f"v_add_u32 v{T0}, v{T0}, v{T1}")
    e(f"s_lshl_b32 s7, {S_W}, 9"); e(f"v_add_u32 v{T0}, s7, v{T0}")
    e(f"ds_write_b128 v{T0}, {vr(ACC)} offset:{L_REDA}")
    e("s_waitcnt lgkmcnt(0)")
    e("s_barrier")
    Lskip = newlab("pubA")
    e(f"s_cmp_lg_u32 {S_W}, 0"); e(f"s_cbranch_scc1 {Lskip}")
    e(f"s_cmp_eq_u32 {S_HASU}, 0"); e(f"s_cbranch_scc1 {Lskip}")
    e.cond_depth += 1
    e("s_mov_b32 exec_hi, 0")
    for w in range(8): e(f"ds_read_b128 {vr(U+4*w)}, v{V_V} offset:{L_REDA + w*512}")
    e(f"v_lshrrev_b32 v{T0}, 4, v{V_LANE}"); e(f"v_mul_u32_u24 v{T0}, {QP_B}, v{T0}")
    e(f"v_and_b32 v{T1}, 15, v{V_LANE}"); e(f"v_lshl_add_u32 v{T0}, v{T1}, 4, v{T0}")
    e(f"s_and_b32 s7, {S_IDX}, 1"); e(f"s_mul_i32 s7, s7, {QP_KH}")
    e(f"s_lshr_b32 s72, {S_IDX}, 1"); e("s_lshl_b32 s72, s72, 8"); e("s_add_u32 s7, s7, s72")
    e(f"s_cmp_eq_u32 {S_TYPE}, 1"); e(f"s_cselect_b32 s72, 0, {4096*4}"); e("s_add_u32 s7, s7, s72"); e(f"s_add_u32 s7, s7, {WS_QP}")
    e("s_waitcnt lgkmcnt(0)")
    for w in range(1, 8):
        for c in range(4): e(f"v_add_f32 v{U+c}, v{U+c}, v{U+4*w+c}")
    tagput(U+4, [U, U+1, U+2, U+3])
    e(f"buffer_store_dwordx4 {vr(U+4)}, v{T0}, {R_WS}, s7 offen sc1", tag="pubA")
    e("s_mov_b64 exec, -1")
    e.cond_depth -= 1
    e.label(Lskip)
    stamp()
    issueK(1, 2)
    QG = SC
    HG = SC + 4
    VQ, VH = Q0, Q0 + 1
    e(f"v_lshrrev_b32 v{VQ}, 5, v{V_LANE}"); e(f"v_mul_u32_u24 v{VQ}, {QP_KH}, v{VQ}")
    e(f"v_and_b32 v{T1}, 31, v{V_LANE}"); e(f"v_lshl_add_u32 v{VQ}, v{T1}, 4, v{VQ}")
    e("s_lshr_b32 s77, s2, 7"); e(f"s_mul_i32 s77, s77, {QP_B}")
    e("s_lshr_b32 s7, s2, 5"); e("s_and_b32 s7, s7, 3"); e("s_lshl_b32 s7, s7, 12"); e("s_add_u32 s77, s77, s7")
    e(f"s_lshl_b32 s7, {S_W}, 9"); e("s_add_u32 s77, s77, s7"); e(f"s_add_u32 s77, s77, {WS_QP}")
    e(f"v_and_b32 v{VH}, 1, v{V_LANE}"); e(f"v_mul_u32_u24 v{VH}, {QP_B}, v{VH}")
    e(f"v_lshrrev_b32 v{T1}, 4, v{V_LANE}"); e(f"v_lshl_add_u32 v{VH}, v{T1}, 5, v{VH}")
    e(f"s_lshl_b32 s78, {S_IDX}, 7"); e(f"s_add_u32 s78, s78, {WS_QP + 4096*4}"); e(f"s_add_u32 s79, s78, {QP_KH}")
    def q_issue(): e(f"buffer_load_dwordx4 {vr(QG)}, v{VQ}, {R_WS}, s77 offen sc1", tag="qp")
    def q_check(): tagcheck(QG, T3, True, T5)
    def h_issue():
        for kh in range(2):
            for gi in range(2):
                e(f"buffer_load_dwordx4 {vr(HG+8*kh+4*gi)}, v{VH}, {R_WS}, s{78+kh} offen offset:{gi*16} sc1", tag="hp")
    def h_check():
        for k in range(4): tagcheck(HG+4*k, T3, k == 0, T5)
    q_issue()
    Lh = newlab("noh")
    e(f"s_cmp_eq_u32 {S_HASF}, 0"); e(f"s_cbranch_scc1 {Lh}")
    e.cond_depth += 1; h_issue(); e.cond_depth -= 1
    e.label(Lh)
    issueV(1, 3)
    poll(q_issue, q_check, lambda: e.wait_vm("qp"), "q")
    stamp()
    xlane("v_add_f32", [QG, QG+1, QG+2, QG+3], [T0, T1, T2, T3], ["p32"])
    e(f"v_cvt_pk_bf16_f32 v{QG}, v{QG}, v{QG+1}")
    e(f"v_cvt_pk_bf16_f32 v{QG+1}, v{QG+2}, v{QG+3}")
    e(f"v_and_b32 v{T0}, 31, v{V_LANE}"); e(f"v_lshlrev_b32 v{T0}, 3, v{T0}")
    e(f"s_lshl_b32 s7, {S_W}, 8"); e(f"v_add_u32 v{T0}, s7, v{T0}")
    e(f"ds_write_b64 v{T0}, {vr(QG,2)} offset:{L_Q}")
    Lh = newlab("noh2")
    e(f"s_cmp_eq_u32 {S_HASF}, 0"); e(f"s_cbranch_scc1 {Lh}")
    e.cond_depth += 1
    poll(h_issue, h_check, lambda: e.wait_vm("hp"), "h")
    for i in range(8): e(f"v_add_f32 v{HG+i}, v{HG+i}, v{HG+8+i}")
    for d in range(4): rnd2(HG+2*d, HG+2*d+1, HG+8+d)
    for i in range(8): e(f"v_mul_f32 v{HG+8+i}, {S_LOG2E}, v{HG+i}")
    for i in range(8): e(f"v_exp_f32 v{HG+8+i}, -v{HG+8+i}")
    for i in range(8): e(f"v_add_f32 v{HG+8+i}, 1.0, v{HG+8+i}")
    for i in range(8): e(f"v_rcp_f32 v{HG+8+i}, v{HG+8+i}")
    for i in range(8): e(f"v_mul_f32 v{HG+i}, v{HG+i}, v{HG+8+i}")
    for d in range(4): e(f"v_cvt_pk_bf16_f32 v{AD+d}, v{HG+2*d}, v{HG+2*d+1}")
    e.cond_depth -= 1
    e.label(Lh)
    e(f"v_and_b32 v{T0}, 7, v{V_LANE}"); e(f"v_lshlrev_b32 v{T0}, 8, v{T0}")
    e(f"v_lshrrev_b32 v{T1}, 4, v{V_LANE}"); e(f"v_lshl_add_u32 v{T0}, v{T1}, 5, v{T0}")
    e(f"v_bfe_u32 v{T1}, v{V_LANE}, 3, 1"); e(f"v_lshl_add_u32 v{T0}, v{T1}, 4, v{T0}")
    e("s_waitcnt lgkmcnt(0)")
    e("s_barrier")
    e(f"ds_read_b128 {vr(Q0)}, v{T0} offset:{L_Q}")
    e(f"ds_read_b128 {vr(Q1)}, v{T0} offset:{L_Q+128}")
    stamp()

    def S_phase(u, slot, last=False):
        K = SLOT(slot)
        e.wait_vm(f"k{u}", " lgkmcnt(0)" if u == 0 else "")
        for t in range(2):
            for beta in range(4):
                c = "0" if t == 0 else vr(SC+4*beta)
                e(f"v_mfma_f32_16x16x32_bf16 {vr(SC+4*beta)}, {vr(K+8*beta+4*t)}, {vr(Q0 if t == 0 else Q1)}, {c}")
        S = SC + 16
        for beta in range(4):
            for eps in range(2):
                dpp("v_add_f32", S+2*beta+eps, SC+4*beta+2*eps+1, SC+4*beta+2*eps, "row_ror:8")
        for d in range(4): rnd2(S+2*d, S+2*d+1, SC+24+d)
        for i in range(8): e(f"v_mul_f32 v{S+i}, {S_SCALE}, v{S+i}")
        for d in range(4): rnd2(S+2*d, S+2*d+1, SC+24+d)
        e(f"v_max3_f32 v{T0}, v{S}, v{S+1}, v{S+2}")
        e(f"v_max3_f32 v{T1}, v{S+3}, v{S+4}, v{S+5}")
        e(f"v_max3_f32 v{T0}, v{T0}, v{S+6}, v{S+7}")
        e(f"v_max_f32 v{T0}, v{T0}, v{T1}")
        xlane("v_max_f32", [T0], [T1], ["p16", "p32"])
        e(f"v_mul_f32 v{T0}, {S_LOG2E}, v{T0}")
        if u > 0: e(f"v_max_f32 v{T0}, v{T0}, v{V_ML}")
        if last:
            e(f"v_lshlrev_b32 v{T1}, 5, v{V_LANE}"); e(f"s_lshl_b32 s7, {S_W}, 2"); e(f"v_add_u32 v{T1}, s7, v{T1}")
            e("s_mov_b64 exec, 0xff")
            e(f"ds_write_b32 v{T1}, v{T0} offset:{L_MX}")
            e("s_mov_b64 exec, -1")
            e(f"v_and_b32 v{T1}, 7, v{V_LANE}"); e(f"v_lshlrev_b32 v{T1}, 5, v{T1}")
            e("s_waitcnt lgkmcnt(0)")
            e("s_barrier")
            e(f"ds_read_b128 {vr(SC)}, v{T1} offset:{L_MX}")
            e(f"ds_read_b128 {vr(SC+4)}, v{T1} offset:{L_MX+16}")
            e("s_waitcnt lgkmcnt(0)")
            e(f"v_max3_f32 v{T0}, v{SC}, v{SC+1}, v{SC+2}")
            e(f"v_max3_f32 v{T1}, v{SC+3}, v{SC+4}, v{SC+5}")
            e(f"v_max3_f32 v{T0}, v{T0}, v{SC+6}, v{SC+7}")
            e(f"v_max_f32 v{T0}, v{T0}, v{T1}")
        if u > 0:
            e(f"v_sub_f32 v{V_AL}, v{V_ML}, v{T0}")
            e(f"v_exp_f32 v{V_AL}, v{V_AL}")
        e(f"v_mov_b32 v{V_ML}, v{T0}")
        for i in range(8): e(f"v_fma_f32 v{S+i}, v{S+i}, {S_LOG2E}, -v{T0}")
        for i in range(8): e(f"v_exp_f32 v{S+i}, v{S+i}")
        if u > 0:
            e(f"v_mul_f32 v{V_L}, v{V_L}, v{V_AL}")
            for i in range(32): e(f"v_mul_f32 v{ACC+i}, v{ACC+i}, v{V_AL}")
        for d in range(4): e(f"v_cvt_pk_bf16_f32 v{P+d}, v{S+2*d}, v{S+2*d+1}")
        if u == 0: e(f"v_add_f32 v{V_L}, v{S}, v{S+1}")
        else:
            e(f"v_add_f32 v{V_L}, v{V_L}, v{S}"); e(f"v_add_f32 v{V_L}, v{V_L}, v{S+1}")
        for i in range(2, 8): e(f"v_add_f32 v{V_L}, v{V_L}, v{S+i}")
    def perms(src, dst, tag):
        for p in range(4):
            e.wait_vm_idx(tag, 2*p+1)
            for d in range(4):
                for x in range(2):
                    e(f"v_perm_b32 v{dst+4*(2*d+x)+p}, v{src+4*(2*p+1)+d}, v{src+4*(2*p)+d}, {S_HI if x else S_LO}")
    def PV_phase(u, slot):
        perms(SLOT(slot), SC, f"v{u}")
        for ee in range(8):
            c = "0" if u == 0 else vr(ACC+4*ee)
            e(f"v_mfma_f32_16x16x32_bf16 {vr(ACC+4*ee)}, {vr(SC+4*ee)}, {vr(P)}, {c}")

    issueK(2, 4)
    S_phase(0, 0)
    issueV(2, 0)
    PV_phase(0, 1)
    issueK(3, 1)
    S_phase(1, 2)
    issueV(3, 2)
    PV_phase(1, 3)
    issueDN(3)
    stamp()
    S_phase(2, 4)
    PV_phase(2, 0)
    S_phase(3, 1, last=True)
    stamp()
    xlane("v_add_f32", [V_L], [T1], ["p16", "p32"])
    e(f"v_lshlrev_b32 v{T1}, 5, v{V_LANE}"); e(f"s_lshl_b32 s7, {S_W}, 2"); e(f"v_add_u32 v{T1}, s7, v{T1}")
    e("s_mov_b64 exec, 0xff")
    e(f"ds_write_b32 v{T1}, v{V_L} offset:{L_LS}")
    e("s_mov_b64 exec, -1")
    WA = SLOT(4)
    e(f"v_and_b32 v{T0}, 15, v{V_LANE}"); e(f"v_mul_u32_u24 v{WA}, {512+16}, v{T0}")
    e(f"v_lshrrev_b32 v{T1}, 4, v{V_LANE}"); e(f"v_lshl_add_u32 v{WA}, v{T1}, 7, v{WA}")
    e(f"s_lshl_b32 s7, {S_W}, 12"); e(f"v_add_u32 v{WA}, s7, v{WA}")
    for ee in range(1, 8): e(f"v_xor_b32 v{WA+ee}, {ee*16}, v{WA}")
    RA, GA = WA + 8, WA + 9
    e(f"s_lshl_b32 s7, {S_W}, 6"); e(f"v_add_u32 v{T0}, s7, v{V_LANE}")
    e(f"v_lshlrev_b32 v{GA}, 4, v{T0}")
    e(f"v_lshrrev_b32 v{T1}, 5, v{T0}"); e(f"v_and_b32 v{T1}, 7, v{T1}"); e(f"v_lshlrev_b32 v{T1}, 4, v{T1}")
    e(f"v_xor_b32 v{RA}, v{GA}, v{T1}")
    e("s_lshl_b32 s72, s2, 12"); e(f"s_add_u32 s72, s72, {WS_OP}")
    e("s_lshl_b32 s73, s2, 7"); e(f"s_add_u32 s73, s73, {WS_ML}")
    PV_phase(3, 2)
    stamp()
    e(f"s_mov_b64 exec, {S_N8}")
    for ee in range(8): e(f"ds_write_b128 v{WA+ee}, {vr(ACC+4*ee)} offset:{L_ORED}")
    e("s_mov_b64 exec, -1")
    e("s_waitcnt lgkmcnt(0)")
    e("s_barrier")
    L4, Lp = newlab("w4"), newlab("pubdone")
    e(f"s_cmp_ge_u32 {S_W}, 4"); e(f"s_cbranch_scc1 {L4}")
    e.cond_depth += 1
    for w in range(8): e(f"ds_read_b128 {vr(ACC+4*w)}, v{RA} offset:{L_ORED + w*4096}")
    for w in range(1, 8):
        e(f"s_waitcnt lgkmcnt({7-w})")
        for c in range(4): e(f"v_add_f32 v{ACC+c}, v{ACC+c}, v{ACC+4*w+c}")
    tagput(ACC+4, [ACC, ACC+1, ACC+2, ACC+3])
    e(f"buffer_store_dwordx4 {vr(ACC+4)}, v{GA}, {R_WS}, s72 offen sc1", tag="pubO")
    e(f"s_branch {Lp}")
    e.label(L4)
    e(f"s_cmp_lg_u32 {S_W}, 4"); e(f"s_cbranch_scc1 {Lp}")
    e("s_mov_b64 exec, 0xff")
    e(f"v_lshlrev_b32 v{T1}, 5, v{V_LANE}")
    e(f"ds_read_b128 {vr(ACC)}, v{T1} offset:{L_LS}")
    e(f"ds_read_b128 {vr(ACC+4)}, v{T1} offset:{L_LS+16}")
    e("s_waitcnt lgkmcnt(0)")
    for c in range(1, 8): e(f"v_add_f32 v{ACC}, v{ACC}, v{ACC+c}")
    e(f"v_mov_b32 v{ACC+8}, v{V_ML}"); e(f"v_mov_b32 v{ACC+9}, v{ACC}"); e(f"v_mov_b32 v{ACC+10}, v{V_T}"); e(f"v_mov_b32 v{ACC+11}, v{V_T}")
    e(f"buffer_store_dwordx4 {vr(ACC+8)}, v{V_V}, {R_WS}, s73 offen sc1", tag="pubML")
    e("s_mov_b64 exec, -1")
    e.cond_depth -= 1
    e.label(Lp)
    stamp()
    OG, MG = ACC + 16, ACC + 20
    VO, VM = WA + 10, WA + 11
    LF = newlab("ftype")
    Ldown = newlab("down")
    e(f"s_cmp_eq_u32 {S_TYPE}, 1"); e(f"s_cbranch_scc1 {LF}")
    e.cond_depth += 1
    e(f"v_lshrrev_b32 v{T0}, 5, v{V_LANE}"); e(f"v_and_b32 v{T1}, 31, v{V_LANE}"); e(f"v_lshl_add_u32 v{T0}, v{T0}, 7, v{T1}")
    e(f"v_lshlrev_b32 v{VO}, 12, v{T0}"); e(f"v_lshlrev_b32 v{VM}, 7, v{T0}")
    e(f"s_lshr_b32 s7, {S_IDX}, 5"); e("s_lshl_b32 s72, s7, 17"); e("s_lshl_b32 s73, s7, 12")
    e(f"s_and_b32 s7, {S_IDX}, 31"); e("s_lshl_b32 s7, s7, 7"); e("s_add_u32 s72, s72, s7")
    e(f"s_lshl_b32 s7, {S_W}, 4"); e("s_add_u32 s72, s72, s7"); e(f"s_add_u32 s72, s72, {WS_OP}")
    e(f"s_lshr_b32 s7, {S_IDX}, 2"); e("s_and_b32 s7, s7, 7"); e("s_lshl_b32 s7, s7, 4"); e("s_add_u32 s73, s73, s7"); e(f"s_add_u32 s73, s73, {WS_ML}")
    def o_issue():
        e(f"buffer_load_dwordx4 {vr(OG)}, v{VO}, {R_WS}, s72 offen sc1", tag="og")
        e(f"buffer_load_dwordx4 {vr(MG)}, v{VM}, {R_WS}, s73 offen sc1", tag="og")
    def o_check():
        tagcheck(OG, T3, True, T5)
        e(f"v_xor_b32 v{T3}, v{MG+2}, v{V_T}"); e(f"v_xor_b32 v{T4}, v{MG+3}, v{V_T}")
        e(f"v_or3_b32 v{T5}, v{T5}, v{T3}, v{T4}")
    o_issue()
    e("s_waitcnt vmcnt(2)")
    for p in range(4):
        for d in range(4):
            for x in range(2):
                e(f"v_perm_b32 v{SC+4*(2*d+x)+p}, v{SLOT(3)+4*(2*p+1)+d}, v{SLOT(3)+4*(2*p)+d}, {S_HI if x else S_LO}")
    poll(o_issue, o_check, lambda: e("s_waitcnt vmcnt(0)"), "o")
    stamp()
    e(f"v_mov_b32 v{T0}, v{MG}")
    xlane("v_max_f32", [T0], [T1], ["r8", "r4", "r2", "r1", "p16"])
    e(f"v_sub_f32 v{T0}, v{MG}, v{T0}"); e(f"v_exp_f32 v{T0}, v{T0}")
    for c in range(4): e(f"v_mul_f32 v{OG+c}, v{OG+c}, v{T0}")
    e(f"v_mul_f32 v{MG+1}, v{MG+1}, v{T0}")
    xlane("v_add_f32", [OG, OG+1, OG+2, OG+3, MG+1], [T0, T1, T2, T3, T4], ["r8", "r4", "r2", "r1", "p16"])
    e(f"v_rcp_f32 v{MG+1}, v{MG+1}")
    for c in range(4): e(f"v_mul_f32 v{OG+c}, v{OG+c}, v{MG+1}")
    e(f"v_cvt_pk_bf16_f32 v{OG}, v{OG}, v{OG+1}"); e(f"v_cvt_pk_bf16_f32 v{OG+1}, v{OG+2}, v{OG+3}")
    e(f"v_lshlrev_b32 v{T0}, 1, v{V_LANE}"); e(f"s_lshl_b32 s7, {S_W}, 3"); e(f"v_add_u32 v{T0}, s7, v{T0}")
    e("s_mov_b32 exec_lo, 1"); e("s_mov_b32 exec_hi, 1")
    e(f"ds_write_b64 v{T0}, {vr(OG,2)} offset:{L_OL}")
    e("s_mov_b64 exec, -1")
    e(f"v_and_b32 v{T0}, 1, v{V_LANE}"); e(f"v_lshlrev_b32 v{T0}, 6, v{T0}")
    e(f"v_and_b32 v{T1}, 48, v{V_LANE}"); e(f"v_add_u32 v{T0}, v{T0}, v{T1}")
    e("s_waitcnt lgkmcnt(0)")
    e("s_barrier")
    e(f"ds_read_b128 {vr(AD)}, v{T0} offset:{L_OL}")
    e(f"s_lshl_b32 s72, {S_IDX}, 13")
    e("s_waitcnt lgkmcnt(0)")
    e(f"s_branch {Ldown}")
    e.label(LF)
    Lfin = newlab("fin")
    e(f"s_cmp_eq_u32 {S_HASF}, 0"); e(f"s_cbranch_scc1 {Lfin}")
    e("s_waitcnt vmcnt(0)")
    for p in range(4):
        for d in range(4):
            for x in range(2):
                e(f"v_perm_b32 v{SC+4*(2*d+x)+p}, v{SLOT(3)+4*(2*p+1)+d}, v{SLOT(3)+4*(2*p)+d}, {S_HI if x else S_LO}")
    e(f"s_lshl_b32 s72, {S_IDX}, 13"); e(f"s_add_u32 s72, s72, {128*8192}")
    e.label(Ldown)
    for ee in range(8):
        e(f"v_mfma_f32_16x16x32_bf16 {vr(ACC+4*ee)}, {vr(AD)}, {vr(SC+4*ee)}, 0")
    e(f"s_lshl_b32 s7, {S_W}, 10"); e("s_add_u32 s72, s72, s7"); e(f"s_add_u32 s72, s72, {WS_AP}")
    e("s_mov_b64 exec, 0xffff")
    ST = SLOT(0)
    for q4 in range(4):
        b, eh = q4 >> 1, q4 & 1
        tagput(ST+4*q4, [ACC+4*(4*eh+i)+b for i in range(4)])
        e(f"buffer_store_dwordx4 {vr(ST+4*q4)}, v{V_V}, {R_WS}, s72 offen offset:{q4*256} sc1", tag="pubD")
    e("s_mov_b64 exec, -1")
    stamp()
    e(f"s_cmp_eq_u32 {S_TYPE}, 0"); e("s_cbranch_scc1 L_fini")
    e.label(Lfin)
    e(f"s_cmp_lg_u32 {S_W}, 0"); e("s_cbranch_scc1 L_fini")
    VA, VX = T0, T1
    G = SLOT(1)
    XQ = AD
    e(f"v_lshrrev_b32 v{VA}, 2, v{V_LANE}"); e(f"v_lshlrev_b32 v{VA}, 13, v{VA}")
    e(f"v_and_b32 v{VX}, 3, v{V_LANE}"); e(f"v_lshlrev_b32 v{VX}, 4, v{VX}"); e(f"v_add_u32 v{VA}, v{VA}, v{VX}")
    e(f"s_lshl_b32 s72, {S_IDX}, 6"); e(f"s_add_u32 s72, s72, {WS_AP}")
    e(f"s_lshr_b32 s7, {S_IDX}, 3"); e("s_and_b32 s7, s7, 1"); e("s_lshl_b32 s73, s7, 11")
    e(f"s_lshr_b32 s7, {S_IDX}, 4"); e("s_lshl_b32 s7, s7, 8"); e("s_add_u32 s73, s73, s7")
    e(f"s_and_b32 s7, {S_IDX}, 3"); e("s_lshl_b32 s7, s7, 6"); e("s_add_u32 s73, s73, s7")
    e(f"s_and_b32 s7, {S_IDX}, 4"); e("s_lshl_b32 s7, s7, 1"); e("s_add_u32 s73, s73, s7")
    e(f"buffer_load_dwordx2 {vr(XQ,2)}, v{VX}, {R_X}, s73 offen", tag="xq")
    def g_issue(lo, hi):
        def f():
            for i in range(lo, hi):
                e(f"s_add_u32 s74, s72, {i*16*8192}")
                e(f"buffer_load_dwordx4 {vr(G+4*i)}, v{VA}, {R_WS}, s74 offen sc1", tag="g")
        return f
    def g_check(lo, hi):
        def f():
            for i in range(lo, hi): tagcheck(G+4*i, T3, i == lo, T5)
        return f
    g_issue(8, 15)()
    poll(g_issue(8, 15), g_check(8, 15), lambda: e("s_waitcnt vmcnt(0)"), "gf")
    g_issue(0, 8)()
    FS = G + 32
    for i in range(9, 15):
        for c in range(4): e(f"v_add_f32 v{FS+c}, v{FS+c}, v{G+4*i+c}")
    xlane("v_add_f32", [FS, FS+1, FS+2, FS+3], [FS+4, FS+5, FS+6, FS+7], ["r4", "r8", "p16", "p32"])
    rnd2(FS, FS+1, FS+4); rnd2(FS+2, FS+3, FS+5)
    XU = FS + 8
    for d in range(2):
        e(f"v_lshlrev_b32 v{XU+2*d}, 16, v{XQ+d}"); e(f"v_and_b32 v{XU+2*d+1}, {S_MASKH}, v{XQ+d}")
    poll(g_issue(0, 8), g_check(0, 8), lambda: e("s_waitcnt vmcnt(0)"), "ga")
    stamp()
    for i in range(1, 8):
        for c in range(4): e(f"v_add_f32 v{G+c}, v{G+c}, v{G+4*i+c}")
    xlane("v_add_f32", [G, G+1, G+2, G+3], [G+4, G+5, G+6, G+7], ["r4", "r8", "p16", "p32"])
    rnd2(G, G+1, G+4); rnd2(G+2, G+3, G+5)
    for c in range(4): e(f"v_add_f32 v{G+c}, v{XU+c}, v{G+c}")
    rnd2(G, G+1, G+4); rnd2(G+2, G+3, G+5)
    for c in range(4): e(f"v_add_f32 v{G+c}, v{G+c}, v{FS+c}")
    e(f"v_cvt_pk_bf16_f32 v{G+4}, v{G}, v{G+1}"); e(f"v_cvt_pk_bf16_f32 v{G+5}, v{G+2}, v{G+3}")
    e("s_mov_b64 exec, 0xf")
    e(f"buffer_store_dwordx2 {vr(G+4,2)}, v{VX}, {R_OUT}, s73 offen")
    e(f"s_cmp_lg_u32 {S_IDX}, 0"); e("s_cbranch_scc1 L_fini")
    e("s_mov_b64 exec, 1")
    e(f"buffer_store_dword v{V_T}, off, {R_WS}, 0")
    e.cond_depth -= 1
    e.label("L_fini")
    if stamps:
        e("s_mov_b64 exec, -1")
        stamp()
        e("s_mov_b64 exec, 0xffff")
        e(f"v_lshlrev_b32 v{T0}, 2, v{V_LANE}")
        e("s_lshl_b32 s7, s2, 3"); e(f"s_add_u32 s7, s7, {S_W}"); e("s_lshl_b32 s7, s7, 6"); e(f"s_add_u32 s7, s7, {WS_SIZE}")
        e("s_mov_b32 s58, 0x1000000")
        e(f"buffer_store_dword v0, v{T0}, {R_WS}, s7 offen")
    e.label("L_end")
    e("s_endpgm")

    out = HEADER
    out += f"; @launch grid=(256,1,1) block=(512,1,1) lds={LDS_BYTES}\n"
    out += '.amdgcn_target "amdgcn-amd-amdhsa--gfx950"\n.text\n'
    out += f".globl {KNAME}\n.p2align 8\n.type {KNAME},@function\n{KNAME}:\n"
    out += e.text()
    out += f""".section .rodata,"a"
.p2align 6
.amdhsa_kernel {KNAME}
  .amdhsa_next_free_vgpr 256
  .amdhsa_next_free_sgpr 102
  .amdhsa_accum_offset 256
  .amdhsa_group_segment_fixed_size 0
  .amdhsa_kernarg_size 88
  .amdhsa_user_sgpr_count 2
  .amdhsa_user_sgpr_kernarg_segment_ptr 1
  .amdhsa_system_sgpr_workgroup_id_x 1
.end_amdhsa_kernel
"""
    return out

if __name__ == "__main__":
    import argparse
    ap = argparse.ArgumentParser()
    ap.add_argument("-o", default="parallel_sum__gqa_block_cached__dense_activation_silu__decode.s")
    ap.add_argument("--inf", type=int, default=8)
    ap.add_argument("--stamps", action="store_true")
    a = ap.parse_args()
    open(a.o, "w").write(gen(INF=a.inf, stamps=a.stamps))
```

```python
import sys
from emit import Emit
KNAME = "parallel_sum__gqa_block_cached__dense_activation_silu__decode_kernel"
HEADER = open("parallel_sum__gqa_block_cached__dense_activation_silu__decode.s.ref").read().split("; Override launch geometry")[0]

WS_QP = 0x1000
QP_B = 7680 * 4
QP_K = 2 * QP_B
WS_ML = 0x40000
WS_CT = 0x50000
WS_OP = 0x80000
WS_AP = 0x200000
WS_SIZE = 0x400000
L_REDQ = 0
L_REDH = 4096
L_Q = 8192
L_MX = 10240
L_OL = 10752
L_FA = 11008; L_FH = 11040; L_FQ = 11072
L_S2 = 0
L_S2M = 1024
L_ORED = 12288
LDS_BYTES = L_ORED + 8 * 4096
V_LANE, V_K, V_V, V_UP, V_DN, V_T, V_AL, V_ML, V_L = 1, 2, 3, 4, 5, 6, 7, 8, 9
T0, T1, T2, T3, T4, T5 = 10, 11, 12, 13, 14, 15
ACC = 16
Q0, Q1 = 48, 52
P = 56
AD = 60
SC = 64
def SLOT(k): return 96 + 32 * k
S_W, S_TYPE, S_IDX, S_T = "s3", "s4", "s5", "s6"
S_LO, S_HI = "s8", "s9"
S_TI = ["s10", "s11", "s12", "s13"]
S_G2 = "s14"
S_CNT = "s15"
R_K, R_V, R_UP, R_DN, R_WS, R_X, R_OUT, R_W1 = "s[40:43]", "s[44:47]", "s[48:51]", "s[52:55]", "s[56:59]", "s[60:63]", "s[64:67]", "s[28:31]"
S_KV, S_UPQ, S_UPH, S_DNB = "s68", "s69", "s70", "s71"
S_LOG2E, S_SCALE, S_MASKH, S_HASF, S_HASH, S_KS = "s82", "s83", "s84", "s85", "s86", "s87"
S_N8 = "s[88:89]"
S_CBH = "s39"
POLL_LIMIT = 1 << 17
def vr(a, n=4): return f"v[{a}:{a+n-1}]"

def gen(INF=8, stamps=False, NS=5, HF=8, pf=True, prio=True, slp_o=0, slp_g=0, slp_pre=2, prepoll=True, late_ffn=True, LA=4, LF_=8, pbar=True):
    e = Emit()
    lab = [0]
    def newlab(p):
        lab[0] += 1
        return f"L_{p}_{lab[0]}"
    def stamp(k):
        if not stamps: return
        e("s_memrealtime s[90:91]"); e("s_waitcnt lgkmcnt(0)"); e(f"v_writelane_b32 v0, s90, {k}")
    def throttle():
        if INF: e(f"s_waitcnt vmcnt({INF-1})")
    def setprio(n):
        if prio: e(f"s_setprio {n}")
    def dpp(op, d, a, b, ctl):
        e(f"{op}_dpp v{d}, v{a}, v{b} {ctl} row_mask:0xf bank_mask:0xf")
    def xlane(op, regs, tmps, steps):
        for st in steps:
            if st[0] == "r":
                for r in regs: dpp(op, r, r, r, f"row_ror:{st[1:]}")
            else:
                for r, t in zip(regs, tmps): e(f"v_mov_b32 v{t}, v{r}")
                for r, t in zip(regs, tmps): e(f"v_permlane{st[1:]}_swap_b32 v{r}, v{t}")
                for r, t in zip(regs, tmps): e(f"{op} v{r}, v{r}, v{t}")
    def tagcheck(g, tmp, first, accum):
        e(f"v_perm_b32 v{tmp}, v{g+1}, v{g}, {S_G2}")
        e(f"v_perm_b32 v{tmp+1}, v{g+3}, v{g+2}, {S_G2}")
        e(f"v_perm_b32 v{tmp}, v{tmp+1}, v{tmp}, {S_LO}")
        if first: e(f"v_xor_b32 v{accum}, v{tmp}, v{V_T}")
        else:
            e(f"v_xor_b32 v{tmp}, v{tmp}, v{V_T}")
            e(f"v_or_b32 v{accum}, v{accum}, v{tmp}")
    def tagput(dst, srcs):
        for i, s in enumerate(srcs): e(f"v_perm_b32 v{dst+i}, v{s}, v{V_T}, {S_TI[i]}")
    def rnd2(a, b_, tmp):
        e(f"v_cvt_pk_bf16_f32 v{tmp}, v{a}, v{b_}")
        e(f"v_lshlrev_b32 v{a}, 16, v{tmp}")
        e(f"v_and_b32 v{b_}, {S_MASKH}, v{tmp}")
    def poll(issue, check, waitfirst, name, sleep=0):
        Lr, Ld, Lx = newlab(name + "_retry"), newlab(name + "_done"), newlab(name + "_exit")
        waitfirst()
        check()
        e(f"v_cmp_ne_u32 vcc, 0, v{T5}")
        e(f"s_cbranch_vccz {Ld}")
        e(f"s_mov_b32 {S_CNT}, 0")
        e("s_mov_b64 s[80:81], exec")
        e.label(Lr)
        e("s_mov_b64 exec, vcc")
        if sleep: e(f"s_sleep {sleep}")
        e("s_nop 4")
        e.cond_depth += 1
        issue()
        e.cond_depth -= 1
        e(f"s_add_u32 {S_CNT}, {S_CNT}, 1")
        e(f"s_cmp_gt_u32 {S_CNT}, {POLL_LIMIT}")
        e("s_waitcnt vmcnt(0)")
        e(f"s_cbranch_scc1 {Lx}")
        check()
        e(f"v_cmp_ne_u32 vcc, 0, v{T5}")
        e(f"s_cbranch_vccnz {Lr}")
        e.label(Lx)
        e("s_mov_b64 exec, s[80:81]")
        e.label(Ld)
    def setflag(base, idx=None):
        if idx is None:
            e(f"s_lshl_b32 s7, {S_W}, 2"); e(f"v_mov_b32 v{T1}, s7")
        else: e(f"v_mov_b32 v{T1}, {4*idx}")
        e("s_waitcnt lgkmcnt(0)")
        e("s_mov_b64 exec, 1")
        e(f"v_mov_b32 v{T2}, 1")
        e(f"ds_write_b32 v{T1}, v{T2} offset:{base}")
        e("s_mov_b64 exec, -1")
    def waitflags(base, n, name):
        Lr, Lx = newlab(name), newlab(name + "x")
        e(f"v_and_b32 v{T1}, {n-1}, v{V_LANE}"); e(f"v_lshlrev_b32 v{T1}, 2, v{T1}")
        e(f"s_mov_b32 {S_CNT}, 0")
        e.label(Lr)
        e(f"ds_read_b32 v{T2}, v{T1} offset:{base}")
        e(f"s_add_u32 {S_CNT}, {S_CNT}, 1"); e(f"s_cmp_gt_u32 {S_CNT}, {POLL_LIMIT*4}")
        e("s_waitcnt lgkmcnt(0)")
        e(f"s_cbranch_scc1 {Lx}")
        e(f"v_cmp_ne_u32 vcc, 1, v{T2}")
        e(f"s_cbranch_vccnz {Lr}")
        e.label(Lx)
    def srd(base, lo, hi, n):
        e(f"s_mov_b32 s{base}, {lo}"); e(f"s_mov_b32 s{base+1}, {hi}"); e(f"s_mov_b32 s{base+2}, {n}"); e(f"s_mov_b32 s{base+3}, 0x00020000")
    class cond:
        def __init__(self, cmp, br):
            self.L = newlab("skip"); self.cmp = cmp if isinstance(cmp, list) else [cmp]; self.br = br
        def __enter__(self):
            for c in self.cmp:
                e(c); e(f"{self.br} {self.L}")
            e.cond_depth += 1
        def __exit__(self, *a):
            e.cond_depth -= 1; e.label(self.L)

    if stamps: e("s_memrealtime s[90:91]")
    e("s_cmp_ge_u32 s2, 256")
    e("s_cbranch_scc1 L_end")
    setprio(3)
    e("s_load_dwordx16 s[16:31], s[0:1], 0")
    e("s_load_dwordx4 s[32:35], s[0:1], 64")
    e("s_load_dwordx2 s[36:37], s[0:1], 80")
    if pf:
        e("s_getpc_b64 s[72:73]")
        e.raw("L_pc:")
        e(f"v_lshlrev_b32 v{T0}, 4, v0")
        e(f"global_load_dwordx4 {vr(SLOT(0))}, v{T0}, s[72:73]", tag="pf")
        e(f"v_add_u32 v{T0}, 8192, v{T0}")
        e(f"v_min_u32 v{T0}, L_end-L_pc-16, v{T0}")
        e(f"global_load_dwordx4 {vr(SLOT(0)+4)}, v{T0}, s[72:73]", tag="pf")
    e(f"v_lshrrev_b32 v{T0}, 6, v0")
    e(f"v_and_b32 v{V_LANE}, 63, v0")
    e(f"v_readfirstlane_b32 {S_W}, v{T0}")
    if stamps: e("v_mov_b32 v0, 0")
    e(f"v_lshrrev_b32 v{T0}, 3, v{V_LANE}"); e(f"v_and_b32 v{T1}, 7, v{V_LANE}"); e(f"v_lshlrev_b32 v{T1}, 4, v{T1}")
    e(f"v_lshl_add_u32 v{V_UP}, v{T0}, 15, v{T1}")
    e(f"v_mul_u32_u24 v{V_DN}, {4*7168}, v{T0}"); e(f"v_add_u32 v{V_DN}, v{V_DN}, v{T1}")
    e("s_and_b32 s7, s2, 3"); e("s_lshl_b32 s72, s7, 8"); e(f"s_lshl_b32 s73, {S_W}, 5"); e("s_add_u32 s72, s72, s73")
    e("s_lshr_b32 s73, s2, 2")
    e(f"s_lshl_b32 {S_UPQ}, s72, 13"); e("s_lshl_b32 s74, s73, 7"); e(f"s_add_u32 {S_UPQ}, {S_UPQ}, s74")
    e(f"v_lshlrev_b32 v{T2}, 3, v{T0}"); e("s_lshl_b32 s74, s72, 1"); e(f"v_add_u32 v{T2}, s74, v{T2}")
    e(f"v_lshlrev_b32 v{T3}, 5, v{V_LANE}")
    e("s_lshl_b32 s7, s7, 1"); e("s_add_u32 s7, s7, 1"); e("s_and_b32 s74, s73, 7")
    e("s_cmp_lg_u32 s74, s7"); e(f"s_cselect_b32 {S_HASH}, 1, 0")
    e("s_lshr_b32 s75, s73, 3"); e("s_mul_i32 s75, s75, 7"); e("s_add_u32 s75, s75, s74")
    e("s_cmp_gt_u32 s74, s7"); e(f"s_subb_u32 {S_CBH}, s75, 0")
    e(f"s_mul_i32 {S_UPH}, s72, 7168"); e(f"s_lshl_b32 s74, {S_CBH}, 7"); e(f"s_add_u32 {S_UPH}, {S_UPH}, s74")
    e(f"s_mov_b32 {S_MASKH}, 0xffff0000")
    e(f"v_lshlrev_b32 v{T4}, 2, v{V_LANE}"); e(f"v_mov_b32 v{T5}, 0")
    e(f"ds_write_b32 v{T4}, v{T5} offset:{L_FA}")
    e("s_waitcnt lgkmcnt(0)")
    e("s_barrier")
    if stamps:
        e("v_writelane_b32 v0, s90, 15"); stamp(14)
    e("s_load_dword s6, s[36:37], 0")
    srd(60, "s16", "s17", 4096)
    XF, XR = SC, SC + 16
    for b in range(2):
        for hf in range(2):
            e(f"buffer_load_dwordx4 {vr(XF+8*b+4*hf)}, v{T3}, {R_X}, 0 offen offset:{b*2048+hf*16}", tag="xf")
    for b in range(2):
        e(f"buffer_load_dwordx2 {vr(XR+2*b,2)}, v{T2}, {R_X}, 0 offen offset:{b*2048}", tag="xr")
    srd(48, "s22", "s23", 8 << 20)
    UPS = SLOT(4)
    for i in range(4):
        e(f"buffer_load_dwordx4 {vr(UPS+4*i)}, v{V_UP}, {R_UP}, {S_UPQ} offen nt", tag="upq")
        if i < 3: e(f"s_add_u32 {S_UPQ}, {S_UPQ}, 8192")
    e(f"s_lshr_b32 {S_TYPE}, s2, 3"); e(f"s_xor_b32 {S_TYPE}, {S_TYPE}, s2"); e(f"s_and_b32 {S_TYPE}, {S_TYPE}, 1")
    e(f"s_lshr_b32 {S_IDX}, s2, 1"); e(f"s_and_b32 s7, {S_IDX}, 7")
    srd(40, "s18", "s19", 64 << 20)
    srd(44, "s20", "s21", 64 << 20)
    srd(56, "s36", "s37", WS_SIZE)
    srd(64, "s32", "s33", 4096)
    e(f"s_cmp_eq_u32 {S_TYPE}, 1")
    e("s_cselect_b32 s52, s30, s24"); e("s_cselect_b32 s53, s31, s25"); e("s_cselect_b32 s54, 7, 8"); e("s_lshl_b32 s54, s54, 20")
    e("s_mov_b32 s55, 0x00020000")
    e(f"s_mul_i32 s30, {S_HASH}, {7<<20}"); e("s_mov_b32 s31, 0x00020000")
    e("s_cmp_lg_u32 s7, 7"); e(f"s_cselect_b32 {S_HASF}, {S_TYPE}, 0")
    e(f"s_lshr_b32 s7, {S_IDX}, 3"); e(f"s_mul_i32 s7, s7, {S_TYPE}"); e(f"s_sub_u32 {S_KS}, {S_IDX}, s7")
    e(f"s_cmp_eq_u32 {S_TYPE}, {S_HASF}")
    e("s_cselect_b32 s54, s54, 0")
    e(f"s_mov_b32 {S_LO}, 0x05040100"); e(f"s_mov_b32 {S_HI}, 0x07060302")
    for i in range(4): e(f"s_mov_b32 {S_TI[i]}, 0x{0x07060500 + i:08x}")
    e(f"s_mov_b32 {S_G2}, 0x0c0c0400")
    e(f"s_mov_b32 {S_LOG2E}, 0x3fb8aa3b"); e(f"s_mov_b32 {S_SCALE}, 0x3db504f3")
    e("s_mov_b32 s88, 0x00ff00ff"); e("s_mov_b32 s89, 0x00ff00ff")
    e(f"v_lshlrev_b32 v{V_V}, 4, v{V_LANE}")
    e(f"v_bfe_u32 v{T0}, v{V_LANE}, 1, 1"); e(f"v_bfe_u32 v{T1}, v{V_LANE}, 2, 2")
    e(f"v_lshl_add_u32 v{T0}, v{T0}, 2, v{T1}"); e(f"v_lshlrev_b32 v{V_K}, 8, v{T0}")
    e(f"v_lshrrev_b32 v{T1}, 4, v{V_LANE}"); e(f"v_lshl_add_u32 v{V_K}, v{T1}, 5, v{V_K}")
    e(f"v_and_b32 v{T1}, 1, v{V_LANE}"); e(f"v_lshl_add_u32 v{V_K}, v{T1}, 4, v{V_K}")
    e(f"s_lshl_b32 {S_KV}, s2, 18"); e(f"s_lshl_b32 s7, {S_W}, 12"); e(f"s_add_u32 {S_KV}, {S_KV}, s7")
    e(f"s_lshl_b32 {S_DNB}, {S_KS}, 16"); e(f"s_lshl_b32 s7, {S_W}, 8"); e(f"s_add_u32 {S_DNB}, {S_DNB}, s7")

    def kload(u, slot, i, thr=True):
        beta, t = i >> 1, i & 1
        if i % 4 == 0: e(f"s_add_u32 s74, {S_KV}, {(2*u + (beta >> 1)) * 32768}")
        if thr: throttle()
        e(f"buffer_load_dwordx4 {vr(SLOT(slot)+4*i)}, v{V_K}, {R_K}, s74 offen offset:{(beta&1)*2048 + t*128} nt", tag=f"k{u}")
    def vload(u, slot, j, thr=True):
        if j % 4 == 0: e(f"s_add_u32 s75, {S_KV}, {(2*u + (j >> 2)) * 32768}")
        if thr: throttle()
        e(f"buffer_load_dwordx4 {vr(SLOT(slot)+4*j)}, v{V_V}, {R_V}, s75 offen offset:{(j&3)*1024} nt", tag=f"v{u}")
    def issueK(u, slot, lo=0, hi=8):
        for i in range(lo, hi): kload(u, slot, i)
    def issueV(u, slot, lo=0, hi=8):
        for j in range(lo, hi): vload(u, slot, j)
    def issueDN(slot, lo=0, hi=8):
        for jj in range(lo, hi):
            a_on, f_on = jj < 8 - LA, jj < 8 - LF_
            e(f"s_add_u32 s76, {S_DNB}, {(8*(jj&3) + (jj>>2))*2048}")
            if not a_on and not f_on: e("s_mov_b32 s76, 0x40000000")
            elif a_on != f_on:
                e(f"s_cmp_eq_u32 {S_TYPE}, {0 if a_on else 1}"); e("s_cselect_b32 s76, s76, 0x40000000")
            throttle()
            e(f"buffer_load_dwordx4 {vr(SLOT(slot)+4*jj)}, v{V_DN}, {R_DN}, s76 offen nt", tag="dn")

    stamp(0)
    U = SLOT(3)
    e.wait_vm("xf")
    for i in range(4):
        e(f"buffer_load_dwordx4 {vr(UPS+16+4*i)}, v{V_DN}, {R_W1}, {S_UPH} offen nt", tag="uph")
        if i < 3: e(f"s_add_u32 {S_UPH}, {S_UPH}, 7168")
    for b in range(2):
        for d in range(8):
            e(f"v_lshlrev_b32 v{U+16*b+2*d}, 16, v{XF+8*b+d}")
            e(f"v_and_b32 v{U+16*b+2*d+1}, {S_MASKH}, v{XF+8*b+d}")
    SUM = [T0, T1]; TMP = [T2, T3]; VAR = [T4, T5]
    for b in range(2):
        e(f"v_pk_add_f32 {vr(XF+4*b,2)}, {vr(U+16*b,2)}, {vr(U+16*b+2,2)}")
        e(f"v_pk_add_f32 {vr(XF+4*b+2,2)}, {vr(U+16*b+4,2)}, {vr(U+16*b+6,2)}")
    for i in range(4, 8):
        for b in range(2):
            e(f"v_pk_add_f32 {vr(XF+4*b+2*(i&1),2)}, {vr(XF+4*b+2*(i&1),2)}, {vr(U+16*b+2*i,2)}")
    for b in range(2): e(f"v_pk_add_f32 {vr(XF+4*b,2)}, {vr(XF+4*b,2)}, {vr(XF+4*b+2,2)}")
    for b in range(2): e(f"v_add_f32 v{SUM[b]}, v{XF+4*b}, v{XF+4*b+1}")
    xlane("v_add_f32", SUM, TMP, ["r8", "r4", "r2", "r1", "p16", "p32"])
    for b in range(2): e(f"v_mul_f32 v{SUM[b]}, 0x3a800000, v{SUM[b]}")
    kload(0, 0, 0); kload(0, 0, 1)
    for i in range(8):
        for b in range(2):
            e(f"v_pk_add_f32 {vr(U+16*b+2*i,2)}, {vr(U+16*b+2*i,2)}, {vr(T0,2)} op_sel:[0,{b}] op_sel_hi:[1,{b}] neg_lo:[0,1] neg_hi:[0,1]")
    for b in range(2): e(f"v_pk_mul_f32 {vr(XF+4*b,2)}, {vr(U+16*b,2)}, {vr(U+16*b,2)}")
    for i in range(1, 8):
        for b in range(2): e(f"v_pk_fma_f32 {vr(XF+4*b,2)}, {vr(U+16*b+2*i,2)}, {vr(U+16*b+2*i,2)}, {vr(XF+4*b,2)}")
    for b in range(2): e(f"v_add_f32 v{VAR[b]}, v{XF+4*b}, v{XF+4*b+1}")
    xlane("v_add_f32", VAR, TMP, ["r8", "r4", "r2", "r1", "p16", "p32"])
    kload(0, 0, 2); kload(0, 0, 3)
    for b in range(2): e(f"v_mul_f32 v{VAR[b]}, 0x3a800000, v{VAR[b]}")
    rnd2(SUM[0], SUM[1], T2)
    rnd2(VAR[0], VAR[1], T3)
    for b in range(2): e(f"v_add_f32 v{VAR[b]}, 0x3727c5ac, v{VAR[b]}")
    rnd2(VAR[0], VAR[1], T3)
    for b in range(2): e(f"v_sqrt_f32 v{VAR[b]}, v{VAR[b]}")
    rnd2(VAR[0], VAR[1], T3)
    for b in range(2): e(f"v_rcp_f32 v{VAR[b]}, v{VAR[b]}")
    XN = ACC + 16
    e.wait_vm("xr")
    for b in range(2):
        for d in range(2):
            e(f"v_lshlrev_b32 v{XN+4*b+2*d}, 16, v{XR+2*b+d}")
            e(f"v_and_b32 v{XN+4*b+2*d+1}, {S_MASKH}, v{XR+2*b+d}")
    for b in range(2):
        for i in range(4): e(f"v_sub_f32 v{XN+4*b+i}, v{XN+4*b+i}, v{SUM[b]}")
    for d in range(4): rnd2(XN+2*d, XN+2*d+1, U+d)
    for b in range(2):
        for i in range(4): e(f"v_mul_f32 v{XN+4*b+i}, v{XN+4*b+i}, v{VAR[b]}")
    for d in range(4): rnd2(XN+2*d, XN+2*d+1, U+d)
    e("s_waitcnt lgkmcnt(0)")
    e(f"s_mul_i32 {S_T}, {S_T}, 1664525"); e(f"s_add_u32 {S_T}, {S_T}, 1013904223")
    e(f"v_mov_b32 v{V_T}, {S_T}")
    stamp(1)
    e(f"v_lshrrev_b32 v{T0}, 5, v{V_LANE}"); e(f"v_lshlrev_b32 v{T0}, 8, v{T0}")
    e(f"v_and_b32 v{T1}, 7, v{V_LANE}"); e(f"v_lshl_add_u32 v{T0}, v{T1}, 5, v{T0}")
    e(f"v_and_b32 v{T1}, 16, v{V_LANE}"); e(f"v_add_u32 v{T0}, v{T0}, v{T1}")
    e(f"s_lshl_b32 s7, {S_W}, 9"); e(f"v_add_u32 v{V_AL}, s7, v{T0}")
    def up_compute(src, tag, lbase, fbase, between):
        for i in range(4):
            e.wait_vm_idx(tag, i)
            for d in range(4):
                e(f"v_lshlrev_b32 v{U+2*d}, 16, v{src+4*i+d}")
                e(f"v_and_b32 v{U+2*d+1}, {S_MASKH}, v{src+4*i+d}")
            for b in range(2):
                for c in range(0, 8, 2):
                    xr = XN + 4*b + i
                    base = xr & ~1; sel = xr & 1
                    if i == 0: e(f"v_pk_mul_f32 {vr(ACC+8*b+c,2)}, {vr(U+c,2)}, {vr(base,2)} op_sel:[0,{sel}] op_sel_hi:[1,{sel}]")
                    else: e(f"v_pk_fma_f32 {vr(ACC+8*b+c,2)}, {vr(U+c,2)}, {vr(base,2)}, {vr(ACC+8*b+c,2)} op_sel:[0,{sel},0] op_sel_hi:[1,{sel},1]")
            between(i)
        for c in range(8): e(f"v_permlane32_swap_b32 v{ACC+c}, v{ACC+8+c}")
        for c in range(8): e(f"v_add_f32 v{ACC+c}, v{ACC+c}, v{ACC+8+c}")
        for c in range(4): e(f"v_permlane16_swap_b32 v{ACC+c}, v{ACC+4+c}")
        for c in range(4): e(f"v_add_f32 v{ACC+c}, v{ACC+c}, v{ACC+4+c}")
        for c in range(4): dpp("v_add_f32", ACC+c, ACC+c, ACC+c, "row_ror:8")
        e(f"ds_write_b128 v{V_AL}, {vr(ACC)} offset:{lbase}")
        setflag(fbase)
    def up_publish(lbase, fbase, colreg_expr, name):
        waitflags(fbase, 8, name)
        e("s_mov_b32 exec_hi, 0")
        for w in range(8): e(f"ds_read_b128 {vr(U+4*w)}, v{V_V} offset:{lbase + w*512}")
        e(f"v_lshrrev_b32 v{T0}, 4, v{V_LANE}"); e(f"v_mul_u32_u24 v{T0}, {QP_B}, v{T0}")
        e(f"v_and_b32 v{T1}, 15, v{V_LANE}"); e(f"v_lshl_add_u32 v{T0}, v{T1}, 4, v{T0}")
        e("s_and_b32 s7, s2, 3"); e(f"s_mul_i32 s7, s7, {QP_K}")
        colreg_expr()
        e("s_add_u32 s7, s7, s72")
        e("s_waitcnt lgkmcnt(0)")
        for w in range(1, 8):
            e(f"v_pk_add_f32 {vr(U,2)}, {vr(U,2)}, {vr(U+4*w,2)}"); e(f"v_pk_add_f32 {vr(U+2,2)}, {vr(U+2,2)}, {vr(U+4*w+2,2)}")
        tagput(U+4, [U, U+1, U+2, U+3])
        e(f"buffer_store_dwordx4 {vr(U+4)}, v{T0}, {R_WS}, s7 offen sc1", tag="pub")
        e("s_mov_b64 exec, -1")
    up_compute(UPS, "upq", L_REDQ, L_FA, lambda i: None)
    stamp(2)
    with cond(f"s_cmp_lg_u32 {S_W}, 7", "s_cbranch_scc1"):
        up_publish(L_REDQ, L_FA, lambda: (e("s_lshr_b32 s72, s2, 2"), e("s_lshl_b32 s72, s72, 8"), e(f"s_add_u32 s72, s72, {WS_QP}")), "wfa")
    stamp(3)
    setprio(2)
    e("s_lshr_b32 s7, s2, 3"); e("s_lshl_b32 s7, s7, 8"); e(f"s_add_u32 s7, s7, {WS_CT}")
    e("s_add_u32 s92, s36, s7"); e("s_addc_u32 s93, s37, 0")
    e("s_and_b32 s72, s2, 7"); e(f"s_or_b32 s72, s72, {S_W}")
    with cond("s_cmp_lg_u32 s72, 0", "s_cbranch_scc1"):
        e("s_mov_b64 exec, 1")
        e(f"v_mov_b32 v{U+8}, 0"); e(f"v_mov_b32 v{U+9}, {S_T}")
        e(f"buffer_store_dwordx2 {vr(U+8,2)}, off, {R_WS}, s7 sc1", tag="ct")
        e("s_mov_b64 exec, -1")
    up_compute(UPS+16, "uph", L_REDH, L_FH, lambda i: kload(0, 0, 4+i))
    e(f"v_lshrrev_b32 v{T0}, 4, v{V_LANE}"); e(f"v_lshlrev_b32 v{V_DN}, 12, v{T0}")
    e(f"v_and_b32 v{T1}, 15, v{V_LANE}"); e(f"v_lshl_add_u32 v{V_DN}, v{T1}, 4, v{V_DN}")
    issueV(0, 1)
    with cond([f"s_cmp_lg_u32 {S_W}, 6", f"s_cmp_eq_u32 {S_HASH}, 0"], "s_cbranch_scc1"):
        up_publish(L_REDH, L_FH, lambda: (e(f"s_lshl_b32 s72, {S_CBH}, 8"), e(f"s_add_u32 s72, s72, {WS_QP + 4096*4}")), "wfh")
    issueK(1, 2)
    issueV(1, 3)
    setprio(1)
    issueDN(4, 0, 4)
    QG = SC
    e("s_lshr_b32 s77, s2, 7"); e(f"s_mul_i32 s77, s77, {QP_B}")
    e("s_lshr_b32 s7, s2, 5"); e("s_and_b32 s7, s7, 3"); e("s_lshl_b32 s7, s7, 12"); e("s_add_u32 s77, s77, s7")
    e(f"s_lshl_b32 s7, {S_W}, 10"); e("s_add_u32 s77, s77, s7"); e(f"s_add_u32 s77, s77, {WS_QP}")
    e(f"s_add_u32 s78, s77, {2*QP_K}")
    VQ2 = Q0
    e(f"v_add_u32 v{VQ2}, {QP_K}, v{V_V}")
    def q_issue():
        for kq in range(4):
            e(f"buffer_load_dwordx4 {vr(QG+4*kq)}, v{VQ2 if kq & 1 else V_V}, {R_WS}, s{77 + (kq >> 1)} offen sc1", tag="qp")
    def q_check():
        for kq in range(4): tagcheck(QG+4*kq, T3, kq == 0, T5)
    VH = Q0 + 1
    e(f"v_lshrrev_b32 v{T0}, 3, v{V_LANE}"); e(f"v_mul_u32_u24 v{VH}, {QP_B}, v{T0}")
    e(f"v_and_b32 v{T1}, 7, v{V_LANE}"); e(f"v_lshl_add_u32 v{VH}, v{T1}, 4, v{VH}")
    e(f"s_lshl_b32 s79, {S_KS}, 7"); e(f"s_add_u32 s79, s79, {WS_QP + 4096*4}")
    def h_issue(): e(f"buffer_load_dwordx4 {vr(QG)}, v{VH}, {R_WS}, s79 offen sc1", tag="hp")
    def h_check(): tagcheck(QG, T3, True, T5)
    with cond(f"s_cmp_ge_u32 {S_W}, 4", "s_cbranch_scc1"): q_issue()
    with cond([f"s_cmp_lg_u32 {S_W}, 4", f"s_cmp_eq_u32 {S_HASF}, 0"], "s_cbranch_scc1"): h_issue()
    issueDN(4, 4, 8)
    with cond(f"s_cmp_ge_u32 {S_W}, 4", "s_cbranch_scc1"):
        poll(q_issue, q_check, lambda: e("s_waitcnt vmcnt(4)"), "q")
        for kq in range(1, 4):
            e(f"v_pk_add_f32 {vr(QG,2)}, {vr(QG,2)}, {vr(QG+4*kq,2)}"); e(f"v_pk_add_f32 {vr(QG+2,2)}, {vr(QG+2,2)}, {vr(QG+4*kq+2,2)}")
        e(f"v_cvt_pk_bf16_f32 v{QG}, v{QG}, v{QG+1}")
        e(f"v_cvt_pk_bf16_f32 v{QG+1}, v{QG+2}, v{QG+3}")
        e(f"v_lshlrev_b32 v{T0}, 3, v{V_LANE}"); e(f"s_lshl_b32 s7, {S_W}, 9"); e(f"v_add_u32 v{T0}, s7, v{T0}")
        e(f"ds_write_b64 v{T0}, {vr(QG,2)} offset:{L_Q}")
        setflag(L_FQ)
    with cond([f"s_cmp_lg_u32 {S_W}, 4", f"s_cmp_eq_u32 {S_HASF}, 0"], "s_cbranch_scc1"):
        poll(h_issue, h_check, lambda: e("s_waitcnt vmcnt(4)"), "h")
        HG = QG
        xlane("v_add_f32", [HG, HG+1, HG+2, HG+3], [HG+4, HG+5, HG+6, HG+7], ["p16", "p32"])
        for d in range(2): rnd2(HG+2*d, HG+2*d+1, HG+8+d)
        for i in range(4): e(f"v_mul_f32 v{HG+8+i}, {S_LOG2E}, v{HG+i}")
        for i in range(4): e(f"v_exp_f32 v{HG+8+i}, -v{HG+8+i}")
        for i in range(4): e(f"v_add_f32 v{HG+8+i}, 1.0, v{HG+8+i}")
        for i in range(4): e(f"v_rcp_f32 v{HG+8+i}, v{HG+8+i}")
        for i in range(4): e(f"v_mul_f32 v{HG+i}, v{HG+i}, v{HG+8+i}")
        for d in range(2): e(f"v_cvt_pk_bf16_f32 v{HG+4+d}, v{HG+2*d}, v{HG+2*d+1}")
        e(f"v_and_b32 v{T0}, 1, v{V_LANE}"); e(f"v_lshlrev_b32 v{T0}, 5, v{T0}")
        e(f"v_bfe_u32 v{T1}, v{V_LANE}, 1, 2"); e(f"v_lshl_add_u32 v{T0}, v{T1}, 1, v{T0}")
        e(f"v_bfe_u32 v{T1}, v{V_LANE}, 3, 1"); e(f"v_lshl_add_u32 v{T0}, v{T1}, 6, v{T0}")
        e("s_mov_b64 exec, 0xffff")
        for d in range(2):
            e(f"ds_write_b16 v{T0}, v{HG+4+d} offset:{L_OL + 16*d}")
            e(f"ds_write_b16_d16_hi v{T0}, v{HG+4+d} offset:{L_OL + 16*d + 8}")
        e("s_mov_b64 exec, -1")
        setflag(L_FQ)
    stamp(4)
    e(f"v_and_b32 v{T0}, 7, v{V_LANE}"); e(f"v_lshlrev_b32 v{T0}, 8, v{T0}")
    e(f"v_lshrrev_b32 v{T1}, 4, v{V_LANE}"); e(f"v_lshl_add_u32 v{T0}, v{T1}, 5, v{T0}")
    e(f"v_bfe_u32 v{T1}, v{V_LANE}, 3, 1"); e(f"v_lshl_add_u32 v{T0}, v{T1}, 4, v{T0}")
    waitflags(L_FQ, 4, "wfq")
    e(f"ds_read_b128 {vr(Q0)}, v{T0} offset:{L_Q}")
    e(f"ds_read_b128 {vr(Q1)}, v{T0} offset:{L_Q+128}")
    stamp(5)

    def S_phase(u, slot):
        K = SLOT(slot)
        e.wait_vm(f"k{u}", " lgkmcnt(0)" if u == 0 else "")
        for t in range(2):
            for beta in range(4):
                c = "0" if t == 0 else vr(SC+4*beta)
                e(f"v_mfma_f32_16x16x32_bf16 {vr(SC+4*beta)}, {vr(K+8*beta+4*t)}, {vr(Q0 if t == 0 else Q1)}, {c}")
        yield
        S = SC + 16
        for beta in range(4):
            for eps in range(2):
                dpp("v_add_f32", S+2*beta+eps, SC+4*beta+2*eps+1, SC+4*beta+2*eps, "row_ror:8")
        for d in range(4): rnd2(S+2*d, S+2*d+1, SC+24+d)
        for i in range(8): e(f"v_mul_f32 v{S+i}, {S_SCALE}, v{S+i}")
        for d in range(4): rnd2(S+2*d, S+2*d+1, SC+24+d)
        e(f"v_max3_f32 v{T0}, v{S}, v{S+1}, v{S+2}")
        e(f"v_max3_f32 v{T1}, v{S+3}, v{S+4}, v{S+5}")
        e(f"v_max3_f32 v{T0}, v{T0}, v{S+6}, v{S+7}")
        e(f"v_max_f32 v{T0}, v{T0}, v{T1}")
        xlane("v_max_f32", [T0], [T1], ["p16", "p32"])
        e(f"v_mul_f32 v{T0}, {S_LOG2E}, v{T0}")
        if u > 0:
            e(f"v_max_f32 v{T0}, v{T0}, v{V_ML}")
            e(f"v_sub_f32 v{V_AL}, v{V_ML}, v{T0}")
            e(f"v_exp_f32 v{V_AL}, v{V_AL}")
        e(f"v_mov_b32 v{V_ML}, v{T0}")
        for i in range(8): e(f"v_fma_f32 v{S+i}, v{S+i}, {S_LOG2E}, -v{T0}")
        for i in range(8): e(f"v_exp_f32 v{S+i}, v{S+i}")
        if u > 0:
            e(f"v_mul_f32 v{V_L}, v{V_L}, v{V_AL}")
            for i in range(32): e(f"v_mul_f32 v{ACC+i}, v{ACC+i}, v{V_AL}")
        for d in range(4): e(f"v_cvt_pk_bf16_f32 v{P+d}, v{S+2*d}, v{S+2*d+1}")
        if u == 0: e(f"v_add_f32 v{V_L}, v{S}, v{S+1}")
        else:
            e(f"v_add_f32 v{V_L}, v{V_L}, v{S}"); e(f"v_add_f32 v{V_L}, v{V_L}, v{S+1}")
        for i in range(2, 8): e(f"v_add_f32 v{V_L}, v{V_L}, v{S+i}")
        yield
    def perms32(src, dst):
        for p in range(4):
            for d in range(4):
                for x in range(2):
                    e(f"v_perm_b32 v{dst+4*(2*d+x)+p}, v{src+4*(2*p+1)+d}, v{src+4*(2*p)+d}, {S_HI if x else S_LO}")
    def PV_phase(u, slot):
        e.wait_vm(f"v{u}")
        perms32(SLOT(slot), SC)
        for ee in range(8):
            c = "0" if u == 0 else vr(ACC+4*ee)
            e(f"v_mfma_f32_16x16x32_bf16 {vr(ACC+4*ee)}, {vr(SC+4*ee)}, {vr(P)}, {c}")
    KB, VB = SLOT(0), SLOT(0) + 16
    WP = SLOT(1)
    def tileK(sreg, tag, sreg2=None):
        for i in range(4):
            e(f"buffer_load_dwordx4 {vr(KB+4*i)}, v{V_K}, {R_K}, {sreg if (i < 2 or not sreg2) else sreg2} offen offset:{(i>>1)*2048 + (i&1)*128} nt", tag=tag)
    def tileV(sreg, tag, sreg2=None):
        for j in range(4):
            e(f"buffer_load_dwordx4 {vr(VB+4*j)}, v{V_V}, {R_V}, {sreg if (j < 2 or not sreg2) else sreg2} offen offset:{j*1024} nt", tag=tag)
    def down_mfma_publish(A, W, D, ST):
        for ee in range(8):
            e(f"v_mfma_f32_16x16x32_bf16 {vr(D+4*ee)}, {vr(A)}, {vr(W+4*ee)}, 0")
        e("s_mov_b64 exec, 0xffff")
        for q4 in range(4):
            b, eh = q4 >> 1, q4 & 1
            tagput(ST+4*q4, [D+4*(4*eh+i)+b for i in range(4)])
            e(f"buffer_store_dwordx4 {vr(ST+4*q4)}, v{V_V}, {R_WS}, s38 offen offset:{q4*256} sc1", tag="pubD")
        e("s_mov_b64 exec, -1")
    g = S_phase(0, 0); next(g)
    e("s_load_dwordx2 s[94:95], s[92:93], 0 glc")
    e(f"s_add_u32 s74, {S_KV}, {4*32768}")
    tileK("s74", "k4"); tileV("s74", "v4")
    next(g)
    PV_phase(0, 1)
    Lc1, Lc2 = newlab("ctpoll"), newlab("ctok")
    e(f"s_mov_b32 {S_CNT}, 0")
    e.label(Lc1)
    e("s_waitcnt lgkmcnt(0)")
    e(f"s_cmp_eq_u32 s95, {S_T}"); e(f"s_cbranch_scc1 {Lc2}")
    e(f"s_add_u32 {S_CNT}, {S_CNT}, 1"); e(f"s_cmp_gt_u32 {S_CNT}, {POLL_LIMIT}"); e(f"s_cbranch_scc1 {Lc2}")
    e("s_load_dwordx2 s[94:95], s[92:93], 0 glc")
    e(f"s_branch {Lc1}")
    e.label(Lc2)
    S_NX, S_ST = "s96", "s97"
    def grab():
        e(f"s_mov_b32 {S_NX}, 1")
        e(f"s_atomic_add {S_NX}, s[92:93], 0 glc")
    for _ in S_phase(1, 2): pass
    PV_phase(1, 3)
    e.wait_vm("dn")
    perms32(SLOT(4), WP)
    WA = SLOT(4)
    e(f"v_and_b32 v{T0}, 15, v{V_LANE}"); e(f"v_mul_u32_u24 v{WA}, {512+16}, v{T0}")
    e(f"v_lshrrev_b32 v{T1}, 4, v{V_LANE}"); e(f"v_lshl_add_u32 v{WA}, v{T1}, 7, v{WA}")
    e(f"s_lshl_b32 s7, {S_W}, 12"); e(f"v_add_u32 v{WA}, s7, v{WA}")
    for ee in range(1, 8): e(f"v_xor_b32 v{WA+ee}, {ee*16}, v{WA}")
    RA, GA, VO, VM, MA, MW, ADA, OLW = WA + 8, WA + 9, WA + 10, WA + 11, WA + 12, WA + 13, WA + 14, WA + 15
    e(f"s_lshl_b32 s7, {S_W}, 6"); e(f"v_add_u32 v{T0}, s7, v{V_LANE}")
    e(f"v_lshlrev_b32 v{GA}, 4, v{T0}")
    e(f"v_lshrrev_b32 v{T1}, 5, v{T0}"); e(f"v_and_b32 v{T1}, 7, v{T1}"); e(f"v_lshlrev_b32 v{MA}, 6, v{T1}"); e(f"v_lshlrev_b32 v{T1}, 4, v{T1}")
    e(f"v_xor_b32 v{RA}, v{GA}, v{T1}")
    e(f"v_lshlrev_b32 v{MW}, 6, v{V_LANE}"); e(f"s_lshl_b32 s7, {S_W}, 3"); e(f"v_add_u32 v{MW}, s7, v{MW}")
    e(f"v_and_b32 v{T0}, 1, v{V_LANE}"); e(f"v_lshlrev_b32 v{T0}, 6, v{T0}")
    e(f"v_and_b32 v{T1}, 48, v{V_LANE}"); e(f"v_add_u32 v{ADA}, v{T0}, v{T1}")
    e(f"s_lshl_b32 s7, {S_W}, 7"); e(f"v_add_u32 v{OLW}, s7, v{V_V}")
    S2M, S2O = WA + 16, WA + 17
    e(f"v_and_b32 v{T0}, 1, v{V_LANE}"); e(f"v_lshlrev_b32 v{S2M}, 5, v{T0}")
    e(f"v_lshlrev_b32 v{T0}, 9, v{T0}"); e(f"v_lshl_add_u32 v{S2O}, v{T1}, 1, v{T0}")
    e(f"s_lshr_b32 s7, {S_IDX}, 5"); e(f"s_and_b32 s78, {S_W}, 4"); e("s_add_u32 s7, s7, s78"); e("s_lshl_b32 s7, s7, 5")
    e(f"s_and_b32 s78, {S_W}, 3"); e("s_lshl_b32 s78, s78, 3"); e("s_add_u32 s7, s7, s78")
    e("s_lshl_b32 s78, s7, 12"); e("s_lshl_b32 s79, s7, 7")
    e(f"s_and_b32 s7, {S_IDX}, 31"); e("s_lshl_b32 s7, s7, 7"); e("s_add_u32 s78, s78, s7"); e(f"s_add_u32 s78, s78, {WS_OP}")
    e(f"s_lshr_b32 s7, {S_IDX}, 2"); e("s_and_b32 s7, s7, 7"); e("s_lshl_b32 s7, s7, 4"); e("s_add_u32 s79, s79, s7"); e(f"s_add_u32 s79, s79, {WS_ML}")
    e(f"v_lshrrev_b32 v{T0}, 3, v{V_LANE}"); e(f"v_and_b32 v{T1}, 7, v{V_LANE}")
    e(f"v_lshlrev_b32 v{VM}, 7, v{T0}"); e(f"v_lshlrev_b32 v{VO}, 12, v{T0}"); e(f"v_lshl_add_u32 v{VO}, v{T1}, 4, v{VO}")
    e("s_lshl_b32 s100, s2, 12"); e(f"s_add_u32 s100, s100, {WS_OP}")
    e("s_lshl_b32 s101, s2, 7"); e(f"s_add_u32 s101, s101, {WS_ML}")
    e(f"s_lshl_b32 s38, {S_TYPE}, 7"); e(f"s_add_u32 s38, s38, {S_KS}"); e("s_lshl_b32 s38, s38, 13")
    e(f"s_lshl_b32 s7, {S_W}, 10"); e("s_add_u32 s38, s38, s7"); e(f"s_add_u32 s38, s38, {WS_AP}")
    FR = 64 - 8*NS - HF
    P1 = FR * 8
    POOL = P1 + HF * 16
    assert NS == 5
    e("s_and_b32 s98, s2, 0xf8"); e("s_lshl_b32 s98, s98, 18"); e(f"s_add_u32 s98, s98, {NS*8*4096}")
    if not late_ffn:
      with cond(f"s_cmp_eq_u32 {S_HASF}, 0", "s_cbranch_scc1"):
        waitflags(L_FQ + 16, 1, "wfh2")
        e(f"ds_read_b128 {vr(AD)}, v{ADA} offset:{L_OL}")
        e("s_waitcnt lgkmcnt(0)")
        down_mfma_publish(AD, WP, SLOT(2), SLOT(3))
    grab()
    stamp(6)
    setprio(0)
    Lloop, Lskip = newlab("loop"), newlab("noresc")
    e("s_mov_b32 s99, 0")
    e.label(Lloop)
    e("s_waitcnt vmcnt(4)")
    for t in range(2):
        for beta in range(2):
            c = "0" if t == 0 else vr(SC+4*beta)
            e(f"v_mfma_f32_16x16x32_bf16 {vr(SC+4*beta)}, {vr(KB+8*beta+4*t)}, {vr(Q0 if t == 0 else Q1)}, {c}")
    e("s_waitcnt lgkmcnt(0)")
    e(f"s_and_b32 s74, {S_NX}, 7"); e("s_lshl_b32 s74, s74, 18"); e("s_add_u32 s74, s74, s98")
    e(f"s_lshr_b32 s75, {S_NX}, 3"); e("s_lshl_b32 s76, s75, 12"); e("s_lshl_b32 s75, s75, 11"); e(f"s_add_u32 s75, s75, {FR*4096 - FR*2048}")
    e(f"s_cmp_lt_u32 {S_NX}, {P1}"); e("s_cselect_b32 s75, s76, s75"); e("s_cselect_b32 s77, 0, 0xff800000"); e("s_cselect_b32 s76, 0, 0x40000000")
    e("s_add_u32 s74, s74, s75"); e("s_add_u32 s76, s76, s74")
    e(f"s_cmp_lt_u32 {S_NX}, {POOL}"); e("s_cselect_b32 s74, s74, 0x40000000"); e("s_cselect_b32 s75, 1, 0")
    tileK("s74", "kl", "s76")
    S = SC + 8
    for beta in range(2):
        for eps in range(2):
            dpp("v_add_f32", S+2*beta+eps, SC+4*beta+2*eps+1, SC+4*beta+2*eps, "row_ror:8")
    for d in range(2): rnd2(S+2*d, S+2*d+1, SC+12+d)
    for i in range(4): e(f"v_mul_f32 v{S+i}, {S_SCALE}, v{S+i}")
    for d in range(2): rnd2(S+2*d, S+2*d+1, SC+12+d)
    e(f"v_add_f32 v{S+2}, s99, v{S+2}"); e(f"v_add_f32 v{S+3}, s99, v{S+3}")
    e("s_mov_b32 s99, s77")
    e(f"v_max3_f32 v{T0}, v{S}, v{S+1}, v{S+2}")
    e(f"v_max_f32 v{T0}, v{T0}, v{S+3}")
    xlane("v_max_f32", [T0], [T1], ["p16", "p32"])
    e(f"v_mul_f32 v{T0}, {S_LOG2E}, v{T0}")
    e(f"v_cmp_gt_f32 vcc, v{T0}, v{V_ML}")
    e(f"s_and_b64 vcc, vcc, {S_N8}")
    e(f"s_cbranch_scc0 {Lskip}")
    e(f"v_max_f32 v{T0}, v{T0}, v{V_ML}")
    e(f"v_sub_f32 v{V_AL}, v{V_ML}, v{T0}")
    e(f"v_exp_f32 v{V_AL}, v{V_AL}")
    e(f"v_mov_b32 v{V_ML}, v{T0}")
    e(f"v_mul_f32 v{V_L}, v{V_L}, v{V_AL}")
    for i in range(32): e(f"v_mul_f32 v{ACC+i}, v{ACC+i}, v{V_AL}")
    e.label(Lskip)
    for i in range(4): e(f"v_fma_f32 v{S+i}, v{S+i}, {S_LOG2E}, -v{V_ML}")
    for i in range(4): e(f"v_exp_f32 v{S+i}, v{S+i}")
    for d in range(2): e(f"v_cvt_pk_bf16_f32 v{P+d}, v{S+2*d}, v{S+2*d+1}")
    for i in range(4): e(f"v_add_f32 v{V_L}, v{V_L}, v{S+i}")
    PS = SC + 16
    for p in range(2):
        e(f"s_waitcnt vmcnt({6 - 2*p})")
        for d in range(4):
            for x in range(2):
                e(f"v_perm_b32 v{PS+2*(2*d+x)+p}, v{VB+4*(2*p+1)+d}, v{VB+4*(2*p)+d}, {S_HI if x else S_LO}")
    with cond("s_cmp_eq_u32 s75, 0", "s_cbranch_scc1"):
        tileV("s74", "vl", "s76")
        grab()
    for ee in range(8):
        e(f"v_mfma_f32_16x16x16_bf16 {vr(ACC+4*ee)}, {vr(PS+2*ee,2)}, {vr(P,2)}, {vr(ACC+4*ee)}")
    e("s_cmp_lg_u32 s75, 0"); e(f"s_cbranch_scc1 {Lloop}")
    stamp(7)
    xlane("v_add_f32", [V_L], [T1], ["p16", "p32"])
    e("s_mov_b64 exec, 0xff")
    e(f"ds_write_b64 v{MW}, {vr(V_ML,2)} offset:{L_MX}")
    e(f"s_mov_b64 exec, {S_N8}")
    for ee in range(8): e(f"ds_write_b128 v{WA+ee}, {vr(ACC+4*ee)} offset:{L_ORED}")
    e("s_mov_b64 exec, -1")
    stamp(8)
    e("s_waitcnt lgkmcnt(0)")
    e("s_barrier")
    L4, Lp = newlab("w4"), newlab("pubdone")
    ML8 = SC
    def wg_factors():
        e(f"v_max3_f32 v{T0}, v{ML8}, v{ML8+2}, v{ML8+4}")
        e(f"v_max3_f32 v{T1}, v{ML8+6}, v{ML8+8}, v{ML8+10}")
        e(f"v_max3_f32 v{T0}, v{T0}, v{ML8+12}, v{ML8+14}")
        e(f"v_max_f32 v{T0}, v{T0}, v{T1}")
        for w in range(8): e(f"v_sub_f32 v{ML8+2*w}, v{ML8+2*w}, v{T0}")
        for w in range(8): e(f"v_exp_f32 v{ML8+2*w}, v{ML8+2*w}")
    e(f"s_cmp_lt_u32 {S_W}, 4"); e(f"s_cbranch_scc1 {L4}")
    e.cond_depth += 1
    for i in range(4): e(f"ds_read_b128 {vr(ML8+4*i)}, v{MA} offset:{L_MX + 16*i}")
    for w in range(8): e(f"ds_read_b128 {vr(ACC+4*w)}, v{RA} offset:{L_ORED - 4096 + w*4096}")
    e("s_sub_u32 s100, s100, 4096")
    e("s_waitcnt lgkmcnt(8)")
    wg_factors()
    for w in range(8):
        e(f"s_waitcnt lgkmcnt({7-w})")
        for c in range(0, 4, 2):
            if w == 0: e(f"v_pk_mul_f32 {vr(ACC+c,2)}, {vr(ACC+c,2)}, {vr(ML8,2)} op_sel_hi:[1,0]")
            else: e(f"v_pk_fma_f32 {vr(ACC+c,2)}, {vr(ACC+4*w+c,2)}, {vr(ML8+2*w,2)}, {vr(ACC+c,2)} op_sel_hi:[1,0,1]")
    tagput(ACC+4, [ACC, ACC+1, ACC+2, ACC+3])
    e(f"buffer_store_dwordx4 {vr(ACC+4)}, v{GA}, {R_WS}, s100 offen sc1", tag="pubO")
    e(f"s_branch {Lp}")
    e.label(L4)
    e(f"s_cmp_lg_u32 {S_W}, 3"); e(f"s_cbranch_scc1 {Lp}")
    e("s_mov_b64 exec, 0xff")
    e(f"v_lshlrev_b32 v{T1}, 6, v{V_LANE}")
    for i in range(4): e(f"ds_read_b128 {vr(ML8+4*i)}, v{T1} offset:{L_MX + 16*i}")
    e("s_waitcnt lgkmcnt(0)")
    wg_factors()
    e(f"v_mul_f32 v{ACC+9}, v{ML8+1}, v{ML8}")
    for w in range(1, 8): e(f"v_fmac_f32 v{ACC+9}, v{ML8+2*w+1}, v{ML8+2*w}")
    e(f"v_mov_b32 v{ACC+8}, v{T0}"); e(f"v_mov_b32 v{ACC+10}, v{V_T}"); e(f"v_mov_b32 v{ACC+11}, v{V_T}")
    e(f"buffer_store_dwordx4 {vr(ACC+8)}, v{V_V}, {R_WS}, s101 offen sc1", tag="pubML")
    e("s_mov_b64 exec, -1")
    e.cond_depth -= 1
    e.label(Lp)
    stamp(9)
    def late_dn(L):
        for jj in range(8 - L, 8):
            e(f"s_add_u32 s76, {S_DNB}, {(8*(jj&3) + (jj>>2))*2048}")
            e(f"buffer_load_dwordx4 {vr(SLOT(0)+4*jj)}, v{V_DN}, {R_DN}, s76 offen nt", tag="dn2")
        for p in range((8 - L) // 2, 4):
            e(f"s_waitcnt vmcnt({6-2*p})")
            for d in range(4):
                for x in range(2):
                    e(f"v_perm_b32 v{WP+4*(2*d+x)+p}, v{SLOT(0)+4*(2*p+1)+d}, v{SLOT(0)+4*(2*p)+d}, {S_HI if x else S_LO}")
    if pbar: e("s_barrier")
    LF = newlab("ftype")
    e(f"s_cmp_eq_u32 {S_TYPE}, 1"); e(f"s_cbranch_scc1 {LF}")
    e.cond_depth += 1
    OG, MG = ACC + 16, ACC + 20
    def o_issue():
        e(f"buffer_load_dwordx4 {vr(MG)}, v{VM}, {R_WS}, s79 offen sc1", tag="og")
        e(f"buffer_load_dwordx4 {vr(OG)}, v{VO}, {R_WS}, s78 offen sc1", tag="og")
    def o_check():
        tagcheck(OG, T3, True, T5)
        e(f"v_xor_b32 v{T3}, v{MG+2}, v{V_T}"); e(f"v_xor_b32 v{T4}, v{MG+3}, v{V_T}")
        e(f"v_or3_b32 v{T5}, v{T5}, v{T3}, v{T4}")
    late_dn(LA)
    o_issue()
    poll(o_issue, o_check, lambda: e("s_waitcnt vmcnt(0)"), "o", sleep=slp_o)
    stamp(10)
    e(f"v_mov_b32 v{T0}, v{MG}")
    xlane("v_max_f32", [T0], [T1], ["r8", "p16", "p32"])
    e(f"v_sub_f32 v{T2}, v{MG}, v{T0}"); e(f"v_exp_f32 v{T2}, v{T2}")
    for c in range(4): e(f"v_mul_f32 v{OG+c}, v{OG+c}, v{T2}")
    e(f"v_mul_f32 v{T1}, v{MG+1}, v{T2}")
    xlane("v_add_f32", [OG, OG+1, OG+2, OG+3, T1], [MG, MG+1, MG+2, MG+3, T4], ["r8", "p16", "p32"])
    e("s_mov_b64 exec, 0xff")
    e(f"ds_write_b128 v{OLW}, {vr(OG)} offset:{L_S2}")
    e("s_mov_b64 exec, 1")
    e(f"ds_write_b64 v{MW}, {vr(T0,2)} offset:{L_S2M}")
    e("s_mov_b64 exec, -1")
    e("s_waitcnt lgkmcnt(0)")
    e("s_barrier")
    for i in range(2): e(f"ds_read_b128 {vr(SC+4*i)}, v{S2M} offset:{L_S2M + 16*i}")
    for i in range(4):
        for h in range(2): e(f"ds_read_b128 {vr(ACC+8*i+4*h)}, v{S2O} offset:{L_S2 + 128*i + 16*h}")
    e("s_waitcnt lgkmcnt(8)")
    e(f"v_max3_f32 v{T0}, v{SC}, v{SC+2}, v{SC+4}"); e(f"v_max_f32 v{T0}, v{T0}, v{SC+6}")
    for i in range(4): e(f"v_sub_f32 v{SC+2*i}, v{SC+2*i}, v{T0}")
    for i in range(4): e(f"v_exp_f32 v{SC+2*i}, v{SC+2*i}")
    e(f"v_mul_f32 v{T1}, v{SC+1}, v{SC}")
    for i in range(1, 4): e(f"v_fmac_f32 v{T1}, v{SC+2*i+1}, v{SC+2*i}")
    e(f"v_rcp_f32 v{T1}, v{T1}")
    for i in range(4): e(f"v_mul_f32 v{SC+2*i}, v{SC+2*i}, v{T1}")
    for i in range(4):
        e(f"s_waitcnt lgkmcnt({6-2*i})")
        for c in range(0, 8, 2):
            if i == 0: e(f"v_pk_mul_f32 {vr(ACC+c,2)}, {vr(ACC+c,2)}, {vr(SC,2)} op_sel_hi:[1,0]")
            else: e(f"v_pk_fma_f32 {vr(ACC+c,2)}, {vr(ACC+8*i+c,2)}, {vr(SC+2*i,2)}, {vr(ACC+c,2)} op_sel_hi:[1,0,1]")
    for d in range(4): e(f"v_cvt_pk_bf16_f32 v{AD+d}, v{ACC+2*d}, v{ACC+2*d+1}")
    down_mfma_publish(AD, WP, ACC, SLOT(2))
    stamp(11)
    e("s_branch L_fini")
    e.label(LF)
    if late_ffn:
      with cond(f"s_cmp_eq_u32 {S_HASF}, 0", "s_cbranch_scc1"):
        e(f"ds_read_b128 {vr(AD)}, v{ADA} offset:{L_OL}")
        late_dn(LF_)
        e("s_waitcnt lgkmcnt(0)")
        down_mfma_publish(AD, WP, SLOT(2), SLOT(3))
      stamp(11)
    VA, VX = T0, T1
    G = SLOT(1)
    XQ = AD
    e(f"v_lshrrev_b32 v{VA}, 2, v{V_LANE}"); e(f"v_lshlrev_b32 v{VA}, 13, v{VA}")
    e(f"v_and_b32 v{VX}, 3, v{V_LANE}"); e(f"v_lshlrev_b32 v{VX}, 4, v{VX}"); e(f"v_add_u32 v{VA}, v{VA}, v{VX}")
    e(f"s_lshl_b32 s72, {S_IDX}, 6"); e(f"s_add_u32 s72, s72, {WS_AP}"); e(f"s_lshl_b32 s7, {S_W}, 17"); e("s_add_u32 s72, s72, s7")
    e(f"s_add_u32 s74, s72, {128*8192}")
    e(f"s_lshr_b32 s7, {S_IDX}, 3"); e("s_and_b32 s7, s7, 1"); e("s_lshl_b32 s73, s7, 11")
    e(f"s_lshr_b32 s7, {S_IDX}, 4"); e("s_lshl_b32 s7, s7, 8"); e("s_add_u32 s73, s73, s7")
    e(f"s_and_b32 s7, {S_IDX}, 3"); e("s_lshl_b32 s7, s7, 6"); e("s_add_u32 s73, s73, s7")
    e(f"s_and_b32 s7, {S_IDX}, 4"); e("s_lshl_b32 s7, s7, 1"); e("s_add_u32 s73, s73, s7")
    e(f"buffer_load_dwordx2 {vr(XQ,2)}, v{VX}, {R_X}, s73 offen", tag="xq")
    VL = T2
    e(f"s_lshl_b32 s7, {S_W}, 6"); e(f"v_add_u32 v{VL}, s7, v{VX}")
    def ga_issue(): e(f"buffer_load_dwordx4 {vr(G)}, v{VA}, {R_WS}, s72 offen sc1", tag="g")
    def gf_issue(): e(f"buffer_load_dwordx4 {vr(G+4)}, v{VA}, {R_WS}, s74 offen sc1", tag="g")
    for c in range(4): e(f"v_mov_b32 v{G+4+c}, 0")
    with cond(f"s_cmp_eq_u32 {S_W}, 7", "s_cbranch_scc1"):
        gf_issue()
        poll(gf_issue, lambda: tagcheck(G+4, T3, True, T5), lambda: e("s_waitcnt vmcnt(0)"), "gf")
    xlane("v_add_f32", [G+4, G+5, G+6, G+7], [G+8, G+9, G+10, G+11], ["r4", "r8", "p16", "p32"])
    e("s_mov_b64 exec, 0xf")
    e(f"ds_write_b128 v{VL}, {vr(G+4)} offset:{L_REDQ+512}")
    if prepoll:
        e("s_mov_b64 exec, 1")
        ga_issue()
        poll(ga_issue, lambda: tagcheck(G, T3, True, T5), lambda: e("s_waitcnt vmcnt(0)"), "gp", sleep=slp_pre)
    e("s_mov_b64 exec, -1")
    ga_issue()
    poll(ga_issue, lambda: tagcheck(G, T3, True, T5), lambda: e("s_waitcnt vmcnt(0)"), "ga", sleep=slp_g)
    stamp(12)
    xlane("v_add_f32", [G, G+1, G+2, G+3], [G+8, G+9, G+10, G+11], ["r4", "r8", "p16", "p32"])
    e("s_mov_b64 exec, 0xf")
    e(f"ds_write_b128 v{VL}, {vr(G)} offset:{L_REDQ}")
    e("s_waitcnt lgkmcnt(0)")
    e("s_barrier")
    e(f"s_cmp_lg_u32 {S_W}, 0"); e("s_cbranch_scc1 L_fini")
    e("s_mov_b64 exec, -1")
    e(f"ds_read_b128 {vr(G)}, v{V_V} offset:{L_REDQ}")
    XU = G + 12
    for d in range(2):
        e(f"v_lshlrev_b32 v{XU+2*d}, 16, v{XQ+d}"); e(f"v_and_b32 v{XU+2*d+1}, {S_MASKH}, v{XQ+d}")
    e("s_waitcnt lgkmcnt(0)")
    xlane("v_add_f32", [G, G+1, G+2, G+3], [G+8, G+9, G+10, G+11], ["r4", "r8", "p16"])
    rnd2(G, G+1, G+4); rnd2(G+2, G+3, G+5)
    for c in range(4): e(f"v_mov_b32 v{G+8+c}, v{G+c}")
    for c in range(4): e(f"v_permlane32_swap_b32 v{G+c}, v{G+8+c}")
    for c in range(4): e(f"v_add_f32 v{G+c}, v{XU+c}, v{G+c}")
    rnd2(G, G+1, G+4); rnd2(G+2, G+3, G+5)
    for c in range(4): e(f"v_add_f32 v{G+c}, v{G+c}, v{G+8+c}")
    e(f"v_cvt_pk_bf16_f32 v{G+4}, v{G}, v{G+1}"); e(f"v_cvt_pk_bf16_f32 v{G+5}, v{G+2}, v{G+3}")
    e("s_mov_b64 exec, 0xf")
    e(f"buffer_store_dwordx2 {vr(G+4,2)}, v{VX}, {R_OUT}, s73 offen")
    e(f"s_cmp_lg_u32 {S_IDX}, 0"); e("s_cbranch_scc1 L_fini")
    e("s_mov_b64 exec, 1")
    e(f"buffer_store_dword v{V_T}, off, {R_WS}, 0")
    e.cond_depth -= 1
    e.label("L_fini")
    if stamps:
        e("s_mov_b64 exec, -1")
        stamp(13)
        e("s_mov_b64 exec, 0xffff")
        e(f"v_lshlrev_b32 v{T0}, 2, v{V_LANE}")
        e("s_lshl_b32 s7, s2, 3"); e(f"s_add_u32 s7, s7, {S_W}"); e("s_lshl_b32 s7, s7, 6"); e(f"s_add_u32 s7, s7, {WS_SIZE}")
        e("s_mov_b32 s58, 0x1000000")
        e(f"buffer_store_dword v0, v{T0}, {R_WS}, s7 offen")
    e.label("L_end")
    e("s_endpgm")

    out = HEADER
    out += f"; @launch grid=(256,1,1) block=(512,1,1) lds={LDS_BYTES}\n"
    out += '.amdgcn_target "amdgcn-amd-amdhsa--gfx950"\n.text\n'
    out += f".globl {KNAME}\n.p2align 8\n.type {KNAME},@function\n{KNAME}:\n"
    out += e.text()
    out += f""".section .rodata,"a"
.p2align 6
.amdhsa_kernel {KNAME}
  .amdhsa_next_free_vgpr 256
  .amdhsa_next_free_sgpr 102
  .amdhsa_accum_offset 256
  .amdhsa_group_segment_fixed_size 0
  .amdhsa_kernarg_size 88
  .amdhsa_user_sgpr_count 2
  .amdhsa_user_sgpr_kernarg_segment_ptr 1
  .amdhsa_system_sgpr_workgroup_id_x 1
.end_amdhsa_kernel
"""
    return out

if __name__ == "__main__":
    import argparse
    ap = argparse.ArgumentParser()
    ap.add_argument("-o", default="parallel_sum__gqa_block_cached__dense_activation_silu__decode.s")
    ap.add_argument("--inf", type=int, default=8)
    ap.add_argument("--stamps", action="store_true")
    ap.add_argument("--kw", default="")
    a = ap.parse_args()
    kw = eval("dict(%s)" % a.kw)
    open(a.o, "w").write(gen(INF=a.inf, stamps=a.stamps, **kw))
```

```python
import sys
from emit import Emit
KNAME = "parallel_sum__gqa_block_cached__dense_activation_silu__decode_kernel"
HEADER = open("parallel_sum__gqa_block_cached__dense_activation_silu__decode.s.ref").read().split("; Override launch geometry")[0]

WS_QP = 0x1000
QP_B = 7680 * 4
QP_K = 2 * QP_B
WS_ML = 0x40000
WS_CT = 0x50000
WS_OP = 0x80000
WS_AP = 0x200000
WS_SIZE = 0x400000
L_REDQ = 0
L_REDH = 4096
L_Q = 8192
L_MX = 10240
L_OL = 10752
L_FA = 11008; L_FH = 11040; L_FQ = 11072
L_S2 = 0
L_S2M = 1024
L_ORED = 12288
LDS_BYTES = L_ORED + 8 * 4096
V_LANE, V_K, V_V, V_UP, V_DN, V_T, V_AL, V_ML, V_L = 1, 2, 3, 4, 5, 6, 7, 8, 9
T0, T1, T2, T3, T4, T5 = 10, 11, 12, 13, 14, 15
ACC = 16
Q0, Q1 = 48, 52
P = 56
AD = 60
SC = 64
def SLOT(k): return 96 + 32 * k
S_W, S_TYPE, S_IDX, S_T = "s3", "s4", "s5", "s6"
S_LO, S_HI = "s8", "s9"
S_TI = ["s10", "s11", "s12", "s13"]
S_G2 = "s14"
S_CNT = "s15"
R_K, R_V, R_UP, R_DN, R_WS, R_X, R_OUT, R_W1 = "s[40:43]", "s[44:47]", "s[48:51]", "s[52:55]", "s[56:59]", "s[60:63]", "s[64:67]", "s[28:31]"
S_KV, S_UPQ, S_UPH, S_DNB = "s68", "s69", "s70", "s71"
S_LOG2E, S_SCALE, S_MASKH, S_HASF, S_HASH, S_KS = "s82", "s83", "s84", "s85", "s86", "s87"
S_N8 = "s[88:89]"
S_CBH = "s39"
POLL_LIMIT = 1 << 17
def vr(a, n=4): return f"v[{a}:{a+n-1}]"

def gen(INF=8, stamps=False, NS=5, HF=8, pf=True, prio=True, slp_o=0, slp_g=0, slp_pre=2, prepoll=True, late_ffn=True, LA=4, LF_=8, pbar=True, dbgt=False):
    e = Emit()
    lab = [0]
    def newlab(p):
        lab[0] += 1
        return f"L_{p}_{lab[0]}"
    def stamp(k):
        if not stamps: return
        e("s_memrealtime s[90:91]"); e("s_waitcnt lgkmcnt(0)"); e(f"v_writelane_b32 v0, s90, {k}")
    def throttle():
        if INF: e(f"s_waitcnt vmcnt({INF-1})")
    def setprio(n):
        if prio: e(f"s_setprio {n}")
    def dpp(op, d, a, b, ctl):
        e(f"{op}_dpp v{d}, v{a}, v{b} {ctl} row_mask:0xf bank_mask:0xf")
    def xlane(op, regs, tmps, steps):
        for st in steps:
            if st[0] == "r":
                for r in regs: dpp(op, r, r, r, f"row_ror:{st[1:]}")
            else:
                for r, t in zip(regs, tmps): e(f"v_mov_b32 v{t}, v{r}")
                for r, t in zip(regs, tmps): e(f"v_permlane{st[1:]}_swap_b32 v{r}, v{t}")
                for r, t in zip(regs, tmps): e(f"{op} v{r}, v{r}, v{t}")
    def tagcheck(g, tmp, first, accum):
        e(f"v_perm_b32 v{tmp}, v{g+1}, v{g}, {S_G2}")
        e(f"v_perm_b32 v{tmp+1}, v{g+3}, v{g+2}, {S_G2}")
        e(f"v_perm_b32 v{tmp}, v{tmp+1}, v{tmp}, {S_LO}")
        if first: e(f"v_xor_b32 v{accum}, v{tmp}, v{V_T}")
        else:
            e(f"v_xor_b32 v{tmp}, v{tmp}, v{V_T}")
            e(f"v_or_b32 v{accum}, v{accum}, v{tmp}")
    def tagput(dst, srcs):
        for i, s in enumerate(srcs): e(f"v_perm_b32 v{dst+i}, v{s}, v{V_T}, {S_TI[i]}")
    def rnd2(a, b_, tmp):
        e(f"v_cvt_pk_bf16_f32 v{tmp}, v{a}, v{b_}")
        e(f"v_lshlrev_b32 v{a}, 16, v{tmp}")
        e(f"v_and_b32 v{b_}, {S_MASKH}, v{tmp}")
    def poll(issue, check, waitfirst, name, sleep=0):
        Lr, Ld, Lx = newlab(name + "_retry"), newlab(name + "_done"), newlab(name + "_exit")
        waitfirst()
        check()
        e(f"v_cmp_ne_u32 vcc, 0, v{T5}")
        e(f"s_cbranch_vccz {Ld}")
        e(f"s_mov_b32 {S_CNT}, 0")
        e("s_mov_b64 s[80:81], exec")
        e.label(Lr)
        e("s_mov_b64 exec, vcc")
        if sleep: e(f"s_sleep {sleep}")
        e("s_nop 4")
        e.cond_depth += 1
        issue()
        e.cond_depth -= 1
        e(f"s_add_u32 {S_CNT}, {S_CNT}, 1")
        e(f"s_cmp_gt_u32 {S_CNT}, {POLL_LIMIT}")
        e("s_waitcnt vmcnt(0)")
        e(f"s_cbranch_scc1 {Lx}")
        check()
        e(f"v_cmp_ne_u32 vcc, 0, v{T5}")
        e(f"s_cbranch_vccnz {Lr}")
        e.label(Lx)
        e("s_mov_b64 exec, s[80:81]")
        e.label(Ld)
    def setflag(base, idx=None):
        if idx is None:
            e(f"s_lshl_b32 s7, {S_W}, 2"); e(f"v_mov_b32 v{T1}, s7")
        else: e(f"v_mov_b32 v{T1}, {4*idx}")
        e("s_waitcnt lgkmcnt(0)")
        e("s_mov_b64 exec, 1")
        e(f"v_mov_b32 v{T2}, 1")
        e(f"ds_write_b32 v{T1}, v{T2} offset:{base}")
        e("s_mov_b64 exec, -1")
    def waitflags(base, n, name):
        Lr, Lx = newlab(name), newlab(name + "x")
        e(f"v_and_b32 v{T1}, {n-1}, v{V_LANE}"); e(f"v_lshlrev_b32 v{T1}, 2, v{T1}")
        e(f"s_mov_b32 {S_CNT}, 0")
        e.label(Lr)
        e(f"ds_read_b32 v{T2}, v{T1} offset:{base}")
        e(f"s_add_u32 {S_CNT}, {S_CNT}, 1"); e(f"s_cmp_gt_u32 {S_CNT}, {POLL_LIMIT*4}")
        e("s_waitcnt lgkmcnt(0)")
        e(f"s_cbranch_scc1 {Lx}")
        e(f"v_cmp_ne_u32 vcc, 1, v{T2}")
        e(f"s_cbranch_vccnz {Lr}")
        e.label(Lx)
    def srd(base, lo, hi, n):
        e(f"s_mov_b32 s{base}, {lo}"); e(f"s_mov_b32 s{base+1}, {hi}"); e(f"s_mov_b32 s{base+2}, {n}"); e(f"s_mov_b32 s{base+3}, 0x00020000")
    class cond:
        def __init__(self, cmp, br):
            self.L = newlab("skip"); self.cmp = cmp if isinstance(cmp, list) else [cmp]; self.br = br
        def __enter__(self):
            for c in self.cmp:
                e(c); e(f"{self.br} {self.L}")
            e.cond_depth += 1
        def __exit__(self, *a):
            e.cond_depth -= 1; e.label(self.L)

    if stamps or dbgt: e("s_memrealtime s[90:91]")
    e("s_cmp_ge_u32 s2, 256")
    e("s_cbranch_scc1 L_end")
    setprio(3)
    e("s_load_dwordx16 s[16:31], s[0:1], 0")
    e("s_load_dwordx4 s[32:35], s[0:1], 64")
    e("s_load_dwordx2 s[36:37], s[0:1], 80")
    if pf:
        e("s_getpc_b64 s[72:73]")
        e.raw("L_pc:")
        e(f"v_lshlrev_b32 v{T0}, 4, v0")
        e(f"global_load_dwordx4 {vr(SLOT(0))}, v{T0}, s[72:73]", tag="pf")
        e(f"v_add_u32 v{T0}, 8192, v{T0}")
        e(f"v_min_u32 v{T0}, L_end-L_pc-16, v{T0}")
        e(f"global_load_dwordx4 {vr(SLOT(0)+4)}, v{T0}, s[72:73]", tag="pf")
    e(f"v_lshrrev_b32 v{T0}, 6, v0")
    e(f"v_and_b32 v{V_LANE}, 63, v0")
    e(f"v_readfirstlane_b32 {S_W}, v{T0}")
    if stamps: e("v_mov_b32 v0, 0")
    e(f"v_lshrrev_b32 v{T0}, 3, v{V_LANE}"); e(f"v_and_b32 v{T1}, 7, v{V_LANE}"); e(f"v_lshlrev_b32 v{T1}, 4, v{T1}")
    e(f"v_lshl_add_u32 v{V_UP}, v{T0}, 15, v{T1}")
    e(f"v_mul_u32_u24 v{V_DN}, {4*7168}, v{T0}"); e(f"v_add_u32 v{V_DN}, v{V_DN}, v{T1}")
    e("s_and_b32 s7, s2, 3"); e("s_lshl_b32 s72, s7, 8"); e(f"s_lshl_b32 s73, {S_W}, 5"); e("s_add_u32 s72, s72, s73")
    e("s_lshr_b32 s73, s2, 2")
    e(f"s_lshl_b32 {S_UPQ}, s72, 13"); e("s_lshl_b32 s74, s73, 7"); e(f"s_add_u32 {S_UPQ}, {S_UPQ}, s74")
    e(f"v_lshlrev_b32 v{T2}, 3, v{T0}"); e("s_lshl_b32 s74, s72, 1"); e(f"v_add_u32 v{T2}, s74, v{T2}")
    e(f"v_lshlrev_b32 v{T3}, 5, v{V_LANE}")
    e("s_lshl_b32 s7, s7, 1"); e("s_add_u32 s7, s7, 1"); e("s_and_b32 s74, s73, 7")
    e("s_cmp_lg_u32 s74, s7"); e(f"s_cselect_b32 {S_HASH}, 1, 0")
    e("s_lshr_b32 s75, s73, 3"); e("s_mul_i32 s75, s75, 7"); e("s_add_u32 s75, s75, s74")
    e("s_cmp_gt_u32 s74, s7"); e(f"s_subb_u32 {S_CBH}, s75, 0")
    e(f"s_mul_i32 {S_UPH}, s72, 7168"); e(f"s_lshl_b32 s74, {S_CBH}, 7"); e(f"s_add_u32 {S_UPH}, {S_UPH}, s74")
    e(f"s_mov_b32 {S_MASKH}, 0xffff0000")
    e(f"v_lshlrev_b32 v{T4}, 2, v{V_LANE}"); e(f"v_mov_b32 v{T5}, 0")
    e(f"ds_write_b32 v{T4}, v{T5} offset:{L_FA}")
    e("s_waitcnt lgkmcnt(0)")
    e("s_barrier")
    if stamps:
        e("v_writelane_b32 v0, s90, 15"); stamp(14)
    e("s_load_dword s6, s[36:37], 0")
    srd(60, "s16", "s17", 4096)
    XF, XR = SC, SC + 16
    for b in range(2):
        for hf in range(2):
            e(f"buffer_load_dwordx4 {vr(XF+8*b+4*hf)}, v{T3}, {R_X}, 0 offen offset:{b*2048+hf*16}", tag="xf")
    for b in range(2):
        e(f"buffer_load_dwordx2 {vr(XR+2*b,2)}, v{T2}, {R_X}, 0 offen offset:{b*2048}", tag="xr")
    srd(48, "s22", "s23", 8 << 20)
    UPS = SLOT(4)
    for i in range(4):
        e(f"buffer_load_dwordx4 {vr(UPS+4*i)}, v{V_UP}, {R_UP}, {S_UPQ} offen nt", tag="upq")
        if i < 3: e(f"s_add_u32 {S_UPQ}, {S_UPQ}, 8192")
    e(f"s_lshr_b32 {S_TYPE}, s2, 3"); e(f"s_xor_b32 {S_TYPE}, {S_TYPE}, s2"); e(f"s_and_b32 {S_TYPE}, {S_TYPE}, 1")
    e(f"s_lshr_b32 {S_IDX}, s2, 1"); e(f"s_and_b32 s7, {S_IDX}, 7")
    srd(40, "s18", "s19", 64 << 20)
    srd(44, "s20", "s21", 64 << 20)
    srd(56, "s36", "s37", WS_SIZE)
    srd(64, "s32", "s33", 4096)
    e(f"s_cmp_eq_u32 {S_TYPE}, 1")
    e("s_cselect_b32 s52, s30, s24"); e("s_cselect_b32 s53, s31, s25"); e("s_cselect_b32 s54, 7, 8"); e("s_lshl_b32 s54, s54, 20")
    e("s_mov_b32 s55, 0x00020000")
    e(f"s_mul_i32 s30, {S_HASH}, {7<<20}"); e("s_mov_b32 s31, 0x00020000")
    e("s_cmp_lg_u32 s7, 7"); e(f"s_cselect_b32 {S_HASF}, {S_TYPE}, 0")
    e(f"s_lshr_b32 s7, {S_IDX}, 3"); e(f"s_mul_i32 s7, s7, {S_TYPE}"); e(f"s_sub_u32 {S_KS}, {S_IDX}, s7")
    e(f"s_cmp_eq_u32 {S_TYPE}, {S_HASF}")
    e("s_cselect_b32 s54, s54, 0")
    e(f"s_mov_b32 {S_LO}, 0x05040100"); e(f"s_mov_b32 {S_HI}, 0x07060302")
    for i in range(4): e(f"s_mov_b32 {S_TI[i]}, 0x{0x07060500 + i:08x}")
    e(f"s_mov_b32 {S_G2}, 0x0c0c0400")
    e(f"s_mov_b32 {S_LOG2E}, 0x3fb8aa3b"); e(f"s_mov_b32 {S_SCALE}, 0x3db504f3")
    e("s_mov_b32 s88, 0x00ff00ff"); e("s_mov_b32 s89, 0x00ff00ff")
    e(f"v_lshlrev_b32 v{V_V}, 4, v{V_LANE}")
    e(f"v_bfe_u32 v{T0}, v{V_LANE}, 1, 1"); e(f"v_bfe_u32 v{T1}, v{V_LANE}, 2, 2")
    e(f"v_lshl_add_u32 v{T0}, v{T0}, 2, v{T1}"); e(f"v_lshlrev_b32 v{V_K}, 8, v{T0}")
    e(f"v_lshrrev_b32 v{T1}, 4, v{V_LANE}"); e(f"v_lshl_add_u32 v{V_K}, v{T1}, 5, v{V_K}")
    e(f"v_and_b32 v{T1}, 1, v{V_LANE}"); e(f"v_lshl_add_u32 v{V_K}, v{T1}, 4, v{V_K}")
    e(f"s_lshl_b32 {S_KV}, s2, 18"); e(f"s_lshl_b32 s7, {S_W}, 12"); e(f"s_add_u32 {S_KV}, {S_KV}, s7")
    e(f"s_lshl_b32 {S_DNB}, {S_KS}, 16"); e(f"s_lshl_b32 s7, {S_W}, 8"); e(f"s_add_u32 {S_DNB}, {S_DNB}, s7")

    def kload(u, slot, i, thr=True):
        beta, t = i >> 1, i & 1
        if i % 4 == 0: e(f"s_add_u32 s74, {S_KV}, {(2*u + (beta >> 1)) * 32768}")
        if thr: throttle()
        e(f"buffer_load_dwordx4 {vr(SLOT(slot)+4*i)}, v{V_K}, {R_K}, s74 offen offset:{(beta&1)*2048 + t*128} nt", tag=f"k{u}")
    def vload(u, slot, j, thr=True):
        if j % 4 == 0: e(f"s_add_u32 s75, {S_KV}, {(2*u + (j >> 2)) * 32768}")
        if thr: throttle()
        e(f"buffer_load_dwordx4 {vr(SLOT(slot)+4*j)}, v{V_V}, {R_V}, s75 offen offset:{(j&3)*1024} nt", tag=f"v{u}")
    def issueK(u, slot, lo=0, hi=8):
        for i in range(lo, hi): kload(u, slot, i)
    def issueV(u, slot, lo=0, hi=8):
        for j in range(lo, hi): vload(u, slot, j)
    def issueDN(slot, lo=0, hi=8):
        for jj in range(lo, hi):
            a_on, f_on = jj < 8 - LA, jj < 8 - LF_
            e(f"s_add_u32 s76, {S_DNB}, {(8*(jj&3) + (jj>>2))*2048}")
            if not a_on and not f_on: e("s_mov_b32 s76, 0x40000000")
            elif a_on != f_on:
                e(f"s_cmp_eq_u32 {S_TYPE}, {0 if a_on else 1}"); e("s_cselect_b32 s76, s76, 0x40000000")
            throttle()
            e(f"buffer_load_dwordx4 {vr(SLOT(slot)+4*jj)}, v{V_DN}, {R_DN}, s76 offen nt", tag="dn")

    stamp(0)
    U = SLOT(3)
    e.wait_vm("xf")
    for i in range(4):
        e(f"buffer_load_dwordx4 {vr(UPS+16+4*i)}, v{V_DN}, {R_W1}, {S_UPH} offen nt", tag="uph")
        if i < 3: e(f"s_add_u32 {S_UPH}, {S_UPH}, 7168")
    for b in range(2):
        for d in range(8):
            e(f"v_lshlrev_b32 v{U+16*b+2*d}, 16, v{XF+8*b+d}")
            e(f"v_and_b32 v{U+16*b+2*d+1}, {S_MASKH}, v{XF+8*b+d}")
    SUM = [T0, T1]; TMP = [T2, T3]; VAR = [T4, T5]
    for b in range(2):
        e(f"v_pk_add_f32 {vr(XF+4*b,2)}, {vr(U+16*b,2)}, {vr(U+16*b+2,2)}")
        e(f"v_pk_add_f32 {vr(XF+4*b+2,2)}, {vr(U+16*b+4,2)}, {vr(U+16*b+6,2)}")
    for i in range(4, 8):
        for b in range(2):
            e(f"v_pk_add_f32 {vr(XF+4*b+2*(i&1),2)}, {vr(XF+4*b+2*(i&1),2)}, {vr(U+16*b+2*i,2)}")
    for b in range(2): e(f"v_pk_add_f32 {vr(XF+4*b,2)}, {vr(XF+4*b,2)}, {vr(XF+4*b+2,2)}")
    for b in range(2): e(f"v_add_f32 v{SUM[b]}, v{XF+4*b}, v{XF+4*b+1}")
    xlane("v_add_f32", SUM, TMP, ["r8", "r4", "r2", "r1", "p16", "p32"])
    for b in range(2): e(f"v_mul_f32 v{SUM[b]}, 0x3a800000, v{SUM[b]}")
    kload(0, 0, 0); kload(0, 0, 1)
    for i in range(8):
        for b in range(2):
            e(f"v_pk_add_f32 {vr(U+16*b+2*i,2)}, {vr(U+16*b+2*i,2)}, {vr(T0,2)} op_sel:[0,{b}] op_sel_hi:[1,{b}] neg_lo:[0,1] neg_hi:[0,1]")
    for b in range(2): e(f"v_pk_mul_f32 {vr(XF+4*b,2)}, {vr(U+16*b,2)}, {vr(U+16*b,2)}")
    for i in range(1, 8):
        for b in range(2): e(f"v_pk_fma_f32 {vr(XF+4*b,2)}, {vr(U+16*b+2*i,2)}, {vr(U+16*b+2*i,2)}, {vr(XF+4*b,2)}")
    for b in range(2): e(f"v_add_f32 v{VAR[b]}, v{XF+4*b}, v{XF+4*b+1}")
    xlane("v_add_f32", VAR, TMP, ["r8", "r4", "r2", "r1", "p16", "p32"])
    kload(0, 0, 2); kload(0, 0, 3)
    for b in range(2): e(f"v_mul_f32 v{VAR[b]}, 0x3a800000, v{VAR[b]}")
    rnd2(SUM[0], SUM[1], T2)
    rnd2(VAR[0], VAR[1], T3)
    for b in range(2): e(f"v_add_f32 v{VAR[b]}, 0x3727c5ac, v{VAR[b]}")
    rnd2(VAR[0], VAR[1], T3)
    for b in range(2): e(f"v_sqrt_f32 v{VAR[b]}, v{VAR[b]}")
    rnd2(VAR[0], VAR[1], T3)
    for b in range(2): e(f"v_rcp_f32 v{VAR[b]}, v{VAR[b]}")
    XN = ACC + 16
    e.wait_vm("xr")
    for b in range(2):
        for d in range(2):
            e(f"v_lshlrev_b32 v{XN+4*b+2*d}, 16, v{XR+2*b+d}")
            e(f"v_and_b32 v{XN+4*b+2*d+1}, {S_MASKH}, v{XR+2*b+d}")
    for b in range(2):
        for i in range(4): e(f"v_sub_f32 v{XN+4*b+i}, v{XN+4*b+i}, v{SUM[b]}")
    for d in range(4): rnd2(XN+2*d, XN+2*d+1, U+d)
    for b in range(2):
        for i in range(4): e(f"v_mul_f32 v{XN+4*b+i}, v{XN+4*b+i}, v{VAR[b]}")
    for d in range(4): rnd2(XN+2*d, XN+2*d+1, U+d)
    e("s_waitcnt lgkmcnt(0)")
    e(f"s_mul_i32 {S_T}, {S_T}, 1664525"); e(f"s_add_u32 {S_T}, {S_T}, 1013904223")
    e(f"v_mov_b32 v{V_T}, {S_T}")
    stamp(1)
    e(f"v_lshrrev_b32 v{T0}, 5, v{V_LANE}"); e(f"v_lshlrev_b32 v{T0}, 8, v{T0}")
    e(f"v_and_b32 v{T1}, 7, v{V_LANE}"); e(f"v_lshl_add_u32 v{T0}, v{T1}, 5, v{T0}")
    e(f"v_and_b32 v{T1}, 16, v{V_LANE}"); e(f"v_add_u32 v{T0}, v{T0}, v{T1}")
    e(f"s_lshl_b32 s7, {S_W}, 9"); e(f"v_add_u32 v{V_AL}, s7, v{T0}")
    def up_compute(src, tag, lbase, fbase, between):
        for i in range(4):
            e.wait_vm_idx(tag, i)
            for d in range(4):
                e(f"v_lshlrev_b32 v{U+2*d}, 16, v{src+4*i+d}")
                e(f"v_and_b32 v{U+2*d+1}, {S_MASKH}, v{src+4*i+d}")
            for b in range(2):
                for c in range(0, 8, 2):
                    xr = XN + 4*b + i
                    base = xr & ~1; sel = xr & 1
                    if i == 0: e(f"v_pk_mul_f32 {vr(ACC+8*b+c,2)}, {vr(U+c,2)}, {vr(base,2)} op_sel:[0,{sel}] op_sel_hi:[1,{sel}]")
                    else: e(f"v_pk_fma_f32 {vr(ACC+8*b+c,2)}, {vr(U+c,2)}, {vr(base,2)}, {vr(ACC+8*b+c,2)} op_sel:[0,{sel},0] op_sel_hi:[1,{sel},1]")
            between(i)
        for c in range(8): e(f"v_permlane32_swap_b32 v{ACC+c}, v{ACC+8+c}")
        for c in range(8): e(f"v_add_f32 v{ACC+c}, v{ACC+c}, v{ACC+8+c}")
        for c in range(4): e(f"v_permlane16_swap_b32 v{ACC+c}, v{ACC+4+c}")
        for c in range(4): e(f"v_add_f32 v{ACC+c}, v{ACC+c}, v{ACC+4+c}")
        for c in range(4): dpp("v_add_f32", ACC+c, ACC+c, ACC+c, "row_ror:8")
        e(f"ds_write_b128 v{V_AL}, {vr(ACC)} offset:{lbase}")
        setflag(fbase)
    def up_publish(lbase, fbase, colreg_expr, name):
        waitflags(fbase, 8, name)
        e("s_mov_b32 exec_hi, 0")
        for w in range(8): e(f"ds_read_b128 {vr(U+4*w)}, v{V_V} offset:{lbase + w*512}")
        e(f"v_lshrrev_b32 v{T0}, 4, v{V_LANE}"); e(f"v_mul_u32_u24 v{T0}, {QP_B}, v{T0}")
        e(f"v_and_b32 v{T1}, 15, v{V_LANE}"); e(f"v_lshl_add_u32 v{T0}, v{T1}, 4, v{T0}")
        e("s_and_b32 s7, s2, 3"); e(f"s_mul_i32 s7, s7, {QP_K}")
        colreg_expr()
        e("s_add_u32 s7, s7, s72")
        e("s_waitcnt lgkmcnt(0)")
        for w in range(1, 8):
            e(f"v_pk_add_f32 {vr(U,2)}, {vr(U,2)}, {vr(U+4*w,2)}"); e(f"v_pk_add_f32 {vr(U+2,2)}, {vr(U+2,2)}, {vr(U+4*w+2,2)}")
        tagput(U+4, [U, U+1, U+2, U+3])
        e(f"buffer_store_dwordx4 {vr(U+4)}, v{T0}, {R_WS}, s7 offen sc1", tag="pub")
        e("s_mov_b64 exec, -1")
    up_compute(UPS, "upq", L_REDQ, L_FA, lambda i: None)
    stamp(2)
    with cond(f"s_cmp_lg_u32 {S_W}, 7", "s_cbranch_scc1"):
        up_publish(L_REDQ, L_FA, lambda: (e("s_lshr_b32 s72, s2, 2"), e("s_lshl_b32 s72, s72, 8"), e(f"s_add_u32 s72, s72, {WS_QP}")), "wfa")
    stamp(3)
    setprio(2)
    e("s_lshr_b32 s7, s2, 3"); e("s_lshl_b32 s7, s7, 8"); e(f"s_add_u32 s7, s7, {WS_CT}")
    e("s_add_u32 s92, s36, s7"); e("s_addc_u32 s93, s37, 0")
    e("s_and_b32 s72, s2, 7"); e(f"s_or_b32 s72, s72, {S_W}")
    with cond("s_cmp_lg_u32 s72, 0", "s_cbranch_scc1"):
        e("s_mov_b64 exec, 1")
        e(f"v_mov_b32 v{U+8}, 0"); e(f"v_mov_b32 v{U+9}, {S_T}")
        e(f"buffer_store_dwordx2 {vr(U+8,2)}, off, {R_WS}, s7 sc1", tag="ct")
        e("s_mov_b64 exec, -1")
    up_compute(UPS+16, "uph", L_REDH, L_FH, lambda i: kload(0, 0, 4+i))
    e(f"v_lshrrev_b32 v{T0}, 4, v{V_LANE}"); e(f"v_lshlrev_b32 v{V_DN}, 12, v{T0}")
    e(f"v_and_b32 v{T1}, 15, v{V_LANE}"); e(f"v_lshl_add_u32 v{V_DN}, v{T1}, 4, v{V_DN}")
    issueV(0, 1)
    with cond([f"s_cmp_lg_u32 {S_W}, 6", f"s_cmp_eq_u32 {S_HASH}, 0"], "s_cbranch_scc1"):
        up_publish(L_REDH, L_FH, lambda: (e(f"s_lshl_b32 s72, {S_CBH}, 8"), e(f"s_add_u32 s72, s72, {WS_QP + 4096*4}")), "wfh")
    issueK(1, 2)
    issueV(1, 3)
    setprio(1)
    issueDN(4, 0, 4)
    QG = SC
    e("s_lshr_b32 s77, s2, 7"); e(f"s_mul_i32 s77, s77, {QP_B}")
    e("s_lshr_b32 s7, s2, 5"); e("s_and_b32 s7, s7, 3"); e("s_lshl_b32 s7, s7, 12"); e("s_add_u32 s77, s77, s7")
    e(f"s_lshl_b32 s7, {S_W}, 10"); e("s_add_u32 s77, s77, s7"); e(f"s_add_u32 s77, s77, {WS_QP}")
    e(f"s_add_u32 s78, s77, {2*QP_K}")
    VQ2 = Q0
    e(f"v_add_u32 v{VQ2}, {QP_K}, v{V_V}")
    def q_issue():
        for kq in range(4):
            e(f"buffer_load_dwordx4 {vr(QG+4*kq)}, v{VQ2 if kq & 1 else V_V}, {R_WS}, s{77 + (kq >> 1)} offen sc1", tag="qp")
    def q_check():
        for kq in range(4): tagcheck(QG+4*kq, T3, kq == 0, T5)
    VH = Q0 + 1
    e(f"v_lshrrev_b32 v{T0}, 3, v{V_LANE}"); e(f"v_mul_u32_u24 v{VH}, {QP_B}, v{T0}")
    e(f"v_and_b32 v{T1}, 7, v{V_LANE}"); e(f"v_lshl_add_u32 v{VH}, v{T1}, 4, v{VH}")
    e(f"s_lshl_b32 s79, {S_KS}, 7"); e(f"s_add_u32 s79, s79, {WS_QP + 4096*4}")
    def h_issue(): e(f"buffer_load_dwordx4 {vr(QG)}, v{VH}, {R_WS}, s79 offen sc1", tag="hp")
    def h_check(): tagcheck(QG, T3, True, T5)
    with cond(f"s_cmp_ge_u32 {S_W}, 4", "s_cbranch_scc1"): q_issue()
    with cond([f"s_cmp_lg_u32 {S_W}, 4", f"s_cmp_eq_u32 {S_HASF}, 0"], "s_cbranch_scc1"): h_issue()
    issueDN(4, 4, 8)
    with cond(f"s_cmp_ge_u32 {S_W}, 4", "s_cbranch_scc1"):
        poll(q_issue, q_check, lambda: e("s_waitcnt vmcnt(4)"), "q")
        for kq in range(1, 4):
            e(f"v_pk_add_f32 {vr(QG,2)}, {vr(QG,2)}, {vr(QG+4*kq,2)}"); e(f"v_pk_add_f32 {vr(QG+2,2)}, {vr(QG+2,2)}, {vr(QG+4*kq+2,2)}")
        e(f"v_cvt_pk_bf16_f32 v{QG}, v{QG}, v{QG+1}")
        e(f"v_cvt_pk_bf16_f32 v{QG+1}, v{QG+2}, v{QG+3}")
        e(f"v_lshlrev_b32 v{T0}, 3, v{V_LANE}"); e(f"s_lshl_b32 s7, {S_W}, 9"); e(f"v_add_u32 v{T0}, s7, v{T0}")
        e(f"ds_write_b64 v{T0}, {vr(QG,2)} offset:{L_Q}")
        setflag(L_FQ)
    with cond([f"s_cmp_lg_u32 {S_W}, 4", f"s_cmp_eq_u32 {S_HASF}, 0"], "s_cbranch_scc1"):
        poll(h_issue, h_check, lambda: e("s_waitcnt vmcnt(4)"), "h")
        HG = QG
        xlane("v_add_f32", [HG, HG+1, HG+2, HG+3], [HG+4, HG+5, HG+6, HG+7], ["p16", "p32"])
        for d in range(2): rnd2(HG+2*d, HG+2*d+1, HG+8+d)
        for i in range(4): e(f"v_mul_f32 v{HG+8+i}, {S_LOG2E}, v{HG+i}")
        for i in range(4): e(f"v_exp_f32 v{HG+8+i}, -v{HG+8+i}")
        for i in range(4): e(f"v_add_f32 v{HG+8+i}, 1.0, v{HG+8+i}")
        for i in range(4): e(f"v_rcp_f32 v{HG+8+i}, v{HG+8+i}")
        for i in range(4): e(f"v_mul_f32 v{HG+i}, v{HG+i}, v{HG+8+i}")
        for d in range(2): e(f"v_cvt_pk_bf16_f32 v{HG+4+d}, v{HG+2*d}, v{HG+2*d+1}")
        e(f"v_and_b32 v{T0}, 1, v{V_LANE}"); e(f"v_lshlrev_b32 v{T0}, 5, v{T0}")
        e(f"v_bfe_u32 v{T1}, v{V_LANE}, 1, 2"); e(f"v_lshl_add_u32 v{T0}, v{T1}, 1, v{T0}")
        e(f"v_bfe_u32 v{T1}, v{V_LANE}, 3, 1"); e(f"v_lshl_add_u32 v{T0}, v{T1}, 6, v{T0}")
        e("s_mov_b64 exec, 0xffff")
        for d in range(2):
            e(f"ds_write_b16 v{T0}, v{HG+4+d} offset:{L_OL + 16*d}")
            e(f"ds_write_b16_d16_hi v{T0}, v{HG+4+d} offset:{L_OL + 16*d + 8}")
        e("s_mov_b64 exec, -1")
        setflag(L_FQ)
    stamp(4)
    e(f"v_and_b32 v{T0}, 7, v{V_LANE}"); e(f"v_lshlrev_b32 v{T0}, 8, v{T0}")
    e(f"v_lshrrev_b32 v{T1}, 4, v{V_LANE}"); e(f"v_lshl_add_u32 v{T0}, v{T1}, 5, v{T0}")
    e(f"v_bfe_u32 v{T1}, v{V_LANE}, 3, 1"); e(f"v_lshl_add_u32 v{T0}, v{T1}, 4, v{T0}")
    waitflags(L_FQ, 4, "wfq")
    e(f"ds_read_b128 {vr(Q0)}, v{T0} offset:{L_Q}")
    e(f"ds_read_b128 {vr(Q1)}, v{T0} offset:{L_Q+128}")
    stamp(5)

    def S_phase(u, slot):
        K = SLOT(slot)
        e.wait_vm(f"k{u}", " lgkmcnt(0)" if u == 0 else "")
        for t in range(2):
            for beta in range(4):
                c = "0" if t == 0 else vr(SC+4*beta)
                e(f"v_mfma_f32_16x16x32_bf16 {vr(SC+4*beta)}, {vr(K+8*beta+4*t)}, {vr(Q0 if t == 0 else Q1)}, {c}")
        yield
        S = SC + 16
        for beta in range(4):
            for eps in range(2):
                dpp("v_add_f32", S+2*beta+eps, SC+4*beta+2*eps+1, SC+4*beta+2*eps, "row_ror:8")
        for d in range(4): rnd2(S+2*d, S+2*d+1, SC+24+d)
        for i in range(8): e(f"v_mul_f32 v{S+i}, {S_SCALE}, v{S+i}")
        for d in range(4): rnd2(S+2*d, S+2*d+1, SC+24+d)
        e(f"v_max3_f32 v{T0}, v{S}, v{S+1}, v{S+2}")
        e(f"v_max3_f32 v{T1}, v{S+3}, v{S+4}, v{S+5}")
        e(f"v_max3_f32 v{T0}, v{T0}, v{S+6}, v{S+7}")
        e(f"v_max_f32 v{T0}, v{T0}, v{T1}")
        xlane("v_max_f32", [T0], [T1], ["p16", "p32"])
        e(f"v_mul_f32 v{T0}, {S_LOG2E}, v{T0}")
        if u > 0:
            e(f"v_max_f32 v{T0}, v{T0}, v{V_ML}")
            e(f"v_sub_f32 v{V_AL}, v{V_ML}, v{T0}")
            e(f"v_exp_f32 v{V_AL}, v{V_AL}")
        e(f"v_mov_b32 v{V_ML}, v{T0}")
        for i in range(8): e(f"v_fma_f32 v{S+i}, v{S+i}, {S_LOG2E}, -v{T0}")
        for i in range(8): e(f"v_exp_f32 v{S+i}, v{S+i}")
        if u > 0:
            e(f"v_mul_f32 v{V_L}, v{V_L}, v{V_AL}")
            for i in range(32): e(f"v_mul_f32 v{ACC+i}, v{ACC+i}, v{V_AL}")
        for d in range(4): e(f"v_cvt_pk_bf16_f32 v{P+d}, v{S+2*d}, v{S+2*d+1}")
        if u == 0: e(f"v_add_f32 v{V_L}, v{S}, v{S+1}")
        else:
            e(f"v_add_f32 v{V_L}, v{V_L}, v{S}"); e(f"v_add_f32 v{V_L}, v{V_L}, v{S+1}")
        for i in range(2, 8): e(f"v_add_f32 v{V_L}, v{V_L}, v{S+i}")
        yield
    def perms32(src, dst):
        for p in range(4):
            for d in range(4):
                for x in range(2):
                    e(f"v_perm_b32 v{dst+4*(2*d+x)+p}, v{src+4*(2*p+1)+d}, v{src+4*(2*p)+d}, {S_HI if x else S_LO}")
    def PV_phase(u, slot):
        e.wait_vm(f"v{u}")
        perms32(SLOT(slot), SC)
        for ee in range(8):
            c = "0" if u == 0 else vr(ACC+4*ee)
            e(f"v_mfma_f32_16x16x32_bf16 {vr(ACC+4*ee)}, {vr(SC+4*ee)}, {vr(P)}, {c}")
    KB, VB = SLOT(0), SLOT(0) + 16
    WP = SLOT(1)
    def tileK(sreg, tag, sreg2=None):
        for i in range(4):
            e(f"buffer_load_dwordx4 {vr(KB+4*i)}, v{V_K}, {R_K}, {sreg if (i < 2 or not sreg2) else sreg2} offen offset:{(i>>1)*2048 + (i&1)*128} nt", tag=tag)
    def tileV(sreg, tag, sreg2=None):
        for j in range(4):
            e(f"buffer_load_dwordx4 {vr(VB+4*j)}, v{V_V}, {R_V}, {sreg if (j < 2 or not sreg2) else sreg2} offen offset:{j*1024} nt", tag=tag)
    def down_mfma_publish(A, W, D, ST):
        for ee in range(8):
            e(f"v_mfma_f32_16x16x32_bf16 {vr(D+4*ee)}, {vr(A)}, {vr(W+4*ee)}, 0")
        e("s_mov_b64 exec, 0xffff")
        for q4 in range(4):
            b, eh = q4 >> 1, q4 & 1
            tagput(ST+4*q4, [D+4*(4*eh+i)+b for i in range(4)])
            e(f"buffer_store_dwordx4 {vr(ST+4*q4)}, v{V_V}, {R_WS}, s38 offen offset:{q4*256} sc1", tag="pubD")
        e("s_mov_b64 exec, -1")
    g = S_phase(0, 0); next(g)
    e("s_load_dwordx2 s[94:95], s[92:93], 0 glc")
    e(f"s_add_u32 s74, {S_KV}, {4*32768}")
    tileK("s74", "k4"); tileV("s74", "v4")
    next(g)
    PV_phase(0, 1)
    Lc1, Lc2 = newlab("ctpoll"), newlab("ctok")
    e(f"s_mov_b32 {S_CNT}, 0")
    e.label(Lc1)
    e("s_waitcnt lgkmcnt(0)")
    e(f"s_cmp_eq_u32 s95, {S_T}"); e(f"s_cbranch_scc1 {Lc2}")
    e(f"s_add_u32 {S_CNT}, {S_CNT}, 1"); e(f"s_cmp_gt_u32 {S_CNT}, {POLL_LIMIT}"); e(f"s_cbranch_scc1 {Lc2}")
    e("s_load_dwordx2 s[94:95], s[92:93], 0 glc")
    e(f"s_branch {Lc1}")
    e.label(Lc2)
    S_NX, S_ST = "s96", "s97"
    def grab():
        e(f"s_mov_b32 {S_NX}, 1")
        e(f"s_atomic_add {S_NX}, s[92:93], 0 glc")
    for _ in S_phase(1, 2): pass
    PV_phase(1, 3)
    e.wait_vm("dn")
    perms32(SLOT(4), WP)
    WA = SLOT(4)
    e(f"v_and_b32 v{T0}, 15, v{V_LANE}"); e(f"v_mul_u32_u24 v{WA}, {512+16}, v{T0}")
    e(f"v_lshrrev_b32 v{T1}, 4, v{V_LANE}"); e(f"v_lshl_add_u32 v{WA}, v{T1}, 7, v{WA}")
    e(f"s_lshl_b32 s7, {S_W}, 12"); e(f"v_add_u32 v{WA}, s7, v{WA}")
    for ee in range(1, 8): e(f"v_xor_b32 v{WA+ee}, {ee*16}, v{WA}")
    RA, GA, VO, VM, MA, MW, ADA, OLW = WA + 8, WA + 9, WA + 10, WA + 11, WA + 12, WA + 13, WA + 14, WA + 15
    e(f"s_lshl_b32 s7, {S_W}, 6"); e(f"v_add_u32 v{T0}, s7, v{V_LANE}")
    e(f"v_lshlrev_b32 v{GA}, 4, v{T0}")
    e(f"v_lshrrev_b32 v{T1}, 5, v{T0}"); e(f"v_and_b32 v{T1}, 7, v{T1}"); e(f"v_lshlrev_b32 v{MA}, 6, v{T1}"); e(f"v_lshlrev_b32 v{T1}, 4, v{T1}")
    e(f"v_xor_b32 v{RA}, v{GA}, v{T1}")
    e(f"v_lshlrev_b32 v{MW}, 6, v{V_LANE}"); e(f"s_lshl_b32 s7, {S_W}, 3"); e(f"v_add_u32 v{MW}, s7, v{MW}")
    e(f"v_and_b32 v{T0}, 1, v{V_LANE}"); e(f"v_lshlrev_b32 v{T0}, 6, v{T0}")
    e(f"v_and_b32 v{T1}, 48, v{V_LANE}"); e(f"v_add_u32 v{ADA}, v{T0}, v{T1}")
    e(f"s_lshl_b32 s7, {S_W}, 7"); e(f"v_add_u32 v{OLW}, s7, v{V_V}")
    S2M, S2O = WA + 16, WA + 17
    e(f"v_and_b32 v{T0}, 1, v{V_LANE}"); e(f"v_lshlrev_b32 v{S2M}, 5, v{T0}")
    e(f"v_lshlrev_b32 v{T0}, 9, v{T0}"); e(f"v_lshl_add_u32 v{S2O}, v{T1}, 1, v{T0}")
    e(f"s_lshr_b32 s7, {S_IDX}, 5"); e(f"s_and_b32 s78, {S_W}, 4"); e("s_add_u32 s7, s7, s78"); e("s_lshl_b32 s7, s7, 5")
    e(f"s_and_b32 s78, {S_W}, 3"); e("s_lshl_b32 s78, s78, 3"); e("s_add_u32 s7, s7, s78")
    e("s_lshl_b32 s78, s7, 12"); e("s_lshl_b32 s79, s7, 7")
    e(f"s_and_b32 s7, {S_IDX}, 31"); e("s_lshl_b32 s7, s7, 7"); e("s_add_u32 s78, s78, s7"); e(f"s_add_u32 s78, s78, {WS_OP}")
    e(f"s_lshr_b32 s7, {S_IDX}, 2"); e("s_and_b32 s7, s7, 7"); e("s_lshl_b32 s7, s7, 4"); e("s_add_u32 s79, s79, s7"); e(f"s_add_u32 s79, s79, {WS_ML}")
    e(f"v_lshrrev_b32 v{T0}, 3, v{V_LANE}"); e(f"v_and_b32 v{T1}, 7, v{V_LANE}")
    e(f"v_lshlrev_b32 v{VM}, 7, v{T0}"); e(f"v_lshlrev_b32 v{VO}, 12, v{T0}"); e(f"v_lshl_add_u32 v{VO}, v{T1}, 4, v{VO}")
    e("s_lshl_b32 s100, s2, 12"); e(f"s_add_u32 s100, s100, {WS_OP}")
    e("s_lshl_b32 s101, s2, 7"); e(f"s_add_u32 s101, s101, {WS_ML}")
    e(f"s_lshl_b32 s38, {S_TYPE}, 7"); e(f"s_add_u32 s38, s38, {S_KS}"); e("s_lshl_b32 s38, s38, 13")
    e(f"s_lshl_b32 s7, {S_W}, 10"); e("s_add_u32 s38, s38, s7"); e(f"s_add_u32 s38, s38, {WS_AP}")
    FR = 64 - 8*NS - HF
    P1 = FR * 8
    POOL = P1 + HF * 16
    assert NS == 5
    e("s_and_b32 s98, s2, 0xf8"); e("s_lshl_b32 s98, s98, 18"); e(f"s_add_u32 s98, s98, {NS*8*4096}")
    if not late_ffn:
      with cond(f"s_cmp_eq_u32 {S_HASF}, 0", "s_cbranch_scc1"):
        waitflags(L_FQ + 16, 1, "wfh2")
        e(f"ds_read_b128 {vr(AD)}, v{ADA} offset:{L_OL}")
        e("s_waitcnt lgkmcnt(0)")
        down_mfma_publish(AD, WP, SLOT(2), SLOT(3))
    grab()
    stamp(6)
    setprio(0)
    Lloop, Lskip = newlab("loop"), newlab("noresc")
    e("s_mov_b32 s99, 0")
    e.label(Lloop)
    e("s_waitcnt vmcnt(4)")
    for t in range(2):
        for beta in range(2):
            c = "0" if t == 0 else vr(SC+4*beta)
            e(f"v_mfma_f32_16x16x32_bf16 {vr(SC+4*beta)}, {vr(KB+8*beta+4*t)}, {vr(Q0 if t == 0 else Q1)}, {c}")
    e("s_waitcnt lgkmcnt(0)")
    e(f"s_and_b32 s74, {S_NX}, 7"); e("s_lshl_b32 s74, s74, 18"); e("s_add_u32 s74, s74, s98")
    e(f"s_lshr_b32 s75, {S_NX}, 3"); e("s_lshl_b32 s76, s75, 12"); e("s_lshl_b32 s75, s75, 11"); e(f"s_add_u32 s75, s75, {FR*4096 - FR*2048}")
    e(f"s_cmp_lt_u32 {S_NX}, {P1}"); e("s_cselect_b32 s75, s76, s75"); e("s_cselect_b32 s77, 0, 0xff800000"); e("s_cselect_b32 s76, 0, 0x40000000")
    e("s_add_u32 s74, s74, s75"); e("s_add_u32 s76, s76, s74")
    e(f"s_cmp_lt_u32 {S_NX}, {POOL}"); e("s_cselect_b32 s74, s74, 0x40000000"); e("s_cselect_b32 s75, 1, 0")
    tileK("s74", "kl", "s76")
    S = SC + 8
    for beta in range(2):
        for eps in range(2):
            dpp("v_add_f32", S+2*beta+eps, SC+4*beta+2*eps+1, SC+4*beta+2*eps, "row_ror:8")
    for d in range(2): rnd2(S+2*d, S+2*d+1, SC+12+d)
    for i in range(4): e(f"v_mul_f32 v{S+i}, {S_SCALE}, v{S+i}")
    for d in range(2): rnd2(S+2*d, S+2*d+1, SC+12+d)
    e(f"v_add_f32 v{S+2}, s99, v{S+2}"); e(f"v_add_f32 v{S+3}, s99, v{S+3}")
    e("s_mov_b32 s99, s77")
    e(f"v_max3_f32 v{T0}, v{S}, v{S+1}, v{S+2}")
    e(f"v_max_f32 v{T0}, v{T0}, v{S+3}")
    xlane("v_max_f32", [T0], [T1], ["p16", "p32"])
    e(f"v_mul_f32 v{T0}, {S_LOG2E}, v{T0}")
    e(f"v_cmp_gt_f32 vcc, v{T0}, v{V_ML}")
    e(f"s_and_b64 vcc, vcc, {S_N8}")
    e(f"s_cbranch_scc0 {Lskip}")
    e(f"v_max_f32 v{T0}, v{T0}, v{V_ML}")
    e(f"v_sub_f32 v{V_AL}, v{V_ML}, v{T0}")
    e(f"v_exp_f32 v{V_AL}, v{V_AL}")
    e(f"v_mov_b32 v{V_ML}, v{T0}")
    e(f"v_mul_f32 v{V_L}, v{V_L}, v{V_AL}")
    for i in range(32): e(f"v_mul_f32 v{ACC+i}, v{ACC+i}, v{V_AL}")
    e.label(Lskip)
    for i in range(4): e(f"v_fma_f32 v{S+i}, v{S+i}, {S_LOG2E}, -v{V_ML}")
    for i in range(4): e(f"v_exp_f32 v{S+i}, v{S+i}")
    for d in range(2): e(f"v_cvt_pk_bf16_f32 v{P+d}, v{S+2*d}, v{S+2*d+1}")
    for i in range(4): e(f"v_add_f32 v{V_L}, v{V_L}, v{S+i}")
    PS = SC + 16
    for p in range(2):
        e(f"s_waitcnt vmcnt({6 - 2*p})")
        for d in range(4):
            for x in range(2):
                e(f"v_perm_b32 v{PS+2*(2*d+x)+p}, v{VB+4*(2*p+1)+d}, v{VB+4*(2*p)+d}, {S_HI if x else S_LO}")
    with cond("s_cmp_eq_u32 s75, 0", "s_cbranch_scc1"):
        tileV("s74", "vl", "s76")
        grab()
    for ee in range(8):
        e(f"v_mfma_f32_16x16x16_bf16 {vr(ACC+4*ee)}, {vr(PS+2*ee,2)}, {vr(P,2)}, {vr(ACC+4*ee)}")
    e("s_cmp_lg_u32 s75, 0"); e(f"s_cbranch_scc1 {Lloop}")
    stamp(7)
    xlane("v_add_f32", [V_L], [T1], ["p16", "p32"])
    e("s_mov_b64 exec, 0xff")
    e(f"ds_write_b64 v{MW}, {vr(V_ML,2)} offset:{L_MX}")
    e(f"s_mov_b64 exec, {S_N8}")
    for ee in range(8): e(f"ds_write_b128 v{WA+ee}, {vr(ACC+4*ee)} offset:{L_ORED}")
    e("s_mov_b64 exec, -1")
    stamp(8)
    e("s_waitcnt lgkmcnt(0)")
    e("s_barrier")
    L4, Lp = newlab("w4"), newlab("pubdone")
    ML8 = SC
    def wg_factors():
        e(f"v_max3_f32 v{T0}, v{ML8}, v{ML8+2}, v{ML8+4}")
        e(f"v_max3_f32 v{T1}, v{ML8+6}, v{ML8+8}, v{ML8+10}")
        e(f"v_max3_f32 v{T0}, v{T0}, v{ML8+12}, v{ML8+14}")
        e(f"v_max_f32 v{T0}, v{T0}, v{T1}")
        for w in range(8): e(f"v_sub_f32 v{ML8+2*w}, v{ML8+2*w}, v{T0}")
        for w in range(8): e(f"v_exp_f32 v{ML8+2*w}, v{ML8+2*w}")
    e(f"s_cmp_lt_u32 {S_W}, 4"); e(f"s_cbranch_scc1 {L4}")
    e.cond_depth += 1
    for i in range(4): e(f"ds_read_b128 {vr(ML8+4*i)}, v{MA} offset:{L_MX + 16*i}")
    for w in range(8): e(f"ds_read_b128 {vr(ACC+4*w)}, v{RA} offset:{L_ORED - 4096 + w*4096}")
    e("s_sub_u32 s100, s100, 4096")
    e("s_waitcnt lgkmcnt(8)")
    wg_factors()
    for w in range(8):
        e(f"s_waitcnt lgkmcnt({7-w})")
        for c in range(0, 4, 2):
            if w == 0: e(f"v_pk_mul_f32 {vr(ACC+c,2)}, {vr(ACC+c,2)}, {vr(ML8,2)} op_sel_hi:[1,0]")
            else: e(f"v_pk_fma_f32 {vr(ACC+c,2)}, {vr(ACC+4*w+c,2)}, {vr(ML8+2*w,2)}, {vr(ACC+c,2)} op_sel_hi:[1,0,1]")
    tagput(ACC+4, [ACC, ACC+1, ACC+2, ACC+3])
    e(f"buffer_store_dwordx4 {vr(ACC+4)}, v{GA}, {R_WS}, s100 offen sc1", tag="pubO")
    e(f"s_branch {Lp}")
    e.label(L4)
    e(f"s_cmp_lg_u32 {S_W}, 3"); e(f"s_cbranch_scc1 {Lp}")
    e("s_mov_b64 exec, 0xff")
    e(f"v_lshlrev_b32 v{T1}, 6, v{V_LANE}")
    for i in range(4): e(f"ds_read_b128 {vr(ML8+4*i)}, v{T1} offset:{L_MX + 16*i}")
    e("s_waitcnt lgkmcnt(0)")
    wg_factors()
    e(f"v_mul_f32 v{ACC+9}, v{ML8+1}, v{ML8}")
    for w in range(1, 8): e(f"v_fmac_f32 v{ACC+9}, v{ML8+2*w+1}, v{ML8+2*w}")
    e(f"v_mov_b32 v{ACC+8}, v{T0}"); e(f"v_mov_b32 v{ACC+10}, v{V_T}"); e(f"v_mov_b32 v{ACC+11}, v{V_T}")
    e(f"buffer_store_dwordx4 {vr(ACC+8)}, v{V_V}, {R_WS}, s101 offen sc1", tag="pubML")
    e("s_mov_b64 exec, -1")
    e.cond_depth -= 1
    e.label(Lp)
    stamp(9)
    if dbgt:
        e("s_memrealtime s[16:17]"); e("s_waitcnt lgkmcnt(0)")
    def late_dn(L):
        for jj in range(8 - L, 8):
            e(f"s_add_u32 s76, {S_DNB}, {(8*(jj&3) + (jj>>2))*2048}")
            e(f"buffer_load_dwordx4 {vr(SLOT(0)+4*jj)}, v{V_DN}, {R_DN}, s76 offen nt", tag="dn2")
        for p in range((8 - L) // 2, 4):
            e(f"s_waitcnt vmcnt({6-2*p})")
            for d in range(4):
                for x in range(2):
                    e(f"v_perm_b32 v{WP+4*(2*d+x)+p}, v{SLOT(0)+4*(2*p+1)+d}, v{SLOT(0)+4*(2*p)+d}, {S_HI if x else S_LO}")
    if pbar: e("s_barrier")
    LF = newlab("ftype")
    e(f"s_cmp_eq_u32 {S_TYPE}, 1"); e(f"s_cbranch_scc1 {LF}")
    e.cond_depth += 1
    OG, MG = ACC + 16, ACC + 20
    def o_issue():
        e(f"buffer_load_dwordx4 {vr(MG)}, v{VM}, {R_WS}, s79 offen sc1", tag="og")
        e(f"buffer_load_dwordx4 {vr(OG)}, v{VO}, {R_WS}, s78 offen sc1", tag="og")
    def o_check():
        tagcheck(OG, T3, True, T5)
        e(f"v_xor_b32 v{T3}, v{MG+2}, v{V_T}"); e(f"v_xor_b32 v{T4}, v{MG+3}, v{V_T}")
        e(f"v_or3_b32 v{T5}, v{T5}, v{T3}, v{T4}")
    late_dn(LA)
    o_issue()
    poll(o_issue, o_check, lambda: e("s_waitcnt vmcnt(0)"), "o", sleep=slp_o)
    stamp(10)
    e(f"v_mov_b32 v{T0}, v{MG}")
    xlane("v_max_f32", [T0], [T1], ["r8", "p16", "p32"])
    e(f"v_sub_f32 v{T2}, v{MG}, v{T0}"); e(f"v_exp_f32 v{T2}, v{T2}")
    for c in range(4): e(f"v_mul_f32 v{OG+c}, v{OG+c}, v{T2}")
    e(f"v_mul_f32 v{T1}, v{MG+1}, v{T2}")
    xlane("v_add_f32", [OG, OG+1, OG+2, OG+3, T1], [MG, MG+1, MG+2, MG+3, T4], ["r8", "p16", "p32"])
    e("s_mov_b64 exec, 0xff")
    e(f"ds_write_b128 v{OLW}, {vr(OG)} offset:{L_S2}")
    e("s_mov_b64 exec, 1")
    e(f"ds_write_b64 v{MW}, {vr(T0,2)} offset:{L_S2M}")
    e("s_mov_b64 exec, -1")
    e("s_waitcnt lgkmcnt(0)")
    e("s_barrier")
    for i in range(2): e(f"ds_read_b128 {vr(SC+4*i)}, v{S2M} offset:{L_S2M + 16*i}")
    for i in range(4):
        for h in range(2): e(f"ds_read_b128 {vr(ACC+8*i+4*h)}, v{S2O} offset:{L_S2 + 128*i + 16*h}")
    e("s_waitcnt lgkmcnt(8)")
    e(f"v_max3_f32 v{T0}, v{SC}, v{SC+2}, v{SC+4}"); e(f"v_max_f32 v{T0}, v{T0}, v{SC+6}")
    for i in range(4): e(f"v_sub_f32 v{SC+2*i}, v{SC+2*i}, v{T0}")
    for i in range(4): e(f"v_exp_f32 v{SC+2*i}, v{SC+2*i}")
    e(f"v_mul_f32 v{T1}, v{SC+1}, v{SC}")
    for i in range(1, 4): e(f"v_fmac_f32 v{T1}, v{SC+2*i+1}, v{SC+2*i}")
    e(f"v_rcp_f32 v{T1}, v{T1}")
    for i in range(4): e(f"v_mul_f32 v{SC+2*i}, v{SC+2*i}, v{T1}")
    for i in range(4):
        e(f"s_waitcnt lgkmcnt({6-2*i})")
        for c in range(0, 8, 2):
            if i == 0: e(f"v_pk_mul_f32 {vr(ACC+c,2)}, {vr(ACC+c,2)}, {vr(SC,2)} op_sel_hi:[1,0]")
            else: e(f"v_pk_fma_f32 {vr(ACC+c,2)}, {vr(ACC+8*i+c,2)}, {vr(SC+2*i,2)}, {vr(ACC+c,2)} op_sel_hi:[1,0,1]")
    for d in range(4): e(f"v_cvt_pk_bf16_f32 v{AD+d}, v{ACC+2*d}, v{ACC+2*d+1}")
    down_mfma_publish(AD, WP, ACC, SLOT(2))
    stamp(11)
    e("s_branch L_fini")
    e.label(LF)
    if late_ffn:
      with cond(f"s_cmp_eq_u32 {S_HASF}, 0", "s_cbranch_scc1"):
        e(f"ds_read_b128 {vr(AD)}, v{ADA} offset:{L_OL}")
        late_dn(LF_)
        e("s_waitcnt lgkmcnt(0)")
        down_mfma_publish(AD, WP, SLOT(2), SLOT(3))
      stamp(11)
    VA, VX = T0, T1
    G = SLOT(1)
    XQ = AD
    e(f"v_lshrrev_b32 v{VA}, 2, v{V_LANE}"); e(f"v_lshlrev_b32 v{VA}, 13, v{VA}")
    e(f"v_and_b32 v{VX}, 3, v{V_LANE}"); e(f"v_lshlrev_b32 v{VX}, 4, v{VX}"); e(f"v_add_u32 v{VA}, v{VA}, v{VX}")
    e(f"s_lshl_b32 s72, {S_IDX}, 6"); e(f"s_add_u32 s72, s72, {WS_AP}"); e(f"s_lshl_b32 s7, {S_W}, 17"); e("s_add_u32 s72, s72, s7")
    e(f"s_add_u32 s74, s72, {128*8192}")
    e(f"s_lshr_b32 s7, {S_IDX}, 3"); e("s_and_b32 s7, s7, 1"); e("s_lshl_b32 s73, s7, 11")
    e(f"s_lshr_b32 s7, {S_IDX}, 4"); e("s_lshl_b32 s7, s7, 8"); e("s_add_u32 s73, s73, s7")
    e(f"s_and_b32 s7, {S_IDX}, 3"); e("s_lshl_b32 s7, s7, 6"); e("s_add_u32 s73, s73, s7")
    e(f"s_and_b32 s7, {S_IDX}, 4"); e("s_lshl_b32 s7, s7, 1"); e("s_add_u32 s73, s73, s7")
    e(f"buffer_load_dwordx2 {vr(XQ,2)}, v{VX}, {R_X}, s73 offen", tag="xq")
    VL = T2
    e(f"s_lshl_b32 s7, {S_W}, 6"); e(f"v_add_u32 v{VL}, s7, v{VX}")
    def ga_issue(): e(f"buffer_load_dwordx4 {vr(G)}, v{VA}, {R_WS}, s72 offen sc1", tag="g")
    def gf_issue(): e(f"buffer_load_dwordx4 {vr(G+4)}, v{VA}, {R_WS}, s74 offen sc1", tag="g")
    for c in range(4): e(f"v_mov_b32 v{G+4+c}, 0")
    with cond(f"s_cmp_eq_u32 {S_W}, 7", "s_cbranch_scc1"):
        gf_issue()
        poll(gf_issue, lambda: tagcheck(G+4, T3, True, T5), lambda: e("s_waitcnt vmcnt(0)"), "gf")
    xlane("v_add_f32", [G+4, G+5, G+6, G+7], [G+8, G+9, G+10, G+11], ["r4", "r8", "p16", "p32"])
    e("s_mov_b64 exec, 0xf")
    e(f"ds_write_b128 v{VL}, {vr(G+4)} offset:{L_REDQ+512}")
    if prepoll:
        e("s_mov_b64 exec, 1")
        ga_issue()
        poll(ga_issue, lambda: tagcheck(G, T3, True, T5), lambda: e("s_waitcnt vmcnt(0)"), "gp", sleep=slp_pre)
    e("s_mov_b64 exec, -1")
    ga_issue()
    poll(ga_issue, lambda: tagcheck(G, T3, True, T5), lambda: e("s_waitcnt vmcnt(0)"), "ga", sleep=slp_g)
    stamp(12)
    xlane("v_add_f32", [G, G+1, G+2, G+3], [G+8, G+9, G+10, G+11], ["r4", "r8", "p16", "p32"])
    e("s_mov_b64 exec, 0xf")
    e(f"ds_write_b128 v{VL}, {vr(G)} offset:{L_REDQ}")
    e("s_waitcnt lgkmcnt(0)")
    e("s_barrier")
    e(f"s_cmp_lg_u32 {S_W}, 0"); e("s_cbranch_scc1 L_fini")
    e("s_mov_b64 exec, -1")
    e(f"ds_read_b128 {vr(G)}, v{V_V} offset:{L_REDQ}")
    XU = G + 12
    for d in range(2):
        e(f"v_lshlrev_b32 v{XU+2*d}, 16, v{XQ+d}"); e(f"v_and_b32 v{XU+2*d+1}, {S_MASKH}, v{XQ+d}")
    e("s_waitcnt lgkmcnt(0)")
    xlane("v_add_f32", [G, G+1, G+2, G+3], [G+8, G+9, G+10, G+11], ["r4", "r8", "p16"])
    rnd2(G, G+1, G+4); rnd2(G+2, G+3, G+5)
    for c in range(4): e(f"v_mov_b32 v{G+8+c}, v{G+c}")
    for c in range(4): e(f"v_permlane32_swap_b32 v{G+c}, v{G+8+c}")
    for c in range(4): e(f"v_add_f32 v{G+c}, v{XU+c}, v{G+c}")
    rnd2(G, G+1, G+4); rnd2(G+2, G+3, G+5)
    for c in range(4): e(f"v_add_f32 v{G+c}, v{G+c}, v{G+8+c}")
    e(f"v_cvt_pk_bf16_f32 v{G+4}, v{G}, v{G+1}"); e(f"v_cvt_pk_bf16_f32 v{G+5}, v{G+2}, v{G+3}")
    e("s_mov_b64 exec, 0xf")
    e(f"buffer_store_dwordx2 {vr(G+4,2)}, v{VX}, {R_OUT}, s73 offen")
    e(f"s_cmp_lg_u32 {S_IDX}, 0"); e("s_cbranch_scc1 L_fini")
    e("s_mov_b64 exec, 1")
    e(f"buffer_store_dword v{V_T}, off, {R_WS}, 0")
    e.cond_depth -= 1
    e.label("L_fini")
    if dbgt:
        e("s_memrealtime s[72:73]"); e("s_waitcnt lgkmcnt(0)")
        e("s_cmp_lg_u32 s3, 0"); e("s_cbranch_scc1 L_dbg1")
        e("s_atomic_umax s72, s[34:35], 4"); e("s_waitcnt lgkmcnt(0)")
        e.label("L_dbg1")
    if dbgt:
        e("s_cmp_lg_u32 s3, 0"); e("s_cbranch_scc1 L_end")
        e("s_atomic_umax s16, s[34:35], 12")
        e("s_not_b32 s72, s90"); e("s_atomic_umax s72, s[34:35], 0"); e("s_atomic_umax s90, s[34:35], 8"); e("s_waitcnt lgkmcnt(0)")
    if stamps:
        e("s_mov_b64 exec, -1")
        stamp(13)
        e("s_mov_b64 exec, 0xffff")
        e(f"v_lshlrev_b32 v{T0}, 2, v{V_LANE}")
        e("s_lshl_b32 s7, s2, 3"); e(f"s_add_u32 s7, s7, {S_W}"); e("s_lshl_b32 s7, s7, 6"); e(f"s_add_u32 s7, s7, {WS_SIZE}")
        e("s_mov_b32 s58, 0x1000000")
        e(f"buffer_store_dword v0, v{T0}, {R_WS}, s7 offen")
    e.label("L_end")
    e("s_endpgm")

    out = HEADER
    out += f"; @launch grid=(256,1,1) block=(512,1,1) lds={LDS_BYTES}\n"
    out += '.amdgcn_target "amdgcn-amd-amdhsa--gfx950"\n.text\n'
    out += f".globl {KNAME}\n.p2align 8\n.type {KNAME},@function\n{KNAME}:\n"
    out += e.text()
    out += f""".section .rodata,"a"
.p2align 6
.amdhsa_kernel {KNAME}
  .amdhsa_next_free_vgpr 256
  .amdhsa_next_free_sgpr 102
  .amdhsa_accum_offset 256
  .amdhsa_group_segment_fixed_size 0
  .amdhsa_kernarg_size 88
  .amdhsa_user_sgpr_count 2
  .amdhsa_user_sgpr_kernarg_segment_ptr 1
  .amdhsa_system_sgpr_workgroup_id_x 1
.end_amdhsa_kernel
"""
    return out

if __name__ == "__main__":
    import argparse
    ap = argparse.ArgumentParser()
    ap.add_argument("-o", default="parallel_sum__gqa_block_cached__dense_activation_silu__decode.s")
    ap.add_argument("--inf", type=int, default=8)
    ap.add_argument("--stamps", action="store_true")
    ap.add_argument("--kw", default="")
    a = ap.parse_args()
    kw = eval("dict(%s)" % a.kw)
    open(a.o, "w").write(gen(INF=a.inf, stamps=a.stamps, **kw))
```

```python
import sys
from emit import Emit
KNAME = "parallel_sum__gqa_block_cached__dense_activation_silu__decode_kernel"
HEADER = open("parallel_sum__gqa_block_cached__dense_activation_silu__decode.s.ref").read().split("; Override launch geometry")[0]

WS_QP = 0x1000
QP_B = 7680 * 4
QP_K = 2 * QP_B
WS_ML = 0x40000
WS_CT = 0x50000
WS_OP = 0x80000
WS_AP = 0x200000
WS_SIZE = 0x400000
L_REDQ = 0
L_REDH = 4096
L_Q = 8192
L_MX = 10240
L_OL = 10752
L_FA = 11008; L_FH = 11040; L_FQ = 11072
L_S2 = 0
L_S2M = 1024
L_ORED = 12288
LDS_BYTES = L_ORED + 8 * 4096
V_LANE, V_K, V_V, V_UP, V_DN, V_T, V_AL, V_ML, V_L = 1, 2, 3, 4, 5, 6, 7, 8, 9
T0, T1, T2, T3, T4, T5 = 10, 11, 12, 13, 14, 15
ACC = 16
Q0, Q1 = 48, 52
P = 56
AD = 60
SC = 64
def SLOT(k): return 96 + 32 * k
S_W, S_TYPE, S_IDX, S_T = "s3", "s4", "s5", "s6"
S_LO, S_HI = "s8", "s9"
S_TI = ["s10", "s11", "s12", "s13"]
S_G2 = "s14"
S_CNT = "s15"
R_K, R_V, R_UP, R_DN, R_WS, R_X, R_OUT, R_W1 = "s[40:43]", "s[44:47]", "s[48:51]", "s[52:55]", "s[56:59]", "s[60:63]", "s[64:67]", "s[28:31]"
S_KV, S_UPQ, S_UPH, S_DNB = "s68", "s69", "s70", "s71"
S_LOG2E, S_SCALE, S_MASKH, S_HASF, S_HASH, S_KS = "s82", "s83", "s84", "s85", "s86", "s87"
S_N8 = "s[88:89]"
S_CBH = "s39"
POLL_LIMIT = 1 << 17
def vr(a, n=4): return f"v[{a}:{a+n-1}]"

def gen(INF=5, stamps=False, NS=5, HF=8, pf=False, prio=True, slp_o=0, slp_g=0, slp_pre=2, prepoll=True, late_ffn=False, LA=0, LF_=0, pbar=False, dbgt=False, dly_o=24, dly_g=3, pre1=True, upfirst=True, lite=False):
    e = Emit()
    lab = [0]
    def newlab(p):
        lab[0] += 1
        return f"L_{p}_{lab[0]}"
    def stamp(k):
        if not stamps: return
        if lite and k not in (7, 13): return
        e("s_memrealtime s[90:91]"); e("s_waitcnt lgkmcnt(0)"); e(f"v_writelane_b32 v0, s90, {k}")
    def throttle():
        if INF: e(f"s_waitcnt vmcnt({INF-1})")
    def setprio(n):
        if prio: e(f"s_setprio {n}")
    def dpp(op, d, a, b, ctl):
        e(f"{op}_dpp v{d}, v{a}, v{b} {ctl} row_mask:0xf bank_mask:0xf")
    def xlane(op, regs, tmps, steps):
        for st in steps:
            if st[0] == "r":
                for r in regs: dpp(op, r, r, r, f"row_ror:{st[1:]}")
            else:
                for r, t in zip(regs, tmps): e(f"v_mov_b32 v{t}, v{r}")
                for r, t in zip(regs, tmps): e(f"v_permlane{st[1:]}_swap_b32 v{r}, v{t}")
                for r, t in zip(regs, tmps): e(f"{op} v{r}, v{r}, v{t}")
    def tagcheck(g, tmp, first, accum):
        e(f"v_perm_b32 v{tmp}, v{g+1}, v{g}, {S_G2}")
        e(f"v_perm_b32 v{tmp+1}, v{g+3}, v{g+2}, {S_G2}")
        e(f"v_perm_b32 v{tmp}, v{tmp+1}, v{tmp}, {S_LO}")
        if first: e(f"v_xor_b32 v{accum}, v{tmp}, v{V_T}")
        else:
            e(f"v_xor_b32 v{tmp}, v{tmp}, v{V_T}")
            e(f"v_or_b32 v{accum}, v{accum}, v{tmp}")
    def tagput(dst, srcs):
        for i, s in enumerate(srcs): e(f"v_perm_b32 v{dst+i}, v{s}, v{V_T}, {S_TI[i]}")
    def rnd2(a, b_, tmp):
        e(f"v_cvt_pk_bf16_f32 v{tmp}, v{a}, v{b_}")
        e(f"v_lshlrev_b32 v{a}, 16, v{tmp}")
        e(f"v_and_b32 v{b_}, {S_MASKH}, v{tmp}")
    def poll(issue, check, waitfirst, name, sleep=0):
        Lr, Ld, Lx = newlab(name + "_retry"), newlab(name + "_done"), newlab(name + "_exit")
        waitfirst()
        check()
        e(f"v_cmp_ne_u32 vcc, 0, v{T5}")
        e(f"s_cbranch_vccz {Ld}")
        e(f"s_mov_b32 {S_CNT}, 0")
        e("s_mov_b64 s[80:81], exec")
        e.label(Lr)
        e("s_mov_b64 exec, vcc")
        if sleep: e(f"s_sleep {sleep}")
        e("s_nop 4")
        e.cond_depth += 1
        issue()
        e.cond_depth -= 1
        e(f"s_add_u32 {S_CNT}, {S_CNT}, 1")
        e(f"s_cmp_gt_u32 {S_CNT}, {POLL_LIMIT}")
        e("s_waitcnt vmcnt(0)")
        e(f"s_cbranch_scc1 {Lx}")
        check()
        e(f"v_cmp_ne_u32 vcc, 0, v{T5}")
        e(f"s_cbranch_vccnz {Lr}")
        e.label(Lx)
        e("s_mov_b64 exec, s[80:81]")
        e.label(Ld)
    def setflag(base, idx=None):
        if idx is None:
            e(f"s_lshl_b32 s7, {S_W}, 2"); e(f"v_mov_b32 v{T1}, s7")
        else: e(f"v_mov_b32 v{T1}, {4*idx}")
        e("s_waitcnt lgkmcnt(0)")
        e("s_mov_b64 exec, 1")
        e(f"v_mov_b32 v{T2}, 1")
        e(f"ds_write_b32 v{T1}, v{T2} offset:{base}")
        e("s_mov_b64 exec, -1")
    def waitflags(base, n, name):
        Lr, Lx = newlab(name), newlab(name + "x")
        e(f"v_and_b32 v{T1}, {n-1}, v{V_LANE}"); e(f"v_lshlrev_b32 v{T1}, 2, v{T1}")
        e(f"s_mov_b32 {S_CNT}, 0")
        e.label(Lr)
        e(f"ds_read_b32 v{T2}, v{T1} offset:{base}")
        e(f"s_add_u32 {S_CNT}, {S_CNT}, 1"); e(f"s_cmp_gt_u32 {S_CNT}, {POLL_LIMIT*4}")
        e("s_waitcnt lgkmcnt(0)")
        e(f"s_cbranch_scc1 {Lx}")
        e(f"v_cmp_ne_u32 vcc, 1, v{T2}")
        e(f"s_cbranch_vccnz {Lr}")
        e.label(Lx)
    def srd(base, lo, hi, n):
        e(f"s_mov_b32 s{base}, {lo}"); e(f"s_mov_b32 s{base+1}, {hi}"); e(f"s_mov_b32 s{base+2}, {n}"); e(f"s_mov_b32 s{base+3}, 0x00020000")
    class cond:
        def __init__(self, cmp, br):
            self.L = newlab("skip"); self.cmp = cmp if isinstance(cmp, list) else [cmp]; self.br = br
        def __enter__(self):
            for c in self.cmp:
                e(c); e(f"{self.br} {self.L}")
            e.cond_depth += 1
        def __exit__(self, *a):
            e.cond_depth -= 1; e.label(self.L)

    if stamps or dbgt: e("s_memrealtime s[90:91]")
    e("s_cmp_ge_u32 s2, 256")
    e("s_cbranch_scc1 L_end")
    setprio(3)
    e("s_load_dwordx16 s[16:31], s[0:1], 0")
    e("s_load_dwordx4 s[32:35], s[0:1], 64")
    e("s_load_dwordx2 s[36:37], s[0:1], 80")
    if pf:
        e("s_getpc_b64 s[72:73]")
        e.raw("L_pc:")
        e(f"v_lshlrev_b32 v{T0}, 4, v0")
        e(f"global_load_dwordx4 {vr(SLOT(0))}, v{T0}, s[72:73]", tag="pf")
        e(f"v_add_u32 v{T0}, 8192, v{T0}")
        e(f"v_min_u32 v{T0}, L_end-L_pc-16, v{T0}")
        e(f"global_load_dwordx4 {vr(SLOT(0)+4)}, v{T0}, s[72:73]", tag="pf")
    e(f"v_lshrrev_b32 v{T0}, 6, v0")
    e(f"v_and_b32 v{V_LANE}, 63, v0")
    e(f"v_readfirstlane_b32 {S_W}, v{T0}")
    if stamps: e("v_mov_b32 v0, 0")
    e(f"v_lshrrev_b32 v{T0}, 3, v{V_LANE}"); e(f"v_and_b32 v{T1}, 7, v{V_LANE}"); e(f"v_lshlrev_b32 v{T1}, 4, v{T1}")
    e(f"v_lshl_add_u32 v{V_UP}, v{T0}, 15, v{T1}")
    e(f"v_mul_u32_u24 v{V_DN}, {4*7168}, v{T0}"); e(f"v_add_u32 v{V_DN}, v{V_DN}, v{T1}")
    e("s_and_b32 s7, s2, 3"); e("s_lshl_b32 s72, s7, 8"); e(f"s_lshl_b32 s73, {S_W}, 5"); e("s_add_u32 s72, s72, s73")
    e("s_lshr_b32 s73, s2, 2")
    e(f"s_lshl_b32 {S_UPQ}, s72, 13"); e("s_lshl_b32 s74, s73, 7"); e(f"s_add_u32 {S_UPQ}, {S_UPQ}, s74")
    e(f"v_lshlrev_b32 v{T2}, 3, v{T0}"); e("s_lshl_b32 s74, s72, 1"); e(f"v_add_u32 v{T2}, s74, v{T2}")
    e(f"v_lshlrev_b32 v{T3}, 5, v{V_LANE}")
    e("s_lshl_b32 s7, s7, 1"); e("s_add_u32 s7, s7, 1"); e("s_and_b32 s74, s73, 7")
    e("s_cmp_lg_u32 s74, s7"); e(f"s_cselect_b32 {S_HASH}, 1, 0")
    e("s_lshr_b32 s75, s73, 3"); e("s_mul_i32 s75, s75, 7"); e("s_add_u32 s75, s75, s74")
    e("s_cmp_gt_u32 s74, s7"); e(f"s_subb_u32 {S_CBH}, s75, 0")
    e(f"s_mul_i32 {S_UPH}, s72, 7168"); e(f"s_lshl_b32 s74, {S_CBH}, 7"); e(f"s_add_u32 {S_UPH}, {S_UPH}, s74")
    e(f"s_mov_b32 {S_MASKH}, 0xffff0000")
    e(f"v_lshlrev_b32 v{T4}, 2, v{V_LANE}"); e(f"v_mov_b32 v{T5}, 0")
    e(f"ds_write_b32 v{T4}, v{T5} offset:{L_FA}")
    e("s_waitcnt lgkmcnt(0)")
    e("s_barrier")
    if stamps:
        e("v_writelane_b32 v0, s90, 15"); stamp(14)
    e("s_load_dword s6, s[36:37], 0")
    XF, XR = SC, SC + 16
    UPS = SLOT(4)
    def xl():
        srd(60, "s16", "s17", 4096)
        for b in range(2):
            for hf in range(2):
                e(f"buffer_load_dwordx4 {vr(XF+8*b+4*hf)}, v{T3}, {R_X}, 0 offen offset:{b*2048+hf*16}", tag="xf")
        for b in range(2):
            e(f"buffer_load_dwordx2 {vr(XR+2*b,2)}, v{T2}, {R_X}, 0 offen offset:{b*2048}", tag="xr")
    def ul():
        srd(48, "s22", "s23", 8 << 20)
        for i in range(4):
            e(f"buffer_load_dwordx4 {vr(UPS+4*i)}, v{V_UP}, {R_UP}, {S_UPQ} offen nt", tag="upq")
            if i < 3: e(f"s_add_u32 {S_UPQ}, {S_UPQ}, 8192")
    if upfirst: ul(); xl()
    else: xl(); ul()
    e(f"s_lshr_b32 {S_TYPE}, s2, 3"); e(f"s_xor_b32 {S_TYPE}, {S_TYPE}, s2"); e(f"s_and_b32 {S_TYPE}, {S_TYPE}, 1")
    e(f"s_lshr_b32 {S_IDX}, s2, 1"); e(f"s_and_b32 s7, {S_IDX}, 7")
    srd(40, "s18", "s19", 64 << 20)
    srd(44, "s20", "s21", 64 << 20)
    srd(56, "s36", "s37", WS_SIZE)
    srd(64, "s32", "s33", 4096)
    e(f"s_cmp_eq_u32 {S_TYPE}, 1")
    e("s_cselect_b32 s52, s30, s24"); e("s_cselect_b32 s53, s31, s25"); e("s_cselect_b32 s54, 7, 8"); e("s_lshl_b32 s54, s54, 20")
    e("s_mov_b32 s55, 0x00020000")
    e(f"s_mul_i32 s30, {S_HASH}, {7<<20}"); e("s_mov_b32 s31, 0x00020000")
    e("s_cmp_lg_u32 s7, 7"); e(f"s_cselect_b32 {S_HASF}, {S_TYPE}, 0")
    e(f"s_lshr_b32 s7, {S_IDX}, 3"); e(f"s_mul_i32 s7, s7, {S_TYPE}"); e(f"s_sub_u32 {S_KS}, {S_IDX}, s7")
    e(f"s_cmp_eq_u32 {S_TYPE}, {S_HASF}")
    e("s_cselect_b32 s54, s54, 0")
    e(f"s_mov_b32 {S_LO}, 0x05040100"); e(f"s_mov_b32 {S_HI}, 0x07060302")
    for i in range(4): e(f"s_mov_b32 {S_TI[i]}, 0x{0x07060500 + i:08x}")
    e(f"s_mov_b32 {S_G2}, 0x0c0c0400")
    e(f"s_mov_b32 {S_LOG2E}, 0x3fb8aa3b"); e(f"s_mov_b32 {S_SCALE}, 0x3db504f3")
    e("s_mov_b32 s88, 0x00ff00ff"); e("s_mov_b32 s89, 0x00ff00ff")
    e(f"v_lshlrev_b32 v{V_V}, 4, v{V_LANE}")
    e(f"v_bfe_u32 v{T0}, v{V_LANE}, 1, 1"); e(f"v_bfe_u32 v{T1}, v{V_LANE}, 2, 2")
    e(f"v_lshl_add_u32 v{T0}, v{T0}, 2, v{T1}"); e(f"v_lshlrev_b32 v{V_K}, 8, v{T0}")
    e(f"v_lshrrev_b32 v{T1}, 4, v{V_LANE}"); e(f"v_lshl_add_u32 v{V_K}, v{T1}, 5, v{V_K}")
    e(f"v_and_b32 v{T1}, 1, v{V_LANE}"); e(f"v_lshl_add_u32 v{V_K}, v{T1}, 4, v{V_K}")
    e(f"s_lshl_b32 {S_KV}, s2, 18"); e(f"s_lshl_b32 s7, {S_W}, 12"); e(f"s_add_u32 {S_KV}, {S_KV}, s7")
    e(f"s_lshl_b32 {S_DNB}, {S_KS}, 16"); e(f"s_lshl_b32 s7, {S_W}, 8"); e(f"s_add_u32 {S_DNB}, {S_DNB}, s7")

    def kload(u, slot, i, thr=True):
        beta, t = i >> 1, i & 1
        if i % 4 == 0: e(f"s_add_u32 s74, {S_KV}, {(2*u + (beta >> 1)) * 32768}")
        if thr: throttle()
        e(f"buffer_load_dwordx4 {vr(SLOT(slot)+4*i)}, v{V_K}, {R_K}, s74 offen offset:{(beta&1)*2048 + t*128} nt", tag=f"k{u}")
    def vload(u, slot, j, thr=True):
        if j % 4 == 0: e(f"s_add_u32 s75, {S_KV}, {(2*u + (j >> 2)) * 32768}")
        if thr: throttle()
        e(f"buffer_load_dwordx4 {vr(SLOT(slot)+4*j)}, v{V_V}, {R_V}, s75 offen offset:{(j&3)*1024} nt", tag=f"v{u}")
    def issueK(u, slot, lo=0, hi=8):
        for i in range(lo, hi): kload(u, slot, i)
    def issueV(u, slot, lo=0, hi=8):
        for j in range(lo, hi): vload(u, slot, j)
    def issueDN(slot, lo=0, hi=8):
        for jj in range(lo, hi):
            a_on, f_on = jj < 8 - LA, jj < 8 - LF_
            e(f"s_add_u32 s76, {S_DNB}, {(8*(jj&3) + (jj>>2))*2048}")
            if not a_on and not f_on: e("s_mov_b32 s76, 0x40000000")
            elif a_on != f_on:
                e(f"s_cmp_eq_u32 {S_TYPE}, {0 if a_on else 1}"); e("s_cselect_b32 s76, s76, 0x40000000")
            throttle()
            e(f"buffer_load_dwordx4 {vr(SLOT(slot)+4*jj)}, v{V_DN}, {R_DN}, s76 offen nt", tag="dn")

    stamp(0)
    U = SLOT(3)
    e.wait_vm("xf")
    for i in range(4):
        e(f"buffer_load_dwordx4 {vr(UPS+16+4*i)}, v{V_DN}, {R_W1}, {S_UPH} offen nt", tag="uph")
        if i < 3: e(f"s_add_u32 {S_UPH}, {S_UPH}, 7168")
    for b in range(2):
        for d in range(8):
            e(f"v_lshlrev_b32 v{U+16*b+2*d}, 16, v{XF+8*b+d}")
            e(f"v_and_b32 v{U+16*b+2*d+1}, {S_MASKH}, v{XF+8*b+d}")
    SUM = [T0, T1]; TMP = [T2, T3]; VAR = [T4, T5]
    for b in range(2):
        e(f"v_pk_add_f32 {vr(XF+4*b,2)}, {vr(U+16*b,2)}, {vr(U+16*b+2,2)}")
        e(f"v_pk_add_f32 {vr(XF+4*b+2,2)}, {vr(U+16*b+4,2)}, {vr(U+16*b+6,2)}")
    for i in range(4, 8):
        for b in range(2):
            e(f"v_pk_add_f32 {vr(XF+4*b+2*(i&1),2)}, {vr(XF+4*b+2*(i&1),2)}, {vr(U+16*b+2*i,2)}")
    for b in range(2): e(f"v_pk_add_f32 {vr(XF+4*b,2)}, {vr(XF+4*b,2)}, {vr(XF+4*b+2,2)}")
    for b in range(2): e(f"v_add_f32 v{SUM[b]}, v{XF+4*b}, v{XF+4*b+1}")
    xlane("v_add_f32", SUM, TMP, ["r8", "r4", "r2", "r1", "p16", "p32"])
    for b in range(2): e(f"v_mul_f32 v{SUM[b]}, 0x3a800000, v{SUM[b]}")
    kload(0, 0, 0); kload(0, 0, 1)
    for i in range(8):
        for b in range(2):
            e(f"v_pk_add_f32 {vr(U+16*b+2*i,2)}, {vr(U+16*b+2*i,2)}, {vr(T0,2)} op_sel:[0,{b}] op_sel_hi:[1,{b}] neg_lo:[0,1] neg_hi:[0,1]")
    for b in range(2): e(f"v_pk_mul_f32 {vr(XF+4*b,2)}, {vr(U+16*b,2)}, {vr(U+16*b,2)}")
    for i in range(1, 8):
        for b in range(2): e(f"v_pk_fma_f32 {vr(XF+4*b,2)}, {vr(U+16*b+2*i,2)}, {vr(U+16*b+2*i,2)}, {vr(XF+4*b,2)}")
    for b in range(2): e(f"v_add_f32 v{VAR[b]}, v{XF+4*b}, v{XF+4*b+1}")
    xlane("v_add_f32", VAR, TMP, ["r8", "r4", "r2", "r1", "p16", "p32"])
    kload(0, 0, 2); kload(0, 0, 3)
    for b in range(2): e(f"v_mul_f32 v{VAR[b]}, 0x3a800000, v{VAR[b]}")
    rnd2(SUM[0], SUM[1], T2)
    rnd2(VAR[0], VAR[1], T3)
    for b in range(2): e(f"v_add_f32 v{VAR[b]}, 0x3727c5ac, v{VAR[b]}")
    rnd2(VAR[0], VAR[1], T3)
    for b in range(2): e(f"v_sqrt_f32 v{VAR[b]}, v{VAR[b]}")
    rnd2(VAR[0], VAR[1], T3)
    for b in range(2): e(f"v_rcp_f32 v{VAR[b]}, v{VAR[b]}")
    XN = ACC + 16
    e.wait_vm("xr")
    for b in range(2):
        for d in range(2):
            e(f"v_lshlrev_b32 v{XN+4*b+2*d}, 16, v{XR+2*b+d}")
            e(f"v_and_b32 v{XN+4*b+2*d+1}, {S_MASKH}, v{XR+2*b+d}")
    for b in range(2):
        for i in range(4): e(f"v_sub_f32 v{XN+4*b+i}, v{XN+4*b+i}, v{SUM[b]}")
    for d in range(4): rnd2(XN+2*d, XN+2*d+1, U+d)
    for b in range(2):
        for i in range(4): e(f"v_mul_f32 v{XN+4*b+i}, v{XN+4*b+i}, v{VAR[b]}")
    for d in range(4): rnd2(XN+2*d, XN+2*d+1, U+d)
    e("s_waitcnt lgkmcnt(0)")
    e(f"s_mul_i32 {S_T}, {S_T}, 1664525"); e(f"s_add_u32 {S_T}, {S_T}, 1013904223")
    e(f"v_mov_b32 v{V_T}, {S_T}")
    stamp(1)
    e(f"v_lshrrev_b32 v{T0}, 5, v{V_LANE}"); e(f"v_lshlrev_b32 v{T0}, 8, v{T0}")
    e(f"v_and_b32 v{T1}, 7, v{V_LANE}"); e(f"v_lshl_add_u32 v{T0}, v{T1}, 5, v{T0}")
    e(f"v_and_b32 v{T1}, 16, v{V_LANE}"); e(f"v_add_u32 v{T0}, v{T0}, v{T1}")
    e(f"s_lshl_b32 s7, {S_W}, 9"); e(f"v_add_u32 v{V_AL}, s7, v{T0}")
    def up_compute(src, tag, lbase, fbase, between):
        for i in range(4):
            e.wait_vm_idx(tag, i)
            for d in range(4):
                e(f"v_lshlrev_b32 v{U+2*d}, 16, v{src+4*i+d}")
                e(f"v_and_b32 v{U+2*d+1}, {S_MASKH}, v{src+4*i+d}")
            for b in range(2):
                for c in range(0, 8, 2):
                    xr = XN + 4*b + i
                    base = xr & ~1; sel = xr & 1
                    if i == 0: e(f"v_pk_mul_f32 {vr(ACC+8*b+c,2)}, {vr(U+c,2)}, {vr(base,2)} op_sel:[0,{sel}] op_sel_hi:[1,{sel}]")
                    else: e(f"v_pk_fma_f32 {vr(ACC+8*b+c,2)}, {vr(U+c,2)}, {vr(base,2)}, {vr(ACC+8*b+c,2)} op_sel:[0,{sel},0] op_sel_hi:[1,{sel},1]")
            between(i)
        for c in range(8): e(f"v_permlane32_swap_b32 v{ACC+c}, v{ACC+8+c}")
        for c in range(8): e(f"v_add_f32 v{ACC+c}, v{ACC+c}, v{ACC+8+c}")
        for c in range(4): e(f"v_permlane16_swap_b32 v{ACC+c}, v{ACC+4+c}")
        for c in range(4): e(f"v_add_f32 v{ACC+c}, v{ACC+c}, v{ACC+4+c}")
        for c in range(4): dpp("v_add_f32", ACC+c, ACC+c, ACC+c, "row_ror:8")
        e(f"ds_write_b128 v{V_AL}, {vr(ACC)} offset:{lbase}")
        setflag(fbase)
    def up_publish(lbase, fbase, colreg_expr, name):
        waitflags(fbase, 8, name)
        e("s_mov_b32 exec_hi, 0")
        for w in range(8): e(f"ds_read_b128 {vr(U+4*w)}, v{V_V} offset:{lbase + w*512}")
        e(f"v_lshrrev_b32 v{T0}, 4, v{V_LANE}"); e(f"v_mul_u32_u24 v{T0}, {QP_B}, v{T0}")
        e(f"v_and_b32 v{T1}, 15, v{V_LANE}"); e(f"v_lshl_add_u32 v{T0}, v{T1}, 4, v{T0}")
        e("s_and_b32 s7, s2, 3"); e(f"s_mul_i32 s7, s7, {QP_K}")
        colreg_expr()
        e("s_add_u32 s7, s7, s72")
        e("s_waitcnt lgkmcnt(0)")
        for w in range(1, 8):
            e(f"v_pk_add_f32 {vr(U,2)}, {vr(U,2)}, {vr(U+4*w,2)}"); e(f"v_pk_add_f32 {vr(U+2,2)}, {vr(U+2,2)}, {vr(U+4*w+2,2)}")
        tagput(U+4, [U, U+1, U+2, U+3])
        e(f"buffer_store_dwordx4 {vr(U+4)}, v{T0}, {R_WS}, s7 offen sc1", tag="pub")
        e("s_mov_b64 exec, -1")
    up_compute(UPS, "upq", L_REDQ, L_FA, lambda i: None)
    stamp(2)
    with cond(f"s_cmp_lg_u32 {S_W}, 7", "s_cbranch_scc1"):
        up_publish(L_REDQ, L_FA, lambda: (e("s_lshr_b32 s72, s2, 2"), e("s_lshl_b32 s72, s72, 8"), e(f"s_add_u32 s72, s72, {WS_QP}")), "wfa")
    stamp(3)
    setprio(2)
    e("s_lshr_b32 s7, s2, 3"); e("s_lshl_b32 s7, s7, 8"); e(f"s_add_u32 s7, s7, {WS_CT}")
    e("s_add_u32 s92, s36, s7"); e("s_addc_u32 s93, s37, 0")
    e("s_and_b32 s72, s2, 7"); e(f"s_or_b32 s72, s72, {S_W}")
    with cond("s_cmp_lg_u32 s72, 0", "s_cbranch_scc1"):
        e("s_mov_b64 exec, 1")
        e(f"v_mov_b32 v{U+8}, 0"); e(f"v_mov_b32 v{U+9}, {S_T}")
        e(f"buffer_store_dwordx2 {vr(U+8,2)}, off, {R_WS}, s7 sc1", tag="ct")
        e("s_mov_b64 exec, -1")
    up_compute(UPS+16, "uph", L_REDH, L_FH, lambda i: kload(0, 0, 4+i))
    e(f"v_lshrrev_b32 v{T0}, 4, v{V_LANE}"); e(f"v_lshlrev_b32 v{V_DN}, 12, v{T0}")
    e(f"v_and_b32 v{T1}, 15, v{V_LANE}"); e(f"v_lshl_add_u32 v{V_DN}, v{T1}, 4, v{V_DN}")
    issueV(0, 1)
    with cond([f"s_cmp_lg_u32 {S_W}, 6", f"s_cmp_eq_u32 {S_HASH}, 0"], "s_cbranch_scc1"):
        up_publish(L_REDH, L_FH, lambda: (e(f"s_lshl_b32 s72, {S_CBH}, 8"), e(f"s_add_u32 s72, s72, {WS_QP + 4096*4}")), "wfh")
    issueK(1, 2)
    issueV(1, 3)
    setprio(1)
    issueDN(4, 0, 4)
    QG = SC
    e("s_lshr_b32 s77, s2, 7"); e(f"s_mul_i32 s77, s77, {QP_B}")
    e("s_lshr_b32 s7, s2, 5"); e("s_and_b32 s7, s7, 3"); e("s_lshl_b32 s7, s7, 12"); e("s_add_u32 s77, s77, s7")
    e(f"s_lshl_b32 s7, {S_W}, 10"); e("s_add_u32 s77, s77, s7"); e(f"s_add_u32 s77, s77, {WS_QP}")
    e(f"s_add_u32 s78, s77, {2*QP_K}")
    VQ2 = Q0
    e(f"v_add_u32 v{VQ2}, {QP_K}, v{V_V}")
    def q_issue():
        for kq in range(4):
            e(f"buffer_load_dwordx4 {vr(QG+4*kq)}, v{VQ2 if kq & 1 else V_V}, {R_WS}, s{77 + (kq >> 1)} offen sc1", tag="qp")
    def q_check():
        for kq in range(4): tagcheck(QG+4*kq, T3, kq == 0, T5)
    VH = Q0 + 1
    e(f"v_lshrrev_b32 v{T0}, 3, v{V_LANE}"); e(f"v_mul_u32_u24 v{VH}, {QP_B}, v{T0}")
    e(f"v_and_b32 v{T1}, 7, v{V_LANE}"); e(f"v_lshl_add_u32 v{VH}, v{T1}, 4, v{VH}")
    e(f"s_lshl_b32 s79, {S_KS}, 7"); e(f"s_add_u32 s79, s79, {WS_QP + 4096*4}")
    def h_issue(): e(f"buffer_load_dwordx4 {vr(QG)}, v{VH}, {R_WS}, s79 offen sc1", tag="hp")
    def h_check(): tagcheck(QG, T3, True, T5)
    with cond(f"s_cmp_ge_u32 {S_W}, 4", "s_cbranch_scc1"): q_issue()
    with cond([f"s_cmp_lg_u32 {S_W}, 4", f"s_cmp_eq_u32 {S_HASF}, 0"], "s_cbranch_scc1"): h_issue()
    issueDN(4, 4, 8)
    with cond(f"s_cmp_ge_u32 {S_W}, 4", "s_cbranch_scc1"):
        poll(q_issue, q_check, lambda: e("s_waitcnt vmcnt(4)"), "q")
        for kq in range(1, 4):
            e(f"v_pk_add_f32 {vr(QG,2)}, {vr(QG,2)}, {vr(QG+4*kq,2)}"); e(f"v_pk_add_f32 {vr(QG+2,2)}, {vr(QG+2,2)}, {vr(QG+4*kq+2,2)}")
        e(f"v_cvt_pk_bf16_f32 v{QG}, v{QG}, v{QG+1}")
        e(f"v_cvt_pk_bf16_f32 v{QG+1}, v{QG+2}, v{QG+3}")
        e(f"v_lshlrev_b32 v{T0}, 3, v{V_LANE}"); e(f"s_lshl_b32 s7, {S_W}, 9"); e(f"v_add_u32 v{T0}, s7, v{T0}")
        e(f"ds_write_b64 v{T0}, {vr(QG,2)} offset:{L_Q}")
        setflag(L_FQ)
    with cond([f"s_cmp_lg_u32 {S_W}, 4", f"s_cmp_eq_u32 {S_HASF}, 0"], "s_cbranch_scc1"):
        poll(h_issue, h_check, lambda: e("s_waitcnt vmcnt(4)"), "h")
        HG = QG
        xlane("v_add_f32", [HG, HG+1, HG+2, HG+3], [HG+4, HG+5, HG+6, HG+7], ["p16", "p32"])
        for d in range(2): rnd2(HG+2*d, HG+2*d+1, HG+8+d)
        for i in range(4): e(f"v_mul_f32 v{HG+8+i}, {S_LOG2E}, v{HG+i}")
        for i in range(4): e(f"v_exp_f32 v{HG+8+i}, -v{HG+8+i}")
        for i in range(4): e(f"v_add_f32 v{HG+8+i}, 1.0, v{HG+8+i}")
        for i in range(4): e(f"v_rcp_f32 v{HG+8+i}, v{HG+8+i}")
        for i in range(4): e(f"v_mul_f32 v{HG+i}, v{HG+i}, v{HG+8+i}")
        for d in range(2): e(f"v_cvt_pk_bf16_f32 v{HG+4+d}, v{HG+2*d}, v{HG+2*d+1}")
        e(f"v_and_b32 v{T0}, 1, v{V_LANE}"); e(f"v_lshlrev_b32 v{T0}, 5, v{T0}")
        e(f"v_bfe_u32 v{T1}, v{V_LANE}, 1, 2"); e(f"v_lshl_add_u32 v{T0}, v{T1}, 1, v{T0}")
        e(f"v_bfe_u32 v{T1}, v{V_LANE}, 3, 1"); e(f"v_lshl_add_u32 v{T0}, v{T1}, 6, v{T0}")
        e("s_mov_b64 exec, 0xffff")
        for d in range(2):
            e(f"ds_write_b16 v{T0}, v{HG+4+d} offset:{L_OL + 16*d}")
            e(f"ds_write_b16_d16_hi v{T0}, v{HG+4+d} offset:{L_OL + 16*d + 8}")
        e("s_mov_b64 exec, -1")
        setflag(L_FQ)
    stamp(4)
    e(f"v_and_b32 v{T0}, 7, v{V_LANE}"); e(f"v_lshlrev_b32 v{T0}, 8, v{T0}")
    e(f"v_lshrrev_b32 v{T1}, 4, v{V_LANE}"); e(f"v_lshl_add_u32 v{T0}, v{T1}, 5, v{T0}")
    e(f"v_bfe_u32 v{T1}, v{V_LANE}, 3, 1"); e(f"v_lshl_add_u32 v{T0}, v{T1}, 4, v{T0}")
    waitflags(L_FQ, 4, "wfq")
    e(f"ds_read_b128 {vr(Q0)}, v{T0} offset:{L_Q}")
    e(f"ds_read_b128 {vr(Q1)}, v{T0} offset:{L_Q+128}")
    stamp(5)

    def S_phase(u, slot):
        K = SLOT(slot)
        e.wait_vm(f"k{u}", " lgkmcnt(0)" if u == 0 else "")
        for t in range(2):
            for beta in range(4):
                c = "0" if t == 0 else vr(SC+4*beta)
                e(f"v_mfma_f32_16x16x32_bf16 {vr(SC+4*beta)}, {vr(K+8*beta+4*t)}, {vr(Q0 if t == 0 else Q1)}, {c}")
        yield
        S = SC + 16
        for beta in range(4):
            for eps in range(2):
                dpp("v_add_f32", S+2*beta+eps, SC+4*beta+2*eps+1, SC+4*beta+2*eps, "row_ror:8")
        for d in range(4): rnd2(S+2*d, S+2*d+1, SC+24+d)
        for i in range(8): e(f"v_mul_f32 v{S+i}, {S_SCALE}, v{S+i}")
        for d in range(4): rnd2(S+2*d, S+2*d+1, SC+24+d)
        e(f"v_max3_f32 v{T0}, v{S}, v{S+1}, v{S+2}")
        e(f"v_max3_f32 v{T1}, v{S+3}, v{S+4}, v{S+5}")
        e(f"v_max3_f32 v{T0}, v{T0}, v{S+6}, v{S+7}")
        e(f"v_max_f32 v{T0}, v{T0}, v{T1}")
        xlane("v_max_f32", [T0], [T1], ["p16", "p32"])
        e(f"v_mul_f32 v{T0}, {S_LOG2E}, v{T0}")
        if u > 0:
            e(f"v_max_f32 v{T0}, v{T0}, v{V_ML}")
            e(f"v_sub_f32 v{V_AL}, v{V_ML}, v{T0}")
            e(f"v_exp_f32 v{V_AL}, v{V_AL}")
        e(f"v_mov_b32 v{V_ML}, v{T0}")
        for i in range(8): e(f"v_fma_f32 v{S+i}, v{S+i}, {S_LOG2E}, -v{T0}")
        for i in range(8): e(f"v_exp_f32 v{S+i}, v{S+i}")
        if u > 0:
            e(f"v_mul_f32 v{V_L}, v{V_L}, v{V_AL}")
            for i in range(32): e(f"v_mul_f32 v{ACC+i}, v{ACC+i}, v{V_AL}")
        for d in range(4): e(f"v_cvt_pk_bf16_f32 v{P+d}, v{S+2*d}, v{S+2*d+1}")
        if u == 0: e(f"v_add_f32 v{V_L}, v{S}, v{S+1}")
        else:
            e(f"v_add_f32 v{V_L}, v{V_L}, v{S}"); e(f"v_add_f32 v{V_L}, v{V_L}, v{S+1}")
        for i in range(2, 8): e(f"v_add_f32 v{V_L}, v{V_L}, v{S+i}")
        yield
    def perms32(src, dst):
        for p in range(4):
            for d in range(4):
                for x in range(2):
                    e(f"v_perm_b32 v{dst+4*(2*d+x)+p}, v{src+4*(2*p+1)+d}, v{src+4*(2*p)+d}, {S_HI if x else S_LO}")
    def PV_phase(u, slot):
        e.wait_vm(f"v{u}")
        perms32(SLOT(slot), SC)
        for ee in range(8):
            c = "0" if u == 0 else vr(ACC+4*ee)
            e(f"v_mfma_f32_16x16x32_bf16 {vr(ACC+4*ee)}, {vr(SC+4*ee)}, {vr(P)}, {c}")
    KB, VB = SLOT(0), SLOT(0) + 16
    WP = SLOT(1)
    def tileK(sreg, tag, sreg2=None):
        for i in range(4):
            e(f"buffer_load_dwordx4 {vr(KB+4*i)}, v{V_K}, {R_K}, {sreg if (i < 2 or not sreg2) else sreg2} offen offset:{(i>>1)*2048 + (i&1)*128} nt", tag=tag)
    def tileV(sreg, tag, sreg2=None):
        for j in range(4):
            e(f"buffer_load_dwordx4 {vr(VB+4*j)}, v{V_V}, {R_V}, {sreg if (j < 2 or not sreg2) else sreg2} offen offset:{j*1024} nt", tag=tag)
    def down_mfma_publish(A, W, D, ST):
        for ee in range(8):
            e(f"v_mfma_f32_16x16x32_bf16 {vr(D+4*ee)}, {vr(A)}, {vr(W+4*ee)}, 0")
        e("s_mov_b64 exec, 0xffff")
        for q4 in range(4):
            b, eh = q4 >> 1, q4 & 1
            tagput(ST+4*q4, [D+4*(4*eh+i)+b for i in range(4)])
            e(f"buffer_store_dwordx4 {vr(ST+4*q4)}, v{V_V}, {R_WS}, s38 offen offset:{q4*256} sc1", tag="pubD")
        e("s_mov_b64 exec, -1")
    g = S_phase(0, 0); next(g)
    e("s_load_dwordx2 s[94:95], s[92:93], 0 glc")
    e(f"s_add_u32 s74, {S_KV}, {4*32768}")
    tileK("s74", "k4"); tileV("s74", "v4")
    next(g)
    PV_phase(0, 1)
    Lc1, Lc2 = newlab("ctpoll"), newlab("ctok")
    e(f"s_mov_b32 {S_CNT}, 0")
    e.label(Lc1)
    e("s_waitcnt lgkmcnt(0)")
    e(f"s_cmp_eq_u32 s95, {S_T}"); e(f"s_cbranch_scc1 {Lc2}")
    e(f"s_add_u32 {S_CNT}, {S_CNT}, 1"); e(f"s_cmp_gt_u32 {S_CNT}, {POLL_LIMIT}"); e(f"s_cbranch_scc1 {Lc2}")
    e("s_load_dwordx2 s[94:95], s[92:93], 0 glc")
    e(f"s_branch {Lc1}")
    e.label(Lc2)
    S_NX, S_ST = "s96", "s97"
    def grab():
        e(f"s_mov_b32 {S_NX}, 1")
        e(f"s_atomic_add {S_NX}, s[92:93], 0 glc")
    for _ in S_phase(1, 2): pass
    PV_phase(1, 3)
    e.wait_vm("dn")
    perms32(SLOT(4), WP)
    WA = SLOT(4)
    e(f"v_and_b32 v{T0}, 15, v{V_LANE}"); e(f"v_mul_u32_u24 v{WA}, {512+16}, v{T0}")
    e(f"v_lshrrev_b32 v{T1}, 4, v{V_LANE}"); e(f"v_lshl_add_u32 v{WA}, v{T1}, 7, v{WA}")
    e(f"s_lshl_b32 s7, {S_W}, 12"); e(f"v_add_u32 v{WA}, s7, v{WA}")
    for ee in range(1, 8): e(f"v_xor_b32 v{WA+ee}, {ee*16}, v{WA}")
    RA, GA, VO, VM, MA, MW, ADA, OLW = WA + 8, WA + 9, WA + 10, WA + 11, WA + 12, WA + 13, WA + 14, WA + 15
    e(f"s_lshl_b32 s7, {S_W}, 6"); e(f"v_add_u32 v{T0}, s7, v{V_LANE}")
    e(f"v_lshlrev_b32 v{GA}, 4, v{T0}")
    e(f"v_lshrrev_b32 v{T1}, 5, v{T0}"); e(f"v_and_b32 v{T1}, 7, v{T1}"); e(f"v_lshlrev_b32 v{MA}, 6, v{T1}"); e(f"v_lshlrev_b32 v{T1}, 4, v{T1}")
    e(f"v_xor_b32 v{RA}, v{GA}, v{T1}")
    e(f"v_lshlrev_b32 v{MW}, 6, v{V_LANE}"); e(f"s_lshl_b32 s7, {S_W}, 3"); e(f"v_add_u32 v{MW}, s7, v{MW}")
    e(f"v_and_b32 v{T0}, 1, v{V_LANE}"); e(f"v_lshlrev_b32 v{T0}, 6, v{T0}")
    e(f"v_and_b32 v{T1}, 48, v{V_LANE}"); e(f"v_add_u32 v{ADA}, v{T0}, v{T1}")
    e(f"s_and_b32 s7, {S_W}, 1"); e("s_lshl_b32 s7, s7, 6"); e(f"s_lshr_b32 s78, {S_W}, 1"); e("s_lshl_b32 s78, s78, 5"); e("s_add_u32 s7, s7, s78")
    e(f"v_lshlrev_b32 v{OLW}, 3, v{V_LANE}"); e(f"v_add_u32 v{OLW}, s7, v{OLW}")
    e(f"s_lshr_b32 s7, {S_IDX}, 5"); e(f"s_and_b32 s79, {S_W}, 1"); e("s_lshl_b32 s79, s79, 2"); e("s_add_u32 s7, s7, s79"); e("s_lshl_b32 s7, s7, 17")
    e("s_lshl_b32 s78, s78, 1"); e("s_add_u32 s78, s78, s7")
    e(f"s_and_b32 s7, {S_IDX}, 31"); e("s_lshl_b32 s7, s7, 7"); e("s_add_u32 s78, s78, s7"); e(f"s_add_u32 s78, s78, {WS_OP}")
    e(f"s_add_u32 s79, s78, {16*4096}")
    e(f"v_lshrrev_b32 v{T0}, 2, v{V_LANE}"); e(f"v_and_b32 v{T1}, 3, v{V_LANE}")
    e(f"v_lshlrev_b32 v{VO}, 12, v{T0}"); e(f"v_lshl_add_u32 v{VO}, v{T1}, 4, v{VO}")
    e("s_lshl_b32 s100, s2, 12"); e(f"s_add_u32 s100, s100, {WS_OP - 4096}")
    e("s_lshl_b32 s101, s2, 7"); e(f"s_add_u32 s101, s101, {WS_ML}")
    e(f"s_lshl_b32 s38, {S_TYPE}, 7"); e(f"s_add_u32 s38, s38, {S_KS}"); e("s_lshl_b32 s38, s38, 13")
    e(f"s_lshl_b32 s7, {S_W}, 10"); e("s_add_u32 s38, s38, s7"); e(f"s_add_u32 s38, s38, {WS_AP}")
    VA3, VX3, VL3, SH4 = WA + 18, WA + 19, WA + 20, WA + 21
    GF = SLOT(3)
    XQ = SLOT(3) + 4
    e(f"v_lshrrev_b32 v{VA3}, 2, v{V_LANE}"); e(f"v_lshlrev_b32 v{VA3}, 13, v{VA3}")
    e(f"v_and_b32 v{VX3}, 3, v{V_LANE}"); e(f"v_lshlrev_b32 v{SH4}, 3, v{VX3}"); e(f"v_lshlrev_b32 v{VX3}, 4, v{VX3}"); e(f"v_add_u32 v{VA3}, v{VA3}, v{VX3}")
    e(f"s_lshl_b32 s7, {S_W}, 6"); e(f"v_add_u32 v{VL3}, s7, v{VX3}")
    e(f"s_lshl_b32 s16, {S_IDX}, 6"); e(f"s_add_u32 s16, s16, {WS_AP}"); e(f"s_lshl_b32 s7, {S_W}, 17"); e("s_add_u32 s16, s16, s7")
    e(f"s_add_u32 s17, s16, {128*8192}")
    e(f"s_lshr_b32 s7, {S_IDX}, 3"); e("s_and_b32 s7, s7, 1"); e("s_lshl_b32 s18, s7, 11")
    e(f"s_lshr_b32 s7, {S_IDX}, 4"); e("s_lshl_b32 s7, s7, 8"); e("s_add_u32 s18, s18, s7")
    e(f"s_and_b32 s7, {S_IDX}, 3"); e("s_lshl_b32 s7, s7, 6"); e("s_add_u32 s18, s18, s7")
    e(f"s_and_b32 s7, {S_IDX}, 4"); e("s_lshl_b32 s7, s7, 1"); e("s_add_u32 s18, s18, s7")
    e(f"s_cmp_lg_u32 {S_W}, 7"); e(f"s_cselect_b32 s19, {S_TYPE}, 0")
    e(f"s_and_b32 s20, {S_T}, 0xffffff"); e("s_mov_b32 s21, 0x0c040100")
    def gf_issue(): e(f"buffer_load_dwordx4 {vr(GF)}, v{VA3}, {R_WS}, s17 offen sc1", tag="g")
    FR = 64 - 8*NS - HF
    P1 = FR * 8
    POOL = P1 + HF * 16
    assert NS == 5
    e("s_and_b32 s98, s2, 0xf8"); e("s_lshl_b32 s98, s98, 18"); e(f"s_add_u32 s98, s98, {NS*8*4096}")
    if not late_ffn:
      with cond(f"s_cmp_eq_u32 {S_HASF}, 0", "s_cbranch_scc1"):
        waitflags(L_FQ + 16, 1, "wfh2")
        e(f"ds_read_b128 {vr(AD)}, v{ADA} offset:{L_OL}")
        e("s_waitcnt lgkmcnt(0)")
        down_mfma_publish(AD, WP, SLOT(2), SC)
    grab()
    stamp(6)
    setprio(0)
    Lloop, Lskip = newlab("loop"), newlab("noresc")
    e("s_mov_b32 s99, 0")
    e.label(Lloop)
    e("s_waitcnt vmcnt(4)")
    for t in range(2):
        for beta in range(2):
            c = "0" if t == 0 else vr(SC+4*beta)
            e(f"v_mfma_f32_16x16x32_bf16 {vr(SC+4*beta)}, {vr(KB+8*beta+4*t)}, {vr(Q0 if t == 0 else Q1)}, {c}")
    e("s_waitcnt lgkmcnt(0)")
    e(f"s_and_b32 s74, {S_NX}, 7"); e("s_lshl_b32 s74, s74, 18"); e("s_add_u32 s74, s74, s98")
    e(f"s_lshr_b32 s75, {S_NX}, 3"); e("s_lshl_b32 s76, s75, 12"); e("s_lshl_b32 s75, s75, 11"); e(f"s_add_u32 s75, s75, {FR*4096 - FR*2048}")
    e(f"s_cmp_lt_u32 {S_NX}, {P1}"); e("s_cselect_b32 s75, s76, s75"); e("s_cselect_b32 s77, 0, 0xff800000"); e("s_cselect_b32 s76, 0, 0x40000000")
    e("s_add_u32 s74, s74, s75"); e("s_add_u32 s76, s76, s74")
    e(f"s_cmp_lt_u32 {S_NX}, {POOL}"); e("s_cselect_b32 s74, s74, 0x40000000"); e("s_cselect_b32 s75, 1, 0")
    tileK("s74", "kl", "s76")
    S = SC + 8
    for beta in range(2):
        for eps in range(2):
            dpp("v_add_f32", S+2*beta+eps, SC+4*beta+2*eps+1, SC+4*beta+2*eps, "row_ror:8")
    for d in range(2): rnd2(S+2*d, S+2*d+1, SC+12+d)
    for i in range(4): e(f"v_mul_f32 v{S+i}, {S_SCALE}, v{S+i}")
    for d in range(2): rnd2(S+2*d, S+2*d+1, SC+12+d)
    e(f"v_add_f32 v{S+2}, s99, v{S+2}"); e(f"v_add_f32 v{S+3}, s99, v{S+3}")
    e("s_mov_b32 s99, s77")
    e(f"v_max3_f32 v{T0}, v{S}, v{S+1}, v{S+2}")
    e(f"v_max_f32 v{T0}, v{T0}, v{S+3}")
    xlane("v_max_f32", [T0], [T1], ["p16", "p32"])
    e(f"v_mul_f32 v{T0}, {S_LOG2E}, v{T0}")
    e(f"v_cmp_gt_f32 vcc, v{T0}, v{V_ML}")
    e(f"s_and_b64 vcc, vcc, {S_N8}")
    e(f"s_cbranch_scc0 {Lskip}")
    e(f"v_max_f32 v{T0}, v{T0}, v{V_ML}")
    e(f"v_sub_f32 v{V_AL}, v{V_ML}, v{T0}")
    e(f"v_exp_f32 v{V_AL}, v{V_AL}")
    e(f"v_mov_b32 v{V_ML}, v{T0}")
    e(f"v_mul_f32 v{V_L}, v{V_L}, v{V_AL}")
    for i in range(32): e(f"v_mul_f32 v{ACC+i}, v{ACC+i}, v{V_AL}")
    e.label(Lskip)
    for i in range(4): e(f"v_fma_f32 v{S+i}, v{S+i}, {S_LOG2E}, -v{V_ML}")
    for i in range(4): e(f"v_exp_f32 v{S+i}, v{S+i}")
    for d in range(2): e(f"v_cvt_pk_bf16_f32 v{P+d}, v{S+2*d}, v{S+2*d+1}")
    for i in range(4): e(f"v_add_f32 v{V_L}, v{V_L}, v{S+i}")
    PS = SC + 16
    for p in range(2):
        e(f"s_waitcnt vmcnt({6 - 2*p})")
        for d in range(4):
            for x in range(2):
                e(f"v_perm_b32 v{PS+2*(2*d+x)+p}, v{VB+4*(2*p+1)+d}, v{VB+4*(2*p)+d}, {S_HI if x else S_LO}")
    with cond("s_cmp_eq_u32 s75, 0", "s_cbranch_scc1"):
        tileV("s74", "vl", "s76")
        grab()
    with cond("s_cmp_le_u32 s19, s75", "s_cbranch_scc1"):
        gf_issue()
        e(f"buffer_load_dwordx2 {vr(XQ,2)}, v{VX3}, {R_X}, s18 offen", tag="xq")
    for ee in range(8):
        e(f"v_mfma_f32_16x16x16_bf16 {vr(ACC+4*ee)}, {vr(PS+2*ee,2)}, {vr(P,2)}, {vr(ACC+4*ee)}")
    e("s_cmp_lg_u32 s75, 0"); e(f"s_cbranch_scc1 {Lloop}")
    stamp(7)
    xlane("v_add_f32", [V_L], [T1], ["p16", "p32"])
    e("s_mov_b64 exec, 0xff")
    e(f"ds_write_b64 v{MW}, {vr(V_ML,2)} offset:{L_MX}")
    e(f"s_mov_b64 exec, {S_N8}")
    for ee in range(8): e(f"ds_write_b128 v{WA+ee}, {vr(ACC+4*ee)} offset:{L_ORED}")
    e("s_mov_b64 exec, -1")
    stamp(8)
    e("s_waitcnt lgkmcnt(0)")
    e("s_barrier")
    L4, Lp = newlab("w4"), newlab("pubdone")
    ML8 = SC
    def wg_factors():
        e(f"v_max3_f32 v{T0}, v{ML8}, v{ML8+2}, v{ML8+4}")
        e(f"v_max3_f32 v{T1}, v{ML8+6}, v{ML8+8}, v{ML8+10}")
        e(f"v_max3_f32 v{T0}, v{T0}, v{ML8+12}, v{ML8+14}")
        e(f"v_max_f32 v{T0}, v{T0}, v{T1}")
        for w in range(8): e(f"v_sub_f32 v{ML8+2*w}, v{ML8+2*w}, v{T0}")
        for w in range(8): e(f"v_exp_f32 v{ML8+2*w}, v{ML8+2*w}")
    e(f"s_cmp_lt_u32 {S_W}, 4"); e(f"s_cbranch_scc1 {Lp}")
    e.cond_depth += 1
    for i in range(4): e(f"ds_read_b128 {vr(ML8+4*i)}, v{MA} offset:{L_MX + 16*i}")
    for w in range(8): e(f"ds_read_b128 {vr(ACC+4*w)}, v{RA} offset:{L_ORED - 4096 + w*4096}")
    e("s_waitcnt lgkmcnt(8)")
    wg_factors()
    e(f"v_mul_f32 v{T2}, v{ML8+1}, v{ML8}")
    e(f"v_mul_f32 v{T3}, v{ML8+3}, v{ML8+2}")
    for w in range(2, 8): e(f"v_fmac_f32 v{T2 + (w & 1)}, v{ML8+2*w+1}, v{ML8+2*w}")
    e(f"v_add_f32 v{T2}, v{T2}, v{T3}")
    e(f"v_log_f32 v{T3}, v{T2}")
    e(f"v_rcp_f32 v{T2}, v{T2}")
    for w in range(8):
        e(f"s_waitcnt lgkmcnt({7-w})")
        for c in range(0, 4, 2):
            if w == 0: e(f"v_pk_mul_f32 {vr(ACC+c,2)}, {vr(ACC+c,2)}, {vr(ML8,2)} op_sel_hi:[1,0]")
            else: e(f"v_pk_fma_f32 {vr(ACC+c,2)}, {vr(ACC+4*w+c,2)}, {vr(ML8+2*w,2)}, {vr(ACC+c,2)} op_sel_hi:[1,0,1]")
        if w == 1:
            e(f"v_add_f32 v{T3}, v{T3}, v{T0}")
            e(f"v_lshrrev_b32 v{T3}, v{SH4}, v{T3}")
    for c in range(0, 4, 2): e(f"v_pk_mul_f32 {vr(ACC+c,2)}, {vr(ACC+c,2)}, {vr(T2,2)} op_sel_hi:[1,0]")
    tagput(ACC+4, [ACC, ACC+1, ACC+2])
    e(f"v_perm_b32 v{ACC+7}, v{ACC+3}, v{T3}, {S_TI[0]}")
    e(f"buffer_store_dwordx4 {vr(ACC+4)}, v{GA}, {R_WS}, s100 offen sc1", tag="pubO")
    e.cond_depth -= 1
    e.label(Lp)
    stamp(9)
    if dbgt:
        e("s_memrealtime s[16:17]"); e("s_waitcnt lgkmcnt(0)")
    def late_dn(L):
        for jj in range(8 - L, 8):
            e(f"s_add_u32 s76, {S_DNB}, {(8*(jj&3) + (jj>>2))*2048}")
            e(f"buffer_load_dwordx4 {vr(SLOT(0)+4*jj)}, v{V_DN}, {R_DN}, s76 offen nt", tag="dn2")
        for p in range((8 - L) // 2, 4):
            e(f"s_waitcnt vmcnt({6-2*p})")
            for d in range(4):
                for x in range(2):
                    e(f"v_perm_b32 v{WP+4*(2*d+x)+p}, v{SLOT(0)+4*(2*p+1)+d}, v{SLOT(0)+4*(2*p)+d}, {S_HI if x else S_LO}")
    if pbar: e("s_barrier")
    LF = newlab("ftype")
    e(f"s_cmp_eq_u32 {S_TYPE}, 1"); e(f"s_cbranch_scc1 {LF}")
    e.cond_depth += 1
    OG, MG = ACC + 16, ACC + 24
    def o_issue():
        e(f"buffer_load_dwordx4 {vr(OG)}, v{VO}, {R_WS}, s78 offen sc1", tag="og")
        e(f"buffer_load_dwordx4 {vr(OG+4)}, v{VO}, {R_WS}, s79 offen sc1", tag="og")
    def o_check():
        e(f"v_perm_b32 v{T3}, v{OG+1}, v{OG}, {S_G2}")
        e(f"v_perm_b32 v{T4}, v{OG+5}, v{OG+4}, {S_G2}")
        e(f"v_perm_b32 v{T3}, v{OG+2}, v{T3}, s21")
        e(f"v_perm_b32 v{T4}, v{OG+6}, v{T4}, s21")
        e(f"v_xor_b32 v{T3}, s20, v{T3}"); e(f"v_xor_b32 v{T4}, s20, v{T4}")
        e(f"v_or_b32 v{T5}, v{T3}, v{T4}")
    late_dn(LA)
    with cond(f"s_cmp_ge_u32 {S_W}, 4", "s_cbranch_scc1"):
        if dly_o: e(f"s_sleep {dly_o}")
        o_issue()
        poll(o_issue, o_check, lambda: e("s_waitcnt vmcnt(0)"), "o", sleep=slp_o)
        stamp(10)
        for i in range(2): e(f"v_and_b32 v{MG+i}, 0xff, v{OG+4*i+3}")
        for i in range(2): e(f"v_lshlrev_b32 v{MG+i}, v{SH4}, v{MG+i}")
        for i in range(2): dpp("v_or_b32", MG+i, MG+i, MG+i, "quad_perm:[1,0,3,2]")
        for i in range(2): dpp("v_or_b32", MG+i, MG+i, MG+i, "quad_perm:[2,3,0,1]")
        e(f"v_max_f32 v{T0}, v{MG}, v{MG+1}")
        xlane("v_max_f32", [T0], [T1], ["r4", "r8", "p16", "p32"])
        for i in range(2): e(f"v_sub_f32 v{MG+i}, v{MG+i}, v{T0}")
        for i in range(2): e(f"v_exp_f32 v{MG+i}, v{MG+i}")
        for c in range(0, 4, 2): e(f"v_pk_mul_f32 {vr(OG+c,2)}, {vr(OG+c,2)}, {vr(MG,2)} op_sel_hi:[1,0]")
        for c in range(0, 4, 2): e(f"v_pk_fma_f32 {vr(OG+c,2)}, {vr(OG+4+c,2)}, {vr(MG,2)}, {vr(OG+c,2)} op_sel:[0,1,0] op_sel_hi:[1,1,1]")
        e(f"v_add_f32 v{T1}, v{MG}, v{MG+1}")
        xlane("v_add_f32", [OG, OG+1, OG+2, OG+3, T1], [OG+4, OG+5, OG+6, OG+7, T4], ["r4", "r8", "p16", "p32"])
        e(f"v_rcp_f32 v{T0}, v{T1}")
        for c in range(0, 4, 2): e(f"v_pk_mul_f32 {vr(OG+c,2)}, {vr(OG+c,2)}, {vr(T0,2)} op_sel_hi:[1,0]")
        e(f"v_cvt_pk_bf16_f32 v{OG}, v{OG}, v{OG+1}"); e(f"v_cvt_pk_bf16_f32 v{OG+1}, v{OG+2}, v{OG+3}")
        e("s_mov_b64 exec, 0xf")
        e(f"ds_write_b64 v{OLW}, {vr(OG,2)} offset:{L_OL}")
        e("s_mov_b64 exec, -1")
        e("s_waitcnt lgkmcnt(0)")
    e("s_barrier")
    e(f"ds_read_b128 {vr(AD)}, v{ADA} offset:{L_OL}")
    e("s_waitcnt lgkmcnt(0)")
    down_mfma_publish(AD, WP, ACC, SLOT(2))
    stamp(11)
    e("s_branch L_fini")
    e.label(LF)
    if late_ffn:
      with cond(f"s_cmp_eq_u32 {S_HASF}, 0", "s_cbranch_scc1"):
        e(f"ds_read_b128 {vr(AD)}, v{ADA} offset:{L_OL}")
        late_dn(LF_)
        e("s_waitcnt lgkmcnt(0)")
        down_mfma_publish(AD, WP, SLOT(2), SLOT(3))
      stamp(11)
    VA, VX, VL = VA3, VX3, VL3
    G = SLOT(1)
    def ga_issue(): e(f"buffer_load_dwordx4 {vr(G)}, v{VA}, {R_WS}, s16 offen sc1", tag="g")
    Lz, Lz2 = newlab("zf"), newlab("zf2")
    e(f"s_cmp_eq_u32 {S_W}, 7"); e(f"s_cbranch_scc1 {Lz}")
    poll(gf_issue, lambda: tagcheck(GF, T3, True, T5), lambda: e("s_waitcnt vmcnt(0)"), "gf", sleep=2)
    xlane("v_add_f32", [GF, GF+1, GF+2, GF+3], [G+8, G+9, G+10, G+11], ["r4", "r8", "p16", "p32"])
    e(f"s_branch {Lz2}")
    e.label(Lz)
    for c in range(4): e(f"v_mov_b32 v{GF+c}, 0")
    e.label(Lz2)
    e("s_mov_b64 exec, 0xf")
    e(f"ds_write_b128 v{VL}, {vr(GF)} offset:{L_REDQ+512}")
    if prepoll:
        e("s_mov_b64 exec, 1")
        if pre1:
            with cond(f"s_cmp_lg_u32 {S_W}, 0", "s_cbranch_scc1"):
                ga_issue()
                poll(ga_issue, lambda: tagcheck(G, T3, True, T5), lambda: e("s_waitcnt vmcnt(0)"), "gp", sleep=slp_pre)
            e("s_barrier")
        else:
            ga_issue()
            poll(ga_issue, lambda: tagcheck(G, T3, True, T5), lambda: e("s_waitcnt vmcnt(0)"), "gp", sleep=slp_pre)
    e("s_mov_b64 exec, -1")
    if dly_g: e(f"s_sleep {dly_g}")
    ga_issue()
    poll(ga_issue, lambda: tagcheck(G, T3, True, T5), lambda: e("s_waitcnt vmcnt(0)"), "ga", sleep=slp_g)
    stamp(12)
    xlane("v_add_f32", [G, G+1, G+2, G+3], [G+8, G+9, G+10, G+11], ["r4", "r8", "p16", "p32"])
    e("s_mov_b64 exec, 0xf")
    e(f"ds_write_b128 v{VL}, {vr(G)} offset:{L_REDQ}")
    e("s_waitcnt lgkmcnt(0)")
    e("s_barrier")
    e(f"s_cmp_lg_u32 {S_W}, 0"); e("s_cbranch_scc1 L_fini")
    e("s_mov_b64 exec, -1")
    e(f"ds_read_b128 {vr(G)}, v{V_V} offset:{L_REDQ}")
    XU = G + 12
    for d in range(2):
        e(f"v_lshlrev_b32 v{XU+2*d}, 16, v{XQ+d}"); e(f"v_and_b32 v{XU+2*d+1}, {S_MASKH}, v{XQ+d}")
    e("s_waitcnt lgkmcnt(0)")
    xlane("v_add_f32", [G, G+1, G+2, G+3], [G+8, G+9, G+10, G+11], ["r4", "r8", "p16"])
    rnd2(G, G+1, G+4); rnd2(G+2, G+3, G+5)
    for c in range(4): e(f"v_mov_b32 v{G+8+c}, v{G+c}")
    for c in range(4): e(f"v_permlane32_swap_b32 v{G+c}, v{G+8+c}")
    for c in range(4): e(f"v_add_f32 v{G+c}, v{XU+c}, v{G+c}")
    rnd2(G, G+1, G+4); rnd2(G+2, G+3, G+5)
    for c in range(4): e(f"v_add_f32 v{G+c}, v{G+c}, v{G+8+c}")
    e(f"v_cvt_pk_bf16_f32 v{G+4}, v{G}, v{G+1}"); e(f"v_cvt_pk_bf16_f32 v{G+5}, v{G+2}, v{G+3}")
    e("s_mov_b64 exec, 0xf")
    e(f"buffer_store_dwordx2 {vr(G+4,2)}, v{VX}, {R_OUT}, s18 offen")
    e(f"s_cmp_lg_u32 {S_IDX}, 0"); e("s_cbranch_scc1 L_fini")
    e("s_mov_b64 exec, 1")
    e(f"buffer_store_dword v{V_T}, off, {R_WS}, 0")
    e.cond_depth -= 1
    e.label("L_fini")
    if dbgt:
        e("s_memrealtime s[72:73]"); e("s_waitcnt lgkmcnt(0)")
        e("s_cmp_lg_u32 s3, 0"); e("s_cbranch_scc1 L_dbg1")
        e("s_atomic_umax s72, s[34:35], 4"); e("s_waitcnt lgkmcnt(0)")
        e.label("L_dbg1")
    if dbgt:
        e("s_cmp_lg_u32 s3, 0"); e("s_cbranch_scc1 L_end")
        e("s_atomic_umax s16, s[34:35], 12")
        e("s_not_b32 s72, s90"); e("s_atomic_umax s72, s[34:35], 0"); e("s_atomic_umax s90, s[34:35], 8"); e("s_waitcnt lgkmcnt(0)")
    if stamps:
        e("s_mov_b64 exec, -1")
        stamp(13)
        e("s_mov_b64 exec, 0xffff")
        e(f"v_lshlrev_b32 v{T0}, 2, v{V_LANE}")
        e("s_lshl_b32 s7, s2, 3"); e(f"s_add_u32 s7, s7, {S_W}"); e("s_lshl_b32 s7, s7, 6"); e(f"s_add_u32 s7, s7, {WS_SIZE}")
        e("s_mov_b32 s58, 0x1000000")
        e(f"buffer_store_dword v0, v{T0}, {R_WS}, s7 offen")
    e.label("L_end")
    e("s_endpgm")

    out = HEADER
    out += f"; @launch grid=(256,1,1) block=(512,1,1) lds={LDS_BYTES}\n"
    out += '.amdgcn_target "amdgcn-amd-amdhsa--gfx950"\n.text\n'
    out += f".globl {KNAME}\n.p2align 8\n.type {KNAME},@function\n{KNAME}:\n"
    out += e.text()
    out += f""".section .rodata,"a"
.p2align 6
.amdhsa_kernel {KNAME}
  .amdhsa_next_free_vgpr 256
  .amdhsa_next_free_sgpr 102
  .amdhsa_accum_offset 256
  .amdhsa_group_segment_fixed_size 0
  .amdhsa_kernarg_size 88
  .amdhsa_user_sgpr_count 2
  .amdhsa_user_sgpr_kernarg_segment_ptr 1
  .amdhsa_system_sgpr_workgroup_id_x 1
.end_amdhsa_kernel
"""
    return out

if __name__ == "__main__":
    import argparse
    ap = argparse.ArgumentParser()
    ap.add_argument("-o", default="parallel_sum__gqa_block_cached__dense_activation_silu__decode.s")
    ap.add_argument("--inf", type=int, default=5)
    ap.add_argument("--stamps", action="store_true")
    ap.add_argument("--kw", default="")
    a = ap.parse_args()
    kw = eval("dict(%s)" % a.kw)
    open(a.o, "w").write(gen(INF=a.inf, stamps=a.stamps, **kw))
```

```python
import sys
from emit import Emit
KNAME = "parallel_sum__gqa_block_cached__dense_activation_silu__decode_kernel"
HEADER = open("parallel_sum__gqa_block_cached__dense_activation_silu__decode.s.ref").read().split("; Override launch geometry")[0]

WS_QP = 0x1000
QP_B = 7680 * 4
QP_K = 2 * QP_B
WS_ML = 0x40000
WS_CT = 0x50000
WS_OP = 0x80000
WS_AP = 0x200000
WS_SIZE = 0x400000
L_REDQ = 0
L_REDH = 4096
L_Q = 8192
L_MX = 10240
L_OL = 10752
L_FA = 11008; L_FH = 11040; L_FQ = 11072
L_S2 = 0
L_S2M = 1024
L_ORED = 12288
LDS_BYTES = L_ORED + 8 * 4096
V_LANE, V_K, V_V, V_UP, V_DN, V_T, V_AL, V_ML, V_L = 1, 2, 3, 4, 5, 6, 7, 8, 9
T0, T1, T2, T3, T4, T5 = 10, 11, 12, 13, 14, 15
ACC = 16
Q0, Q1 = 48, 52
P = 56
AD = 60
SC = 64
def SLOT(k): return 96 + 32 * k
S_W, S_TYPE, S_IDX, S_T = "s3", "s4", "s5", "s6"
S_LO, S_HI = "s8", "s9"
S_TI = ["s10", "s11", "s12", "s13"]
S_G2 = "s14"
S_CNT = "s15"
R_K, R_V, R_UP, R_DN, R_WS, R_X, R_OUT, R_W1 = "s[40:43]", "s[44:47]", "s[48:51]", "s[52:55]", "s[56:59]", "s[60:63]", "s[64:67]", "s[28:31]"
S_KV, S_UPQ, S_UPH, S_DNB = "s68", "s69", "s70", "s71"
S_LOG2E, S_SCALE, S_MASKH, S_HASF, S_HASH, S_KS = "s82", "s83", "s84", "s85", "s86", "s87"
S_N8 = "s[88:89]"
S_CBH = "s39"
POLL_LIMIT = 1 << 17
def vr(a, n=4): return f"v[{a}:{a+n-1}]"

def gen(INF=5, stamps=False, NS=5, HF=8, pf=False, prio=True, slp_o=0, slp_g=0, slp_pre=2, prepoll=True, late_ffn=False, LA=0, LF_=0, pbar=False, dbgt=False, dly_o=8, dly_g=3, pre1=True, upfirst=False, lite=False, early=1, early_k=4, pmap=0, EA=8, xmode=0):
    e = Emit()
    lab = [0]
    def newlab(p):
        lab[0] += 1
        return f"L_{p}_{lab[0]}"
    def stamp(k):
        if not stamps: return
        if lite and k not in (7, 13): return
        e("s_memrealtime s[90:91]"); e("s_waitcnt lgkmcnt(0)"); e(f"v_writelane_b32 v0, s90, {k}")
    def throttle():
        if INF: e(f"s_waitcnt vmcnt({INF-1})")
    def setprio(n):
        if prio: e(f"s_setprio {n}")
    def dpp(op, d, a, b, ctl):
        e(f"{op}_dpp v{d}, v{a}, v{b} {ctl} row_mask:0xf bank_mask:0xf")
    def xlane(op, regs, tmps, steps):
        for st in steps:
            if st[0] == "r":
                for r in regs: dpp(op, r, r, r, f"row_ror:{st[1:]}")
            else:
                for r, t in zip(regs, tmps): e(f"v_mov_b32 v{t}, v{r}")
                for r, t in zip(regs, tmps): e(f"v_permlane{st[1:]}_swap_b32 v{r}, v{t}")
                for r, t in zip(regs, tmps): e(f"{op} v{r}, v{r}, v{t}")
    def tagcheck(g, tmp, first, accum):
        e(f"v_perm_b32 v{tmp}, v{g+1}, v{g}, {S_G2}")
        e(f"v_perm_b32 v{tmp+1}, v{g+3}, v{g+2}, {S_G2}")
        e(f"v_perm_b32 v{tmp}, v{tmp+1}, v{tmp}, {S_LO}")
        if first: e(f"v_xor_b32 v{accum}, v{tmp}, v{V_T}")
        else:
            e(f"v_xor_b32 v{tmp}, v{tmp}, v{V_T}")
            e(f"v_or_b32 v{accum}, v{accum}, v{tmp}")
    def tagput(dst, srcs):
        for i, s in enumerate(srcs): e(f"v_perm_b32 v{dst+i}, v{s}, v{V_T}, {S_TI[i]}")
    def rnd2(a, b_, tmp):
        e(f"v_cvt_pk_bf16_f32 v{tmp}, v{a}, v{b_}")
        e(f"v_lshlrev_b32 v{a}, 16, v{tmp}")
        e(f"v_and_b32 v{b_}, {S_MASKH}, v{tmp}")
    def poll(issue, check, waitfirst, name, sleep=0):
        Lr, Ld, Lx = newlab(name + "_retry"), newlab(name + "_done"), newlab(name + "_exit")
        waitfirst()
        check()
        e(f"v_cmp_ne_u32 vcc, 0, v{T5}")
        e(f"s_cbranch_vccz {Ld}")
        e(f"s_mov_b32 {S_CNT}, 0")
        e("s_mov_b64 s[80:81], exec")
        e.label(Lr)
        e("s_mov_b64 exec, vcc")
        if sleep: e(f"s_sleep {sleep}")
        e("s_nop 4")
        e.cond_depth += 1
        issue()
        e.cond_depth -= 1
        e(f"s_add_u32 {S_CNT}, {S_CNT}, 1")
        e(f"s_cmp_gt_u32 {S_CNT}, {POLL_LIMIT}")
        e("s_waitcnt vmcnt(0)")
        e(f"s_cbranch_scc1 {Lx}")
        check()
        e(f"v_cmp_ne_u32 vcc, 0, v{T5}")
        e(f"s_cbranch_vccnz {Lr}")
        e.label(Lx)
        e("s_mov_b64 exec, s[80:81]")
        e.label(Ld)
    def setflag(base, idx=None):
        if idx is None:
            e(f"s_lshl_b32 s7, {S_W}, 2"); e(f"v_mov_b32 v{T1}, s7")
        else: e(f"v_mov_b32 v{T1}, {4*idx}")
        e("s_waitcnt lgkmcnt(0)")
        e("s_mov_b64 exec, 1")
        e(f"v_mov_b32 v{T2}, 1")
        e(f"ds_write_b32 v{T1}, v{T2} offset:{base}")
        e("s_mov_b64 exec, -1")
    def waitflags(base, n, name):
        Lr, Lx = newlab(name), newlab(name + "x")
        e(f"v_and_b32 v{T1}, {n-1}, v{V_LANE}"); e(f"v_lshlrev_b32 v{T1}, 2, v{T1}")
        e(f"s_mov_b32 {S_CNT}, 0")
        e.label(Lr)
        e(f"ds_read_b32 v{T2}, v{T1} offset:{base}")
        e(f"s_add_u32 {S_CNT}, {S_CNT}, 1"); e(f"s_cmp_gt_u32 {S_CNT}, {POLL_LIMIT*4}")
        e("s_waitcnt lgkmcnt(0)")
        e(f"s_cbranch_scc1 {Lx}")
        e(f"v_cmp_ne_u32 vcc, 1, v{T2}")
        e(f"s_cbranch_vccnz {Lr}")
        e.label(Lx)
    def srd(base, lo, hi, n):
        e(f"s_mov_b32 s{base}, {lo}"); e(f"s_mov_b32 s{base+1}, {hi}"); e(f"s_mov_b32 s{base+2}, {n}"); e(f"s_mov_b32 s{base+3}, 0x00020000")
    class cond:
        def __init__(self, cmp, br):
            self.L = newlab("skip"); self.cmp = cmp if isinstance(cmp, list) else [cmp]; self.br = br
        def __enter__(self):
            for c in self.cmp:
                e(c); e(f"{self.br} {self.L}")
            e.cond_depth += 1
        def __exit__(self, *a):
            e.cond_depth -= 1; e.label(self.L)

    if stamps or dbgt: e("s_memrealtime s[90:91]")
    e("s_cmp_ge_u32 s2, 256")
    e("s_cbranch_scc1 L_end")
    e("s_load_dwordx2 s[48:49], s[0:1], 24")
    e("s_load_dwordx2 s[60:61], s[0:1], 0")
    e("s_load_dwordx4 s[16:19], s[0:1], 8")
    e("s_load_dwordx2 s[28:29], s[0:1], 48")
    setprio(3)
    e(f"v_lshrrev_b32 v{T0}, 6, v0")
    e(f"v_and_b32 v{V_LANE}, 63, v0")
    e(f"v_readfirstlane_b32 {S_W}, v{T0}")
    if stamps: e("v_mov_b32 v0, 0")
    e(f"v_lshrrev_b32 v{T0}, 3, v{V_LANE}"); e(f"v_and_b32 v{T1}, 7, v{V_LANE}"); e(f"v_lshlrev_b32 v{T1}, 4, v{T1}")
    e(f"v_lshl_add_u32 v{V_UP}, v{T0}, 15, v{T1}")
    e("s_and_b32 s7, s2, 3"); e("s_lshl_b32 s72, s7, 8"); e(f"s_lshl_b32 s73, {S_W}, 5"); e("s_add_u32 s72, s72, s73")
    e("s_lshr_b32 s73, s2, 2")
    e(f"s_lshl_b32 {S_UPQ}, s72, 13"); e("s_lshl_b32 s74, s73, 7"); e(f"s_add_u32 {S_UPQ}, {S_UPQ}, s74")
    e(f"s_mov_b32 s50, {8<<20}"); e("s_mov_b32 s51, 0x00020000"); e("s_movk_i32 s62, 4096"); e("s_mov_b32 s63, s51")
    e(f"v_lshlrev_b32 v{T3}, 5, v{V_LANE}")
    e("s_waitcnt lgkmcnt(0)")
    if stamps:
        e("v_writelane_b32 v0, s90, 15"); stamp(14)
    XF, XR = SC, SC + 16
    UPS = SLOT(4)
    def xl():
        for b in range(2):
            for hf in range(2):
                e(f"buffer_load_dwordx4 {vr(XF+8*b+4*hf)}, v{T3}, {R_X}, 0 offen offset:{b*2048+hf*16}", tag="xf")
    def ul():
        for i in range(4):
            e(f"buffer_load_dwordx4 {vr(UPS+4*i)}, v{V_UP}, {R_UP}, {S_UPQ} offen nt", tag="upq")
            if i < 3: e(f"s_add_u32 {S_UPQ}, {S_UPQ}, 8192")
    if upfirst: ul(); xl()
    else: xl(); ul()
    e(f"s_lshr_b32 {S_TYPE}, s2, 3"); e(f"s_xor_b32 {S_TYPE}, {S_TYPE}, s2"); e(f"s_and_b32 {S_TYPE}, {S_TYPE}, 1")
    e("s_load_dwordx2 s[56:57], s[0:1], 80")
    e(f"s_mul_i32 s76, {S_TYPE}, 24"); e("s_add_u32 s76, s76, 32")
    e("s_load_dwordx2 s[52:53], s[0:1], s76")
    e("s_load_dwordx2 s[64:65], s[0:1], 64")
    if dbgt: e("s_load_dwordx2 s[34:35], s[0:1], 72")
    e(f"v_lshlrev_b32 v{T2}, 3, v{T0}"); e("s_lshl_b32 s74, s72, 1"); e(f"v_add_u32 v{T2}, s74, v{T2}")
    for b in range(2):
        e(f"buffer_load_dwordx2 {vr(XR+2*b,2)}, v{T2}, {R_X}, 0 offen offset:{b*2048}", tag="xr")
    e(f"v_mul_u32_u24 v{V_DN}, {4*7168}, v{T0}"); e(f"v_add_u32 v{V_DN}, v{V_DN}, v{T1}")
    e("s_lshl_b32 s7, s7, 1"); e("s_add_u32 s7, s7, 1"); e("s_and_b32 s74, s73, 7")
    e("s_cmp_lg_u32 s74, s7"); e(f"s_cselect_b32 {S_HASH}, 1, 0")
    e("s_lshr_b32 s75, s73, 3"); e("s_mul_i32 s75, s75, 7"); e("s_add_u32 s75, s75, s74")
    e("s_cmp_gt_u32 s74, s7"); e(f"s_subb_u32 {S_CBH}, s75, 0")
    e(f"s_mul_i32 {S_UPH}, s72, 7168"); e(f"s_lshl_b32 s74, {S_CBH}, 7"); e(f"s_add_u32 {S_UPH}, {S_UPH}, s74")
    e(f"s_mul_i32 s30, {S_HASH}, {7<<20}"); e("s_mov_b32 s31, 0x00020000")
    def uh():
        for i in range(4):
            e(f"buffer_load_dwordx4 {vr(UPS+16+4*i)}, v{V_DN}, {R_W1}, {S_UPH} offen nt", tag="uph")
            if i < 3: e(f"s_add_u32 {S_UPH}, {S_UPH}, 7168")
    if early >= 1: uh()
    srd(40, "s16", "s17", 64 << 20)
    srd(44, "s18", "s19", 64 << 20)
    e(f"v_lshlrev_b32 v{V_V}, 4, v{V_LANE}")
    e(f"v_bfe_u32 v{T0}, v{V_LANE}, 1, 1"); e(f"v_bfe_u32 v{T1}, v{V_LANE}, 2, 2")
    e(f"v_lshl_add_u32 v{T0}, v{T0}, 2, v{T1}"); e(f"v_lshlrev_b32 v{V_K}, 8, v{T0}")
    e(f"v_lshrrev_b32 v{T1}, 4, v{V_LANE}"); e(f"v_lshl_add_u32 v{V_K}, v{T1}, 5, v{V_K}")
    e(f"v_and_b32 v{T1}, 1, v{V_LANE}"); e(f"v_lshl_add_u32 v{V_K}, v{T1}, 4, v{V_K}")
    e(f"s_lshl_b32 {S_KV}, s2, 18"); e(f"s_lshl_b32 s7, {S_W}, 12"); e(f"s_add_u32 {S_KV}, {S_KV}, s7")
    e(f"v_lshlrev_b32 v{T4}, 2, v{V_LANE}"); e(f"v_mov_b32 v{T5}, 0")
    e(f"ds_write_b32 v{T4}, v{T5} offset:{L_FA}")
    for base, n in ((56, WS_SIZE), (64, 4096)):
        e(f"s_mov_b32 s{base+2}, {n}"); e(f"s_mov_b32 s{base+3}, 0x00020000")
    e("s_waitcnt lgkmcnt(0)")
    e("s_load_dword s6, s[56:57], 0")
    e("s_barrier")
    for i in range(early_k):
        e(f"buffer_load_dwordx4 {vr(SLOT(0)+4*i)}, v{V_K}, {R_K}, {S_KV} offen offset:{(i>>1)*2048 + (i&1)*128} nt", tag="k0")
    e(f"s_mov_b32 {S_MASKH}, 0xffff0000")
    e(f"s_lshr_b32 {S_IDX}, s2, 1"); e(f"s_and_b32 s7, {S_IDX}, 7")
    e(f"s_sub_u32 s54, 8, {S_TYPE}"); e("s_lshl_b32 s54, s54, 20")
    e("s_mov_b32 s55, 0x00020000")
    e("s_cmp_lg_u32 s7, 7"); e(f"s_cselect_b32 {S_HASF}, {S_TYPE}, 0")
    e(f"s_lshr_b32 s7, {S_IDX}, 3"); e(f"s_mul_i32 s7, s7, {S_TYPE}"); e(f"s_sub_u32 {S_KS}, {S_IDX}, s7")
    e(f"s_cmp_eq_u32 {S_TYPE}, {S_HASF}")
    e("s_cselect_b32 s54, s54, 0")
    e(f"s_mov_b32 {S_LO}, 0x05040100"); e(f"s_mov_b32 {S_HI}, 0x07060302")
    for i in range(4): e(f"s_mov_b32 {S_TI[i]}, 0x{0x07060500 + i:08x}")
    e(f"s_mov_b32 {S_G2}, 0x0c0c0400")
    e(f"s_mov_b32 {S_LOG2E}, 0x3fb8aa3b"); e(f"s_mov_b32 {S_SCALE}, 0x3db504f3")
    e("s_mov_b32 s88, 0x00ff00ff"); e("s_mov_b32 s89, 0x00ff00ff")
    e(f"s_lshl_b32 {S_DNB}, {S_KS}, 16"); e(f"s_lshl_b32 s7, {S_W}, 8"); e(f"s_add_u32 {S_DNB}, {S_DNB}, s7")

    def kload(u, slot, i, thr=True):
        beta, t = i >> 1, i & 1
        if i % 4 == 0: e(f"s_add_u32 s74, {S_KV}, {(2*u + (beta >> 1)) * 32768}")
        if thr: throttle()
        e(f"buffer_load_dwordx4 {vr(SLOT(slot)+4*i)}, v{V_K}, {R_K}, s74 offen offset:{(beta&1)*2048 + t*128} nt", tag=f"k{u}")
    def vload(u, slot, j, thr=True):
        if j % 4 == 0: e(f"s_add_u32 s75, {S_KV}, {(2*u + (j >> 2)) * 32768}")
        if thr: throttle()
        e(f"buffer_load_dwordx4 {vr(SLOT(slot)+4*j)}, v{V_V}, {R_V}, s75 offen offset:{(j&3)*1024} nt", tag=f"v{u}")
    def issueK(u, slot, lo=0, hi=8):
        for i in range(lo, hi): kload(u, slot, i)
    def issueV(u, slot, lo=0, hi=8):
        for j in range(lo, hi): vload(u, slot, j)
    def issueDN(slot, lo=0, hi=8):
        for jj in range(lo, hi):
            a_on, f_on = jj < 8 - LA - EA, jj < 8 - LF_
            e(f"s_add_u32 s76, {S_DNB}, {(8*(jj&3) + (jj>>2))*2048}")
            if not a_on and not f_on: e("s_mov_b32 s76, 0x40000000")
            elif a_on != f_on:
                e(f"s_cmp_eq_u32 {S_TYPE}, {0 if a_on else 1}"); e("s_cselect_b32 s76, s76, 0x40000000")
            throttle()
            e(f"buffer_load_dwordx4 {vr(SLOT(slot)+4*jj)}, v{V_DN}, {R_DN}, s76 offen nt", tag="dn")

    stamp(0)
    U = SLOT(3)
    e.wait_vm("xf")
    if early < 1: uh()
    pend = [("k", i) for i in range(early_k, 8)] + [("v", j) for j in range(8)]
    def more(n):
        for _ in range(n):
            if not pend: return
            t, i = pend.pop(0)
            if t == "k":
                if i % 4 and i == early_k: e(f"s_mov_b32 s74, {S_KV}")
                kload(0, 0, i)
            else: vload(0, 1, i)
    for b in range(2):
        for d in range(8):
            e(f"v_lshlrev_b32 v{U+16*b+2*d}, 16, v{XF+8*b+d}")
            e(f"v_and_b32 v{U+16*b+2*d+1}, {S_MASKH}, v{XF+8*b+d}")
    SUM = [T0, T1]; TMP = [T2, T3]; VAR = [T4, T5]
    for b in range(2):
        e(f"v_pk_add_f32 {vr(XF+4*b,2)}, {vr(U+16*b,2)}, {vr(U+16*b+2,2)}")
        e(f"v_pk_add_f32 {vr(XF+4*b+2,2)}, {vr(U+16*b+4,2)}, {vr(U+16*b+6,2)}")
    for i in range(4, 8):
        for b in range(2):
            e(f"v_pk_add_f32 {vr(XF+4*b+2*(i&1),2)}, {vr(XF+4*b+2*(i&1),2)}, {vr(U+16*b+2*i,2)}")
    for b in range(2): e(f"v_pk_add_f32 {vr(XF+4*b,2)}, {vr(XF+4*b,2)}, {vr(XF+4*b+2,2)}")
    for b in range(2): e(f"v_add_f32 v{SUM[b]}, v{XF+4*b}, v{XF+4*b+1}")
    xlane("v_add_f32", SUM, TMP, ["r8", "r4", "r2", "r1", "p16", "p32"])
    for b in range(2): e(f"v_mul_f32 v{SUM[b]}, 0x3a800000, v{SUM[b]}")
    more(2)
    for i in range(8):
        for b in range(2):
            e(f"v_pk_add_f32 {vr(U+16*b+2*i,2)}, {vr(U+16*b+2*i,2)}, {vr(T0,2)} op_sel:[0,{b}] op_sel_hi:[1,{b}] neg_lo:[0,1] neg_hi:[0,1]")
    for b in range(2): e(f"v_pk_mul_f32 {vr(XF+4*b,2)}, {vr(U+16*b,2)}, {vr(U+16*b,2)}")
    for i in range(1, 8):
        for b in range(2): e(f"v_pk_fma_f32 {vr(XF+4*b,2)}, {vr(U+16*b+2*i,2)}, {vr(U+16*b+2*i,2)}, {vr(XF+4*b,2)}")
    for b in range(2): e(f"v_add_f32 v{VAR[b]}, v{XF+4*b}, v{XF+4*b+1}")
    xlane("v_add_f32", VAR, TMP, ["r8", "r4", "r2", "r1", "p16", "p32"])
    more(2)
    for b in range(2): e(f"v_mul_f32 v{VAR[b]}, 0x3a800000, v{VAR[b]}")
    rnd2(SUM[0], SUM[1], T2)
    rnd2(VAR[0], VAR[1], T3)
    for b in range(2): e(f"v_add_f32 v{VAR[b]}, 0x3727c5ac, v{VAR[b]}")
    rnd2(VAR[0], VAR[1], T3)
    for b in range(2): e(f"v_sqrt_f32 v{VAR[b]}, v{VAR[b]}")
    rnd2(VAR[0], VAR[1], T3)
    for b in range(2): e(f"v_rcp_f32 v{VAR[b]}, v{VAR[b]}")
    XN = ACC + 16
    e.wait_vm("xr")
    for b in range(2):
        for d in range(2):
            e(f"v_lshlrev_b32 v{XN+4*b+2*d}, 16, v{XR+2*b+d}")
            e(f"v_and_b32 v{XN+4*b+2*d+1}, {S_MASKH}, v{XR+2*b+d}")
    for b in range(2):
        for i in range(4): e(f"v_sub_f32 v{XN+4*b+i}, v{XN+4*b+i}, v{SUM[b]}")
    for d in range(4): rnd2(XN+2*d, XN+2*d+1, U+d)
    for b in range(2):
        for i in range(4): e(f"v_mul_f32 v{XN+4*b+i}, v{XN+4*b+i}, v{VAR[b]}")
    for d in range(4): rnd2(XN+2*d, XN+2*d+1, U+d)
    e("s_waitcnt lgkmcnt(0)")
    e(f"s_mul_i32 {S_T}, {S_T}, 1664525"); e(f"s_add_u32 {S_T}, {S_T}, 1013904223")
    e(f"v_mov_b32 v{V_T}, {S_T}")
    stamp(1)
    e(f"v_lshrrev_b32 v{T0}, 5, v{V_LANE}"); e(f"v_lshlrev_b32 v{T0}, 8, v{T0}")
    e(f"v_and_b32 v{T1}, 7, v{V_LANE}"); e(f"v_lshl_add_u32 v{T0}, v{T1}, 5, v{T0}")
    e(f"v_and_b32 v{T1}, 16, v{V_LANE}"); e(f"v_add_u32 v{T0}, v{T0}, v{T1}")
    e(f"s_lshl_b32 s7, {S_W}, 9"); e(f"v_add_u32 v{V_AL}, s7, v{T0}")
    def up_compute(src, tag, lbase, fbase, between):
        for i in range(4):
            e.wait_vm_idx(tag, i)
            for d in range(4):
                e(f"v_lshlrev_b32 v{U+2*d}, 16, v{src+4*i+d}")
                e(f"v_and_b32 v{U+2*d+1}, {S_MASKH}, v{src+4*i+d}")
            for b in range(2):
                for c in range(0, 8, 2):
                    xr = XN + 4*b + i
                    base = xr & ~1; sel = xr & 1
                    if i == 0: e(f"v_pk_mul_f32 {vr(ACC+8*b+c,2)}, {vr(U+c,2)}, {vr(base,2)} op_sel:[0,{sel}] op_sel_hi:[1,{sel}]")
                    else: e(f"v_pk_fma_f32 {vr(ACC+8*b+c,2)}, {vr(U+c,2)}, {vr(base,2)}, {vr(ACC+8*b+c,2)} op_sel:[0,{sel},0] op_sel_hi:[1,{sel},1]")
            between(i)
        for c in range(8): e(f"v_permlane32_swap_b32 v{ACC+c}, v{ACC+8+c}")
        for c in range(8): e(f"v_add_f32 v{ACC+c}, v{ACC+c}, v{ACC+8+c}")
        for c in range(4): e(f"v_permlane16_swap_b32 v{ACC+c}, v{ACC+4+c}")
        for c in range(4): e(f"v_add_f32 v{ACC+c}, v{ACC+c}, v{ACC+4+c}")
        for c in range(4): dpp("v_add_f32", ACC+c, ACC+c, ACC+c, "row_ror:8")
        e(f"ds_write_b128 v{V_AL}, {vr(ACC)} offset:{lbase}")
        setflag(fbase)
    def up_publish(lbase, fbase, colreg_expr, name):
        waitflags(fbase, 8, name)
        e("s_mov_b32 exec_hi, 0")
        for w in range(8): e(f"ds_read_b128 {vr(U+4*w)}, v{V_V} offset:{lbase + w*512}")
        e(f"v_lshrrev_b32 v{T0}, 4, v{V_LANE}"); e(f"v_mul_u32_u24 v{T0}, {QP_B}, v{T0}")
        e(f"v_and_b32 v{T1}, 15, v{V_LANE}"); e(f"v_lshl_add_u32 v{T0}, v{T1}, 4, v{T0}")
        e("s_and_b32 s7, s2, 3"); e(f"s_mul_i32 s7, s7, {QP_K}")
        colreg_expr()
        e("s_add_u32 s7, s7, s72")
        e("s_waitcnt lgkmcnt(0)")
        for w in range(1, 8):
            e(f"v_pk_add_f32 {vr(U,2)}, {vr(U,2)}, {vr(U+4*w,2)}"); e(f"v_pk_add_f32 {vr(U+2,2)}, {vr(U+2,2)}, {vr(U+4*w+2,2)}")
        tagput(U+4, [U, U+1, U+2, U+3])
        e(f"buffer_store_dwordx4 {vr(U+4)}, v{T0}, {R_WS}, s7 offen sc1", tag="pub")
        e("s_mov_b64 exec, -1")
    up_compute(UPS, "upq", L_REDQ, L_FA, lambda i: None)
    stamp(2)
    with cond(f"s_cmp_lg_u32 {S_W}, 7", "s_cbranch_scc1"):
        up_publish(L_REDQ, L_FA, lambda: (e("s_lshr_b32 s72, s2, 2"), e("s_lshl_b32 s72, s72, 8"), e(f"s_add_u32 s72, s72, {WS_QP}")), "wfa")
    stamp(3)
    setprio(2)
    e("s_lshr_b32 s7, s2, 3"); e("s_lshl_b32 s7, s7, 8"); e(f"s_add_u32 s7, s7, {WS_CT}")
    e("s_add_u32 s92, s56, s7"); e("s_addc_u32 s93, s57, 0")
    e("s_and_b32 s72, s2, 7"); e(f"s_or_b32 s72, s72, {S_W}")
    with cond("s_cmp_lg_u32 s72, 0", "s_cbranch_scc1"):
        e("s_mov_b64 exec, 1")
        e(f"v_mov_b32 v{U+8}, 0"); e(f"v_mov_b32 v{U+9}, {S_T}")
        e(f"buffer_store_dwordx2 {vr(U+8,2)}, off, {R_WS}, s7 sc1", tag="ct")
        e("s_mov_b64 exec, -1")
    up_compute(UPS+16, "uph", L_REDH, L_FH, lambda i: more(1))
    e(f"v_lshrrev_b32 v{T0}, 4, v{V_LANE}"); e(f"v_lshlrev_b32 v{V_DN}, 12, v{T0}")
    e(f"v_and_b32 v{T1}, 15, v{V_LANE}"); e(f"v_lshl_add_u32 v{V_DN}, v{T1}, 4, v{V_DN}")
    more(16)
    with cond([f"s_cmp_lg_u32 {S_W}, 6", f"s_cmp_eq_u32 {S_HASH}, 0"], "s_cbranch_scc1"):
        up_publish(L_REDH, L_FH, lambda: (e(f"s_lshl_b32 s72, {S_CBH}, 8"), e(f"s_add_u32 s72, s72, {WS_QP + 4096*4}")), "wfh")
    issueK(1, 2)
    issueV(1, 3)
    setprio(1)
    issueDN(4, 0, 4)
    QG = SC
    e("s_lshr_b32 s77, s2, 7"); e(f"s_mul_i32 s77, s77, {QP_B}")
    e("s_lshr_b32 s7, s2, 5"); e("s_and_b32 s7, s7, 3"); e("s_lshl_b32 s7, s7, 12"); e("s_add_u32 s77, s77, s7")
    e(f"s_lshl_b32 s7, {S_W}, 10"); e("s_add_u32 s77, s77, s7"); e(f"s_add_u32 s77, s77, {WS_QP}")
    e(f"s_add_u32 s78, s77, {2*QP_K}")
    VQ2 = Q0
    e(f"v_add_u32 v{VQ2}, {QP_K}, v{V_V}")
    def q_issue():
        for kq in range(4):
            e(f"buffer_load_dwordx4 {vr(QG+4*kq)}, v{VQ2 if kq & 1 else V_V}, {R_WS}, s{77 + (kq >> 1)} offen sc1", tag="qp")
    def q_check():
        for kq in range(4): tagcheck(QG+4*kq, T3, kq == 0, T5)
    VH = Q0 + 1
    e(f"v_lshrrev_b32 v{T0}, 3, v{V_LANE}"); e(f"v_mul_u32_u24 v{VH}, {QP_B}, v{T0}")
    e(f"v_and_b32 v{T1}, 7, v{V_LANE}"); e(f"v_lshl_add_u32 v{VH}, v{T1}, 4, v{VH}")
    e(f"s_lshl_b32 s79, {S_KS}, 7"); e(f"s_add_u32 s79, s79, {WS_QP + 4096*4}")
    def h_issue(): e(f"buffer_load_dwordx4 {vr(QG)}, v{VH}, {R_WS}, s79 offen sc1", tag="hp")
    def h_check(): tagcheck(QG, T3, True, T5)
    with cond(f"s_cmp_ge_u32 {S_W}, 4", "s_cbranch_scc1"): q_issue()
    with cond([f"s_cmp_lg_u32 {S_W}, 4", f"s_cmp_eq_u32 {S_HASF}, 0"], "s_cbranch_scc1"): h_issue()
    issueDN(4, 4, 8)
    with cond(f"s_cmp_ge_u32 {S_W}, 4", "s_cbranch_scc1"):
        poll(q_issue, q_check, lambda: e("s_waitcnt vmcnt(4)"), "q")
        for kq in range(1, 4):
            e(f"v_pk_add_f32 {vr(QG,2)}, {vr(QG,2)}, {vr(QG+4*kq,2)}"); e(f"v_pk_add_f32 {vr(QG+2,2)}, {vr(QG+2,2)}, {vr(QG+4*kq+2,2)}")
        e(f"v_cvt_pk_bf16_f32 v{QG}, v{QG}, v{QG+1}")
        e(f"v_cvt_pk_bf16_f32 v{QG+1}, v{QG+2}, v{QG+3}")
        e(f"v_lshlrev_b32 v{T0}, 3, v{V_LANE}"); e(f"s_lshl_b32 s7, {S_W}, 9"); e(f"v_add_u32 v{T0}, s7, v{T0}")
        e(f"ds_write_b64 v{T0}, {vr(QG,2)} offset:{L_Q}")
        setflag(L_FQ)
    with cond([f"s_cmp_lg_u32 {S_W}, 4", f"s_cmp_eq_u32 {S_HASF}, 0"], "s_cbranch_scc1"):
        poll(h_issue, h_check, lambda: e("s_waitcnt vmcnt(4)"), "h")
        HG = QG
        xlane("v_add_f32", [HG, HG+1, HG+2, HG+3], [HG+4, HG+5, HG+6, HG+7], ["p16", "p32"])
        for d in range(2): rnd2(HG+2*d, HG+2*d+1, HG+8+d)
        for i in range(4): e(f"v_mul_f32 v{HG+8+i}, {S_LOG2E}, v{HG+i}")
        for i in range(4): e(f"v_exp_f32 v{HG+8+i}, -v{HG+8+i}")
        for i in range(4): e(f"v_add_f32 v{HG+8+i}, 1.0, v{HG+8+i}")
        for i in range(4): e(f"v_rcp_f32 v{HG+8+i}, v{HG+8+i}")
        for i in range(4): e(f"v_mul_f32 v{HG+i}, v{HG+i}, v{HG+8+i}")
        for d in range(2): e(f"v_cvt_pk_bf16_f32 v{HG+4+d}, v{HG+2*d}, v{HG+2*d+1}")
        e(f"v_and_b32 v{T0}, 1, v{V_LANE}"); e(f"v_lshlrev_b32 v{T0}, 5, v{T0}")
        e(f"v_bfe_u32 v{T1}, v{V_LANE}, 1, 2"); e(f"v_lshl_add_u32 v{T0}, v{T1}, 1, v{T0}")
        e(f"v_bfe_u32 v{T1}, v{V_LANE}, 3, 1"); e(f"v_lshl_add_u32 v{T0}, v{T1}, 6, v{T0}")
        e("s_mov_b64 exec, 0xffff")
        for d in range(2):
            e(f"ds_write_b16 v{T0}, v{HG+4+d} offset:{L_OL + 16*d}")
            e(f"ds_write_b16_d16_hi v{T0}, v{HG+4+d} offset:{L_OL + 16*d + 8}")
        e("s_mov_b64 exec, -1")
        setflag(L_FQ)
    stamp(4)
    e(f"v_and_b32 v{T0}, 7, v{V_LANE}"); e(f"v_lshlrev_b32 v{T0}, 8, v{T0}")
    e(f"v_lshrrev_b32 v{T1}, 4, v{V_LANE}"); e(f"v_lshl_add_u32 v{T0}, v{T1}, 5, v{T0}")
    e(f"v_bfe_u32 v{T1}, v{V_LANE}, 3, 1"); e(f"v_lshl_add_u32 v{T0}, v{T1}, 4, v{T0}")
    waitflags(L_FQ, 4, "wfq")
    e(f"ds_read_b128 {vr(Q0)}, v{T0} offset:{L_Q}")
    e(f"ds_read_b128 {vr(Q1)}, v{T0} offset:{L_Q+128}")
    stamp(5)

    def S_phase(u, slot):
        K = SLOT(slot)
        e.wait_vm(f"k{u}", " lgkmcnt(0)" if u == 0 else "")
        for t in range(2):
            for beta in range(4):
                c = "0" if t == 0 else vr(SC+4*beta)
                e(f"v_mfma_f32_16x16x32_bf16 {vr(SC+4*beta)}, {vr(K+8*beta+4*t)}, {vr(Q0 if t == 0 else Q1)}, {c}")
        yield
        S = SC + 16
        for beta in range(4):
            for eps in range(2):
                dpp("v_add_f32", S+2*beta+eps, SC+4*beta+2*eps+1, SC+4*beta+2*eps, "row_ror:8")
        for d in range(4): rnd2(S+2*d, S+2*d+1, SC+24+d)
        for i in range(8): e(f"v_mul_f32 v{S+i}, {S_SCALE}, v{S+i}")
        for d in range(4): rnd2(S+2*d, S+2*d+1, SC+24+d)
        e(f"v_max3_f32 v{T0}, v{S}, v{S+1}, v{S+2}")
        e(f"v_max3_f32 v{T1}, v{S+3}, v{S+4}, v{S+5}")
        e(f"v_max3_f32 v{T0}, v{T0}, v{S+6}, v{S+7}")
        e(f"v_max_f32 v{T0}, v{T0}, v{T1}")
        xlane("v_max_f32", [T0], [T1], ["p16", "p32"])
        e(f"v_mul_f32 v{T0}, {S_LOG2E}, v{T0}")
        if u > 0:
            e(f"v_max_f32 v{T0}, v{T0}, v{V_ML}")
            e(f"v_sub_f32 v{V_AL}, v{V_ML}, v{T0}")
            e(f"v_exp_f32 v{V_AL}, v{V_AL}")
        e(f"v_mov_b32 v{V_ML}, v{T0}")
        for i in range(8): e(f"v_fma_f32 v{S+i}, v{S+i}, {S_LOG2E}, -v{T0}")
        for i in range(8): e(f"v_exp_f32 v{S+i}, v{S+i}")
        if u > 0:
            e(f"v_mul_f32 v{V_L}, v{V_L}, v{V_AL}")
            for i in range(32): e(f"v_mul_f32 v{ACC+i}, v{ACC+i}, v{V_AL}")
        for d in range(4): e(f"v_cvt_pk_bf16_f32 v{P+d}, v{S+2*d}, v{S+2*d+1}")
        if u == 0: e(f"v_add_f32 v{V_L}, v{S}, v{S+1}")
        else:
            e(f"v_add_f32 v{V_L}, v{V_L}, v{S}"); e(f"v_add_f32 v{V_L}, v{V_L}, v{S+1}")
        for i in range(2, 8): e(f"v_add_f32 v{V_L}, v{V_L}, v{S+i}")
        yield
    def perms32(src, dst):
        for p in range(4):
            for d in range(4):
                for x in range(2):
                    e(f"v_perm_b32 v{dst+4*(2*d+x)+p}, v{src+4*(2*p+1)+d}, v{src+4*(2*p)+d}, {S_HI if x else S_LO}")
    def PV_phase(u, slot):
        e.wait_vm(f"v{u}")
        perms32(SLOT(slot), SC)
        for ee in range(8):
            c = "0" if u == 0 else vr(ACC+4*ee)
            e(f"v_mfma_f32_16x16x32_bf16 {vr(ACC+4*ee)}, {vr(SC+4*ee)}, {vr(P)}, {c}")
    KB, VB = SLOT(0), SLOT(0) + 16
    WP = SLOT(1)
    def tileK(sreg, tag, sreg2=None):
        for i in range(4):
            e(f"buffer_load_dwordx4 {vr(KB+4*i)}, v{V_K}, {R_K}, {sreg if (i < 2 or not sreg2) else sreg2} offen offset:{(i>>1)*2048 + (i&1)*128} nt", tag=tag)
    def tileV(sreg, tag, sreg2=None):
        for j in range(4):
            e(f"buffer_load_dwordx4 {vr(VB+4*j)}, v{V_V}, {R_V}, {sreg if (j < 2 or not sreg2) else sreg2} offen offset:{j*1024} nt", tag=tag)
    def down_mfma_publish(A, W, D, ST):
        for ee in range(8):
            e(f"v_mfma_f32_16x16x32_bf16 {vr(D+4*ee)}, {vr(A)}, {vr(W+4*ee)}, 0")
        e("s_mov_b64 exec, 0xffff")
        for q4 in range(4):
            b, eh = q4 >> 1, q4 & 1
            tagput(ST+4*q4, [D+4*(4*eh+i)+b for i in range(4)])
            e(f"buffer_store_dwordx4 {vr(ST+4*q4)}, v{V_V}, {R_WS}, s38 offen offset:{q4*256} sc1", tag="pubD")
        e("s_mov_b64 exec, -1")
    g = S_phase(0, 0); next(g)
    e("s_load_dwordx2 s[94:95], s[92:93], 0 glc")
    e(f"s_add_u32 s74, {S_KV}, {4*32768}")
    tileK("s74", "k4"); tileV("s74", "v4")
    next(g)
    PV_phase(0, 1)
    Lc1, Lc2 = newlab("ctpoll"), newlab("ctok")
    e(f"s_mov_b32 {S_CNT}, 0")
    e.label(Lc1)
    e("s_waitcnt lgkmcnt(0)")
    e(f"s_cmp_eq_u32 s95, {S_T}"); e(f"s_cbranch_scc1 {Lc2}")
    e(f"s_add_u32 {S_CNT}, {S_CNT}, 1"); e(f"s_cmp_gt_u32 {S_CNT}, {POLL_LIMIT}"); e(f"s_cbranch_scc1 {Lc2}")
    e("s_load_dwordx2 s[94:95], s[92:93], 0 glc")
    e(f"s_branch {Lc1}")
    e.label(Lc2)
    S_NX, S_ST = "s96", "s97"
    def grab():
        e(f"s_mov_b32 {S_NX}, 1")
        e(f"s_atomic_add {S_NX}, s[92:93], 0 glc")
    for _ in S_phase(1, 2): pass
    PV_phase(1, 3)
    e.wait_vm("dn")
    perms32(SLOT(4), WP)
    WA = SLOT(4)
    e(f"v_and_b32 v{T0}, 15, v{V_LANE}"); e(f"v_mul_u32_u24 v{WA}, {512+16}, v{T0}")
    e(f"v_lshrrev_b32 v{T1}, 4, v{V_LANE}"); e(f"v_lshl_add_u32 v{WA}, v{T1}, 7, v{WA}")
    e(f"s_lshl_b32 s7, {S_W}, 12"); e(f"v_add_u32 v{WA}, s7, v{WA}")
    for ee in range(1, 8): e(f"v_xor_b32 v{WA+ee}, {ee*16}, v{WA}")
    RA, GA, VO, VM, MA, MW, ADA, OLW = WA + 8, WA + 9, WA + 10, WA + 11, WA + 12, WA + 13, WA + 14, WA + 15
    e(f"s_lshl_b32 s7, {S_W}, 6"); e(f"v_add_u32 v{T0}, s7, v{V_LANE}")
    e(f"v_lshlrev_b32 v{GA}, 4, v{T0}")
    e(f"v_lshrrev_b32 v{T1}, 5, v{T0}"); e(f"v_and_b32 v{T1}, 7, v{T1}"); e(f"v_lshlrev_b32 v{MA}, 6, v{T1}"); e(f"v_lshlrev_b32 v{T1}, 4, v{T1}")
    e(f"v_xor_b32 v{RA}, v{GA}, v{T1}")
    e(f"v_lshlrev_b32 v{MW}, 6, v{V_LANE}"); e(f"s_lshl_b32 s7, {S_W}, 3"); e(f"v_add_u32 v{MW}, s7, v{MW}")
    e(f"v_and_b32 v{T0}, 1, v{V_LANE}"); e(f"v_lshlrev_b32 v{T0}, 6, v{T0}")
    e(f"v_and_b32 v{T1}, 48, v{V_LANE}"); e(f"v_add_u32 v{ADA}, v{T0}, v{T1}")
    e(f"s_and_b32 s7, {S_W}, 1"); e("s_lshl_b32 s7, s7, 6"); e(f"s_lshr_b32 s78, {S_W}, 1"); e("s_lshl_b32 s78, s78, 5"); e("s_add_u32 s7, s7, s78")
    e(f"v_lshlrev_b32 v{OLW}, 3, v{V_LANE}"); e(f"v_add_u32 v{OLW}, s7, v{OLW}")
    e(f"s_lshr_b32 s7, {S_IDX}, 5"); e(f"s_and_b32 s79, {S_W}, 1"); e("s_lshl_b32 s79, s79, 2"); e("s_add_u32 s7, s7, s79"); e("s_lshl_b32 s7, s7, 17")
    e("s_lshl_b32 s78, s78, 1"); e("s_add_u32 s78, s78, s7")
    e(f"s_and_b32 s7, {S_IDX}, 31"); e("s_lshl_b32 s7, s7, 7"); e("s_add_u32 s78, s78, s7"); e(f"s_add_u32 s78, s78, {WS_OP}")
    e(f"s_add_u32 s79, s78, {16*4096}")
    e(f"v_lshrrev_b32 v{T0}, 2, v{V_LANE}"); e(f"v_and_b32 v{T1}, 3, v{V_LANE}")
    e(f"v_lshlrev_b32 v{VO}, 12, v{T0}"); e(f"v_lshl_add_u32 v{VO}, v{T1}, 4, v{VO}")
    e("s_lshl_b32 s100, s2, 12"); e(f"s_add_u32 s100, s100, {WS_OP - 4096}")
    e("s_lshl_b32 s101, s2, 7"); e(f"s_add_u32 s101, s101, {WS_ML}")
    e(f"s_lshl_b32 s38, {S_TYPE}, 7"); e(f"s_add_u32 s38, s38, {S_KS}"); e("s_lshl_b32 s38, s38, 13")
    e(f"s_lshl_b32 s7, {S_W}, 10"); e("s_add_u32 s38, s38, s7"); e(f"s_add_u32 s38, s38, {WS_AP}")
    VA3, VX3, VL3, SH4 = WA + 18, WA + 19, WA + 20, WA + 21
    GF = SLOT(3)
    XQ = SLOT(3) + 4
    e(f"v_lshrrev_b32 v{VA3}, 2, v{V_LANE}"); e(f"v_lshlrev_b32 v{VA3}, 13, v{VA3}")
    e(f"v_and_b32 v{VX3}, 3, v{V_LANE}"); e(f"v_lshlrev_b32 v{SH4}, 3, v{VX3}"); e(f"v_lshlrev_b32 v{VX3}, 4, v{VX3}"); e(f"v_add_u32 v{VA3}, v{VA3}, v{VX3}")
    e(f"s_lshl_b32 s7, {S_W}, 6"); e(f"v_add_u32 v{VL3}, s7, v{VX3}")
    e(f"s_lshl_b32 s16, {S_IDX}, 6"); e(f"s_add_u32 s16, s16, {WS_AP}"); e(f"s_lshl_b32 s7, {S_W}, 17"); e("s_add_u32 s16, s16, s7")
    e(f"s_add_u32 s17, s16, {128*8192}")
    e(f"s_lshr_b32 s7, {S_IDX}, 3"); e("s_and_b32 s7, s7, 1"); e("s_lshl_b32 s18, s7, 11")
    e(f"s_lshr_b32 s7, {S_IDX}, 4"); e("s_lshl_b32 s7, s7, 8"); e("s_add_u32 s18, s18, s7")
    e(f"s_and_b32 s7, {S_IDX}, 3"); e("s_lshl_b32 s7, s7, 6"); e("s_add_u32 s18, s18, s7")
    e(f"s_and_b32 s7, {S_IDX}, 4"); e("s_lshl_b32 s7, s7, 1"); e("s_add_u32 s18, s18, s7")
    e(f"s_cmp_lg_u32 {S_W}, 7"); e(f"s_cselect_b32 s19, {S_TYPE}, 0")
    e(f"s_and_b32 s20, {S_T}, 0xffffff"); e("s_mov_b32 s21, 0x0c040100")
    def gf_issue(): e(f"buffer_load_dwordx4 {vr(GF)}, v{VA3}, {R_WS}, s17 offen sc1", tag="g")
    FR = 64 - 8*NS - HF
    P1 = FR * 8
    POOL = P1 + HF * 16
    assert NS == 5
    e("s_and_b32 s98, s2, 0xf8"); e("s_lshl_b32 s98, s98, 18"); e(f"s_add_u32 s98, s98, {NS*8*4096}")
    if not late_ffn:
      with cond(f"s_cmp_eq_u32 {S_HASF}, 0", "s_cbranch_scc1"):
        waitflags(L_FQ + 16, 1, "wfh2")
        e(f"ds_read_b128 {vr(AD)}, v{ADA} offset:{L_OL}")
        e("s_waitcnt lgkmcnt(0)")
        down_mfma_publish(AD, WP, SLOT(2), SC)
    grab()
    stamp(6)
    setprio(0)
    Lloop, Lskip = newlab("loop"), newlab("noresc")
    e("s_mov_b32 s99, 0")
    e.label(Lloop)
    e("s_waitcnt vmcnt(4)")
    for t in range(2):
        for beta in range(2):
            c = "0" if t == 0 else vr(SC+4*beta)
            e(f"v_mfma_f32_16x16x32_bf16 {vr(SC+4*beta)}, {vr(KB+8*beta+4*t)}, {vr(Q0 if t == 0 else Q1)}, {c}")
    e("s_waitcnt lgkmcnt(0)")
    if pmap == 0:
        e(f"s_and_b32 s74, {S_NX}, 7"); e("s_lshl_b32 s74, s74, 18"); e("s_add_u32 s74, s74, s98")
        e(f"s_lshr_b32 s75, {S_NX}, 3"); e("s_lshl_b32 s76, s75, 12"); e("s_lshl_b32 s75, s75, 11"); e(f"s_add_u32 s75, s75, {FR*4096 - FR*2048}")
    else:
        assert FR % 8 == 0 and HF == 8
        e(f"s_and_b32 s74, {S_NX}, 7"); e("s_lshl_b32 s74, s74, 12"); e("s_add_u32 s74, s74, s98")
        e(f"s_bfe_u32 s75, {S_NX}, 0x30003"); e("s_lshl_b32 s75, s75, 18"); e("s_add_u32 s74, s74, s75")
        e(f"s_lshr_b32 s75, {S_NX}, 6"); e("s_lshl_b32 s76, s75, 15"); e("s_lshl_b32 s75, s75, 11"); e(f"s_add_u32 s75, s75, {FR*4096 - (FR//8)*2048}")
    e(f"s_cmp_lt_u32 {S_NX}, {P1}"); e("s_cselect_b32 s75, s76, s75"); e("s_cselect_b32 s77, 0, 0xff800000"); e("s_cselect_b32 s76, 0, 0x40000000")
    e("s_add_u32 s74, s74, s75"); e("s_add_u32 s76, s76, s74")
    e(f"s_cmp_lt_u32 {S_NX}, {POOL}"); e("s_cselect_b32 s74, s74, 0x40000000"); e("s_cselect_b32 s75, 1, 0")
    def dn_at(jjs):
        for jj in jjs:
            e(f"s_add_u32 s22, {S_DNB}, {(8*(jj&3) + (jj>>2))*2048}")
            e(f"buffer_load_dwordx4 {vr(SLOT(2)+4*jj)}, v{V_DN}, {R_DN}, s22 offen nt", tag="dn3")
    ea = list(range(8 - LA - EA, 8 - LA))
    ea_exit = []
    if xmode == 1: ea_exit = ea; ea = []
    if xmode == 2: ea_exit = ea[4:]; ea = ea[:4]
    if EA >= 4 and xmode == 0:
        Lk, Lk2 = newlab("kdn"), newlab("kdn2")
        e(f"s_or_b32 s22, s75, {S_TYPE}"); e(f"s_cbranch_scc1 {Lk}")
        e.cond_depth += 1; dn_at(ea[:4]); e.cond_depth -= 1
        e(f"s_branch {Lk2}")
        e.label(Lk)
        tileK("s74", "kl", "s76")
        e.label(Lk2)
        ea = ea[4:]
    else:
        tileK("s74", "kl", "s76")
    S = SC + 8
    for beta in range(2):
        for eps in range(2):
            dpp("v_add_f32", S+2*beta+eps, SC+4*beta+2*eps+1, SC+4*beta+2*eps, "row_ror:8")
    for d in range(2): rnd2(S+2*d, S+2*d+1, SC+12+d)
    for i in range(4): e(f"v_mul_f32 v{S+i}, {S_SCALE}, v{S+i}")
    for d in range(2): rnd2(S+2*d, S+2*d+1, SC+12+d)
    e(f"v_add_f32 v{S+2}, s99, v{S+2}"); e(f"v_add_f32 v{S+3}, s99, v{S+3}")
    e("s_mov_b32 s99, s77")
    e(f"v_max3_f32 v{T0}, v{S}, v{S+1}, v{S+2}")
    e(f"v_max_f32 v{T0}, v{T0}, v{S+3}")
    xlane("v_max_f32", [T0], [T1], ["p16", "p32"])
    e(f"v_mul_f32 v{T0}, {S_LOG2E}, v{T0}")
    e(f"v_cmp_gt_f32 vcc, v{T0}, v{V_ML}")
    e(f"s_and_b64 vcc, vcc, {S_N8}")
    e(f"s_cbranch_scc0 {Lskip}")
    e(f"v_max_f32 v{T0}, v{T0}, v{V_ML}")
    e(f"v_sub_f32 v{V_AL}, v{V_ML}, v{T0}")
    e(f"v_exp_f32 v{V_AL}, v{V_AL}")
    e(f"v_mov_b32 v{V_ML}, v{T0}")
    e(f"v_mul_f32 v{V_L}, v{V_L}, v{V_AL}")
    for i in range(32): e(f"v_mul_f32 v{ACC+i}, v{ACC+i}, v{V_AL}")
    e.label(Lskip)
    for i in range(4): e(f"v_fma_f32 v{S+i}, v{S+i}, {S_LOG2E}, -v{V_ML}")
    for i in range(4): e(f"v_exp_f32 v{S+i}, v{S+i}")
    for d in range(2): e(f"v_cvt_pk_bf16_f32 v{P+d}, v{S+2*d}, v{S+2*d+1}")
    for i in range(4): e(f"v_add_f32 v{V_L}, v{V_L}, v{S+i}")
    PS = SC + 16
    for p in range(2):
        e(f"s_waitcnt vmcnt({6 - 2*p})")
        for d in range(4):
            for x in range(2):
                e(f"v_perm_b32 v{PS+2*(2*d+x)+p}, v{VB+4*(2*p+1)+d}, v{VB+4*(2*p)+d}, {S_HI if x else S_LO}")
    with cond("s_cmp_eq_u32 s75, 0", "s_cbranch_scc1"):
        tileV("s74", "vl", "s76")
        grab()
    if ea:
        with cond(f"s_or_b32 s22, s75, {S_TYPE}", "s_cbranch_scc1"): dn_at(ea)
    with cond("s_cmp_le_u32 s19, s75", "s_cbranch_scc1"):
        gf_issue()
        e(f"buffer_load_dwordx2 {vr(XQ,2)}, v{VX3}, {R_X}, s18 offen", tag="xq")
    for ee in range(8):
        e(f"v_mfma_f32_16x16x16_bf16 {vr(ACC+4*ee)}, {vr(PS+2*ee,2)}, {vr(P,2)}, {vr(ACC+4*ee)}")
    e("s_cmp_lg_u32 s75, 0"); e(f"s_cbranch_scc1 {Lloop}")
    stamp(7)
    xlane("v_add_f32", [V_L], [T1], ["p16", "p32"])
    e("s_mov_b64 exec, 0xff")
    e(f"ds_write_b64 v{MW}, {vr(V_ML,2)} offset:{L_MX}")
    e(f"s_mov_b64 exec, {S_N8}")
    for ee in range(8): e(f"ds_write_b128 v{WA+ee}, {vr(ACC+4*ee)} offset:{L_ORED}")
    e("s_mov_b64 exec, -1")
    if ea_exit:
        with cond(f"s_cmp_eq_u32 {S_TYPE}, 1", "s_cbranch_scc1"): dn_at(ea_exit)
    stamp(8)
    e("s_waitcnt lgkmcnt(0)")
    e("s_barrier")
    L4, Lp = newlab("w4"), newlab("pubdone")
    ML8 = SC
    def wg_factors():
        e(f"v_max3_f32 v{T0}, v{ML8}, v{ML8+2}, v{ML8+4}")
        e(f"v_max3_f32 v{T1}, v{ML8+6}, v{ML8+8}, v{ML8+10}")
        e(f"v_max3_f32 v{T0}, v{T0}, v{ML8+12}, v{ML8+14}")
        e(f"v_max_f32 v{T0}, v{T0}, v{T1}")
        for w in range(8): e(f"v_sub_f32 v{ML8+2*w}, v{ML8+2*w}, v{T0}")
        for w in range(8): e(f"v_exp_f32 v{ML8+2*w}, v{ML8+2*w}")
    e(f"s_cmp_lt_u32 {S_W}, 4"); e(f"s_cbranch_scc1 {Lp}")
    e.cond_depth += 1
    for i in range(4): e(f"ds_read_b128 {vr(ML8+4*i)}, v{MA} offset:{L_MX + 16*i}")
    for w in range(8): e(f"ds_read_b128 {vr(ACC+4*w)}, v{RA} offset:{L_ORED - 4096 + w*4096}")
    e("s_waitcnt lgkmcnt(8)")
    wg_factors()
    e(f"v_mul_f32 v{T2}, v{ML8+1}, v{ML8}")
    e(f"v_mul_f32 v{T3}, v{ML8+3}, v{ML8+2}")
    for w in range(2, 8): e(f"v_fmac_f32 v{T2 + (w & 1)}, v{ML8+2*w+1}, v{ML8+2*w}")
    e(f"v_add_f32 v{T2}, v{T2}, v{T3}")
    e(f"v_log_f32 v{T3}, v{T2}")
    e(f"v_rcp_f32 v{T2}, v{T2}")
    for w in range(8):
        e(f"s_waitcnt lgkmcnt({7-w})")
        for c in range(0, 4, 2):
            if w == 0: e(f"v_pk_mul_f32 {vr(ACC+c,2)}, {vr(ACC+c,2)}, {vr(ML8,2)} op_sel_hi:[1,0]")
            else: e(f"v_pk_fma_f32 {vr(ACC+c,2)}, {vr(ACC+4*w+c,2)}, {vr(ML8+2*w,2)}, {vr(ACC+c,2)} op_sel_hi:[1,0,1]")
        if w == 1:
            e(f"v_add_f32 v{T3}, v{T3}, v{T0}")
            e(f"v_lshrrev_b32 v{T3}, v{SH4}, v{T3}")
    for c in range(0, 4, 2): e(f"v_pk_mul_f32 {vr(ACC+c,2)}, {vr(ACC+c,2)}, {vr(T2,2)} op_sel_hi:[1,0]")
    tagput(ACC+4, [ACC, ACC+1, ACC+2])
    e(f"v_perm_b32 v{ACC+7}, v{ACC+3}, v{T3}, {S_TI[0]}")
    e(f"buffer_store_dwordx4 {vr(ACC+4)}, v{GA}, {R_WS}, s100 offen sc1", tag="pubO")
    e.cond_depth -= 1
    e.label(Lp)
    stamp(9)
    if dbgt:
        e("s_memrealtime s[16:17]"); e("s_waitcnt lgkmcnt(0)")
    def late_dn(L):
        for jj in range(8 - L, 8):
            e(f"s_add_u32 s76, {S_DNB}, {(8*(jj&3) + (jj>>2))*2048}")
            e(f"buffer_load_dwordx4 {vr(SLOT(0)+4*jj)}, v{V_DN}, {R_DN}, s76 offen nt", tag="dn2")
        for p in range((8 - L) // 2, 4):
            e(f"s_waitcnt vmcnt({6-2*p})")
            for d in range(4):
                for x in range(2):
                    e(f"v_perm_b32 v{WP+4*(2*d+x)+p}, v{SLOT(0)+4*(2*p+1)+d}, v{SLOT(0)+4*(2*p)+d}, {S_HI if x else S_LO}")
    if pbar: e("s_barrier")
    LF = newlab("ftype")
    e(f"s_cmp_eq_u32 {S_TYPE}, 1"); e(f"s_cbranch_scc1 {LF}")
    e.cond_depth += 1
    OG, MG = ACC + 16, ACC + 24
    def o_issue():
        e(f"buffer_load_dwordx4 {vr(OG)}, v{VO}, {R_WS}, s78 offen sc1", tag="og")
        e(f"buffer_load_dwordx4 {vr(OG+4)}, v{VO}, {R_WS}, s79 offen sc1", tag="og")
    def o_check():
        e(f"v_perm_b32 v{T3}, v{OG+1}, v{OG}, {S_G2}")
        e(f"v_perm_b32 v{T4}, v{OG+5}, v{OG+4}, {S_G2}")
        e(f"v_perm_b32 v{T3}, v{OG+2}, v{T3}, s21")
        e(f"v_perm_b32 v{T4}, v{OG+6}, v{T4}, s21")
        e(f"v_xor_b32 v{T3}, s20, v{T3}"); e(f"v_xor_b32 v{T4}, s20, v{T4}")
        e(f"v_or_b32 v{T5}, v{T3}, v{T4}")
    if EA:
        if not LA: e("s_waitcnt vmcnt(0)")
        else: e("s_waitcnt vmcnt(0)")
        for p in range((8 - LA - EA) // 2, (8 - LA) // 2):
            for d in range(4):
                for x in range(2):
                    e(f"v_perm_b32 v{WP+4*(2*d+x)+p}, v{SLOT(2)+4*(2*p+1)+d}, v{SLOT(2)+4*(2*p)+d}, {S_HI if x else S_LO}")
    late_dn(LA)
    with cond(f"s_cmp_ge_u32 {S_W}, 4", "s_cbranch_scc1"):
        if dly_o: e(f"s_sleep {dly_o}")
        o_issue()
        poll(o_issue, o_check, lambda: e("s_waitcnt vmcnt(0)"), "o", sleep=slp_o)
        stamp(10)
        for i in range(2): e(f"v_and_b32 v{MG+i}, 0xff, v{OG+4*i+3}")
        for i in range(2): e(f"v_lshlrev_b32 v{MG+i}, v{SH4}, v{MG+i}")
        for i in range(2): dpp("v_or_b32", MG+i, MG+i, MG+i, "quad_perm:[1,0,3,2]")
        for i in range(2): dpp("v_or_b32", MG+i, MG+i, MG+i, "quad_perm:[2,3,0,1]")
        e(f"v_max_f32 v{T0}, v{MG}, v{MG+1}")
        xlane("v_max_f32", [T0], [T1], ["r4", "r8", "p16", "p32"])
        for i in range(2): e(f"v_sub_f32 v{MG+i}, v{MG+i}, v{T0}")
        for i in range(2): e(f"v_exp_f32 v{MG+i}, v{MG+i}")
        for c in range(0, 4, 2): e(f"v_pk_mul_f32 {vr(OG+c,2)}, {vr(OG+c,2)}, {vr(MG,2)} op_sel_hi:[1,0]")
        for c in range(0, 4, 2): e(f"v_pk_fma_f32 {vr(OG+c,2)}, {vr(OG+4+c,2)}, {vr(MG,2)}, {vr(OG+c,2)} op_sel:[0,1,0] op_sel_hi:[1,1,1]")
        e(f"v_add_f32 v{T1}, v{MG}, v{MG+1}")
        xlane("v_add_f32", [OG, OG+1, OG+2, OG+3, T1], [OG+4, OG+5, OG+6, OG+7, T4], ["r4", "r8", "p16", "p32"])
        e(f"v_rcp_f32 v{T0}, v{T1}")
        for c in range(0, 4, 2): e(f"v_pk_mul_f32 {vr(OG+c,2)}, {vr(OG+c,2)}, {vr(T0,2)} op_sel_hi:[1,0]")
        e(f"v_cvt_pk_bf16_f32 v{OG}, v{OG}, v{OG+1}"); e(f"v_cvt_pk_bf16_f32 v{OG+1}, v{OG+2}, v{OG+3}")
        e("s_mov_b64 exec, 0xf")
        e(f"ds_write_b64 v{OLW}, {vr(OG,2)} offset:{L_OL}")
        e("s_mov_b64 exec, -1")
        e("s_waitcnt lgkmcnt(0)")
    e("s_barrier")
    e(f"ds_read_b128 {vr(AD)}, v{ADA} offset:{L_OL}")
    e("s_waitcnt lgkmcnt(0)")
    down_mfma_publish(AD, WP, ACC, SLOT(3))
    stamp(11)
    e("s_branch L_fini")
    e.label(LF)
    if late_ffn:
      with cond(f"s_cmp_eq_u32 {S_HASF}, 0", "s_cbranch_scc1"):
        e(f"ds_read_b128 {vr(AD)}, v{ADA} offset:{L_OL}")
        late_dn(LF_)
        e("s_waitcnt lgkmcnt(0)")
        down_mfma_publish(AD, WP, SLOT(2), SLOT(3))
      stamp(11)
    VA, VX, VL = VA3, VX3, VL3
    G = SLOT(1)
    def ga_issue(): e(f"buffer_load_dwordx4 {vr(G)}, v{VA}, {R_WS}, s16 offen sc1", tag="g")
    Lz, Lz2 = newlab("zf"), newlab("zf2")
    e(f"s_cmp_eq_u32 {S_W}, 7"); e(f"s_cbranch_scc1 {Lz}")
    poll(gf_issue, lambda: tagcheck(GF, T3, True, T5), lambda: e("s_waitcnt vmcnt(0)"), "gf", sleep=2)
    xlane("v_add_f32", [GF, GF+1, GF+2, GF+3], [G+8, G+9, G+10, G+11], ["r4", "r8", "p16", "p32"])
    e(f"s_branch {Lz2}")
    e.label(Lz)
    for c in range(4): e(f"v_mov_b32 v{GF+c}, 0")
    e.label(Lz2)
    e("s_mov_b64 exec, 0xf")
    e(f"ds_write_b128 v{VL}, {vr(GF)} offset:{L_REDQ+512}")
    if prepoll:
        e("s_mov_b64 exec, 1")
        if pre1:
            with cond(f"s_cmp_lg_u32 {S_W}, 0", "s_cbranch_scc1"):
                ga_issue()
                poll(ga_issue, lambda: tagcheck(G, T3, True, T5), lambda: e("s_waitcnt vmcnt(0)"), "gp", sleep=slp_pre)
            e("s_barrier")
        else:
            ga_issue()
            poll(ga_issue, lambda: tagcheck(G, T3, True, T5), lambda: e("s_waitcnt vmcnt(0)"), "gp", sleep=slp_pre)
    e("s_mov_b64 exec, -1")
    if dly_g: e(f"s_sleep {dly_g}")
    ga_issue()
    poll(ga_issue, lambda: tagcheck(G, T3, True, T5), lambda: e("s_waitcnt vmcnt(0)"), "ga", sleep=slp_g)
    stamp(12)
    xlane("v_add_f32", [G, G+1, G+2, G+3], [G+8, G+9, G+10, G+11], ["r4", "r8", "p16", "p32"])
    e("s_mov_b64 exec, 0xf")
    e(f"ds_write_b128 v{VL}, {vr(G)} offset:{L_REDQ}")
    e("s_waitcnt lgkmcnt(0)")
    e("s_barrier")
    e(f"s_cmp_lg_u32 {S_W}, 0"); e("s_cbranch_scc1 L_fini")
    e("s_mov_b64 exec, -1")
    e(f"ds_read_b128 {vr(G)}, v{V_V} offset:{L_REDQ}")
    XU = G + 12
    for d in range(2):
        e(f"v_lshlrev_b32 v{XU+2*d}, 16, v{XQ+d}"); e(f"v_and_b32 v{XU+2*d+1}, {S_MASKH}, v{XQ+d}")
    e("s_waitcnt lgkmcnt(0)")
    xlane("v_add_f32", [G, G+1, G+2, G+3], [G+8, G+9, G+10, G+11], ["r4", "r8", "p16"])
    rnd2(G, G+1, G+4); rnd2(G+2, G+3, G+5)
    for c in range(4): e(f"v_mov_b32 v{G+8+c}, v{G+c}")
    for c in range(4): e(f"v_permlane32_swap_b32 v{G+c}, v{G+8+c}")
    for c in range(4): e(f"v_add_f32 v{G+c}, v{XU+c}, v{G+c}")
    rnd2(G, G+1, G+4); rnd2(G+2, G+3, G+5)
    for c in range(4): e(f"v_add_f32 v{G+c}, v{G+c}, v{G+8+c}")
    e(f"v_cvt_pk_bf16_f32 v{G+4}, v{G}, v{G+1}"); e(f"v_cvt_pk_bf16_f32 v{G+5}, v{G+2}, v{G+3}")
    e("s_mov_b64 exec, 0xf")
    e(f"buffer_store_dwordx2 {vr(G+4,2)}, v{VX}, {R_OUT}, s18 offen")
    e(f"s_cmp_lg_u32 {S_IDX}, 0"); e("s_cbranch_scc1 L_fini")
    e("s_mov_b64 exec, 1")
    e(f"buffer_store_dword v{V_T}, off, {R_WS}, 0")
    e.cond_depth -= 1
    e.label("L_fini")
    if dbgt:
        e("s_memrealtime s[72:73]"); e("s_waitcnt lgkmcnt(0)")
        e("s_cmp_lg_u32 s3, 0"); e("s_cbranch_scc1 L_dbg1")
        e("s_atomic_umax s72, s[34:35], 4"); e("s_waitcnt lgkmcnt(0)")
        e.label("L_dbg1")
    if dbgt:
        e("s_cmp_lg_u32 s3, 0"); e("s_cbranch_scc1 L_end")
        e("s_atomic_umax s16, s[34:35], 12")
        e("s_not_b32 s72, s90"); e("s_atomic_umax s72, s[34:35], 0"); e("s_atomic_umax s90, s[34:35], 8"); e("s_waitcnt lgkmcnt(0)")
    if stamps:
        e("s_mov_b64 exec, -1")
        stamp(13)
        e("s_mov_b64 exec, 0xffff")
        e(f"v_lshlrev_b32 v{T0}, 2, v{V_LANE}")
        e("s_lshl_b32 s7, s2, 3"); e(f"s_add_u32 s7, s7, {S_W}"); e("s_lshl_b32 s7, s7, 6"); e(f"s_add_u32 s7, s7, {WS_SIZE}")
        e("s_mov_b32 s58, 0x1000000")
        e(f"buffer_store_dword v0, v{T0}, {R_WS}, s7 offen")
    e.label("L_end")
    e("s_endpgm")

    out = HEADER
    out += f"; @launch grid=(256,1,1) block=(512,1,1) lds={LDS_BYTES}\n"
    out += '.amdgcn_target "amdgcn-amd-amdhsa--gfx950"\n.text\n'
    out += f".globl {KNAME}\n.p2align 8\n.type {KNAME},@function\n{KNAME}:\n"
    out += e.text()
    out += f""".section .rodata,"a"
.p2align 6
.amdhsa_kernel {KNAME}
  .amdhsa_next_free_vgpr 256
  .amdhsa_next_free_sgpr 102
  .amdhsa_accum_offset 256
  .amdhsa_group_segment_fixed_size 0
  .amdhsa_kernarg_size 88
  .amdhsa_user_sgpr_count 2
  .amdhsa_user_sgpr_kernarg_segment_ptr 1
  .amdhsa_system_sgpr_workgroup_id_x 1
.end_amdhsa_kernel
"""
    return out

if __name__ == "__main__":
    import argparse
    ap = argparse.ArgumentParser()
    ap.add_argument("-o", default="parallel_sum__gqa_block_cached__dense_activation_silu__decode.s")
    ap.add_argument("--inf", type=int, default=5)
    ap.add_argument("--stamps", action="store_true")
    ap.add_argument("--kw", default="")
    a = ap.parse_args()
    kw = eval("dict(%s)" % a.kw)
    open(a.o, "w").write(gen(INF=a.inf, stamps=a.stamps, **kw))
```

```python
import sys
from emit import Emit
KNAME = "parallel_sum__gqa_block_cached__dense_activation_silu__decode_kernel"
HEADER = open("parallel_sum__gqa_block_cached__dense_activation_silu__decode.s.ref").read().split("; Override launch geometry")[0]

WS_QP = 0x1000
QP_B = 7680 * 4
QP_K = 2 * QP_B
WS_ML = 0x40000
WS_CT = 0x50000
WS_OP = 0x80000
WS_AP = 0x200000
WS_SIZE = 0x400000
L_REDQ = 0
L_REDH = 4096
L_Q = 8192
L_MX = 10240
L_OL = 10752
L_FA = 11008; L_FH = 11040; L_FQ = 11072
L_S2 = 0
L_S2M = 1024
L_ORED = 12288
LDS_BYTES = L_ORED + 8 * 4096
V_LANE, V_K, V_V, V_UP, V_DN, V_T, V_AL, V_ML, V_L = 1, 2, 3, 4, 5, 6, 7, 8, 9
T0, T1, T2, T3, T4, T5 = 10, 11, 12, 13, 14, 15
ACC = 16
Q0, Q1 = 48, 52
P = 56
AD = 60
SC = 64
def SLOT(k): return 96 + 32 * k
S_W, S_TYPE, S_IDX, S_T = "s3", "s4", "s5", "s6"
S_LO, S_HI = "s8", "s9"
S_TI = ["s10", "s11", "s12", "s13"]
S_G2 = "s14"
S_CNT = "s15"
R_K, R_V, R_UP, R_DN, R_WS, R_X, R_OUT, R_W1 = "s[40:43]", "s[44:47]", "s[48:51]", "s[52:55]", "s[56:59]", "s[60:63]", "s[64:67]", "s[28:31]"
S_KV, S_UPQ, S_UPH, S_DNB = "s68", "s69", "s70", "s71"
S_LOG2E, S_SCALE, S_MASKH, S_HASF, S_HASH, S_KS = "s82", "s83", "s84", "s85", "s86", "s87"
S_N8 = "s[88:89]"
S_CBH = "s39"
POLL_LIMIT = 1 << 17
def vr(a, n=4): return f"v[{a}:{a+n-1}]"

def gen(INF=5, stamps=False, NS=5, HF=8, pf=False, prio=True, slp_o=0, slp_g=0, slp_pre=2, prepoll=True, late_ffn=False, LA=0, LF_=0, pbar=False, dbgt=False, dly_o=8, dly_g=3, pre1=True, upfirst=False, lite=False, early=1, early_k=4, pmap=0, EA=8, xmode=0):
    e = Emit()
    lab = [0]
    def newlab(p):
        lab[0] += 1
        return f"L_{p}_{lab[0]}"
    def stamp(k):
        if not stamps: return
        if lite and k not in (7, 13): return
        e("s_memrealtime s[90:91]"); e("s_waitcnt lgkmcnt(0)"); e(f"v_writelane_b32 v0, s90, {k}")
    def throttle():
        if INF: e(f"s_waitcnt vmcnt({INF-1})")
    def setprio(n):
        if prio: e(f"s_setprio {n}")
    def dpp(op, d, a, b, ctl):
        e(f"{op}_dpp v{d}, v{a}, v{b} {ctl} row_mask:0xf bank_mask:0xf")
    def xlane(op, regs, tmps, steps):
        for st in steps:
            if st[0] == "r":
                for r in regs: dpp(op, r, r, r, f"row_ror:{st[1:]}")
            else:
                for r, t in zip(regs, tmps): e(f"v_mov_b32 v{t}, v{r}")
                for r, t in zip(regs, tmps): e(f"v_permlane{st[1:]}_swap_b32 v{r}, v{t}")
                for r, t in zip(regs, tmps): e(f"{op} v{r}, v{r}, v{t}")
    def tagcheck(g, tmp, first, accum):
        e(f"v_perm_b32 v{tmp}, v{g+1}, v{g}, {S_G2}")
        e(f"v_perm_b32 v{tmp+1}, v{g+3}, v{g+2}, {S_G2}")
        e(f"v_perm_b32 v{tmp}, v{tmp+1}, v{tmp}, {S_LO}")
        if first: e(f"v_xor_b32 v{accum}, v{tmp}, v{V_T}")
        else:
            e(f"v_xor_b32 v{tmp}, v{tmp}, v{V_T}")
            e(f"v_or_b32 v{accum}, v{accum}, v{tmp}")
    def untag(regs):
        for r in regs: e(f"v_and_b32 v{r}, s23, v{r}")
    def tagput(dst, srcs):
        for i, s in enumerate(srcs): e(f"v_perm_b32 v{dst+i}, v{s}, v{V_T}, {S_TI[i]}")
    def rnd2(a, b_, tmp):
        e(f"v_cvt_pk_bf16_f32 v{tmp}, v{a}, v{b_}")
        e(f"v_lshlrev_b32 v{a}, 16, v{tmp}")
        e(f"v_and_b32 v{b_}, {S_MASKH}, v{tmp}")
    def poll(issue, check, waitfirst, name, sleep=0):
        Lr, Ld, Lx = newlab(name + "_retry"), newlab(name + "_done"), newlab(name + "_exit")
        waitfirst()
        check()
        e(f"v_cmp_ne_u32 vcc, 0, v{T5}")
        e(f"s_cbranch_vccz {Ld}")
        e(f"s_mov_b32 {S_CNT}, 0")
        e("s_mov_b64 s[80:81], exec")
        e.label(Lr)
        e("s_mov_b64 exec, vcc")
        if sleep: e(f"s_sleep {sleep}")
        e("s_nop 4")
        e.cond_depth += 1
        issue()
        e.cond_depth -= 1
        e(f"s_add_u32 {S_CNT}, {S_CNT}, 1")
        e(f"s_cmp_gt_u32 {S_CNT}, {POLL_LIMIT}")
        e("s_waitcnt vmcnt(0)")
        e(f"s_cbranch_scc1 {Lx}")
        check()
        e(f"v_cmp_ne_u32 vcc, 0, v{T5}")
        e(f"s_cbranch_vccnz {Lr}")
        e.label(Lx)
        e("s_mov_b64 exec, s[80:81]")
        e.label(Ld)
    def setflag(base, idx=None):
        if idx is None:
            e(f"s_lshl_b32 s7, {S_W}, 2"); e(f"v_mov_b32 v{T1}, s7")
        else: e(f"v_mov_b32 v{T1}, {4*idx}")
        e("s_waitcnt lgkmcnt(0)")
        e("s_mov_b64 exec, 1")
        e(f"v_mov_b32 v{T2}, 1")
        e(f"ds_write_b32 v{T1}, v{T2} offset:{base}")
        e("s_mov_b64 exec, -1")
    def waitflags(base, n, name):
        Lr, Lx = newlab(name), newlab(name + "x")
        e(f"v_and_b32 v{T1}, {n-1}, v{V_LANE}"); e(f"v_lshlrev_b32 v{T1}, 2, v{T1}")
        e(f"s_mov_b32 {S_CNT}, 0")
        e.label(Lr)
        e(f"ds_read_b32 v{T2}, v{T1} offset:{base}")
        e(f"s_add_u32 {S_CNT}, {S_CNT}, 1"); e(f"s_cmp_gt_u32 {S_CNT}, {POLL_LIMIT*4}")
        e("s_waitcnt lgkmcnt(0)")
        e(f"s_cbranch_scc1 {Lx}")
        e(f"v_cmp_ne_u32 vcc, 1, v{T2}")
        e(f"s_cbranch_vccnz {Lr}")
        e.label(Lx)
    def srd(base, lo, hi, n):
        e(f"s_mov_b32 s{base}, {lo}"); e(f"s_mov_b32 s{base+1}, {hi}"); e(f"s_mov_b32 s{base+2}, {n}"); e(f"s_mov_b32 s{base+3}, 0x00020000")
    class cond:
        def __init__(self, cmp, br):
            self.L = newlab("skip"); self.cmp = cmp if isinstance(cmp, list) else [cmp]; self.br = br
        def __enter__(self):
            for c in self.cmp:
                e(c); e(f"{self.br} {self.L}")
            e.cond_depth += 1
        def __exit__(self, *a):
            e.cond_depth -= 1; e.label(self.L)

    if stamps or dbgt: e("s_memrealtime s[90:91]")
    e("s_cmp_ge_u32 s2, 256")
    e("s_cbranch_scc1 L_end")
    e("s_load_dwordx2 s[48:49], s[0:1], 24")
    e("s_load_dwordx2 s[60:61], s[0:1], 0")
    e("s_load_dwordx4 s[16:19], s[0:1], 8")
    e("s_load_dwordx2 s[28:29], s[0:1], 48")
    setprio(3)
    e(f"v_lshrrev_b32 v{T0}, 6, v0")
    e(f"v_and_b32 v{V_LANE}, 63, v0")
    e(f"v_readfirstlane_b32 {S_W}, v{T0}")
    if stamps: e("v_mov_b32 v0, 0")
    e(f"v_lshrrev_b32 v{T0}, 3, v{V_LANE}"); e(f"v_and_b32 v{T1}, 7, v{V_LANE}"); e(f"v_lshlrev_b32 v{T1}, 4, v{T1}")
    e(f"v_lshl_add_u32 v{V_UP}, v{T0}, 15, v{T1}")
    e("s_and_b32 s7, s2, 3"); e("s_lshl_b32 s72, s7, 8"); e(f"s_lshl_b32 s73, {S_W}, 5"); e("s_add_u32 s72, s72, s73")
    e("s_lshr_b32 s73, s2, 2")
    e(f"s_lshl_b32 {S_UPQ}, s72, 13"); e("s_lshl_b32 s74, s73, 7"); e(f"s_add_u32 {S_UPQ}, {S_UPQ}, s74")
    e(f"s_mov_b32 s50, {8<<20}"); e("s_mov_b32 s51, 0x00020000"); e("s_movk_i32 s62, 4096"); e("s_mov_b32 s63, s51")
    e(f"v_lshlrev_b32 v{T3}, 5, v{V_LANE}")
    e("s_waitcnt lgkmcnt(0)")
    if stamps:
        e("v_writelane_b32 v0, s90, 15"); stamp(14)
    XF, XR = SC, SC + 16
    UPS = SLOT(4)
    def xl():
        for b in range(2):
            for hf in range(2):
                e(f"buffer_load_dwordx4 {vr(XF+8*b+4*hf)}, v{T3}, {R_X}, 0 offen offset:{b*2048+hf*16}", tag="xf")
    def ul():
        for i in range(4):
            e(f"buffer_load_dwordx4 {vr(UPS+4*i)}, v{V_UP}, {R_UP}, {S_UPQ} offen nt", tag="upq")
            if i < 3: e(f"s_add_u32 {S_UPQ}, {S_UPQ}, 8192")
    if upfirst: ul(); xl()
    else: xl(); ul()
    e(f"s_lshr_b32 {S_TYPE}, s2, 3"); e(f"s_xor_b32 {S_TYPE}, {S_TYPE}, s2"); e(f"s_and_b32 {S_TYPE}, {S_TYPE}, 1")
    e("s_load_dwordx2 s[56:57], s[0:1], 80")
    e(f"s_mul_i32 s76, {S_TYPE}, 24"); e("s_add_u32 s76, s76, 32")
    e("s_load_dwordx2 s[52:53], s[0:1], s76")
    e("s_load_dwordx2 s[64:65], s[0:1], 64")
    if dbgt: e("s_load_dwordx2 s[34:35], s[0:1], 72")
    e(f"v_lshlrev_b32 v{T2}, 3, v{T0}"); e("s_lshl_b32 s74, s72, 1"); e(f"v_add_u32 v{T2}, s74, v{T2}")
    for b in range(2):
        e(f"buffer_load_dwordx2 {vr(XR+2*b,2)}, v{T2}, {R_X}, 0 offen offset:{b*2048}", tag="xr")
    e(f"v_mul_u32_u24 v{V_DN}, {4*7168}, v{T0}"); e(f"v_add_u32 v{V_DN}, v{V_DN}, v{T1}")
    e("s_lshl_b32 s7, s7, 1"); e("s_add_u32 s7, s7, 1"); e("s_and_b32 s74, s73, 7")
    e("s_cmp_lg_u32 s74, s7"); e(f"s_cselect_b32 {S_HASH}, 1, 0")
    e("s_lshr_b32 s75, s73, 3"); e("s_mul_i32 s75, s75, 7"); e("s_add_u32 s75, s75, s74")
    e("s_cmp_gt_u32 s74, s7"); e(f"s_subb_u32 {S_CBH}, s75, 0")
    e(f"s_mul_i32 {S_UPH}, s72, 7168"); e(f"s_lshl_b32 s74, {S_CBH}, 7"); e(f"s_add_u32 {S_UPH}, {S_UPH}, s74")
    e(f"s_mul_i32 s30, {S_HASH}, {7<<20}"); e("s_mov_b32 s31, 0x00020000")
    def uh():
        for i in range(4):
            e(f"buffer_load_dwordx4 {vr(UPS+16+4*i)}, v{V_DN}, {R_W1}, {S_UPH} offen nt", tag="uph")
            if i < 3: e(f"s_add_u32 {S_UPH}, {S_UPH}, 7168")
    if early >= 1: uh()
    srd(40, "s16", "s17", 64 << 20)
    srd(44, "s18", "s19", 64 << 20)
    e(f"v_lshlrev_b32 v{V_V}, 4, v{V_LANE}")
    e(f"v_bfe_u32 v{T0}, v{V_LANE}, 1, 1"); e(f"v_bfe_u32 v{T1}, v{V_LANE}, 2, 2")
    e(f"v_lshl_add_u32 v{T0}, v{T0}, 2, v{T1}"); e(f"v_lshlrev_b32 v{V_K}, 8, v{T0}")
    e(f"v_lshrrev_b32 v{T1}, 4, v{V_LANE}"); e(f"v_lshl_add_u32 v{V_K}, v{T1}, 5, v{V_K}")
    e(f"v_and_b32 v{T1}, 1, v{V_LANE}"); e(f"v_lshl_add_u32 v{V_K}, v{T1}, 4, v{V_K}")
    e(f"s_lshl_b32 {S_KV}, s2, 18"); e(f"s_lshl_b32 s7, {S_W}, 12"); e(f"s_add_u32 {S_KV}, {S_KV}, s7")
    e(f"v_lshlrev_b32 v{T4}, 2, v{V_LANE}"); e(f"v_mov_b32 v{T5}, 0")
    e(f"ds_write_b32 v{T4}, v{T5} offset:{L_FA}")
    for base, n in ((56, WS_SIZE), (64, 4096)):
        e(f"s_mov_b32 s{base+2}, {n}"); e(f"s_mov_b32 s{base+3}, 0x00020000")
    e("s_waitcnt lgkmcnt(0)")
    e("s_load_dword s6, s[56:57], 0")
    e("s_barrier")
    for i in range(early_k):
        e(f"buffer_load_dwordx4 {vr(SLOT(0)+4*i)}, v{V_K}, {R_K}, {S_KV} offen offset:{(i>>1)*2048 + (i&1)*128} nt", tag="k0")
    e(f"s_mov_b32 {S_MASKH}, 0xffff0000")
    e(f"s_lshr_b32 {S_IDX}, s2, 1"); e(f"s_and_b32 s7, {S_IDX}, 7")
    e(f"s_sub_u32 s54, 8, {S_TYPE}"); e("s_lshl_b32 s54, s54, 20")
    e("s_mov_b32 s55, 0x00020000")
    e("s_cmp_lg_u32 s7, 7"); e(f"s_cselect_b32 {S_HASF}, {S_TYPE}, 0")
    e(f"s_lshr_b32 s7, {S_IDX}, 3"); e(f"s_mul_i32 s7, s7, {S_TYPE}"); e(f"s_sub_u32 {S_KS}, {S_IDX}, s7")
    e(f"s_cmp_eq_u32 {S_TYPE}, {S_HASF}")
    e("s_cselect_b32 s54, s54, 0")
    e(f"s_mov_b32 {S_LO}, 0x05040100"); e(f"s_mov_b32 {S_HI}, 0x07060302")
    for i in range(4): e(f"s_mov_b32 {S_TI[i]}, 0x{0x07060500 + i:08x}")
    e(f"s_mov_b32 {S_G2}, 0x0c0c0400"); e("s_mov_b32 s23, 0xffffff00")
    e(f"s_mov_b32 {S_LOG2E}, 0x3fb8aa3b"); e(f"s_mov_b32 {S_SCALE}, 0x3db504f3")
    e("s_mov_b32 s88, 0x00ff00ff"); e("s_mov_b32 s89, 0x00ff00ff")
    e(f"s_lshl_b32 {S_DNB}, {S_KS}, 16"); e(f"s_lshl_b32 s7, {S_W}, 8"); e(f"s_add_u32 {S_DNB}, {S_DNB}, s7")

    def kload(u, slot, i, thr=True):
        beta, t = i >> 1, i & 1
        if i % 4 == 0: e(f"s_add_u32 s74, {S_KV}, {(2*u + (beta >> 1)) * 32768}")
        if thr: throttle()
        e(f"buffer_load_dwordx4 {vr(SLOT(slot)+4*i)}, v{V_K}, {R_K}, s74 offen offset:{(beta&1)*2048 + t*128} nt", tag=f"k{u}")
    def vload(u, slot, j, thr=True):
        if j % 4 == 0: e(f"s_add_u32 s75, {S_KV}, {(2*u + (j >> 2)) * 32768}")
        if thr: throttle()
        e(f"buffer_load_dwordx4 {vr(SLOT(slot)+4*j)}, v{V_V}, {R_V}, s75 offen offset:{(j&3)*1024} nt", tag=f"v{u}")
    def issueK(u, slot, lo=0, hi=8):
        for i in range(lo, hi): kload(u, slot, i)
    def issueV(u, slot, lo=0, hi=8):
        for j in range(lo, hi): vload(u, slot, j)
    def issueDN(slot, lo=0, hi=8):
        for jj in range(lo, hi):
            a_on, f_on = jj < 8 - LA - EA, jj < 8 - LF_
            e(f"s_add_u32 s76, {S_DNB}, {(8*(jj&3) + (jj>>2))*2048}")
            if not a_on and not f_on: e("s_mov_b32 s76, 0x40000000")
            elif a_on != f_on:
                e(f"s_cmp_eq_u32 {S_TYPE}, {0 if a_on else 1}"); e("s_cselect_b32 s76, s76, 0x40000000")
            throttle()
            e(f"buffer_load_dwordx4 {vr(SLOT(slot)+4*jj)}, v{V_DN}, {R_DN}, s76 offen nt", tag="dn")

    stamp(0)
    U = SLOT(3)
    e.wait_vm("xf")
    if early < 1: uh()
    pend = [("k", i) for i in range(early_k, 8)] + [("v", j) for j in range(8)]
    def more(n):
        for _ in range(n):
            if not pend: return
            t, i = pend.pop(0)
            if t == "k":
                if i % 4 and i == early_k: e(f"s_mov_b32 s74, {S_KV}")
                kload(0, 0, i)
            else: vload(0, 1, i)
    for b in range(2):
        for d in range(8):
            e(f"v_lshlrev_b32 v{U+16*b+2*d}, 16, v{XF+8*b+d}")
            e(f"v_and_b32 v{U+16*b+2*d+1}, {S_MASKH}, v{XF+8*b+d}")
    SUM = [T0, T1]; TMP = [T2, T3]; VAR = [T4, T5]
    for b in range(2):
        e(f"v_pk_add_f32 {vr(XF+4*b,2)}, {vr(U+16*b,2)}, {vr(U+16*b+2,2)}")
        e(f"v_pk_add_f32 {vr(XF+4*b+2,2)}, {vr(U+16*b+4,2)}, {vr(U+16*b+6,2)}")
    for i in range(4, 8):
        for b in range(2):
            e(f"v_pk_add_f32 {vr(XF+4*b+2*(i&1),2)}, {vr(XF+4*b+2*(i&1),2)}, {vr(U+16*b+2*i,2)}")
    for b in range(2): e(f"v_pk_add_f32 {vr(XF+4*b,2)}, {vr(XF+4*b,2)}, {vr(XF+4*b+2,2)}")
    for b in range(2): e(f"v_add_f32 v{SUM[b]}, v{XF+4*b}, v{XF+4*b+1}")
    xlane("v_add_f32", SUM, TMP, ["r8", "r4", "r2", "r1", "p16", "p32"])
    for b in range(2): e(f"v_mul_f32 v{SUM[b]}, 0x3a800000, v{SUM[b]}")
    more(2)
    for i in range(8):
        for b in range(2):
            e(f"v_pk_add_f32 {vr(U+16*b+2*i,2)}, {vr(U+16*b+2*i,2)}, {vr(T0,2)} op_sel:[0,{b}] op_sel_hi:[1,{b}] neg_lo:[0,1] neg_hi:[0,1]")
    for b in range(2): e(f"v_pk_mul_f32 {vr(XF+4*b,2)}, {vr(U+16*b,2)}, {vr(U+16*b,2)}")
    for i in range(1, 8):
        for b in range(2): e(f"v_pk_fma_f32 {vr(XF+4*b,2)}, {vr(U+16*b+2*i,2)}, {vr(U+16*b+2*i,2)}, {vr(XF+4*b,2)}")
    for b in range(2): e(f"v_add_f32 v{VAR[b]}, v{XF+4*b}, v{XF+4*b+1}")
    xlane("v_add_f32", VAR, TMP, ["r8", "r4", "r2", "r1", "p16", "p32"])
    more(2)
    for b in range(2): e(f"v_mul_f32 v{VAR[b]}, 0x3a800000, v{VAR[b]}")
    rnd2(SUM[0], SUM[1], T2)
    rnd2(VAR[0], VAR[1], T3)
    for b in range(2): e(f"v_add_f32 v{VAR[b]}, 0x3727c5ac, v{VAR[b]}")
    rnd2(VAR[0], VAR[1], T3)
    for b in range(2): e(f"v_sqrt_f32 v{VAR[b]}, v{VAR[b]}")
    rnd2(VAR[0], VAR[1], T3)
    for b in range(2): e(f"v_rcp_f32 v{VAR[b]}, v{VAR[b]}")
    XN = ACC + 16
    e.wait_vm("xr")
    for b in range(2):
        for d in range(2):
            e(f"v_lshlrev_b32 v{XN+4*b+2*d}, 16, v{XR+2*b+d}")
            e(f"v_and_b32 v{XN+4*b+2*d+1}, {S_MASKH}, v{XR+2*b+d}")
    for b in range(2):
        for i in range(4): e(f"v_sub_f32 v{XN+4*b+i}, v{XN+4*b+i}, v{SUM[b]}")
    for d in range(4): rnd2(XN+2*d, XN+2*d+1, U+d)
    for b in range(2):
        for i in range(4): e(f"v_mul_f32 v{XN+4*b+i}, v{XN+4*b+i}, v{VAR[b]}")
    for d in range(4): rnd2(XN+2*d, XN+2*d+1, U+d)
    e("s_waitcnt lgkmcnt(0)")
    e(f"s_mul_i32 {S_T}, {S_T}, 1664525"); e(f"s_add_u32 {S_T}, {S_T}, 1013904223")
    e(f"v_mov_b32 v{V_T}, {S_T}")
    stamp(1)
    e(f"v_lshrrev_b32 v{T0}, 5, v{V_LANE}"); e(f"v_lshlrev_b32 v{T0}, 8, v{T0}")
    e(f"v_and_b32 v{T1}, 7, v{V_LANE}"); e(f"v_lshl_add_u32 v{T0}, v{T1}, 5, v{T0}")
    e(f"v_and_b32 v{T1}, 16, v{V_LANE}"); e(f"v_add_u32 v{T0}, v{T0}, v{T1}")
    e(f"s_lshl_b32 s7, {S_W}, 9"); e(f"v_add_u32 v{V_AL}, s7, v{T0}")
    def up_compute(src, tag, lbase, fbase, between):
        for i in range(4):
            e.wait_vm_idx(tag, i)
            for d in range(4):
                e(f"v_lshlrev_b32 v{U+2*d}, 16, v{src+4*i+d}")
                e(f"v_and_b32 v{U+2*d+1}, {S_MASKH}, v{src+4*i+d}")
            for b in range(2):
                for c in range(0, 8, 2):
                    xr = XN + 4*b + i
                    base = xr & ~1; sel = xr & 1
                    if i == 0: e(f"v_pk_mul_f32 {vr(ACC+8*b+c,2)}, {vr(U+c,2)}, {vr(base,2)} op_sel:[0,{sel}] op_sel_hi:[1,{sel}]")
                    else: e(f"v_pk_fma_f32 {vr(ACC+8*b+c,2)}, {vr(U+c,2)}, {vr(base,2)}, {vr(ACC+8*b+c,2)} op_sel:[0,{sel},0] op_sel_hi:[1,{sel},1]")
            between(i)
        for c in range(8): e(f"v_permlane32_swap_b32 v{ACC+c}, v{ACC+8+c}")
        for c in range(8): e(f"v_add_f32 v{ACC+c}, v{ACC+c}, v{ACC+8+c}")
        for c in range(4): e(f"v_permlane16_swap_b32 v{ACC+c}, v{ACC+4+c}")
        for c in range(4): e(f"v_add_f32 v{ACC+c}, v{ACC+c}, v{ACC+4+c}")
        for c in range(4): dpp("v_add_f32", ACC+c, ACC+c, ACC+c, "row_ror:8")
        e(f"ds_write_b128 v{V_AL}, {vr(ACC)} offset:{lbase}")
        setflag(fbase)
    def up_publish(lbase, fbase, colreg_expr, name):
        waitflags(fbase, 8, name)
        e("s_mov_b32 exec_hi, 0")
        for w in range(8): e(f"ds_read_b128 {vr(U+4*w)}, v{V_V} offset:{lbase + w*512}")
        e(f"v_lshrrev_b32 v{T0}, 4, v{V_LANE}"); e(f"v_mul_u32_u24 v{T0}, {QP_B}, v{T0}")
        e(f"v_and_b32 v{T1}, 15, v{V_LANE}"); e(f"v_lshl_add_u32 v{T0}, v{T1}, 4, v{T0}")
        e("s_and_b32 s7, s2, 3"); e(f"s_mul_i32 s7, s7, {QP_K}")
        colreg_expr()
        e("s_add_u32 s7, s7, s72")
        e("s_waitcnt lgkmcnt(0)")
        for w in range(1, 8):
            e(f"v_pk_add_f32 {vr(U,2)}, {vr(U,2)}, {vr(U+4*w,2)}"); e(f"v_pk_add_f32 {vr(U+2,2)}, {vr(U+2,2)}, {vr(U+4*w+2,2)}")
        for c in range(4): e(f"v_add_u32 v{U+c}, 0x80, v{U+c}")
        tagput(U+4, [U, U+1, U+2, U+3])
        e(f"buffer_store_dwordx4 {vr(U+4)}, v{T0}, {R_WS}, s7 offen sc1", tag="pub")
        e("s_mov_b64 exec, -1")
    up_compute(UPS, "upq", L_REDQ, L_FA, lambda i: None)
    stamp(2)
    with cond(f"s_cmp_lg_u32 {S_W}, 7", "s_cbranch_scc1"):
        up_publish(L_REDQ, L_FA, lambda: (e("s_lshr_b32 s72, s2, 2"), e("s_lshl_b32 s72, s72, 8"), e(f"s_add_u32 s72, s72, {WS_QP}")), "wfa")
    stamp(3)
    setprio(2)
    e("s_lshr_b32 s7, s2, 3"); e("s_lshl_b32 s7, s7, 8"); e(f"s_add_u32 s7, s7, {WS_CT}")
    e("s_add_u32 s92, s56, s7"); e("s_addc_u32 s93, s57, 0")
    e("s_and_b32 s72, s2, 7"); e(f"s_or_b32 s72, s72, {S_W}")
    with cond("s_cmp_lg_u32 s72, 0", "s_cbranch_scc1"):
        e("s_mov_b64 exec, 1")
        e(f"v_mov_b32 v{U+8}, 0"); e(f"v_mov_b32 v{U+9}, {S_T}")
        e(f"buffer_store_dwordx2 {vr(U+8,2)}, off, {R_WS}, s7 sc1", tag="ct")
        e("s_mov_b64 exec, -1")
    up_compute(UPS+16, "uph", L_REDH, L_FH, lambda i: more(1))
    e(f"v_lshrrev_b32 v{T0}, 4, v{V_LANE}"); e(f"v_lshlrev_b32 v{V_DN}, 12, v{T0}")
    e(f"v_and_b32 v{T1}, 15, v{V_LANE}"); e(f"v_lshl_add_u32 v{V_DN}, v{T1}, 4, v{V_DN}")
    more(16)
    with cond([f"s_cmp_lg_u32 {S_W}, 6", f"s_cmp_eq_u32 {S_HASH}, 0"], "s_cbranch_scc1"):
        up_publish(L_REDH, L_FH, lambda: (e(f"s_lshl_b32 s72, {S_CBH}, 8"), e(f"s_add_u32 s72, s72, {WS_QP + 4096*4}")), "wfh")
    issueK(1, 2)
    issueV(1, 3)
    setprio(1)
    issueDN(4, 0, 4)
    QG = SC
    e("s_lshr_b32 s77, s2, 7"); e(f"s_mul_i32 s77, s77, {QP_B}")
    e("s_lshr_b32 s7, s2, 5"); e("s_and_b32 s7, s7, 3"); e("s_lshl_b32 s7, s7, 12"); e("s_add_u32 s77, s77, s7")
    e(f"s_lshl_b32 s7, {S_W}, 10"); e("s_add_u32 s77, s77, s7"); e(f"s_add_u32 s77, s77, {WS_QP}")
    e(f"s_add_u32 s78, s77, {2*QP_K}")
    VQ2 = Q0
    e(f"v_add_u32 v{VQ2}, {QP_K}, v{V_V}")
    def q_issue():
        for kq in range(4):
            e(f"buffer_load_dwordx4 {vr(QG+4*kq)}, v{VQ2 if kq & 1 else V_V}, {R_WS}, s{77 + (kq >> 1)} offen sc1", tag="qp")
    def q_check():
        for kq in range(4): tagcheck(QG+4*kq, T3, kq == 0, T5)
    VH = Q0 + 1
    e(f"v_lshrrev_b32 v{T0}, 3, v{V_LANE}"); e(f"v_mul_u32_u24 v{VH}, {QP_B}, v{T0}")
    e(f"v_and_b32 v{T1}, 7, v{V_LANE}"); e(f"v_lshl_add_u32 v{VH}, v{T1}, 4, v{VH}")
    e(f"s_lshl_b32 s79, {S_KS}, 7"); e(f"s_add_u32 s79, s79, {WS_QP + 4096*4}")
    def h_issue(): e(f"buffer_load_dwordx4 {vr(QG)}, v{VH}, {R_WS}, s79 offen sc1", tag="hp")
    def h_check(): tagcheck(QG, T3, True, T5)
    with cond(f"s_cmp_ge_u32 {S_W}, 4", "s_cbranch_scc1"): q_issue()
    with cond([f"s_cmp_lg_u32 {S_W}, 4", f"s_cmp_eq_u32 {S_HASF}, 0"], "s_cbranch_scc1"): h_issue()
    issueDN(4, 4, 8)
    with cond(f"s_cmp_ge_u32 {S_W}, 4", "s_cbranch_scc1"):
        poll(q_issue, q_check, lambda: e("s_waitcnt vmcnt(4)"), "q")
        untag(range(QG, QG+16))
        for kq in range(1, 4):
            e(f"v_pk_add_f32 {vr(QG,2)}, {vr(QG,2)}, {vr(QG+4*kq,2)}"); e(f"v_pk_add_f32 {vr(QG+2,2)}, {vr(QG+2,2)}, {vr(QG+4*kq+2,2)}")
        e(f"v_cvt_pk_bf16_f32 v{QG}, v{QG}, v{QG+1}")
        e(f"v_cvt_pk_bf16_f32 v{QG+1}, v{QG+2}, v{QG+3}")
        e(f"v_lshlrev_b32 v{T0}, 3, v{V_LANE}"); e(f"s_lshl_b32 s7, {S_W}, 9"); e(f"v_add_u32 v{T0}, s7, v{T0}")
        e(f"ds_write_b64 v{T0}, {vr(QG,2)} offset:{L_Q}")
        setflag(L_FQ)
    with cond([f"s_cmp_lg_u32 {S_W}, 4", f"s_cmp_eq_u32 {S_HASF}, 0"], "s_cbranch_scc1"):
        poll(h_issue, h_check, lambda: e("s_waitcnt vmcnt(4)"), "h")
        HG = QG
        untag(range(HG, HG+4))
        xlane("v_add_f32", [HG, HG+1, HG+2, HG+3], [HG+4, HG+5, HG+6, HG+7], ["p16", "p32"])
        for d in range(2): rnd2(HG+2*d, HG+2*d+1, HG+8+d)
        for i in range(4): e(f"v_mul_f32 v{HG+8+i}, {S_LOG2E}, v{HG+i}")
        for i in range(4): e(f"v_exp_f32 v{HG+8+i}, -v{HG+8+i}")
        for i in range(4): e(f"v_add_f32 v{HG+8+i}, 1.0, v{HG+8+i}")
        for i in range(4): e(f"v_rcp_f32 v{HG+8+i}, v{HG+8+i}")
        for i in range(4): e(f"v_mul_f32 v{HG+i}, v{HG+i}, v{HG+8+i}")
        for d in range(2): e(f"v_cvt_pk_bf16_f32 v{HG+4+d}, v{HG+2*d}, v{HG+2*d+1}")
        e(f"v_and_b32 v{T0}, 1, v{V_LANE}"); e(f"v_lshlrev_b32 v{T0}, 5, v{T0}")
        e(f"v_bfe_u32 v{T1}, v{V_LANE}, 1, 2"); e(f"v_lshl_add_u32 v{T0}, v{T1}, 1, v{T0}")
        e(f"v_bfe_u32 v{T1}, v{V_LANE}, 3, 1"); e(f"v_lshl_add_u32 v{T0}, v{T1}, 6, v{T0}")
        e("s_mov_b64 exec, 0xffff")
        for d in range(2):
            e(f"ds_write_b16 v{T0}, v{HG+4+d} offset:{L_OL + 16*d}")
            e(f"ds_write_b16_d16_hi v{T0}, v{HG+4+d} offset:{L_OL + 16*d + 8}")
        e("s_mov_b64 exec, -1")
        setflag(L_FQ)
    stamp(4)
    e(f"v_and_b32 v{T0}, 7, v{V_LANE}"); e(f"v_lshlrev_b32 v{T0}, 8, v{T0}")
    e(f"v_lshrrev_b32 v{T1}, 4, v{V_LANE}"); e(f"v_lshl_add_u32 v{T0}, v{T1}, 5, v{T0}")
    e(f"v_bfe_u32 v{T1}, v{V_LANE}, 3, 1"); e(f"v_lshl_add_u32 v{T0}, v{T1}, 4, v{T0}")
    waitflags(L_FQ, 4, "wfq")
    e(f"ds_read_b128 {vr(Q0)}, v{T0} offset:{L_Q}")
    e(f"ds_read_b128 {vr(Q1)}, v{T0} offset:{L_Q+128}")
    stamp(5)

    def S_phase(u, slot):
        K = SLOT(slot)
        e.wait_vm(f"k{u}", " lgkmcnt(0)" if u == 0 else "")
        for t in range(2):
            for beta in range(4):
                c = "0" if t == 0 else vr(SC+4*beta)
                e(f"v_mfma_f32_16x16x32_bf16 {vr(SC+4*beta)}, {vr(K+8*beta+4*t)}, {vr(Q0 if t == 0 else Q1)}, {c}")
        yield
        S = SC + 16
        for beta in range(4):
            for eps in range(2):
                dpp("v_add_f32", S+2*beta+eps, SC+4*beta+2*eps+1, SC+4*beta+2*eps, "row_ror:8")
        for d in range(4): rnd2(S+2*d, S+2*d+1, SC+24+d)
        for i in range(8): e(f"v_mul_f32 v{S+i}, {S_SCALE}, v{S+i}")
        for d in range(4): rnd2(S+2*d, S+2*d+1, SC+24+d)
        e(f"v_max3_f32 v{T0}, v{S}, v{S+1}, v{S+2}")
        e(f"v_max3_f32 v{T1}, v{S+3}, v{S+4}, v{S+5}")
        e(f"v_max3_f32 v{T0}, v{T0}, v{S+6}, v{S+7}")
        e(f"v_max_f32 v{T0}, v{T0}, v{T1}")
        xlane("v_max_f32", [T0], [T1], ["p16", "p32"])
        e(f"v_mul_f32 v{T0}, {S_LOG2E}, v{T0}")
        if u > 0:
            e(f"v_max_f32 v{T0}, v{T0}, v{V_ML}")
            e(f"v_sub_f32 v{V_AL}, v{V_ML}, v{T0}")
            e(f"v_exp_f32 v{V_AL}, v{V_AL}")
        e(f"v_mov_b32 v{V_ML}, v{T0}")
        for i in range(8): e(f"v_fma_f32 v{S+i}, v{S+i}, {S_LOG2E}, -v{T0}")
        for i in range(8): e(f"v_exp_f32 v{S+i}, v{S+i}")
        if u > 0:
            e(f"v_mul_f32 v{V_L}, v{V_L}, v{V_AL}")
            for i in range(32): e(f"v_mul_f32 v{ACC+i}, v{ACC+i}, v{V_AL}")
        for d in range(4): e(f"v_cvt_pk_bf16_f32 v{P+d}, v{S+2*d}, v{S+2*d+1}")
        if u == 0: e(f"v_add_f32 v{V_L}, v{S}, v{S+1}")
        else:
            e(f"v_add_f32 v{V_L}, v{V_L}, v{S}"); e(f"v_add_f32 v{V_L}, v{V_L}, v{S+1}")
        for i in range(2, 8): e(f"v_add_f32 v{V_L}, v{V_L}, v{S+i}")
        yield
    def perms32(src, dst):
        for p in range(4):
            for d in range(4):
                for x in range(2):
                    e(f"v_perm_b32 v{dst+4*(2*d+x)+p}, v{src+4*(2*p+1)+d}, v{src+4*(2*p)+d}, {S_HI if x else S_LO}")
    def PV_phase(u, slot):
        e.wait_vm(f"v{u}")
        perms32(SLOT(slot), SC)
        for ee in range(8):
            c = "0" if u == 0 else vr(ACC+4*ee)
            e(f"v_mfma_f32_16x16x32_bf16 {vr(ACC+4*ee)}, {vr(SC+4*ee)}, {vr(P)}, {c}")
    KB, VB = SLOT(0), SLOT(0) + 16
    WP = SLOT(1)
    def tileK(sreg, tag, sreg2=None):
        for i in range(4):
            e(f"buffer_load_dwordx4 {vr(KB+4*i)}, v{V_K}, {R_K}, {sreg if (i < 2 or not sreg2) else sreg2} offen offset:{(i>>1)*2048 + (i&1)*128} nt", tag=tag)
    def tileV(sreg, tag, sreg2=None):
        for j in range(4):
            e(f"buffer_load_dwordx4 {vr(VB+4*j)}, v{V_V}, {R_V}, {sreg if (j < 2 or not sreg2) else sreg2} offen offset:{j*1024} nt", tag=tag)
    def down_mfma_publish(A, W, D, ST):
        for ee in range(8):
            e(f"v_mfma_f32_16x16x32_bf16 {vr(D+4*ee)}, {vr(A)}, {vr(W+4*ee)}, 0")
        e("s_mov_b64 exec, 0xffff")
        for q4 in range(4):
            b, eh = q4 >> 1, q4 & 1
            tagput(ST+4*q4, [D+4*(4*eh+i)+b for i in range(4)])
            e(f"buffer_store_dwordx4 {vr(ST+4*q4)}, v{V_V}, {R_WS}, s38 offen offset:{q4*256} sc1", tag="pubD")
        e("s_mov_b64 exec, -1")
    g = S_phase(0, 0); next(g)
    e("s_load_dwordx2 s[94:95], s[92:93], 0 glc")
    e(f"s_add_u32 s74, {S_KV}, {4*32768}")
    tileK("s74", "k4"); tileV("s74", "v4")
    next(g)
    PV_phase(0, 1)
    Lc1, Lc2 = newlab("ctpoll"), newlab("ctok")
    e(f"s_mov_b32 {S_CNT}, 0")
    e.label(Lc1)
    e("s_waitcnt lgkmcnt(0)")
    e(f"s_cmp_eq_u32 s95, {S_T}"); e(f"s_cbranch_scc1 {Lc2}")
    e(f"s_add_u32 {S_CNT}, {S_CNT}, 1"); e(f"s_cmp_gt_u32 {S_CNT}, {POLL_LIMIT}"); e(f"s_cbranch_scc1 {Lc2}")
    e("s_load_dwordx2 s[94:95], s[92:93], 0 glc")
    e(f"s_branch {Lc1}")
    e.label(Lc2)
    S_NX, S_ST = "s96", "s97"
    def grab():
        e(f"s_mov_b32 {S_NX}, 1")
        e(f"s_atomic_add {S_NX}, s[92:93], 0 glc")
    for _ in S_phase(1, 2): pass
    PV_phase(1, 3)
    e.wait_vm("dn")
    perms32(SLOT(4), WP)
    WA = SLOT(4)
    e(f"v_and_b32 v{T0}, 15, v{V_LANE}"); e(f"v_mul_u32_u24 v{WA}, {512+16}, v{T0}")
    e(f"v_lshrrev_b32 v{T1}, 4, v{V_LANE}"); e(f"v_lshl_add_u32 v{WA}, v{T1}, 7, v{WA}")
    e(f"s_lshl_b32 s7, {S_W}, 12"); e(f"v_add_u32 v{WA}, s7, v{WA}")
    for ee in range(1, 8): e(f"v_xor_b32 v{WA+ee}, {ee*16}, v{WA}")
    RA, GA, VO, VM, MA, MW, ADA, OLW = WA + 8, WA + 9, WA + 10, WA + 11, WA + 12, WA + 13, WA + 14, WA + 15
    e(f"s_lshl_b32 s7, {S_W}, 6"); e(f"v_add_u32 v{T0}, s7, v{V_LANE}")
    e(f"v_lshlrev_b32 v{GA}, 4, v{T0}")
    e(f"v_lshrrev_b32 v{T1}, 5, v{T0}"); e(f"v_and_b32 v{T1}, 7, v{T1}"); e(f"v_lshlrev_b32 v{MA}, 6, v{T1}"); e(f"v_lshlrev_b32 v{T1}, 4, v{T1}")
    e(f"v_xor_b32 v{RA}, v{GA}, v{T1}")
    e(f"v_lshlrev_b32 v{MW}, 6, v{V_LANE}"); e(f"s_lshl_b32 s7, {S_W}, 3"); e(f"v_add_u32 v{MW}, s7, v{MW}")
    e(f"v_and_b32 v{T0}, 1, v{V_LANE}"); e(f"v_lshlrev_b32 v{T0}, 6, v{T0}")
    e(f"v_and_b32 v{T1}, 48, v{V_LANE}"); e(f"v_add_u32 v{ADA}, v{T0}, v{T1}")
    e(f"s_and_b32 s7, {S_W}, 1"); e("s_lshl_b32 s7, s7, 6"); e(f"s_lshr_b32 s78, {S_W}, 1"); e("s_lshl_b32 s78, s78, 5"); e("s_add_u32 s7, s7, s78")
    e(f"v_lshlrev_b32 v{OLW}, 3, v{V_LANE}"); e(f"v_add_u32 v{OLW}, s7, v{OLW}")
    e(f"s_lshr_b32 s7, {S_IDX}, 5"); e(f"s_and_b32 s79, {S_W}, 1"); e("s_lshl_b32 s79, s79, 2"); e("s_add_u32 s7, s7, s79"); e("s_lshl_b32 s7, s7, 17")
    e("s_lshl_b32 s78, s78, 1"); e("s_add_u32 s78, s78, s7")
    e(f"s_and_b32 s7, {S_IDX}, 31"); e("s_lshl_b32 s7, s7, 7"); e("s_add_u32 s78, s78, s7"); e(f"s_add_u32 s78, s78, {WS_OP}")
    e(f"s_add_u32 s79, s78, {16*4096}")
    e(f"v_lshrrev_b32 v{T0}, 2, v{V_LANE}"); e(f"v_and_b32 v{T1}, 3, v{V_LANE}")
    e(f"v_lshlrev_b32 v{VO}, 12, v{T0}"); e(f"v_lshl_add_u32 v{VO}, v{T1}, 4, v{VO}")
    e("s_lshl_b32 s100, s2, 12"); e(f"s_add_u32 s100, s100, {WS_OP - 4096}")
    e("s_lshl_b32 s101, s2, 7"); e(f"s_add_u32 s101, s101, {WS_ML}")
    e(f"s_lshl_b32 s38, {S_TYPE}, 7"); e(f"s_add_u32 s38, s38, {S_KS}"); e("s_lshl_b32 s38, s38, 13")
    e(f"s_lshl_b32 s7, {S_W}, 10"); e("s_add_u32 s38, s38, s7"); e(f"s_add_u32 s38, s38, {WS_AP}")
    VA3, VX3, VL3, SH4 = WA + 18, WA + 19, WA + 20, WA + 21
    GF = SLOT(3)
    XQ = SLOT(3) + 4
    e(f"v_lshrrev_b32 v{VA3}, 2, v{V_LANE}"); e(f"v_lshlrev_b32 v{VA3}, 13, v{VA3}")
    e(f"v_and_b32 v{VX3}, 3, v{V_LANE}"); e(f"v_lshlrev_b32 v{SH4}, 3, v{VX3}"); e(f"v_lshlrev_b32 v{VX3}, 4, v{VX3}"); e(f"v_add_u32 v{VA3}, v{VA3}, v{VX3}")
    e(f"s_lshl_b32 s7, {S_W}, 6"); e(f"v_add_u32 v{VL3}, s7, v{VX3}")
    e(f"s_lshl_b32 s16, {S_IDX}, 6"); e(f"s_add_u32 s16, s16, {WS_AP}"); e(f"s_lshl_b32 s7, {S_W}, 17"); e("s_add_u32 s16, s16, s7")
    e(f"s_add_u32 s17, s16, {128*8192}")
    e(f"s_lshr_b32 s7, {S_IDX}, 3"); e("s_and_b32 s7, s7, 1"); e("s_lshl_b32 s18, s7, 11")
    e(f"s_lshr_b32 s7, {S_IDX}, 4"); e("s_lshl_b32 s7, s7, 8"); e("s_add_u32 s18, s18, s7")
    e(f"s_and_b32 s7, {S_IDX}, 3"); e("s_lshl_b32 s7, s7, 6"); e("s_add_u32 s18, s18, s7")
    e(f"s_and_b32 s7, {S_IDX}, 4"); e("s_lshl_b32 s7, s7, 1"); e("s_add_u32 s18, s18, s7")
    e(f"s_cmp_lg_u32 {S_W}, 7"); e(f"s_cselect_b32 s19, {S_TYPE}, 0")
    e(f"s_and_b32 s20, {S_T}, 0xffffff"); e("s_mov_b32 s21, 0x0c040100")
    def gf_issue(): e(f"buffer_load_dwordx4 {vr(GF)}, v{VA3}, {R_WS}, s17 offen sc1", tag="g")
    FR = 64 - 8*NS - HF
    P1 = FR * 8
    POOL = P1 + HF * 16
    assert NS == 5
    e("s_and_b32 s98, s2, 0xf8"); e("s_lshl_b32 s98, s98, 18"); e(f"s_add_u32 s98, s98, {NS*8*4096}")
    if not late_ffn:
      with cond(f"s_cmp_eq_u32 {S_HASF}, 0", "s_cbranch_scc1"):
        waitflags(L_FQ + 16, 1, "wfh2")
        e(f"ds_read_b128 {vr(AD)}, v{ADA} offset:{L_OL}")
        e("s_waitcnt lgkmcnt(0)")
        down_mfma_publish(AD, WP, SLOT(2), SC)
    grab()
    stamp(6)
    setprio(0)
    Lloop, Lskip = newlab("loop"), newlab("noresc")
    e("s_mov_b32 s99, 0")
    e.label(Lloop)
    e("s_waitcnt vmcnt(4)")
    for t in range(2):
        for beta in range(2):
            c = "0" if t == 0 else vr(SC+4*beta)
            e(f"v_mfma_f32_16x16x32_bf16 {vr(SC+4*beta)}, {vr(KB+8*beta+4*t)}, {vr(Q0 if t == 0 else Q1)}, {c}")
    e("s_waitcnt lgkmcnt(0)")
    if pmap == 0:
        e(f"s_and_b32 s74, {S_NX}, 7"); e("s_lshl_b32 s74, s74, 18"); e("s_add_u32 s74, s74, s98")
        e(f"s_lshr_b32 s75, {S_NX}, 3"); e("s_lshl_b32 s76, s75, 12"); e("s_lshl_b32 s75, s75, 11"); e(f"s_add_u32 s75, s75, {FR*4096 - FR*2048}")
    else:
        assert FR % 8 == 0 and HF == 8
        e(f"s_and_b32 s74, {S_NX}, 7"); e("s_lshl_b32 s74, s74, 12"); e("s_add_u32 s74, s74, s98")
        e(f"s_bfe_u32 s75, {S_NX}, 0x30003"); e("s_lshl_b32 s75, s75, 18"); e("s_add_u32 s74, s74, s75")
        e(f"s_lshr_b32 s75, {S_NX}, 6"); e("s_lshl_b32 s76, s75, 15"); e("s_lshl_b32 s75, s75, 11"); e(f"s_add_u32 s75, s75, {FR*4096 - (FR//8)*2048}")
    e(f"s_cmp_lt_u32 {S_NX}, {P1}"); e("s_cselect_b32 s75, s76, s75"); e("s_cselect_b32 s77, 0, 0xff800000"); e("s_cselect_b32 s76, 0, 0x40000000")
    e("s_add_u32 s74, s74, s75"); e("s_add_u32 s76, s76, s74")
    e(f"s_cmp_lt_u32 {S_NX}, {POOL}"); e("s_cselect_b32 s74, s74, 0x40000000"); e("s_cselect_b32 s75, 1, 0")
    def dn_at(jjs):
        for jj in jjs:
            e(f"s_add_u32 s22, {S_DNB}, {(8*(jj&3) + (jj>>2))*2048}")
            e(f"buffer_load_dwordx4 {vr(SLOT(2)+4*jj)}, v{V_DN}, {R_DN}, s22 offen nt", tag="dn3")
    ea = list(range(8 - LA - EA, 8 - LA))
    ea_exit = []
    if xmode == 1: ea_exit = ea; ea = []
    if xmode == 2: ea_exit = ea[4:]; ea = ea[:4]
    if EA >= 4 and xmode == 0:
        Lk, Lk2 = newlab("kdn"), newlab("kdn2")
        e(f"s_or_b32 s22, s75, {S_TYPE}"); e(f"s_cbranch_scc1 {Lk}")
        e.cond_depth += 1; dn_at(ea[:4]); e.cond_depth -= 1
        e(f"s_branch {Lk2}")
        e.label(Lk)
        tileK("s74", "kl", "s76")
        e.label(Lk2)
        ea = ea[4:]
    else:
        tileK("s74", "kl", "s76")
    S = SC + 8
    for beta in range(2):
        for eps in range(2):
            dpp("v_add_f32", S+2*beta+eps, SC+4*beta+2*eps+1, SC+4*beta+2*eps, "row_ror:8")
    for d in range(2): rnd2(S+2*d, S+2*d+1, SC+12+d)
    for i in range(4): e(f"v_mul_f32 v{S+i}, {S_SCALE}, v{S+i}")
    for d in range(2): rnd2(S+2*d, S+2*d+1, SC+12+d)
    e(f"v_add_f32 v{S+2}, s99, v{S+2}"); e(f"v_add_f32 v{S+3}, s99, v{S+3}")
    e("s_mov_b32 s99, s77")
    e(f"v_max3_f32 v{T0}, v{S}, v{S+1}, v{S+2}")
    e(f"v_max_f32 v{T0}, v{T0}, v{S+3}")
    xlane("v_max_f32", [T0], [T1], ["p16", "p32"])
    e(f"v_mul_f32 v{T0}, {S_LOG2E}, v{T0}")
    e(f"v_cmp_gt_f32 vcc, v{T0}, v{V_ML}")
    e(f"s_and_b64 vcc, vcc, {S_N8}")
    e(f"s_cbranch_scc0 {Lskip}")
    e(f"v_max_f32 v{T0}, v{T0}, v{V_ML}")
    e(f"v_sub_f32 v{V_AL}, v{V_ML}, v{T0}")
    e(f"v_exp_f32 v{V_AL}, v{V_AL}")
    e(f"v_mov_b32 v{V_ML}, v{T0}")
    e(f"v_mul_f32 v{V_L}, v{V_L}, v{V_AL}")
    for i in range(32): e(f"v_mul_f32 v{ACC+i}, v{ACC+i}, v{V_AL}")
    e.label(Lskip)
    for i in range(4): e(f"v_fma_f32 v{S+i}, v{S+i}, {S_LOG2E}, -v{V_ML}")
    for i in range(4): e(f"v_exp_f32 v{S+i}, v{S+i}")
    for d in range(2): e(f"v_cvt_pk_bf16_f32 v{P+d}, v{S+2*d}, v{S+2*d+1}")
    for i in range(4): e(f"v_add_f32 v{V_L}, v{V_L}, v{S+i}")
    PS = SC + 16
    for p in range(2):
        e(f"s_waitcnt vmcnt({6 - 2*p})")
        for d in range(4):
            for x in range(2):
                e(f"v_perm_b32 v{PS+2*(2*d+x)+p}, v{VB+4*(2*p+1)+d}, v{VB+4*(2*p)+d}, {S_HI if x else S_LO}")
    with cond("s_cmp_eq_u32 s75, 0", "s_cbranch_scc1"):
        tileV("s74", "vl", "s76")
        grab()
    if ea:
        with cond(f"s_or_b32 s22, s75, {S_TYPE}", "s_cbranch_scc1"): dn_at(ea)
    with cond("s_cmp_le_u32 s19, s75", "s_cbranch_scc1"):
        gf_issue()
        e(f"buffer_load_dwordx2 {vr(XQ,2)}, v{VX3}, {R_X}, s18 offen", tag="xq")
    for ee in range(8):
        e(f"v_mfma_f32_16x16x16_bf16 {vr(ACC+4*ee)}, {vr(PS+2*ee,2)}, {vr(P,2)}, {vr(ACC+4*ee)}")
    e("s_cmp_lg_u32 s75, 0"); e(f"s_cbranch_scc1 {Lloop}")
    stamp(7)
    xlane("v_add_f32", [V_L], [T1], ["p16", "p32"])
    e("s_mov_b64 exec, 0xff")
    e(f"ds_write_b64 v{MW}, {vr(V_ML,2)} offset:{L_MX}")
    e(f"s_mov_b64 exec, {S_N8}")
    for ee in range(8): e(f"ds_write_b128 v{WA+ee}, {vr(ACC+4*ee)} offset:{L_ORED}")
    e("s_mov_b64 exec, -1")
    if ea_exit:
        with cond(f"s_cmp_eq_u32 {S_TYPE}, 1", "s_cbranch_scc1"): dn_at(ea_exit)
    stamp(8)
    e("s_waitcnt lgkmcnt(0)")
    e("s_barrier")
    L4, Lp = newlab("w4"), newlab("pubdone")
    ML8 = SC
    def wg_factors():
        e(f"v_max3_f32 v{T0}, v{ML8}, v{ML8+2}, v{ML8+4}")
        e(f"v_max3_f32 v{T1}, v{ML8+6}, v{ML8+8}, v{ML8+10}")
        e(f"v_max3_f32 v{T0}, v{T0}, v{ML8+12}, v{ML8+14}")
        e(f"v_max_f32 v{T0}, v{T0}, v{T1}")
        for w in range(8): e(f"v_sub_f32 v{ML8+2*w}, v{ML8+2*w}, v{T0}")
        for w in range(8): e(f"v_exp_f32 v{ML8+2*w}, v{ML8+2*w}")
    e(f"s_cmp_lt_u32 {S_W}, 4"); e(f"s_cbranch_scc1 {Lp}")
    e.cond_depth += 1
    for i in range(4): e(f"ds_read_b128 {vr(ML8+4*i)}, v{MA} offset:{L_MX + 16*i}")
    for w in range(8): e(f"ds_read_b128 {vr(ACC+4*w)}, v{RA} offset:{L_ORED - 4096 + w*4096}")
    e("s_waitcnt lgkmcnt(8)")
    wg_factors()
    e(f"v_mul_f32 v{T2}, v{ML8+1}, v{ML8}")
    e(f"v_mul_f32 v{T3}, v{ML8+3}, v{ML8+2}")
    for w in range(2, 8): e(f"v_fmac_f32 v{T2 + (w & 1)}, v{ML8+2*w+1}, v{ML8+2*w}")
    e(f"v_add_f32 v{T2}, v{T2}, v{T3}")
    e(f"v_log_f32 v{T3}, v{T2}")
    e(f"v_rcp_f32 v{T2}, v{T2}")
    for w in range(8):
        e(f"s_waitcnt lgkmcnt({7-w})")
        for c in range(0, 4, 2):
            if w == 0: e(f"v_pk_mul_f32 {vr(ACC+c,2)}, {vr(ACC+c,2)}, {vr(ML8,2)} op_sel_hi:[1,0]")
            else: e(f"v_pk_fma_f32 {vr(ACC+c,2)}, {vr(ACC+4*w+c,2)}, {vr(ML8+2*w,2)}, {vr(ACC+c,2)} op_sel_hi:[1,0,1]")
        if w == 1:
            e(f"v_add_f32 v{T3}, v{T3}, v{T0}")
            e(f"v_lshrrev_b32 v{T3}, v{SH4}, v{T3}")
    for c in range(0, 4, 2): e(f"v_pk_mul_f32 {vr(ACC+c,2)}, {vr(ACC+c,2)}, {vr(T2,2)} op_sel_hi:[1,0]")
    tagput(ACC+4, [ACC, ACC+1, ACC+2])
    e(f"v_perm_b32 v{ACC+7}, v{ACC+3}, v{T3}, {S_TI[0]}")
    e(f"buffer_store_dwordx4 {vr(ACC+4)}, v{GA}, {R_WS}, s100 offen sc1", tag="pubO")
    e.cond_depth -= 1
    e.label(Lp)
    stamp(9)
    if dbgt:
        e("s_memrealtime s[16:17]"); e("s_waitcnt lgkmcnt(0)")
    def late_dn(L):
        for jj in range(8 - L, 8):
            e(f"s_add_u32 s76, {S_DNB}, {(8*(jj&3) + (jj>>2))*2048}")
            e(f"buffer_load_dwordx4 {vr(SLOT(0)+4*jj)}, v{V_DN}, {R_DN}, s76 offen nt", tag="dn2")
        for p in range((8 - L) // 2, 4):
            e(f"s_waitcnt vmcnt({6-2*p})")
            for d in range(4):
                for x in range(2):
                    e(f"v_perm_b32 v{WP+4*(2*d+x)+p}, v{SLOT(0)+4*(2*p+1)+d}, v{SLOT(0)+4*(2*p)+d}, {S_HI if x else S_LO}")
    if pbar: e("s_barrier")
    LF = newlab("ftype")
    e(f"s_cmp_eq_u32 {S_TYPE}, 1"); e(f"s_cbranch_scc1 {LF}")
    e.cond_depth += 1
    OG, MG = ACC + 16, ACC + 24
    def o_issue():
        e(f"buffer_load_dwordx4 {vr(OG)}, v{VO}, {R_WS}, s78 offen sc1", tag="og")
        e(f"buffer_load_dwordx4 {vr(OG+4)}, v{VO}, {R_WS}, s79 offen sc1", tag="og")
    def o_check():
        e(f"v_perm_b32 v{T3}, v{OG+1}, v{OG}, {S_G2}")
        e(f"v_perm_b32 v{T4}, v{OG+5}, v{OG+4}, {S_G2}")
        e(f"v_perm_b32 v{T3}, v{OG+2}, v{T3}, s21")
        e(f"v_perm_b32 v{T4}, v{OG+6}, v{T4}, s21")
        e(f"v_xor_b32 v{T3}, s20, v{T3}"); e(f"v_xor_b32 v{T4}, s20, v{T4}")
        e(f"v_or_b32 v{T5}, v{T3}, v{T4}")
    if EA:
        if not LA: e("s_waitcnt vmcnt(0)")
        else: e("s_waitcnt vmcnt(0)")
        for p in range((8 - LA - EA) // 2, (8 - LA) // 2):
            for d in range(4):
                for x in range(2):
                    e(f"v_perm_b32 v{WP+4*(2*d+x)+p}, v{SLOT(2)+4*(2*p+1)+d}, v{SLOT(2)+4*(2*p)+d}, {S_HI if x else S_LO}")
    late_dn(LA)
    with cond(f"s_cmp_ge_u32 {S_W}, 4", "s_cbranch_scc1"):
        if dly_o: e(f"s_sleep {dly_o}")
        o_issue()
        poll(o_issue, o_check, lambda: e("s_waitcnt vmcnt(0)"), "o", sleep=slp_o)
        stamp(10)
        for i in range(2): e(f"v_and_b32 v{MG+i}, 0xff, v{OG+4*i+3}")
        for i in range(2): e(f"v_lshlrev_b32 v{MG+i}, v{SH4}, v{MG+i}")
        untag(range(OG, OG+4))
        for i in range(2): dpp("v_or_b32", MG+i, MG+i, MG+i, "quad_perm:[1,0,3,2]")
        untag(range(OG+4, OG+8))
        for i in range(2): dpp("v_or_b32", MG+i, MG+i, MG+i, "quad_perm:[2,3,0,1]")
        e(f"v_max_f32 v{T0}, v{MG}, v{MG+1}")
        xlane("v_max_f32", [T0], [T1], ["r4", "r8", "p16", "p32"])
        for i in range(2): e(f"v_sub_f32 v{MG+i}, v{MG+i}, v{T0}")
        for i in range(2): e(f"v_exp_f32 v{MG+i}, v{MG+i}")
        for c in range(0, 4, 2): e(f"v_pk_mul_f32 {vr(OG+c,2)}, {vr(OG+c,2)}, {vr(MG,2)} op_sel_hi:[1,0]")
        for c in range(0, 4, 2): e(f"v_pk_fma_f32 {vr(OG+c,2)}, {vr(OG+4+c,2)}, {vr(MG,2)}, {vr(OG+c,2)} op_sel:[0,1,0] op_sel_hi:[1,1,1]")
        e(f"v_add_f32 v{T1}, v{MG}, v{MG+1}")
        xlane("v_add_f32", [OG, OG+1, OG+2, OG+3, T1], [OG+4, OG+5, OG+6, OG+7, T4], ["r4", "r8", "p16", "p32"])
        e(f"v_rcp_f32 v{T0}, v{T1}")
        for c in range(0, 4, 2): e(f"v_pk_mul_f32 {vr(OG+c,2)}, {vr(OG+c,2)}, {vr(T0,2)} op_sel_hi:[1,0]")
        e(f"v_cvt_pk_bf16_f32 v{OG}, v{OG}, v{OG+1}"); e(f"v_cvt_pk_bf16_f32 v{OG+1}, v{OG+2}, v{OG+3}")
        e("s_mov_b64 exec, 0xf")
        e(f"ds_write_b64 v{OLW}, {vr(OG,2)} offset:{L_OL}")
        e("s_mov_b64 exec, -1")
        e("s_waitcnt lgkmcnt(0)")
    e("s_barrier")
    e(f"ds_read_b128 {vr(AD)}, v{ADA} offset:{L_OL}")
    e("s_waitcnt lgkmcnt(0)")
    down_mfma_publish(AD, WP, ACC, SLOT(3))
    stamp(11)
    e("s_branch L_fini")
    e.label(LF)
    if late_ffn:
      with cond(f"s_cmp_eq_u32 {S_HASF}, 0", "s_cbranch_scc1"):
        e(f"ds_read_b128 {vr(AD)}, v{ADA} offset:{L_OL}")
        late_dn(LF_)
        e("s_waitcnt lgkmcnt(0)")
        down_mfma_publish(AD, WP, SLOT(2), SLOT(3))
      stamp(11)
    VA, VX, VL = VA3, VX3, VL3
    G = SLOT(1)
    def ga_issue(): e(f"buffer_load_dwordx4 {vr(G)}, v{VA}, {R_WS}, s16 offen sc1", tag="g")
    Lz, Lz2 = newlab("zf"), newlab("zf2")
    e(f"s_cmp_eq_u32 {S_W}, 7"); e(f"s_cbranch_scc1 {Lz}")
    poll(gf_issue, lambda: tagcheck(GF, T3, True, T5), lambda: e("s_waitcnt vmcnt(0)"), "gf", sleep=2)
    untag(range(GF, GF+4))
    xlane("v_add_f32", [GF, GF+1, GF+2, GF+3], [G+8, G+9, G+10, G+11], ["r4", "r8", "p16", "p32"])
    e(f"s_branch {Lz2}")
    e.label(Lz)
    for c in range(4): e(f"v_mov_b32 v{GF+c}, 0")
    e.label(Lz2)
    e("s_mov_b64 exec, 0xf")
    e(f"ds_write_b128 v{VL}, {vr(GF)} offset:{L_REDQ+512}")
    if prepoll:
        e("s_mov_b64 exec, 1")
        if pre1:
            with cond(f"s_cmp_lg_u32 {S_W}, 0", "s_cbranch_scc1"):
                ga_issue()
                poll(ga_issue, lambda: tagcheck(G, T3, True, T5), lambda: e("s_waitcnt vmcnt(0)"), "gp", sleep=slp_pre)
            e("s_barrier")
        else:
            ga_issue()
            poll(ga_issue, lambda: tagcheck(G, T3, True, T5), lambda: e("s_waitcnt vmcnt(0)"), "gp", sleep=slp_pre)
    e("s_mov_b64 exec, -1")
    if dly_g: e(f"s_sleep {dly_g}")
    ga_issue()
    poll(ga_issue, lambda: tagcheck(G, T3, True, T5), lambda: e("s_waitcnt vmcnt(0)"), "ga", sleep=slp_g)
    stamp(12)
    untag(range(G, G+4))
    xlane("v_add_f32", [G, G+1, G+2, G+3], [G+8, G+9, G+10, G+11], ["r4", "r8", "p16", "p32"])
    e("s_mov_b64 exec, 0xf")
    e(f"ds_write_b128 v{VL}, {vr(G)} offset:{L_REDQ}")
    e("s_waitcnt lgkmcnt(0)")
    e("s_barrier")
    e(f"s_cmp_lg_u32 {S_W}, 0"); e("s_cbranch_scc1 L_fini")
    e("s_mov_b64 exec, -1")
    e(f"ds_read_b128 {vr(G)}, v{V_V} offset:{L_REDQ}")
    XU = G + 12
    for d in range(2):
        e(f"v_lshlrev_b32 v{XU+2*d}, 16, v{XQ+d}"); e(f"v_and_b32 v{XU+2*d+1}, {S_MASKH}, v{XQ+d}")
    e("s_waitcnt lgkmcnt(0)")
    xlane("v_add_f32", [G, G+1, G+2, G+3], [G+8, G+9, G+10, G+11], ["r4", "r8", "p16"])
    rnd2(G, G+1, G+4); rnd2(G+2, G+3, G+5)
    for c in range(4): e(f"v_mov_b32 v{G+8+c}, v{G+c}")
    for c in range(4): e(f"v_permlane32_swap_b32 v{G+c}, v{G+8+c}")
    for c in range(4): e(f"v_add_f32 v{G+c}, v{XU+c}, v{G+c}")
    rnd2(G, G+1, G+4); rnd2(G+2, G+3, G+5)
    for c in range(4): e(f"v_add_f32 v{G+c}, v{G+c}, v{G+8+c}")
    e(f"v_cvt_pk_bf16_f32 v{G+4}, v{G}, v{G+1}"); e(f"v_cvt_pk_bf16_f32 v{G+5}, v{G+2}, v{G+3}")
    e("s_mov_b64 exec, 0xf")
    e(f"buffer_store_dwordx2 {vr(G+4,2)}, v{VX}, {R_OUT}, s18 offen")
    e(f"s_cmp_lg_u32 {S_IDX}, 0"); e("s_cbranch_scc1 L_fini")
    e("s_mov_b64 exec, 1")
    e(f"buffer_store_dword v{V_T}, off, {R_WS}, 0")
    e.cond_depth -= 1
    e.label("L_fini")
    if dbgt:
        e("s_memrealtime s[72:73]"); e("s_waitcnt lgkmcnt(0)")
        e("s_cmp_lg_u32 s3, 0"); e("s_cbranch_scc1 L_dbg1")
        e("s_atomic_umax s72, s[34:35], 4"); e("s_waitcnt lgkmcnt(0)")
        e.label("L_dbg1")
    if dbgt:
        e("s_cmp_lg_u32 s3, 0"); e("s_cbranch_scc1 L_end")
        e("s_atomic_umax s16, s[34:35], 12")
        e("s_not_b32 s72, s90"); e("s_atomic_umax s72, s[34:35], 0"); e("s_atomic_umax s90, s[34:35], 8"); e("s_waitcnt lgkmcnt(0)")
    if stamps:
        e("s_mov_b64 exec, -1")
        stamp(13)
        e("s_mov_b64 exec, 0xffff")
        e(f"v_lshlrev_b32 v{T0}, 2, v{V_LANE}")
        e("s_lshl_b32 s7, s2, 3"); e(f"s_add_u32 s7, s7, {S_W}"); e("s_lshl_b32 s7, s7, 6"); e(f"s_add_u32 s7, s7, {WS_SIZE}")
        e("s_mov_b32 s58, 0x1000000")
        e(f"buffer_store_dword v0, v{T0}, {R_WS}, s7 offen")
    e.label("L_end")
    e("s_endpgm")

    out = HEADER
    out += f"; @launch grid=(256,1,1) block=(512,1,1) lds={LDS_BYTES}\n"
    out += '.amdgcn_target "amdgcn-amd-amdhsa--gfx950"\n.text\n'
    out += f".globl {KNAME}\n.p2align 8\n.type {KNAME},@function\n{KNAME}:\n"
    out += e.text()
    out += f""".section .rodata,"a"
.p2align 6
.amdhsa_kernel {KNAME}
  .amdhsa_next_free_vgpr 256
  .amdhsa_next_free_sgpr 102
  .amdhsa_accum_offset 256
  .amdhsa_group_segment_fixed_size 0
  .amdhsa_kernarg_size 88
  .amdhsa_user_sgpr_count 2
  .amdhsa_user_sgpr_kernarg_segment_ptr 1
  .amdhsa_system_sgpr_workgroup_id_x 1
.end_amdhsa_kernel
"""
    return out

if __name__ == "__main__":
    import argparse
    ap = argparse.ArgumentParser()
    ap.add_argument("-o", default="parallel_sum__gqa_block_cached__dense_activation_silu__decode.s")
    ap.add_argument("--inf", type=int, default=5)
    ap.add_argument("--stamps", action="store_true")
    ap.add_argument("--kw", default="")
    a = ap.parse_args()
    kw = eval("dict(%s)" % a.kw)
    open(a.o, "w").write(gen(INF=a.inf, stamps=a.stamps, **kw))
```

```python
import sys
from emit import Emit
KNAME = "parallel_sum__gqa_block_cached__dense_activation_silu__decode_kernel"
HEADER = open("parallel_sum__gqa_block_cached__dense_activation_silu__decode.s.ref").read().split("; Override launch geometry")[0]

WS_QP = 0x1000
QP_B = 7680 * 4
QP_K = 2 * QP_B
WS_ML = 0x40000
WS_CT = 0x50000
WS_OP = 0x80000
WS_AP = 0x200000
WS_SIZE = 0x400000
L_REDQ = 0
L_REDH = 4096
L_Q = 8192
L_MX = 10240
L_OL = 10752
L_FA = 11008; L_FH = 11040; L_FQ = 11072
L_S2 = 0
L_S2M = 1024
L_ORED = 12288
LDS_BYTES = L_ORED + 8 * 4096
V_LANE, V_K, V_V, V_UP, V_DN, V_T, V_AL, V_ML, V_L = 1, 2, 3, 4, 5, 6, 7, 8, 9
T0, T1, T2, T3, T4, T5 = 10, 11, 12, 13, 14, 15
ACC = 16
Q0, Q1 = 48, 52
P = 56
AD = 60
SC = 64
def SLOT(k): return 96 + 32 * k
S_W, S_TYPE, S_IDX, S_T = "s3", "s4", "s5", "s6"
S_LO, S_HI = "s8", "s9"
S_TI = ["s10", "s11", "s12", "s13"]
S_G2 = "s14"
S_CNT = "s15"
R_K, R_V, R_UP, R_DN, R_WS, R_X, R_OUT, R_W1 = "s[40:43]", "s[44:47]", "s[48:51]", "s[52:55]", "s[56:59]", "s[60:63]", "s[64:67]", "s[28:31]"
S_KV, S_UPQ, S_UPH, S_DNB = "s68", "s69", "s70", "s71"
S_LOG2E, S_SCALE, S_MASKH, S_HASF, S_HASH, S_KS = "s82", "s83", "s84", "s85", "s86", "s87"
S_N8 = "s[88:89]"
S_CBH = "s39"
POLL_LIMIT = 1 << 17
def vr(a, n=4): return f"v[{a}:{a+n-1}]"

def gen(INF=5, stamps=False, NS=5, HF=8, pf=False, prio=True, slp_o=0, slp_g=0, slp_pre=2, prepoll=True, late_ffn=False, LA=0, LF_=0, pbar=False, dbgt=False, dly_o=8, dly_g=0, pre1=True, upfirst=False, lite=False, early=1, early_k=4, pmap=0, EA=8, xmode=0, THR=6, THO=6):
    e = Emit()
    lab = [0]
    def newlab(p):
        lab[0] += 1
        return f"L_{p}_{lab[0]}"
    def stamp(k):
        if not stamps: return
        if lite and k not in (7, 13): return
        e("s_memrealtime s[90:91]"); e("s_waitcnt lgkmcnt(0)"); e(f"v_writelane_b32 v0, s90, {k}")
    def throttle():
        if INF: e(f"s_waitcnt vmcnt({INF-1})")
    def setprio(n):
        if prio: e(f"s_setprio {n}")
    def dpp(op, d, a, b, ctl):
        e(f"{op}_dpp v{d}, v{a}, v{b} {ctl} row_mask:0xf bank_mask:0xf")
    def xlane(op, regs, tmps, steps):
        for st in steps:
            if st[0] == "r":
                for r in regs: dpp(op, r, r, r, f"row_ror:{st[1:]}")
            else:
                for r, t in zip(regs, tmps): e(f"v_mov_b32 v{t}, v{r}")
                for r, t in zip(regs, tmps): e(f"v_permlane{st[1:]}_swap_b32 v{r}, v{t}")
                for r, t in zip(regs, tmps): e(f"{op} v{r}, v{r}, v{t}")
    def tagcheck(g, tmp, first, accum):
        e(f"v_perm_b32 v{tmp}, v{g+1}, v{g}, {S_G2}")
        e(f"v_perm_b32 v{tmp+1}, v{g+3}, v{g+2}, {S_G2}")
        e(f"v_perm_b32 v{tmp}, v{tmp+1}, v{tmp}, {S_LO}")
        if first: e(f"v_xor_b32 v{accum}, v{tmp}, v{V_T}")
        else:
            e(f"v_xor_b32 v{tmp}, v{tmp}, v{V_T}")
            e(f"v_or_b32 v{accum}, v{accum}, v{tmp}")
    def untag(regs):
        for r in regs: e(f"v_and_b32 v{r}, s23, v{r}")
    def tagput(dst, srcs):
        for i, s in enumerate(srcs): e(f"v_perm_b32 v{dst+i}, v{s}, v{V_T}, {S_TI[i]}")
    def rnd2(a, b_, tmp):
        e(f"v_cvt_pk_bf16_f32 v{tmp}, v{a}, v{b_}")
        e(f"v_lshlrev_b32 v{a}, 16, v{tmp}")
        e(f"v_and_b32 v{b_}, {S_MASKH}, v{tmp}")
    def poll(issue, check, waitfirst, name, sleep=0):
        Lr, Ld, Lx = newlab(name + "_retry"), newlab(name + "_done"), newlab(name + "_exit")
        waitfirst()
        check()
        e(f"v_cmp_ne_u32 vcc, 0, v{T5}")
        e(f"s_cbranch_vccz {Ld}")
        e(f"s_mov_b32 {S_CNT}, 0")
        e("s_mov_b64 s[80:81], exec")
        e.label(Lr)
        e("s_mov_b64 exec, vcc")
        if sleep: e(f"s_sleep {sleep}")
        e("s_nop 4")
        e.cond_depth += 1
        issue()
        e.cond_depth -= 1
        e(f"s_add_u32 {S_CNT}, {S_CNT}, 1")
        e(f"s_cmp_gt_u32 {S_CNT}, {POLL_LIMIT}")
        e("s_waitcnt vmcnt(0)")
        e(f"s_cbranch_scc1 {Lx}")
        check()
        e(f"v_cmp_ne_u32 vcc, 0, v{T5}")
        e(f"s_cbranch_vccnz {Lr}")
        e.label(Lx)
        e("s_mov_b64 exec, s[80:81]")
        e.label(Ld)
    def setflag(base, idx=None):
        if idx is None:
            e(f"s_lshl_b32 s7, {S_W}, 2"); e(f"v_mov_b32 v{T1}, s7")
        else: e(f"v_mov_b32 v{T1}, {4*idx}")
        e("s_waitcnt lgkmcnt(0)")
        e("s_mov_b64 exec, 1")
        e(f"v_mov_b32 v{T2}, 1")
        e(f"ds_write_b32 v{T1}, v{T2} offset:{base}")
        e("s_mov_b64 exec, -1")
    def waitflags(base, n, name):
        Lr, Lx = newlab(name), newlab(name + "x")
        e(f"v_and_b32 v{T1}, {n-1}, v{V_LANE}"); e(f"v_lshlrev_b32 v{T1}, 2, v{T1}")
        e(f"s_mov_b32 {S_CNT}, 0")
        e.label(Lr)
        e(f"ds_read_b32 v{T2}, v{T1} offset:{base}")
        e(f"s_add_u32 {S_CNT}, {S_CNT}, 1"); e(f"s_cmp_gt_u32 {S_CNT}, {POLL_LIMIT*4}")
        e("s_waitcnt lgkmcnt(0)")
        e(f"s_cbranch_scc1 {Lx}")
        e(f"v_cmp_ne_u32 vcc, 1, v{T2}")
        e(f"s_cbranch_vccnz {Lr}")
        e.label(Lx)
    def srd(base, lo, hi, n):
        e(f"s_mov_b32 s{base}, {lo}"); e(f"s_mov_b32 s{base+1}, {hi}"); e(f"s_mov_b32 s{base+2}, {n}"); e(f"s_mov_b32 s{base+3}, 0x00020000")
    class cond:
        def __init__(self, cmp, br):
            self.L = newlab("skip"); self.cmp = cmp if isinstance(cmp, list) else [cmp]; self.br = br
        def __enter__(self):
            for c in self.cmp:
                e(c); e(f"{self.br} {self.L}")
            e.cond_depth += 1
        def __exit__(self, *a):
            e.cond_depth -= 1; e.label(self.L)

    if stamps or dbgt: e("s_memrealtime s[90:91]")
    e("s_cmp_ge_u32 s2, 256")
    e("s_cbranch_scc1 L_end")
    e("s_load_dwordx2 s[48:49], s[0:1], 24")
    e("s_load_dwordx2 s[60:61], s[0:1], 0")
    e("s_load_dwordx4 s[16:19], s[0:1], 8")
    e("s_load_dwordx2 s[28:29], s[0:1], 48")
    setprio(3)
    e(f"v_lshrrev_b32 v{T0}, 6, v0")
    e(f"v_and_b32 v{V_LANE}, 63, v0")
    e(f"v_readfirstlane_b32 {S_W}, v{T0}")
    if stamps: e("v_mov_b32 v0, 0")
    e(f"v_lshrrev_b32 v{T0}, 3, v{V_LANE}"); e(f"v_and_b32 v{T1}, 7, v{V_LANE}"); e(f"v_lshlrev_b32 v{T1}, 4, v{T1}")
    e(f"v_lshl_add_u32 v{V_UP}, v{T0}, 15, v{T1}")
    e("s_and_b32 s7, s2, 3"); e("s_lshl_b32 s72, s7, 8"); e(f"s_lshl_b32 s73, {S_W}, 5"); e("s_add_u32 s72, s72, s73")
    e("s_lshr_b32 s73, s2, 2")
    e(f"s_lshl_b32 {S_UPQ}, s72, 13"); e("s_lshl_b32 s74, s73, 7"); e(f"s_add_u32 {S_UPQ}, {S_UPQ}, s74")
    e(f"s_mov_b32 s50, {8<<20}"); e("s_mov_b32 s51, 0x00020000"); e("s_movk_i32 s62, 4096"); e("s_mov_b32 s63, s51")
    e(f"v_lshlrev_b32 v{T3}, 5, v{V_LANE}")
    e("s_waitcnt lgkmcnt(0)")
    if stamps:
        e("v_writelane_b32 v0, s90, 15"); stamp(14)
    XF, XR = SC, SC + 16
    UPS = SLOT(4)
    def xl():
        for b in range(2):
            for hf in range(2):
                e(f"buffer_load_dwordx4 {vr(XF+8*b+4*hf)}, v{T3}, {R_X}, 0 offen offset:{b*2048+hf*16}", tag="xf")
    def ul():
        for i in range(4):
            e(f"buffer_load_dwordx4 {vr(UPS+4*i)}, v{V_UP}, {R_UP}, {S_UPQ} offen nt", tag="upq")
            if i < 3: e(f"s_add_u32 {S_UPQ}, {S_UPQ}, 8192")
    if upfirst: ul(); xl()
    else: xl(); ul()
    if pf:
        e("s_getpc_b64 s[78:79]")
        e.raw("L_pc:")
        e("s_bfe_u32 s76, s2, 0x20003"); e("s_lshl_b32 s76, s76, 3"); e(f"s_add_u32 s76, s76, {S_W}"); e("s_lshl_b32 s76, s76, 9")
        e(f"v_lshlrev_b32 v{T4}, 3, v{V_LANE}"); e(f"v_add_u32 v{T4}, s76, v{T4}")
        e(f"v_min_u32 v{T4}, L_end-L_pc-8, v{T4}")
        e(f"global_load_dwordx2 {vr(SLOT(1),2)}, v{T4}, s[78:79]", tag="pf")
    e(f"s_lshr_b32 {S_TYPE}, s2, 3"); e(f"s_xor_b32 {S_TYPE}, {S_TYPE}, s2"); e(f"s_and_b32 {S_TYPE}, {S_TYPE}, 1")
    e("s_load_dwordx2 s[56:57], s[0:1], 80")
    e(f"s_mul_i32 s76, {S_TYPE}, 24"); e("s_add_u32 s76, s76, 32")
    e("s_load_dwordx2 s[52:53], s[0:1], s76")
    e("s_load_dwordx2 s[64:65], s[0:1], 64")
    if dbgt: e("s_load_dwordx2 s[34:35], s[0:1], 72")
    e(f"v_lshlrev_b32 v{T2}, 3, v{T0}"); e("s_lshl_b32 s74, s72, 1"); e(f"v_add_u32 v{T2}, s74, v{T2}")
    for b in range(2):
        e(f"buffer_load_dwordx2 {vr(XR+2*b,2)}, v{T2}, {R_X}, 0 offen offset:{b*2048}", tag="xr")
    e(f"v_mul_u32_u24 v{V_DN}, {4*7168}, v{T0}"); e(f"v_add_u32 v{V_DN}, v{V_DN}, v{T1}")
    e("s_lshl_b32 s7, s7, 1"); e("s_add_u32 s7, s7, 1"); e("s_and_b32 s74, s73, 7")
    e("s_cmp_lg_u32 s74, s7"); e(f"s_cselect_b32 {S_HASH}, 1, 0")
    e("s_lshr_b32 s75, s73, 3"); e("s_mul_i32 s75, s75, 7"); e("s_add_u32 s75, s75, s74")
    e("s_cmp_gt_u32 s74, s7"); e(f"s_subb_u32 {S_CBH}, s75, 0")
    e(f"s_mul_i32 {S_UPH}, s72, 7168"); e(f"s_lshl_b32 s74, {S_CBH}, 7"); e(f"s_add_u32 {S_UPH}, {S_UPH}, s74")
    e(f"s_mul_i32 s30, {S_HASH}, {7<<20}"); e("s_mov_b32 s31, 0x00020000")
    def uh():
        for i in range(4):
            e(f"buffer_load_dwordx4 {vr(UPS+16+4*i)}, v{V_DN}, {R_W1}, {S_UPH} offen nt", tag="uph")
            if i < 3: e(f"s_add_u32 {S_UPH}, {S_UPH}, 7168")
    if early >= 1: uh()
    srd(40, "s16", "s17", 64 << 20)
    srd(44, "s18", "s19", 64 << 20)
    e(f"v_lshlrev_b32 v{V_V}, 4, v{V_LANE}")
    e(f"v_bfe_u32 v{T0}, v{V_LANE}, 1, 1"); e(f"v_bfe_u32 v{T1}, v{V_LANE}, 2, 2")
    e(f"v_lshl_add_u32 v{T0}, v{T0}, 2, v{T1}"); e(f"v_lshlrev_b32 v{V_K}, 8, v{T0}")
    e(f"v_lshrrev_b32 v{T1}, 4, v{V_LANE}"); e(f"v_lshl_add_u32 v{V_K}, v{T1}, 5, v{V_K}")
    e(f"v_and_b32 v{T1}, 1, v{V_LANE}"); e(f"v_lshl_add_u32 v{V_K}, v{T1}, 4, v{V_K}")
    e(f"s_lshl_b32 {S_KV}, s2, 18"); e(f"s_lshl_b32 s7, {S_W}, 12"); e(f"s_add_u32 {S_KV}, {S_KV}, s7")
    e(f"v_lshlrev_b32 v{T4}, 2, v{V_LANE}"); e(f"v_mov_b32 v{T5}, 0")
    e(f"ds_write_b32 v{T4}, v{T5} offset:{L_FA}")
    for base, n in ((56, WS_SIZE), (64, 4096)):
        e(f"s_mov_b32 s{base+2}, {n}"); e(f"s_mov_b32 s{base+3}, 0x00020000")
    e("s_waitcnt lgkmcnt(0)")
    e("s_load_dword s6, s[56:57], 0")
    e("s_barrier")
    for i in range(early_k):
        e(f"buffer_load_dwordx4 {vr(SLOT(0)+4*i)}, v{V_K}, {R_K}, {S_KV} offen offset:{(i>>1)*2048 + (i&1)*128} nt", tag="k0")
    e(f"s_mov_b32 {S_MASKH}, 0xffff0000")
    e(f"s_lshr_b32 {S_IDX}, s2, 1"); e(f"s_and_b32 s7, {S_IDX}, 7")
    e(f"s_sub_u32 s54, 8, {S_TYPE}"); e("s_lshl_b32 s54, s54, 20")
    e("s_mov_b32 s55, 0x00020000")
    e("s_cmp_lg_u32 s7, 7"); e(f"s_cselect_b32 {S_HASF}, {S_TYPE}, 0")
    e(f"s_lshr_b32 s7, {S_IDX}, 3"); e(f"s_mul_i32 s7, s7, {S_TYPE}"); e(f"s_sub_u32 {S_KS}, {S_IDX}, s7")
    e(f"s_cmp_eq_u32 {S_TYPE}, {S_HASF}")
    e("s_cselect_b32 s54, s54, 0")
    e(f"s_mov_b32 {S_LO}, 0x05040100"); e(f"s_mov_b32 {S_HI}, 0x07060302")
    for i in range(4): e(f"s_mov_b32 {S_TI[i]}, 0x{0x07060500 + i:08x}")
    e(f"s_mov_b32 {S_G2}, 0x0c0c0400"); e("s_mov_b32 s23, 0xffffff00")
    e(f"s_mov_b32 {S_LOG2E}, 0x3fb8aa3b"); e(f"s_mov_b32 {S_SCALE}, 0x3db504f3")
    e("s_mov_b32 s88, 0x00ff00ff"); e("s_mov_b32 s89, 0x00ff00ff")
    e(f"s_lshl_b32 {S_DNB}, {S_KS}, 16"); e(f"s_lshl_b32 s7, {S_W}, 8"); e(f"s_add_u32 {S_DNB}, {S_DNB}, s7")

    def kload(u, slot, i, thr=True):
        beta, t = i >> 1, i & 1
        if i % 4 == 0: e(f"s_add_u32 s74, {S_KV}, {(2*u + (beta >> 1)) * 32768}")
        if thr: throttle()
        e(f"buffer_load_dwordx4 {vr(SLOT(slot)+4*i)}, v{V_K}, {R_K}, s74 offen offset:{(beta&1)*2048 + t*128} nt", tag=f"k{u}")
    def vload(u, slot, j, thr=True):
        if j % 4 == 0: e(f"s_add_u32 s75, {S_KV}, {(2*u + (j >> 2)) * 32768}")
        if thr: throttle()
        e(f"buffer_load_dwordx4 {vr(SLOT(slot)+4*j)}, v{V_V}, {R_V}, s75 offen offset:{(j&3)*1024} nt", tag=f"v{u}")
    def issueK(u, slot, lo=0, hi=8):
        for i in range(lo, hi): kload(u, slot, i)
    def issueV(u, slot, lo=0, hi=8):
        for j in range(lo, hi): vload(u, slot, j)
    def issueDN(slot, lo=0, hi=8):
        for jj in range(lo, hi):
            a_on, f_on = jj < 8 - LA - EA, jj < 8 - LF_
            e(f"s_add_u32 s76, {S_DNB}, {(8*(jj&3) + (jj>>2))*2048}")
            if not a_on and not f_on: e("s_mov_b32 s76, 0x40000000")
            elif a_on != f_on:
                e(f"s_cmp_eq_u32 {S_TYPE}, {0 if a_on else 1}"); e("s_cselect_b32 s76, s76, 0x40000000")
            throttle()
            e(f"buffer_load_dwordx4 {vr(SLOT(slot)+4*jj)}, v{V_DN}, {R_DN}, s76 offen nt", tag="dn")

    stamp(0)
    U = SLOT(3)
    e.wait_vm("xf")
    if early < 1: uh()
    pend = [("k", i) for i in range(early_k, 8)] + [("v", j) for j in range(8)]
    def more(n):
        for _ in range(n):
            if not pend: return
            t, i = pend.pop(0)
            if t == "k":
                if i % 4 and i == early_k: e(f"s_mov_b32 s74, {S_KV}")
                kload(0, 0, i)
            else: vload(0, 1, i)
    for b in range(2):
        for d in range(8):
            e(f"v_lshlrev_b32 v{U+16*b+2*d}, 16, v{XF+8*b+d}")
            e(f"v_and_b32 v{U+16*b+2*d+1}, {S_MASKH}, v{XF+8*b+d}")
    SUM = [T0, T1]; TMP = [T2, T3]; VAR = [T4, T5]
    for b in range(2):
        e(f"v_pk_add_f32 {vr(XF+4*b,2)}, {vr(U+16*b,2)}, {vr(U+16*b+2,2)}")
        e(f"v_pk_add_f32 {vr(XF+4*b+2,2)}, {vr(U+16*b+4,2)}, {vr(U+16*b+6,2)}")
    for i in range(4, 8):
        for b in range(2):
            e(f"v_pk_add_f32 {vr(XF+4*b+2*(i&1),2)}, {vr(XF+4*b+2*(i&1),2)}, {vr(U+16*b+2*i,2)}")
    for b in range(2): e(f"v_pk_add_f32 {vr(XF+4*b,2)}, {vr(XF+4*b,2)}, {vr(XF+4*b+2,2)}")
    for b in range(2): e(f"v_add_f32 v{SUM[b]}, v{XF+4*b}, v{XF+4*b+1}")
    xlane("v_add_f32", SUM, TMP, ["r8", "r4", "r2", "r1", "p16", "p32"])
    for b in range(2): e(f"v_mul_f32 v{SUM[b]}, 0x3a800000, v{SUM[b]}")
    more(2)
    for i in range(8):
        for b in range(2):
            e(f"v_pk_add_f32 {vr(U+16*b+2*i,2)}, {vr(U+16*b+2*i,2)}, {vr(T0,2)} op_sel:[0,{b}] op_sel_hi:[1,{b}] neg_lo:[0,1] neg_hi:[0,1]")
    for b in range(2): e(f"v_pk_mul_f32 {vr(XF+4*b,2)}, {vr(U+16*b,2)}, {vr(U+16*b,2)}")
    for i in range(1, 8):
        for b in range(2): e(f"v_pk_fma_f32 {vr(XF+4*b,2)}, {vr(U+16*b+2*i,2)}, {vr(U+16*b+2*i,2)}, {vr(XF+4*b,2)}")
    for b in range(2): e(f"v_add_f32 v{VAR[b]}, v{XF+4*b}, v{XF+4*b+1}")
    xlane("v_add_f32", VAR, TMP, ["r8", "r4", "r2", "r1", "p16", "p32"])
    more(2)
    for b in range(2): e(f"v_mul_f32 v{VAR[b]}, 0x3a800000, v{VAR[b]}")
    rnd2(SUM[0], SUM[1], T2)
    rnd2(VAR[0], VAR[1], T3)
    for b in range(2): e(f"v_add_f32 v{VAR[b]}, 0x3727c5ac, v{VAR[b]}")
    rnd2(VAR[0], VAR[1], T3)
    for b in range(2): e(f"v_sqrt_f32 v{VAR[b]}, v{VAR[b]}")
    rnd2(VAR[0], VAR[1], T3)
    for b in range(2): e(f"v_rcp_f32 v{VAR[b]}, v{VAR[b]}")
    XN = ACC + 16
    e.wait_vm("xr")
    for b in range(2):
        for d in range(2):
            e(f"v_lshlrev_b32 v{XN+4*b+2*d}, 16, v{XR+2*b+d}")
            e(f"v_and_b32 v{XN+4*b+2*d+1}, {S_MASKH}, v{XR+2*b+d}")
    for b in range(2):
        for i in range(4): e(f"v_sub_f32 v{XN+4*b+i}, v{XN+4*b+i}, v{SUM[b]}")
    for d in range(4): rnd2(XN+2*d, XN+2*d+1, U+d)
    for b in range(2):
        for i in range(4): e(f"v_mul_f32 v{XN+4*b+i}, v{XN+4*b+i}, v{VAR[b]}")
    for d in range(4): rnd2(XN+2*d, XN+2*d+1, U+d)
    e("s_waitcnt lgkmcnt(0)")
    e(f"s_mul_i32 {S_T}, {S_T}, 1664525"); e(f"s_add_u32 {S_T}, {S_T}, 1013904223")
    e(f"v_mov_b32 v{V_T}, {S_T}")
    stamp(1)
    e(f"v_lshrrev_b32 v{T0}, 5, v{V_LANE}"); e(f"v_lshlrev_b32 v{T0}, 8, v{T0}")
    e(f"v_and_b32 v{T1}, 7, v{V_LANE}"); e(f"v_lshl_add_u32 v{T0}, v{T1}, 5, v{T0}")
    e(f"v_and_b32 v{T1}, 16, v{V_LANE}"); e(f"v_add_u32 v{T0}, v{T0}, v{T1}")
    e(f"s_lshl_b32 s7, {S_W}, 9"); e(f"v_add_u32 v{V_AL}, s7, v{T0}")
    def up_compute(src, tag, lbase, fbase, between):
        for i in range(4):
            e.wait_vm_idx(tag, i)
            for d in range(4):
                e(f"v_lshlrev_b32 v{U+2*d}, 16, v{src+4*i+d}")
                e(f"v_and_b32 v{U+2*d+1}, {S_MASKH}, v{src+4*i+d}")
            for b in range(2):
                for c in range(0, 8, 2):
                    xr = XN + 4*b + i
                    base = xr & ~1; sel = xr & 1
                    if i == 0: e(f"v_pk_mul_f32 {vr(ACC+8*b+c,2)}, {vr(U+c,2)}, {vr(base,2)} op_sel:[0,{sel}] op_sel_hi:[1,{sel}]")
                    else: e(f"v_pk_fma_f32 {vr(ACC+8*b+c,2)}, {vr(U+c,2)}, {vr(base,2)}, {vr(ACC+8*b+c,2)} op_sel:[0,{sel},0] op_sel_hi:[1,{sel},1]")
            between(i)
        for c in range(8): e(f"v_permlane32_swap_b32 v{ACC+c}, v{ACC+8+c}")
        for c in range(8): e(f"v_add_f32 v{ACC+c}, v{ACC+c}, v{ACC+8+c}")
        for c in range(4): e(f"v_permlane16_swap_b32 v{ACC+c}, v{ACC+4+c}")
        for c in range(4): e(f"v_add_f32 v{ACC+c}, v{ACC+c}, v{ACC+4+c}")
        for c in range(4): dpp("v_add_f32", ACC+c, ACC+c, ACC+c, "row_ror:8")
        e(f"ds_write_b128 v{V_AL}, {vr(ACC)} offset:{lbase}")
        setflag(fbase)
    def up_publish(lbase, fbase, colreg_expr, name):
        waitflags(fbase, 8, name)
        e("s_mov_b32 exec_hi, 0")
        for w in range(8): e(f"ds_read_b128 {vr(U+4*w)}, v{V_V} offset:{lbase + w*512}")
        e(f"v_lshrrev_b32 v{T0}, 4, v{V_LANE}"); e(f"v_mul_u32_u24 v{T0}, {QP_B}, v{T0}")
        e(f"v_and_b32 v{T1}, 15, v{V_LANE}"); e(f"v_lshl_add_u32 v{T0}, v{T1}, 4, v{T0}")
        e("s_and_b32 s7, s2, 3"); e(f"s_mul_i32 s7, s7, {QP_K}")
        colreg_expr()
        e("s_add_u32 s7, s7, s72")
        e("s_waitcnt lgkmcnt(0)")
        for w in range(1, 8):
            e(f"v_pk_add_f32 {vr(U,2)}, {vr(U,2)}, {vr(U+4*w,2)}"); e(f"v_pk_add_f32 {vr(U+2,2)}, {vr(U+2,2)}, {vr(U+4*w+2,2)}")
        for c in range(4): e(f"v_add_u32 v{U+c}, 0x80, v{U+c}")
        tagput(U+4, [U, U+1, U+2, U+3])
        e(f"buffer_store_dwordx4 {vr(U+4)}, v{T0}, {R_WS}, s7 offen sc1", tag="pub")
        e("s_mov_b64 exec, -1")
    up_compute(UPS, "upq", L_REDQ, L_FA, lambda i: None)
    stamp(2)
    with cond(f"s_cmp_lg_u32 {S_W}, 7", "s_cbranch_scc1"):
        up_publish(L_REDQ, L_FA, lambda: (e("s_lshr_b32 s72, s2, 2"), e("s_lshl_b32 s72, s72, 8"), e(f"s_add_u32 s72, s72, {WS_QP}")), "wfa")
    stamp(3)
    setprio(2)
    e("s_lshr_b32 s7, s2, 3"); e("s_lshl_b32 s7, s7, 8"); e(f"s_add_u32 s7, s7, {WS_CT}")
    e("s_add_u32 s92, s56, s7"); e("s_addc_u32 s93, s57, 0")
    e("s_and_b32 s72, s2, 7"); e(f"s_or_b32 s72, s72, {S_W}")
    with cond("s_cmp_lg_u32 s72, 0", "s_cbranch_scc1"):
        e("s_mov_b64 exec, 1")
        e(f"v_mov_b32 v{U+8}, 0"); e(f"v_mov_b32 v{U+9}, {S_T}")
        e(f"buffer_store_dwordx2 {vr(U+8,2)}, off, {R_WS}, s7 sc1", tag="ct")
        e("s_mov_b64 exec, -1")
    up_compute(UPS+16, "uph", L_REDH, L_FH, lambda i: more(1))
    e(f"v_lshrrev_b32 v{T0}, 4, v{V_LANE}"); e(f"v_lshlrev_b32 v{V_DN}, 12, v{T0}")
    e(f"v_and_b32 v{T1}, 15, v{V_LANE}"); e(f"v_lshl_add_u32 v{V_DN}, v{T1}, 4, v{V_DN}")
    more(16)
    with cond([f"s_cmp_lg_u32 {S_W}, 6", f"s_cmp_eq_u32 {S_HASH}, 0"], "s_cbranch_scc1"):
        up_publish(L_REDH, L_FH, lambda: (e(f"s_lshl_b32 s72, {S_CBH}, 8"), e(f"s_add_u32 s72, s72, {WS_QP + 4096*4}")), "wfh")
    issueK(1, 2)
    issueV(1, 3)
    setprio(1)
    issueDN(4, 0, 4)
    QG = SC
    e("s_lshr_b32 s77, s2, 7"); e(f"s_mul_i32 s77, s77, {QP_B}")
    e("s_lshr_b32 s7, s2, 5"); e("s_and_b32 s7, s7, 3"); e("s_lshl_b32 s7, s7, 12"); e("s_add_u32 s77, s77, s7")
    e(f"s_lshl_b32 s7, {S_W}, 10"); e("s_add_u32 s77, s77, s7"); e(f"s_add_u32 s77, s77, {WS_QP}")
    e(f"s_add_u32 s78, s77, {2*QP_K}")
    VQ2 = Q0
    e(f"v_add_u32 v{VQ2}, {QP_K}, v{V_V}")
    def q_issue():
        for kq in range(4):
            e(f"buffer_load_dwordx4 {vr(QG+4*kq)}, v{VQ2 if kq & 1 else V_V}, {R_WS}, s{77 + (kq >> 1)} offen sc1", tag="qp")
    def q_check():
        for kq in range(4): tagcheck(QG+4*kq, T3, kq == 0, T5)
    VH = Q0 + 1
    e(f"v_lshrrev_b32 v{T0}, 3, v{V_LANE}"); e(f"v_mul_u32_u24 v{VH}, {QP_B}, v{T0}")
    e(f"v_and_b32 v{T1}, 7, v{V_LANE}"); e(f"v_lshl_add_u32 v{VH}, v{T1}, 4, v{VH}")
    e(f"s_lshl_b32 s79, {S_KS}, 7"); e(f"s_add_u32 s79, s79, {WS_QP + 4096*4}")
    def h_issue(): e(f"buffer_load_dwordx4 {vr(QG)}, v{VH}, {R_WS}, s79 offen sc1", tag="hp")
    def h_check(): tagcheck(QG, T3, True, T5)
    with cond(f"s_cmp_ge_u32 {S_W}, 4", "s_cbranch_scc1"): q_issue()
    with cond([f"s_cmp_lg_u32 {S_W}, 4", f"s_cmp_eq_u32 {S_HASF}, 0"], "s_cbranch_scc1"): h_issue()
    issueDN(4, 4, 8)
    with cond(f"s_cmp_ge_u32 {S_W}, 4", "s_cbranch_scc1"):
        poll(q_issue, q_check, lambda: e("s_waitcnt vmcnt(4)"), "q")
        untag(range(QG, QG+16))
        for kq in range(1, 4):
            e(f"v_pk_add_f32 {vr(QG,2)}, {vr(QG,2)}, {vr(QG+4*kq,2)}"); e(f"v_pk_add_f32 {vr(QG+2,2)}, {vr(QG+2,2)}, {vr(QG+4*kq+2,2)}")
        e(f"v_cvt_pk_bf16_f32 v{QG}, v{QG}, v{QG+1}")
        e(f"v_cvt_pk_bf16_f32 v{QG+1}, v{QG+2}, v{QG+3}")
        e(f"v_lshlrev_b32 v{T0}, 3, v{V_LANE}"); e(f"s_lshl_b32 s7, {S_W}, 9"); e(f"v_add_u32 v{T0}, s7, v{T0}")
        e(f"ds_write_b64 v{T0}, {vr(QG,2)} offset:{L_Q}")
        setflag(L_FQ)
    with cond([f"s_cmp_lg_u32 {S_W}, 4", f"s_cmp_eq_u32 {S_HASF}, 0"], "s_cbranch_scc1"):
        poll(h_issue, h_check, lambda: e("s_waitcnt vmcnt(4)"), "h")
        HG = QG
        untag(range(HG, HG+4))
        xlane("v_add_f32", [HG, HG+1, HG+2, HG+3], [HG+4, HG+5, HG+6, HG+7], ["p16", "p32"])
        for d in range(2): rnd2(HG+2*d, HG+2*d+1, HG+8+d)
        for i in range(4): e(f"v_mul_f32 v{HG+8+i}, {S_LOG2E}, v{HG+i}")
        for i in range(4): e(f"v_exp_f32 v{HG+8+i}, -v{HG+8+i}")
        for i in range(4): e(f"v_add_f32 v{HG+8+i}, 1.0, v{HG+8+i}")
        for i in range(4): e(f"v_rcp_f32 v{HG+8+i}, v{HG+8+i}")
        for i in range(4): e(f"v_mul_f32 v{HG+i}, v{HG+i}, v{HG+8+i}")
        for d in range(2): e(f"v_cvt_pk_bf16_f32 v{HG+4+d}, v{HG+2*d}, v{HG+2*d+1}")
        e(f"v_and_b32 v{T0}, 1, v{V_LANE}"); e(f"v_lshlrev_b32 v{T0}, 5, v{T0}")
        e(f"v_bfe_u32 v{T1}, v{V_LANE}, 1, 2"); e(f"v_lshl_add_u32 v{T0}, v{T1}, 1, v{T0}")
        e(f"v_bfe_u32 v{T1}, v{V_LANE}, 3, 1"); e(f"v_lshl_add_u32 v{T0}, v{T1}, 6, v{T0}")
        e("s_mov_b64 exec, 0xffff")
        for d in range(2):
            e(f"ds_write_b16 v{T0}, v{HG+4+d} offset:{L_OL + 16*d}")
            e(f"ds_write_b16_d16_hi v{T0}, v{HG+4+d} offset:{L_OL + 16*d + 8}")
        e("s_mov_b64 exec, -1")
        setflag(L_FQ)
    stamp(4)
    e(f"v_and_b32 v{T0}, 7, v{V_LANE}"); e(f"v_lshlrev_b32 v{T0}, 8, v{T0}")
    e(f"v_lshrrev_b32 v{T1}, 4, v{V_LANE}"); e(f"v_lshl_add_u32 v{T0}, v{T1}, 5, v{T0}")
    e(f"v_bfe_u32 v{T1}, v{V_LANE}, 3, 1"); e(f"v_lshl_add_u32 v{T0}, v{T1}, 4, v{T0}")
    waitflags(L_FQ, 4, "wfq")
    e(f"ds_read_b128 {vr(Q0)}, v{T0} offset:{L_Q}")
    e(f"ds_read_b128 {vr(Q1)}, v{T0} offset:{L_Q+128}")
    stamp(5)

    def S_phase(u, slot):
        K = SLOT(slot)
        e.wait_vm(f"k{u}", " lgkmcnt(0)" if u == 0 else "")
        for t in range(2):
            for beta in range(4):
                c = "0" if t == 0 else vr(SC+4*beta)
                e(f"v_mfma_f32_16x16x32_bf16 {vr(SC+4*beta)}, {vr(K+8*beta+4*t)}, {vr(Q0 if t == 0 else Q1)}, {c}")
        yield
        S = SC + 16
        for beta in range(4):
            for eps in range(2):
                dpp("v_add_f32", S+2*beta+eps, SC+4*beta+2*eps+1, SC+4*beta+2*eps, "row_ror:8")
        for d in range(4): rnd2(S+2*d, S+2*d+1, SC+24+d)
        for i in range(8): e(f"v_mul_f32 v{S+i}, {S_SCALE}, v{S+i}")
        for d in range(4): rnd2(S+2*d, S+2*d+1, SC+24+d)
        e(f"v_max3_f32 v{T0}, v{S}, v{S+1}, v{S+2}")
        e(f"v_max3_f32 v{T1}, v{S+3}, v{S+4}, v{S+5}")
        e(f"v_max3_f32 v{T0}, v{T0}, v{S+6}, v{S+7}")
        e(f"v_max_f32 v{T0}, v{T0}, v{T1}")
        xlane("v_max_f32", [T0], [T1], ["p16", "p32"])
        e(f"v_mul_f32 v{T0}, {S_LOG2E}, v{T0}")
        if u > 0:
            e(f"v_max_f32 v{T0}, v{T0}, v{V_ML}")
            e(f"v_sub_f32 v{V_AL}, v{V_ML}, v{T0}")
            e(f"v_exp_f32 v{V_AL}, v{V_AL}")
        e(f"v_mov_b32 v{V_ML}, v{T0}")
        for i in range(8): e(f"v_fma_f32 v{S+i}, v{S+i}, {S_LOG2E}, -v{T0}")
        for i in range(8): e(f"v_exp_f32 v{S+i}, v{S+i}")
        if u > 0:
            e(f"v_mul_f32 v{V_L}, v{V_L}, v{V_AL}")
            for i in range(32): e(f"v_mul_f32 v{ACC+i}, v{ACC+i}, v{V_AL}")
        for d in range(4): e(f"v_cvt_pk_bf16_f32 v{P+d}, v{S+2*d}, v{S+2*d+1}")
        if u == 0: e(f"v_add_f32 v{V_L}, v{S}, v{S+1}")
        else:
            e(f"v_add_f32 v{V_L}, v{V_L}, v{S}"); e(f"v_add_f32 v{V_L}, v{V_L}, v{S+1}")
        for i in range(2, 8): e(f"v_add_f32 v{V_L}, v{V_L}, v{S+i}")
        yield
    def perms32(src, dst):
        for p in range(4):
            for d in range(4):
                for x in range(2):
                    e(f"v_perm_b32 v{dst+4*(2*d+x)+p}, v{src+4*(2*p+1)+d}, v{src+4*(2*p)+d}, {S_HI if x else S_LO}")
    def PV_phase(u, slot):
        e.wait_vm(f"v{u}")
        perms32(SLOT(slot), SC)
        for ee in range(8):
            c = "0" if u == 0 else vr(ACC+4*ee)
            e(f"v_mfma_f32_16x16x32_bf16 {vr(ACC+4*ee)}, {vr(SC+4*ee)}, {vr(P)}, {c}")
    KB, VB = SLOT(0), SLOT(0) + 16
    WP = SLOT(1)
    def tileK(sreg, tag, sreg2=None):
        for i in range(4):
            e(f"buffer_load_dwordx4 {vr(KB+4*i)}, v{V_K}, {R_K}, {sreg if (i < 2 or not sreg2) else sreg2} offen offset:{(i>>1)*2048 + (i&1)*128} nt", tag=tag)
    def tileV(sreg, tag, sreg2=None):
        for j in range(4):
            e(f"buffer_load_dwordx4 {vr(VB+4*j)}, v{V_V}, {R_V}, {sreg if (j < 2 or not sreg2) else sreg2} offen offset:{j*1024} nt", tag=tag)
    def down_mfma_publish(A, W, D, ST):
        for ee in range(8):
            e(f"v_mfma_f32_16x16x32_bf16 {vr(D+4*ee)}, {vr(A)}, {vr(W+4*ee)}, 0")
        e("s_mov_b64 exec, 0xffff")
        for q4 in range(4):
            b, eh = q4 >> 1, q4 & 1
            tagput(ST+4*q4, [D+4*(4*eh+i)+b for i in range(4)])
            e(f"buffer_store_dwordx4 {vr(ST+4*q4)}, v{V_V}, {R_WS}, s38 offen offset:{q4*256} sc1", tag="pubD")
        e("s_mov_b64 exec, -1")
    g = S_phase(0, 0); next(g)
    e("s_load_dwordx2 s[94:95], s[92:93], 0 glc")
    e(f"s_add_u32 s74, {S_KV}, {4*32768}")
    tileK("s74", "k4"); tileV("s74", "v4")
    next(g)
    PV_phase(0, 1)
    Lc1, Lc2 = newlab("ctpoll"), newlab("ctok")
    e(f"s_mov_b32 {S_CNT}, 0")
    e.label(Lc1)
    e("s_waitcnt lgkmcnt(0)")
    e(f"s_cmp_eq_u32 s95, {S_T}"); e(f"s_cbranch_scc1 {Lc2}")
    e(f"s_add_u32 {S_CNT}, {S_CNT}, 1"); e(f"s_cmp_gt_u32 {S_CNT}, {POLL_LIMIT}"); e(f"s_cbranch_scc1 {Lc2}")
    e("s_load_dwordx2 s[94:95], s[92:93], 0 glc")
    e(f"s_branch {Lc1}")
    e.label(Lc2)
    S_NX, S_ST = "s96", "s97"
    def grab():
        e(f"s_mov_b32 {S_NX}, 1")
        e(f"s_atomic_add {S_NX}, s[92:93], 0 glc")
    for _ in S_phase(1, 2): pass
    PV_phase(1, 3)
    e.wait_vm("dn")
    perms32(SLOT(4), WP)
    WA = SLOT(4)
    e(f"v_and_b32 v{T0}, 15, v{V_LANE}"); e(f"v_mul_u32_u24 v{WA}, {512+16}, v{T0}")
    e(f"v_lshrrev_b32 v{T1}, 4, v{V_LANE}"); e(f"v_lshl_add_u32 v{WA}, v{T1}, 7, v{WA}")
    e(f"s_lshl_b32 s7, {S_W}, 12"); e(f"v_add_u32 v{WA}, s7, v{WA}")
    for ee in range(1, 8): e(f"v_xor_b32 v{WA+ee}, {ee*16}, v{WA}")
    RA, GA, VO, VM, MA, MW, ADA, OLW = WA + 8, WA + 9, WA + 10, WA + 11, WA + 12, WA + 13, WA + 14, WA + 15
    e(f"s_lshl_b32 s7, {S_W}, 6"); e(f"v_add_u32 v{T0}, s7, v{V_LANE}")
    e(f"v_lshlrev_b32 v{GA}, 4, v{T0}")
    e(f"v_lshrrev_b32 v{T1}, 5, v{T0}"); e(f"v_and_b32 v{T1}, 7, v{T1}"); e(f"v_lshlrev_b32 v{MA}, 6, v{T1}"); e(f"v_lshlrev_b32 v{T1}, 4, v{T1}")
    e(f"v_xor_b32 v{RA}, v{GA}, v{T1}")
    e(f"v_lshlrev_b32 v{MW}, 6, v{V_LANE}"); e(f"s_lshl_b32 s7, {S_W}, 3"); e(f"v_add_u32 v{MW}, s7, v{MW}")
    e(f"v_and_b32 v{T0}, 1, v{V_LANE}"); e(f"v_lshlrev_b32 v{T0}, 6, v{T0}")
    e(f"v_and_b32 v{T1}, 48, v{V_LANE}"); e(f"v_add_u32 v{ADA}, v{T0}, v{T1}")
    e(f"s_and_b32 s7, {S_W}, 1"); e("s_lshl_b32 s7, s7, 6"); e(f"s_lshr_b32 s78, {S_W}, 1"); e("s_lshl_b32 s78, s78, 5"); e("s_add_u32 s7, s7, s78")
    e(f"v_and_b32 v{OLW}, 3, v{V_LANE}"); e(f"v_lshlrev_b32 v{OLW}, 3, v{OLW}"); e(f"v_lshrrev_b32 v{T0}, 4, v{V_LANE}"); e(f"v_lshl_add_u32 v{OLW}, v{T0}, 1, v{OLW}"); e(f"v_add_u32 v{OLW}, s7, v{OLW}")
    e(f"s_lshr_b32 s7, {S_IDX}, 5"); e(f"s_and_b32 s79, {S_W}, 1"); e("s_lshl_b32 s79, s79, 2"); e("s_add_u32 s7, s7, s79"); e("s_lshl_b32 s7, s7, 17")
    e("s_lshl_b32 s78, s78, 1"); e("s_add_u32 s78, s78, s7")
    e(f"s_and_b32 s7, {S_IDX}, 31"); e("s_lshl_b32 s7, s7, 7"); e("s_add_u32 s78, s78, s7"); e(f"s_add_u32 s78, s78, {WS_OP}")
    e(f"s_add_u32 s79, s78, {16*4096}")
    e(f"v_lshrrev_b32 v{T0}, 2, v{V_LANE}"); e(f"v_and_b32 v{T1}, 3, v{V_LANE}")
    e(f"v_lshlrev_b32 v{VO}, 12, v{T0}"); e(f"v_lshl_add_u32 v{VO}, v{T1}, 4, v{VO}")
    e("s_lshl_b32 s100, s2, 12"); e(f"s_add_u32 s100, s100, {WS_OP - 4096}")
    e("s_lshl_b32 s101, s2, 7"); e(f"s_add_u32 s101, s101, {WS_ML}")
    e(f"s_lshl_b32 s38, {S_TYPE}, 7"); e(f"s_add_u32 s38, s38, {S_KS}"); e("s_lshl_b32 s38, s38, 13")
    e(f"s_lshl_b32 s7, {S_W}, 10"); e("s_add_u32 s38, s38, s7"); e(f"s_add_u32 s38, s38, {WS_AP}")
    VA3, VX3, VL3, SH4 = WA + 18, WA + 19, WA + 20, WA + 21
    GF = SLOT(3)
    XQ = SLOT(3) + 4
    e(f"v_lshrrev_b32 v{VA3}, 2, v{V_LANE}"); e(f"v_lshlrev_b32 v{VA3}, 13, v{VA3}")
    e(f"v_and_b32 v{VX3}, 3, v{V_LANE}"); e(f"v_lshlrev_b32 v{SH4}, 3, v{VX3}"); e(f"v_lshlrev_b32 v{VX3}, 4, v{VX3}"); e(f"v_add_u32 v{VA3}, v{VA3}, v{VX3}")
    e(f"s_lshl_b32 s7, {S_W}, 6"); e(f"v_add_u32 v{VL3}, s7, v{VX3}")
    e(f"s_lshl_b32 s16, {S_IDX}, 6"); e(f"s_add_u32 s16, s16, {WS_AP}"); e(f"s_lshl_b32 s7, {S_W}, 17"); e("s_add_u32 s16, s16, s7")
    e(f"s_add_u32 s17, s16, {128*8192}")
    e(f"s_lshr_b32 s7, {S_IDX}, 3"); e("s_and_b32 s7, s7, 1"); e("s_lshl_b32 s18, s7, 11")
    e(f"s_lshr_b32 s7, {S_IDX}, 4"); e("s_lshl_b32 s7, s7, 8"); e("s_add_u32 s18, s18, s7")
    e(f"s_and_b32 s7, {S_IDX}, 3"); e("s_lshl_b32 s7, s7, 6"); e("s_add_u32 s18, s18, s7")
    e(f"s_and_b32 s7, {S_IDX}, 4"); e("s_lshl_b32 s7, s7, 1"); e("s_add_u32 s18, s18, s7")
    e(f"s_cmp_lg_u32 {S_W}, 7"); e(f"s_cselect_b32 s19, {S_TYPE}, 0")
    e(f"s_and_b32 s20, {S_T}, 0xffffff"); e("s_mov_b32 s21, 0x0c040100")
    def gf_issue(): e(f"buffer_load_dwordx4 {vr(GF)}, v{VA3}, {R_WS}, s17 offen sc1", tag="g")
    FR = 64 - 8*NS - HF
    P1 = FR * 8
    POOL = P1 + HF * 16
    assert NS == 5
    e("s_and_b32 s98, s2, 0xf8"); e("s_lshl_b32 s98, s98, 18"); e(f"s_add_u32 s98, s98, {NS*8*4096}")
    if not late_ffn:
      with cond(f"s_cmp_eq_u32 {S_HASF}, 0", "s_cbranch_scc1"):
        waitflags(L_FQ + 16, 1, "wfh2")
        e(f"ds_read_b128 {vr(AD)}, v{ADA} offset:{L_OL}")
        e("s_waitcnt lgkmcnt(0)")
        down_mfma_publish(AD, WP, SLOT(2), SC)
    grab()
    stamp(6)
    setprio(0)
    Lloop, Lskip = newlab("loop"), newlab("noresc")
    e("s_mov_b32 s99, 0")
    e.label(Lloop)
    e("s_waitcnt vmcnt(4)")
    for t in range(2):
        for beta in range(2):
            c = "0" if t == 0 else vr(SC+4*beta)
            e(f"v_mfma_f32_16x16x32_bf16 {vr(SC+4*beta)}, {vr(KB+8*beta+4*t)}, {vr(Q0 if t == 0 else Q1)}, {c}")
    e("s_waitcnt lgkmcnt(0)")
    if pmap == 0:
        e(f"s_and_b32 s74, {S_NX}, 7"); e("s_lshl_b32 s74, s74, 18"); e("s_add_u32 s74, s74, s98")
        e(f"s_lshr_b32 s75, {S_NX}, 3"); e("s_lshl_b32 s76, s75, 12"); e("s_lshl_b32 s75, s75, 11"); e(f"s_add_u32 s75, s75, {FR*4096 - FR*2048}")
    else:
        assert FR % 8 == 0 and HF == 8
        e(f"s_and_b32 s74, {S_NX}, 7"); e("s_lshl_b32 s74, s74, 12"); e("s_add_u32 s74, s74, s98")
        e(f"s_bfe_u32 s75, {S_NX}, 0x30003"); e("s_lshl_b32 s75, s75, 18"); e("s_add_u32 s74, s74, s75")
        e(f"s_lshr_b32 s75, {S_NX}, 6"); e("s_lshl_b32 s76, s75, 15"); e("s_lshl_b32 s75, s75, 11"); e(f"s_add_u32 s75, s75, {FR*4096 - (FR//8)*2048}")
    e(f"s_cmp_lt_u32 {S_NX}, {P1}"); e("s_cselect_b32 s75, s76, s75"); e("s_cselect_b32 s77, 0, 0xff800000"); e("s_cselect_b32 s76, 0, 0x40000000")
    e("s_add_u32 s74, s74, s75"); e("s_add_u32 s76, s76, s74")
    e(f"s_cmp_lt_u32 {S_NX}, {POOL}"); e("s_cselect_b32 s74, s74, 0x40000000"); e("s_cselect_b32 s75, 1, 0")
    def dn_at(jjs):
        for jj in jjs:
            e(f"s_add_u32 s22, {S_DNB}, {(8*(jj&3) + (jj>>2))*2048}")
            e(f"buffer_load_dwordx4 {vr(SLOT(2)+4*jj)}, v{V_DN}, {R_DN}, s22 offen nt", tag="dn3")
    ea = list(range(8 - LA - EA, 8 - LA))
    ea_exit = []
    if xmode == 1: ea_exit = ea; ea = []
    if xmode == 2: ea_exit = ea[4:]; ea = ea[:4]
    if EA >= 4 and xmode == 0:
        Lk, Lk2 = newlab("kdn"), newlab("kdn2")
        e(f"s_or_b32 s22, s75, {S_TYPE}"); e(f"s_cbranch_scc1 {Lk}")
        e.cond_depth += 1; dn_at(ea[:4]); e.cond_depth -= 1
        e(f"s_branch {Lk2}")
        e.label(Lk)
        tileK("s74", "kl", "s76")
        e.label(Lk2)
        ea = ea[4:]
    else:
        tileK("s74", "kl", "s76")
    S = SC + 8
    for beta in range(2):
        for eps in range(2):
            dpp("v_add_f32", S+2*beta+eps, SC+4*beta+2*eps+1, SC+4*beta+2*eps, "row_ror:8")
    for d in range(2): rnd2(S+2*d, S+2*d+1, SC+12+d)
    for i in range(4): e(f"v_mul_f32 v{S+i}, {S_SCALE}, v{S+i}")
    for d in range(2): rnd2(S+2*d, S+2*d+1, SC+12+d)
    e(f"v_add_f32 v{S+2}, s99, v{S+2}"); e(f"v_add_f32 v{S+3}, s99, v{S+3}")
    e("s_mov_b32 s99, s77")
    e(f"v_max3_f32 v{T0}, v{S}, v{S+1}, v{S+2}")
    e(f"v_max_f32 v{T0}, v{T0}, v{S+3}")
    xlane("v_max_f32", [T0], [T1], ["p16", "p32"])
    e(f"v_mul_f32 v{T0}, {S_LOG2E}, v{T0}")
    e(f"v_cmp_gt_f32 vcc, v{T0}, v{V_ML}")
    e(f"s_and_b64 vcc, vcc, {S_N8}")
    e(f"s_cbranch_scc0 {Lskip}")
    e(f"v_max_f32 v{T0}, v{T0}, v{V_ML}")
    e(f"v_sub_f32 v{V_AL}, v{V_ML}, v{T0}")
    e(f"v_exp_f32 v{V_AL}, v{V_AL}")
    e(f"v_mov_b32 v{V_ML}, v{T0}")
    e(f"v_mul_f32 v{V_L}, v{V_L}, v{V_AL}")
    for i in range(32): e(f"v_mul_f32 v{ACC+i}, v{ACC+i}, v{V_AL}")
    e.label(Lskip)
    for i in range(4): e(f"v_fma_f32 v{S+i}, v{S+i}, {S_LOG2E}, -v{V_ML}")
    for i in range(4): e(f"v_exp_f32 v{S+i}, v{S+i}")
    for d in range(2): e(f"v_cvt_pk_bf16_f32 v{P+d}, v{S+2*d}, v{S+2*d+1}")
    for i in range(4): e(f"v_add_f32 v{V_L}, v{V_L}, v{S+i}")
    PS = SC + 16
    for p in range(2):
        e(f"s_waitcnt vmcnt({6 - 2*p})")
        for d in range(4):
            for x in range(2):
                e(f"v_perm_b32 v{PS+2*(2*d+x)+p}, v{VB+4*(2*p+1)+d}, v{VB+4*(2*p)+d}, {S_HI if x else S_LO}")
    with cond("s_cmp_eq_u32 s75, 0", "s_cbranch_scc1"):
        tileV("s74", "vl", "s76")
        grab()
    if ea:
        with cond(f"s_or_b32 s22, s75, {S_TYPE}", "s_cbranch_scc1"): dn_at(ea)
    with cond("s_cmp_le_u32 s19, s75", "s_cbranch_scc1"):
        gf_issue()
    for ee in range(8):
        e(f"v_mfma_f32_16x16x16_bf16 {vr(ACC+4*ee)}, {vr(PS+2*ee,2)}, {vr(P,2)}, {vr(ACC+4*ee)}")
    e("s_cmp_lg_u32 s75, 0"); e(f"s_cbranch_scc1 {Lloop}")
    stamp(7)
    xlane("v_add_f32", [V_L], [T1], ["p16", "p32"])
    e("s_mov_b64 exec, 0xff")
    e(f"ds_write_b64 v{MW}, {vr(V_ML,2)} offset:{L_MX}")
    e(f"s_mov_b64 exec, {S_N8}")
    for ee in range(8): e(f"ds_write_b128 v{WA+ee}, {vr(ACC+4*ee)} offset:{L_ORED}")
    e("s_mov_b64 exec, -1")
    if ea_exit:
        with cond(f"s_cmp_eq_u32 {S_TYPE}, 1", "s_cbranch_scc1"): dn_at(ea_exit)
    stamp(8)
    e("s_waitcnt lgkmcnt(0)")
    e("s_barrier")
    L4, Lp = newlab("w4"), newlab("pubdone")
    ML8 = SC
    def wg_factors():
        e(f"v_max3_f32 v{T0}, v{ML8}, v{ML8+2}, v{ML8+4}")
        e(f"v_max3_f32 v{T1}, v{ML8+6}, v{ML8+8}, v{ML8+10}")
        e(f"v_max3_f32 v{T0}, v{T0}, v{ML8+12}, v{ML8+14}")
        e(f"v_max_f32 v{T0}, v{T0}, v{T1}")
        for w in range(8): e(f"v_sub_f32 v{ML8+2*w}, v{ML8+2*w}, v{T0}")
        for w in range(8): e(f"v_exp_f32 v{ML8+2*w}, v{ML8+2*w}")
    e(f"s_cmp_lt_u32 {S_W}, 4"); e(f"s_cbranch_scc1 {Lp}")
    e.cond_depth += 1
    for i in range(4): e(f"ds_read_b128 {vr(ML8+4*i)}, v{MA} offset:{L_MX + 16*i}")
    for w in range(8): e(f"ds_read_b128 {vr(ACC+4*w)}, v{RA} offset:{L_ORED - 4096 + w*4096}")
    e("s_waitcnt lgkmcnt(8)")
    wg_factors()
    e(f"v_mul_f32 v{T2}, v{ML8+1}, v{ML8}")
    e(f"v_mul_f32 v{T3}, v{ML8+3}, v{ML8+2}")
    for w in range(2, 8): e(f"v_fmac_f32 v{T2 + (w & 1)}, v{ML8+2*w+1}, v{ML8+2*w}")
    e(f"v_add_f32 v{T2}, v{T2}, v{T3}")
    e(f"v_log_f32 v{T3}, v{T2}")
    e(f"v_rcp_f32 v{T2}, v{T2}")
    for w in range(8):
        e(f"s_waitcnt lgkmcnt({7-w})")
        for c in range(0, 4, 2):
            if w == 0: e(f"v_pk_mul_f32 {vr(ACC+c,2)}, {vr(ACC+c,2)}, {vr(ML8,2)} op_sel_hi:[1,0]")
            else: e(f"v_pk_fma_f32 {vr(ACC+c,2)}, {vr(ACC+4*w+c,2)}, {vr(ML8+2*w,2)}, {vr(ACC+c,2)} op_sel_hi:[1,0,1]")
        if w == 1:
            e(f"v_add_f32 v{T3}, v{T3}, v{T0}")
            e(f"v_lshrrev_b32 v{T3}, v{SH4}, v{T3}")
    for c in range(0, 4, 2): e(f"v_pk_mul_f32 {vr(ACC+c,2)}, {vr(ACC+c,2)}, {vr(T2,2)} op_sel_hi:[1,0]")
    tagput(ACC+4, [ACC, ACC+1, ACC+2])
    e(f"v_perm_b32 v{ACC+7}, v{ACC+3}, v{T3}, {S_TI[0]}")
    e(f"buffer_store_dwordx4 {vr(ACC+4)}, v{GA}, {R_WS}, s100 offen sc1", tag="pubO")
    e.cond_depth -= 1
    e.label(Lp)
    stamp(9)
    if dbgt:
        e("s_memrealtime s[16:17]"); e("s_waitcnt lgkmcnt(0)")
    def late_dn(L):
        for jj in range(8 - L, 8):
            e(f"s_add_u32 s76, {S_DNB}, {(8*(jj&3) + (jj>>2))*2048}")
            e(f"buffer_load_dwordx4 {vr(SLOT(0)+4*jj)}, v{V_DN}, {R_DN}, s76 offen nt", tag="dn2")
        for p in range((8 - L) // 2, 4):
            e(f"s_waitcnt vmcnt({6-2*p})")
            for d in range(4):
                for x in range(2):
                    e(f"v_perm_b32 v{WP+4*(2*d+x)+p}, v{SLOT(0)+4*(2*p+1)+d}, v{SLOT(0)+4*(2*p)+d}, {S_HI if x else S_LO}")
    if pbar: e("s_barrier")
    LF = newlab("ftype")
    e(f"s_cmp_eq_u32 {S_TYPE}, 1"); e(f"s_cbranch_scc1 {LF}")
    e.cond_depth += 1
    OG, MG = ACC + 16, ACC + 24
    def o_issue():
        e(f"buffer_load_dwordx4 {vr(OG)}, v{VO}, {R_WS}, s78 offen sc1", tag="og")
        e(f"buffer_load_dwordx4 {vr(OG+4)}, v{VO}, {R_WS}, s79 offen sc1", tag="og")
    def o_check():
        e(f"v_perm_b32 v{T3}, v{OG+1}, v{OG}, {S_G2}")
        e(f"v_perm_b32 v{T4}, v{OG+5}, v{OG+4}, {S_G2}")
        e(f"v_perm_b32 v{T3}, v{OG+2}, v{T3}, s21")
        e(f"v_perm_b32 v{T4}, v{OG+6}, v{T4}, s21")
        e(f"v_xor_b32 v{T3}, s20, v{T3}"); e(f"v_xor_b32 v{T4}, s20, v{T4}")
        e(f"v_or_b32 v{T5}, v{T3}, v{T4}")
    if EA:
        if not LA: e("s_waitcnt vmcnt(0)")
        else: e("s_waitcnt vmcnt(0)")
        for p in range((8 - LA - EA) // 2, (8 - LA) // 2):
            for d in range(4):
                for x in range(2):
                    e(f"v_perm_b32 v{WP+4*(2*d+x)+p}, v{SLOT(2)+4*(2*p+1)+d}, v{SLOT(2)+4*(2*p)+d}, {S_HI if x else S_LO}")
    late_dn(LA)
    if THO:
        with cond(f"s_cmp_lg_u32 {S_W}, 0", "s_cbranch_scc1"):
            Lr, Lx = newlab("so"), newlab("sox")
            e("s_mov_b32 exec_lo, 0x01010101"); e("s_mov_b32 exec_hi, 0x01010101")
            e(f"s_mov_b32 {S_CNT}, 0")
            e.label(Lr)
            e(f"buffer_load_dwordx4 {vr(OG)}, v{VO}, {R_WS}, s78 offen sc1", tag="og")
            e(f"s_add_u32 {S_CNT}, {S_CNT}, 1"); e(f"s_cmp_gt_u32 {S_CNT}, {POLL_LIMIT}")
            e("s_waitcnt vmcnt(0)")
            e(f"s_cbranch_scc1 {Lx}")
            e(f"v_perm_b32 v{T3}, v{OG+1}, v{OG}, {S_G2}")
            e(f"v_perm_b32 v{T3}, v{OG+2}, v{T3}, s21")
            e(f"v_cmp_eq_u32 vcc, s20, v{T3}")
            e("s_bcnt1_i32_b64 s7, vcc")
            e(f"s_cmp_ge_u32 s7, {THO}"); e(f"s_cbranch_scc1 {Lx}")
            e("s_sleep 1")
            e(f"s_branch {Lr}")
            e.label(Lx)
            e("s_mov_b64 exec, -1")
        e("s_barrier")
    with cond(f"s_cmp_ge_u32 {S_W}, 4", "s_cbranch_scc1"):
        if dly_o and not THO: e(f"s_sleep {dly_o}")
        o_issue()
        poll(o_issue, o_check, lambda: e("s_waitcnt vmcnt(0)"), "o", sleep=slp_o)
        stamp(10)
        for i in range(2): e(f"v_and_b32 v{MG+i}, 0xff, v{OG+4*i+3}")
        for i in range(2): e(f"v_lshlrev_b32 v{MG+i}, v{SH4}, v{MG+i}")
        untag(range(OG, OG+4))
        for i in range(2): dpp("v_or_b32", MG+i, MG+i, MG+i, "quad_perm:[1,0,3,2]")
        untag(range(OG+4, OG+8))
        for i in range(2): dpp("v_or_b32", MG+i, MG+i, MG+i, "quad_perm:[2,3,0,1]")
        e(f"v_max_f32 v{T0}, v{MG}, v{MG+1}")
        xlane("v_max_f32", [T0], [T1], ["r4", "r8", "p16", "p32"])
        for i in range(2): e(f"v_sub_f32 v{MG+i}, v{MG+i}, v{T0}")
        for i in range(2): e(f"v_exp_f32 v{MG+i}, v{MG+i}")
        for c in range(0, 4, 2): e(f"v_pk_mul_f32 {vr(OG+c,2)}, {vr(OG+c,2)}, {vr(MG,2)} op_sel_hi:[1,0]")
        for c in range(0, 4, 2): e(f"v_pk_fma_f32 {vr(OG+c,2)}, {vr(OG+4+c,2)}, {vr(MG,2)}, {vr(OG+c,2)} op_sel:[0,1,0] op_sel_hi:[1,1,1]")
        e(f"v_add_f32 v{T1}, v{MG}, v{MG+1}")
        e(f"v_mov_b32 v{T4}, v{T1}")
        e(f"v_permlane32_swap_b32 v{OG}, v{OG+2}"); e(f"v_permlane32_swap_b32 v{OG+1}, v{OG+3}"); e(f"v_permlane32_swap_b32 v{T1}, v{T4}")
        e(f"v_add_f32 v{T1}, v{T1}, v{T4}"); e(f"v_add_f32 v{OG}, v{OG}, v{OG+2}"); e(f"v_add_f32 v{OG+1}, v{OG+1}, v{OG+3}")
        e(f"v_mov_b32 v{T4}, v{T1}")
        e(f"v_permlane16_swap_b32 v{OG}, v{OG+1}"); e(f"v_permlane16_swap_b32 v{T1}, v{T4}")
        e(f"v_add_f32 v{OG}, v{OG}, v{OG+1}"); e(f"v_add_f32 v{T1}, v{T1}, v{T4}")
        for st in (8, 4):
            dpp("v_add_f32", OG, OG, OG, f"row_ror:{st}"); dpp("v_add_f32", T1, T1, T1, f"row_ror:{st}")
        e(f"v_rcp_f32 v{T0}, v{T1}")
        e(f"v_mul_f32 v{OG}, v{OG}, v{T0}")
        e(f"v_cvt_pk_bf16_f32 v{OG}, v{OG}, v{OG}")
        e("s_mov_b32 exec_lo, 0x000f000f"); e("s_mov_b32 exec_hi, 0x000f000f")
        e(f"ds_write_b16 v{OLW}, v{OG} offset:{L_OL}")
        e("s_mov_b64 exec, -1")
        e("s_waitcnt lgkmcnt(0)")
    e("s_barrier")
    e(f"ds_read_b128 {vr(AD)}, v{ADA} offset:{L_OL}")
    e("s_waitcnt lgkmcnt(0)")
    down_mfma_publish(AD, WP, ACC, SLOT(3))
    stamp(11)
    e("s_branch L_fini")
    e.label(LF)
    if late_ffn:
      with cond(f"s_cmp_eq_u32 {S_HASF}, 0", "s_cbranch_scc1"):
        e(f"ds_read_b128 {vr(AD)}, v{ADA} offset:{L_OL}")
        late_dn(LF_)
        e("s_waitcnt lgkmcnt(0)")
        down_mfma_publish(AD, WP, SLOT(2), SLOT(3))
      stamp(11)
    VA, VX = VA3, VX3
    G = SLOT(1)
    def ga_issue(): e(f"buffer_load_dwordx4 {vr(G)}, v{VA}, {R_WS}, s16 offen sc1", tag="g")
    def tred(R):
        e(f"v_permlane32_swap_b32 v{R}, v{R+2}"); e(f"v_permlane32_swap_b32 v{R+1}, v{R+3}")
        e(f"v_add_f32 v{R}, v{R}, v{R+2}"); e(f"v_add_f32 v{R+1}, v{R+1}, v{R+3}")
        e(f"v_permlane16_swap_b32 v{R}, v{R+1}")
        e(f"v_add_f32 v{R}, v{R}, v{R+1}")
        dpp("v_add_f32", R, R, R, "row_ror:8"); dpp("v_add_f32", R, R, R, "row_ror:4")
    VL = T0
    e(f"v_lshrrev_b32 v{VL}, 4, v{V_LANE}"); e(f"v_lshl_add_u32 v{VL}, v{VL}, 2, v{VL3}")
    e("s_mov_b32 s24, 0x000f000f"); e("s_mov_b32 s25, 0x000f000f")
    Lz, Lz2 = newlab("zf"), newlab("zf2")
    e(f"s_cmp_eq_u32 {S_W}, 7"); e(f"s_cbranch_scc1 {Lz}")
    poll(gf_issue, lambda: tagcheck(GF, T3, True, T5), lambda: e("s_waitcnt vmcnt(0)"), "gf", sleep=2)
    untag(range(GF, GF+4))
    tred(GF)
    e(f"s_branch {Lz2}")
    e.label(Lz)
    e(f"v_mov_b32 v{GF}, 0")
    e.label(Lz2)
    e("s_mov_b64 exec, s[24:25]")
    e(f"ds_write_b32 v{VL}, v{GF} offset:{L_REDQ+512}")
    e("s_mov_b64 exec, -1")
    e("s_waitcnt lgkmcnt(0)")
    e("s_barrier")
    FV, XV, VR, VS = G + 8, G + 9, G + 10, G + 11
    with cond(f"s_cmp_lg_u32 {S_W}, 0", "s_cbranch_scc1"):
        e(f"v_lshlrev_b32 v{VR}, 2, v{V_LANE}")
        e(f"ds_read2_b32 {vr(G+12,2)}, v{VR} offset0:{(L_REDQ+512)//4} offset1:{(L_REDQ+512+256)//4}")
        e(f"v_and_b32 v{VS}, 12, v{V_LANE}"); e(f"v_lshlrev_b32 v{VS}, 2, v{VS}"); e(f"v_and_b32 v{T1}, 3, v{V_LANE}"); e(f"v_lshl_add_u32 v{VS}, v{T1}, 1, v{VS}")
        e(f"buffer_load_ushort v{XV}, v{VS}, {R_X}, s18 offen", tag="xq")
        e("s_waitcnt lgkmcnt(0)")
        e(f"v_add_f32 v{FV}, v{G+12}, v{G+13}")
        xlane("v_add_f32", [FV], [T1], ["p16", "p32"])
        e(f"v_cvt_pk_bf16_f32 v{FV}, v{FV}, v{FV}"); e(f"v_and_b32 v{FV}, {S_MASKH}, v{FV}")
        e("s_waitcnt vmcnt(0)")
        e(f"v_lshlrev_b32 v{XV}, 16, v{XV}")
        Lr, Lx = newlab("sp"), newlab("spx")
        e("s_mov_b32 exec_lo, 0x11111111"); e("s_mov_b32 exec_hi, 0x11111111")
        e(f"s_mov_b32 {S_CNT}, 0")
        e.label(Lr)
        ga_issue()
        e(f"s_add_u32 {S_CNT}, {S_CNT}, 1"); e(f"s_cmp_gt_u32 {S_CNT}, {POLL_LIMIT}")
        e("s_waitcnt vmcnt(0)")
        e(f"s_cbranch_scc1 {Lx}")
        tagcheck(G, T3, True, T5)
        e(f"v_cmp_eq_u32 vcc, 0, v{T5}")
        e("s_bcnt1_i32_b64 s7, vcc")
        e(f"s_cmp_ge_u32 s7, {THR}"); e(f"s_cbranch_scc1 {Lx}")
        if slp_pre: e(f"s_sleep {slp_pre}")
        e(f"s_branch {Lr}")
        e.label(Lx)
        e("s_mov_b64 exec, -1")
    e("s_barrier")
    if dly_g: e(f"s_sleep {dly_g}")
    ga_issue()
    poll(ga_issue, lambda: tagcheck(G, T3, True, T5), lambda: e("s_waitcnt vmcnt(0)"), "ga", sleep=slp_g)
    stamp(12)
    untag(range(G, G+4))
    tred(G)
    e("s_mov_b64 exec, s[24:25]")
    e(f"ds_write_b32 v{VL}, v{G} offset:{L_REDQ}")
    e("s_waitcnt lgkmcnt(0)")
    e("s_barrier")
    e(f"s_cmp_lg_u32 {S_W}, 0"); e("s_cbranch_scc1 L_fini")
    e("s_mov_b64 exec, -1")
    e(f"ds_read2_b32 {vr(G,2)}, v{VR} offset0:{L_REDQ//4} offset1:{(L_REDQ+256)//4}")
    e("s_waitcnt lgkmcnt(0)")
    e(f"v_add_f32 v{G}, v{G}, v{G+1}")
    xlane("v_add_f32", [G], [G+1], ["p16", "p32"])
    e(f"v_cvt_pk_bf16_f32 v{G}, v{G}, v{G}"); e(f"v_and_b32 v{G}, {S_MASKH}, v{G}")
    e(f"v_add_f32 v{G}, v{XV}, v{G}")
    e(f"v_cvt_pk_bf16_f32 v{G}, v{G}, v{G}"); e(f"v_and_b32 v{G}, {S_MASKH}, v{G}")
    e(f"v_add_f32 v{G}, v{G}, v{FV}")
    e(f"v_cvt_pk_bf16_f32 v{G}, v{G}, v{G}")
    e("s_mov_b64 exec, 0xffff")
    e(f"buffer_store_short v{G}, v{VS}, {R_OUT}, s18 offen")
    e(f"s_cmp_lg_u32 {S_IDX}, 0"); e("s_cbranch_scc1 L_fini")
    e("s_mov_b64 exec, 1")
    e(f"buffer_store_dword v{V_T}, off, {R_WS}, 0")
    e.cond_depth -= 1
    e.label("L_fini")
    if dbgt:
        e("s_memrealtime s[72:73]"); e("s_waitcnt lgkmcnt(0)")
        e("s_cmp_lg_u32 s3, 0"); e("s_cbranch_scc1 L_dbg1")
        e("s_atomic_umax s72, s[34:35], 4"); e("s_waitcnt lgkmcnt(0)")
        e.label("L_dbg1")
    if dbgt:
        e("s_cmp_lg_u32 s3, 0"); e("s_cbranch_scc1 L_end")
        e("s_atomic_umax s16, s[34:35], 12")
        e("s_not_b32 s72, s90"); e("s_atomic_umax s72, s[34:35], 0"); e("s_atomic_umax s90, s[34:35], 8"); e("s_waitcnt lgkmcnt(0)")
    if stamps:
        e("s_mov_b64 exec, -1")
        stamp(13)
        e("s_mov_b64 exec, 0xffff")
        e(f"v_lshlrev_b32 v{T0}, 2, v{V_LANE}")
        e("s_lshl_b32 s7, s2, 3"); e(f"s_add_u32 s7, s7, {S_W}"); e("s_lshl_b32 s7, s7, 6"); e(f"s_add_u32 s7, s7, {WS_SIZE}")
        e("s_mov_b32 s58, 0x1000000")
        e(f"buffer_store_dword v0, v{T0}, {R_WS}, s7 offen")
    e.label("L_end")
    e("s_endpgm")

    out = HEADER
    out += f"; @launch grid=(256,1,1) block=(512,1,1) lds={LDS_BYTES}\n"
    out += '.amdgcn_target "amdgcn-amd-amdhsa--gfx950"\n.text\n'
    out += f".globl {KNAME}\n.p2align 8\n.type {KNAME},@function\n{KNAME}:\n"
    out += e.text()
    out += f""".section .rodata,"a"
.p2align 6
.amdhsa_kernel {KNAME}
  .amdhsa_next_free_vgpr 256
  .amdhsa_next_free_sgpr 102
  .amdhsa_accum_offset 256
  .amdhsa_group_segment_fixed_size 0
  .amdhsa_kernarg_size 88
  .amdhsa_user_sgpr_count 2
  .amdhsa_user_sgpr_kernarg_segment_ptr 1
  .amdhsa_system_sgpr_workgroup_id_x 1
.end_amdhsa_kernel
"""
    return out

if __name__ == "__main__":
    import argparse
    ap = argparse.ArgumentParser()
    ap.add_argument("-o", default="parallel_sum__gqa_block_cached__dense_activation_silu__decode.s")
    ap.add_argument("--inf", type=int, default=5)
    ap.add_argument("--stamps", action="store_true")
    ap.add_argument("--kw", default="")
    a = ap.parse_args()
    kw = eval("dict(%s)" % a.kw)
    open(a.o, "w").write(gen(INF=a.inf, stamps=a.stamps, **kw))
```

```python
import sys
from emit import Emit
KNAME = "parallel_sum__gqa_block_cached__dense_activation_silu__decode_kernel"
HEADER = open("parallel_sum__gqa_block_cached__dense_activation_silu__decode.s.ref").read().split("; Override launch geometry")[0]

WS_QP = 0x1000
QP_B = 7680 * 4
QP_K = 2 * QP_B
WS_ML = 0x40000
WS_CT = 0x50000
WS_OP = 0x80000
WS_AP = 0x200000
WS_SIZE = 0x400000
L_REDQ = 0
L_REDH = 4096
L_Q = 8192
L_MX = 10240
L_OL = 10752
L_FA = 11008; L_FH = 11040; L_FQ = 11072
L_S2 = 0
L_S2M = 1024
L_ORED = 12288
LDS_BYTES = L_ORED + 8 * 4096
V_LANE, V_K, V_V, V_UP, V_DN, V_T, V_AL, V_ML, V_L = 1, 2, 3, 4, 5, 6, 7, 8, 9
T0, T1, T2, T3, T4, T5 = 10, 11, 12, 13, 14, 15
ACC = 16
Q0, Q1 = 48, 52
P = 56
AD = 60
SC = 64
def SLOT(k): return 96 + 32 * k
S_W, S_TYPE, S_IDX, S_T = "s3", "s4", "s5", "s6"
S_LO, S_HI = "s8", "s9"
S_TI = ["s10", "s11", "s12", "s13"]
S_G2 = "s14"
S_CNT = "s15"
R_K, R_V, R_UP, R_DN, R_WS, R_X, R_OUT, R_W1 = "s[40:43]", "s[44:47]", "s[48:51]", "s[52:55]", "s[56:59]", "s[60:63]", "s[64:67]", "s[28:31]"
S_KV, S_UPQ, S_UPH, S_DNB = "s68", "s69", "s70", "s71"
S_LOG2E, S_SCALE, S_MASKH, S_HASF, S_HASH, S_KS = "s82", "s83", "s84", "s85", "s86", "s87"
S_N8 = "s[88:89]"
S_CBH = "s39"
POLL_LIMIT = 1 << 17
def vr(a, n=4): return f"v[{a}:{a+n-1}]"

def gen(INF=5, stamps=False, NS=5, HF=8, pf=False, prio=True, slp_o=0, slp_g=0, slp_pre=2, prepoll=True, late_ffn=False, LA=0, LF_=0, pbar=False, dbgt=False, dly_o=8, dly_g=0, pre1=True, upfirst=False, lite=False, early=1, early_k=4, pmap=0, EA=8, xmode=0, THR=6, THO=6, tlb=True):
    e = Emit()
    lab = [0]
    def newlab(p):
        lab[0] += 1
        return f"L_{p}_{lab[0]}"
    def stamp(k):
        if not stamps: return
        if lite and k not in (7, 13): return
        e("s_memrealtime s[90:91]"); e("s_waitcnt lgkmcnt(0)"); e(f"v_writelane_b32 v0, s90, {k}")
    def throttle():
        if INF: e(f"s_waitcnt vmcnt({INF-1})")
    def setprio(n):
        if prio: e(f"s_setprio {n}")
    def dpp(op, d, a, b, ctl):
        e(f"{op}_dpp v{d}, v{a}, v{b} {ctl} row_mask:0xf bank_mask:0xf")
    def xlane(op, regs, tmps, steps):
        for st in steps:
            if st[0] == "r":
                for r in regs: dpp(op, r, r, r, f"row_ror:{st[1:]}")
            else:
                for r, t in zip(regs, tmps): e(f"v_mov_b32 v{t}, v{r}")
                for r, t in zip(regs, tmps): e(f"v_permlane{st[1:]}_swap_b32 v{r}, v{t}")
                for r, t in zip(regs, tmps): e(f"{op} v{r}, v{r}, v{t}")
    def tagcheck(g, tmp, first, accum):
        e(f"v_perm_b32 v{tmp}, v{g+1}, v{g}, {S_G2}")
        e(f"v_perm_b32 v{tmp+1}, v{g+3}, v{g+2}, {S_G2}")
        e(f"v_perm_b32 v{tmp}, v{tmp+1}, v{tmp}, {S_LO}")
        if first: e(f"v_xor_b32 v{accum}, v{tmp}, v{V_T}")
        else:
            e(f"v_xor_b32 v{tmp}, v{tmp}, v{V_T}")
            e(f"v_or_b32 v{accum}, v{accum}, v{tmp}")
    def untag(regs):
        for r in regs: e(f"v_and_b32 v{r}, s23, v{r}")
    def tagput(dst, srcs):
        for i, s in enumerate(srcs): e(f"v_perm_b32 v{dst+i}, v{s}, v{V_T}, {S_TI[i]}")
    def rnd2(a, b_, tmp):
        e(f"v_cvt_pk_bf16_f32 v{tmp}, v{a}, v{b_}")
        e(f"v_lshlrev_b32 v{a}, 16, v{tmp}")
        e(f"v_and_b32 v{b_}, {S_MASKH}, v{tmp}")
    def poll(issue, check, waitfirst, name, sleep=0):
        Lr, Ld, Lx = newlab(name + "_retry"), newlab(name + "_done"), newlab(name + "_exit")
        waitfirst()
        check()
        e(f"v_cmp_ne_u32 vcc, 0, v{T5}")
        e(f"s_cbranch_vccz {Ld}")
        e(f"s_mov_b32 {S_CNT}, 0")
        e("s_mov_b64 s[80:81], exec")
        e.label(Lr)
        e("s_mov_b64 exec, vcc")
        if sleep: e(f"s_sleep {sleep}")
        e("s_nop 4")
        e.cond_depth += 1
        issue()
        e.cond_depth -= 1
        e(f"s_add_u32 {S_CNT}, {S_CNT}, 1")
        e(f"s_cmp_gt_u32 {S_CNT}, {POLL_LIMIT}")
        e("s_waitcnt vmcnt(0)")
        e(f"s_cbranch_scc1 {Lx}")
        check()
        e(f"v_cmp_ne_u32 vcc, 0, v{T5}")
        e(f"s_cbranch_vccnz {Lr}")
        e.label(Lx)
        e("s_mov_b64 exec, s[80:81]")
        e.label(Ld)
    def setflag(base, idx=None):
        if idx is None:
            e(f"s_lshl_b32 s7, {S_W}, 2"); e(f"v_mov_b32 v{T1}, s7")
        else: e(f"v_mov_b32 v{T1}, {4*idx}")
        e("s_waitcnt lgkmcnt(0)")
        e("s_mov_b64 exec, 1")
        e(f"v_mov_b32 v{T2}, 1")
        e(f"ds_write_b32 v{T1}, v{T2} offset:{base}")
        e("s_mov_b64 exec, -1")
    def waitflags(base, n, name):
        Lr, Lx = newlab(name), newlab(name + "x")
        e(f"v_and_b32 v{T1}, {n-1}, v{V_LANE}"); e(f"v_lshlrev_b32 v{T1}, 2, v{T1}")
        e(f"s_mov_b32 {S_CNT}, 0")
        e.label(Lr)
        e(f"ds_read_b32 v{T2}, v{T1} offset:{base}")
        e(f"s_add_u32 {S_CNT}, {S_CNT}, 1"); e(f"s_cmp_gt_u32 {S_CNT}, {POLL_LIMIT*4}")
        e("s_waitcnt lgkmcnt(0)")
        e(f"s_cbranch_scc1 {Lx}")
        e(f"v_cmp_ne_u32 vcc, 1, v{T2}")
        e(f"s_cbranch_vccnz {Lr}")
        e.label(Lx)
    def srd(base, lo, hi, n):
        e(f"s_mov_b32 s{base}, {lo}"); e(f"s_mov_b32 s{base+1}, {hi}"); e(f"s_mov_b32 s{base+2}, {n}"); e(f"s_mov_b32 s{base+3}, 0x00020000")
    class cond:
        def __init__(self, cmp, br):
            self.L = newlab("skip"); self.cmp = cmp if isinstance(cmp, list) else [cmp]; self.br = br
        def __enter__(self):
            for c in self.cmp:
                e(c); e(f"{self.br} {self.L}")
            e.cond_depth += 1
        def __exit__(self, *a):
            e.cond_depth -= 1; e.label(self.L)

    if stamps or dbgt: e("s_memrealtime s[90:91]")
    e("s_cmp_ge_u32 s2, 256")
    e("s_cbranch_scc1 L_end")
    e("s_load_dwordx2 s[48:49], s[0:1], 24")
    e("s_load_dwordx2 s[60:61], s[0:1], 0")
    e("s_load_dwordx4 s[16:19], s[0:1], 8")
    e("s_load_dwordx2 s[28:29], s[0:1], 48")
    setprio(3)
    e(f"v_lshrrev_b32 v{T0}, 6, v0")
    e(f"v_and_b32 v{V_LANE}, 63, v0")
    e(f"v_readfirstlane_b32 {S_W}, v{T0}")
    if stamps: e("v_mov_b32 v0, 0")
    e(f"v_lshrrev_b32 v{T0}, 3, v{V_LANE}"); e(f"v_and_b32 v{T1}, 7, v{V_LANE}"); e(f"v_lshlrev_b32 v{T1}, 4, v{T1}")
    e(f"v_lshl_add_u32 v{V_UP}, v{T0}, 15, v{T1}")
    e("s_and_b32 s7, s2, 3"); e("s_lshl_b32 s72, s7, 8"); e(f"s_lshl_b32 s73, {S_W}, 5"); e("s_add_u32 s72, s72, s73")
    e("s_lshr_b32 s73, s2, 2")
    e(f"s_lshl_b32 {S_UPQ}, s72, 13"); e("s_lshl_b32 s74, s73, 7"); e(f"s_add_u32 {S_UPQ}, {S_UPQ}, s74")
    e(f"s_mov_b32 s50, {8<<20}"); e("s_mov_b32 s51, 0x00020000"); e("s_movk_i32 s62, 4096"); e("s_mov_b32 s63, s51")
    e(f"v_lshlrev_b32 v{T3}, 5, v{V_LANE}")
    e("s_waitcnt lgkmcnt(0)")
    if stamps:
        e("v_writelane_b32 v0, s90, 15"); stamp(14)
    XF, XR = SC, SC + 16
    UPS = SLOT(4)
    def xl():
        for b in range(2):
            for hf in range(2):
                e(f"buffer_load_dwordx4 {vr(XF+8*b+4*hf)}, v{T3}, {R_X}, 0 offen offset:{b*2048+hf*16}", tag="xf")
    def ul():
        for i in range(4):
            e(f"buffer_load_dwordx4 {vr(UPS+4*i)}, v{V_UP}, {R_UP}, {S_UPQ} offen nt", tag="upq")
            if i < 3: e(f"s_add_u32 {S_UPQ}, {S_UPQ}, 8192")
    if upfirst: ul(); xl()
    else: xl(); ul()
    if pf:
        e("s_getpc_b64 s[78:79]")
        e.raw("L_pc:")
        e("s_bfe_u32 s76, s2, 0x20003"); e("s_lshl_b32 s76, s76, 3"); e(f"s_add_u32 s76, s76, {S_W}"); e("s_lshl_b32 s76, s76, 9")
        e(f"v_lshlrev_b32 v{T4}, 3, v{V_LANE}"); e(f"v_add_u32 v{T4}, s76, v{T4}")
        e(f"v_min_u32 v{T4}, L_end-L_pc-8, v{T4}")
        e(f"global_load_dwordx2 {vr(SLOT(1),2)}, v{T4}, s[78:79]", tag="pf")
    e(f"s_lshr_b32 {S_TYPE}, s2, 3"); e(f"s_xor_b32 {S_TYPE}, {S_TYPE}, s2"); e(f"s_and_b32 {S_TYPE}, {S_TYPE}, 1")
    e("s_load_dwordx2 s[56:57], s[0:1], 80")
    e(f"s_mul_i32 s76, {S_TYPE}, 24"); e("s_add_u32 s76, s76, 32")
    e("s_load_dwordx2 s[52:53], s[0:1], s76")
    e("s_load_dwordx2 s[64:65], s[0:1], 64")
    if dbgt: e("s_load_dwordx2 s[34:35], s[0:1], 72")
    e(f"v_lshlrev_b32 v{T2}, 3, v{T0}"); e("s_lshl_b32 s74, s72, 1"); e(f"v_add_u32 v{T2}, s74, v{T2}")
    for b in range(2):
        e(f"buffer_load_dwordx2 {vr(XR+2*b,2)}, v{T2}, {R_X}, 0 offen offset:{b*2048}", tag="xr")
    e(f"v_mul_u32_u24 v{V_DN}, {4*7168}, v{T0}"); e(f"v_add_u32 v{V_DN}, v{V_DN}, v{T1}")
    e("s_lshl_b32 s7, s7, 1"); e("s_add_u32 s7, s7, 1"); e("s_and_b32 s74, s73, 7")
    e("s_cmp_lg_u32 s74, s7"); e(f"s_cselect_b32 {S_HASH}, 1, 0")
    e("s_lshr_b32 s75, s73, 3"); e("s_mul_i32 s75, s75, 7"); e("s_add_u32 s75, s75, s74")
    e("s_cmp_gt_u32 s74, s7"); e(f"s_subb_u32 {S_CBH}, s75, 0")
    e(f"s_mul_i32 {S_UPH}, s72, 7168"); e(f"s_lshl_b32 s74, {S_CBH}, 7"); e(f"s_add_u32 {S_UPH}, {S_UPH}, s74")
    e(f"s_mul_i32 s30, {S_HASH}, {7<<20}"); e("s_mov_b32 s31, 0x00020000")
    def uh():
        for i in range(4):
            e(f"buffer_load_dwordx4 {vr(UPS+16+4*i)}, v{V_DN}, {R_W1}, {S_UPH} offen nt", tag="uph")
            if i < 3: e(f"s_add_u32 {S_UPH}, {S_UPH}, 7168")
    if early >= 1: uh()
    srd(40, "s16", "s17", 64 << 20)
    srd(44, "s18", "s19", 64 << 20)
    e(f"v_lshlrev_b32 v{V_V}, 4, v{V_LANE}")
    e(f"v_bfe_u32 v{T0}, v{V_LANE}, 1, 1"); e(f"v_bfe_u32 v{T1}, v{V_LANE}, 2, 2")
    e(f"v_lshl_add_u32 v{T0}, v{T0}, 2, v{T1}"); e(f"v_lshlrev_b32 v{V_K}, 8, v{T0}")
    e(f"v_lshrrev_b32 v{T1}, 4, v{V_LANE}"); e(f"v_lshl_add_u32 v{V_K}, v{T1}, 5, v{V_K}")
    e(f"v_and_b32 v{T1}, 1, v{V_LANE}"); e(f"v_lshl_add_u32 v{V_K}, v{T1}, 4, v{V_K}")
    e(f"s_lshl_b32 {S_KV}, s2, 18"); e(f"s_lshl_b32 s7, {S_W}, 12"); e(f"s_add_u32 {S_KV}, {S_KV}, s7")
    e(f"v_lshlrev_b32 v{T4}, 2, v{V_LANE}"); e(f"v_mov_b32 v{T5}, 0")
    e(f"ds_write_b32 v{T4}, v{T5} offset:{L_FA}")
    for base, n in ((56, WS_SIZE), (64, 4096)):
        e(f"s_mov_b32 s{base+2}, {n}"); e(f"s_mov_b32 s{base+3}, 0x00020000")
    e("s_waitcnt lgkmcnt(0)")
    e("s_load_dword s6, s[56:57], 0")
    e("s_barrier")
    for i in range(early_k):
        e(f"buffer_load_dwordx4 {vr(SLOT(0)+4*i)}, v{V_K}, {R_K}, {S_KV} offen offset:{(i>>1)*2048 + (i&1)*128} nt", tag="k0")
    e(f"s_mov_b32 {S_MASKH}, 0xffff0000")
    e(f"s_lshr_b32 {S_IDX}, s2, 1"); e(f"s_and_b32 s7, {S_IDX}, 7")
    e(f"s_sub_u32 s54, 8, {S_TYPE}"); e("s_lshl_b32 s54, s54, 20")
    e("s_mov_b32 s55, 0x00020000")
    e("s_cmp_lg_u32 s7, 7"); e(f"s_cselect_b32 {S_HASF}, {S_TYPE}, 0")
    e(f"s_lshr_b32 s7, {S_IDX}, 3"); e(f"s_mul_i32 s7, s7, {S_TYPE}"); e(f"s_sub_u32 {S_KS}, {S_IDX}, s7")
    e(f"s_cmp_eq_u32 {S_TYPE}, {S_HASF}")
    e("s_cselect_b32 s54, s54, 0")
    e(f"s_mov_b32 {S_LO}, 0x05040100"); e(f"s_mov_b32 {S_HI}, 0x07060302")
    for i in range(4): e(f"s_mov_b32 {S_TI[i]}, 0x{0x07060500 + i:08x}")
    e(f"s_mov_b32 {S_G2}, 0x0c0c0400"); e("s_mov_b32 s23, 0xffffff00")
    e(f"s_mov_b32 {S_LOG2E}, 0x3fb8aa3b"); e(f"s_mov_b32 {S_SCALE}, 0x3db504f3")
    e("s_mov_b32 s88, 0x00ff00ff"); e("s_mov_b32 s89, 0x00ff00ff")
    e(f"s_lshl_b32 {S_DNB}, {S_KS}, 16"); e(f"s_lshl_b32 s7, {S_W}, 8"); e(f"s_add_u32 {S_DNB}, {S_DNB}, s7")

    def kload(u, slot, i, thr=True):
        beta, t = i >> 1, i & 1
        if i % 4 == 0: e(f"s_add_u32 s74, {S_KV}, {(2*u + (beta >> 1)) * 32768}")
        if thr: throttle()
        e(f"buffer_load_dwordx4 {vr(SLOT(slot)+4*i)}, v{V_K}, {R_K}, s74 offen offset:{(beta&1)*2048 + t*128} nt", tag=f"k{u}")
    def vload(u, slot, j, thr=True):
        if j % 4 == 0: e(f"s_add_u32 s75, {S_KV}, {(2*u + (j >> 2)) * 32768}")
        if thr: throttle()
        e(f"buffer_load_dwordx4 {vr(SLOT(slot)+4*j)}, v{V_V}, {R_V}, s75 offen offset:{(j&3)*1024} nt", tag=f"v{u}")
    def issueK(u, slot, lo=0, hi=8):
        for i in range(lo, hi): kload(u, slot, i)
    def issueV(u, slot, lo=0, hi=8):
        for j in range(lo, hi): vload(u, slot, j)
    def issueDN(slot, lo=0, hi=8):
        for jj in range(lo, hi):
            a_on, f_on = jj < 8 - LA - EA, jj < 8 - LF_
            e(f"s_add_u32 s76, {S_DNB}, {(8*(jj&3) + (jj>>2))*2048}")
            if not a_on and not f_on: e("s_mov_b32 s76, 0x40000000")
            elif a_on != f_on:
                e(f"s_cmp_eq_u32 {S_TYPE}, {0 if a_on else 1}"); e("s_cselect_b32 s76, s76, 0x40000000")
            throttle()
            e(f"buffer_load_dwordx4 {vr(SLOT(slot)+4*jj)}, v{V_DN}, {R_DN}, s76 offen nt", tag="dn")

    stamp(0)
    U = SLOT(3)
    e.wait_vm("xf")
    if early < 1: uh()
    pend = [("k", i) for i in range(early_k, 8)] + [("v", j) for j in range(8)]
    def more(n):
        for _ in range(n):
            if not pend: return
            t, i = pend.pop(0)
            if t == "k":
                if i % 4 and i == early_k: e(f"s_mov_b32 s74, {S_KV}")
                kload(0, 0, i)
            else: vload(0, 1, i)
    for b in range(2):
        for d in range(8):
            e(f"v_lshlrev_b32 v{U+16*b+2*d}, 16, v{XF+8*b+d}")
            e(f"v_and_b32 v{U+16*b+2*d+1}, {S_MASKH}, v{XF+8*b+d}")
    SUM = [T0, T1]; TMP = [T2, T3]; VAR = [T4, T5]
    for b in range(2):
        e(f"v_pk_add_f32 {vr(XF+4*b,2)}, {vr(U+16*b,2)}, {vr(U+16*b+2,2)}")
        e(f"v_pk_add_f32 {vr(XF+4*b+2,2)}, {vr(U+16*b+4,2)}, {vr(U+16*b+6,2)}")
    for i in range(4, 8):
        for b in range(2):
            e(f"v_pk_add_f32 {vr(XF+4*b+2*(i&1),2)}, {vr(XF+4*b+2*(i&1),2)}, {vr(U+16*b+2*i,2)}")
    for b in range(2): e(f"v_pk_add_f32 {vr(XF+4*b,2)}, {vr(XF+4*b,2)}, {vr(XF+4*b+2,2)}")
    for b in range(2): e(f"v_add_f32 v{SUM[b]}, v{XF+4*b}, v{XF+4*b+1}")
    xlane("v_add_f32", SUM, TMP, ["r8", "r4", "r2", "r1", "p16", "p32"])
    for b in range(2): e(f"v_mul_f32 v{SUM[b]}, 0x3a800000, v{SUM[b]}")
    more(2)
    for i in range(8):
        for b in range(2):
            e(f"v_pk_add_f32 {vr(U+16*b+2*i,2)}, {vr(U+16*b+2*i,2)}, {vr(T0,2)} op_sel:[0,{b}] op_sel_hi:[1,{b}] neg_lo:[0,1] neg_hi:[0,1]")
    for b in range(2): e(f"v_pk_mul_f32 {vr(XF+4*b,2)}, {vr(U+16*b,2)}, {vr(U+16*b,2)}")
    for i in range(1, 8):
        for b in range(2): e(f"v_pk_fma_f32 {vr(XF+4*b,2)}, {vr(U+16*b+2*i,2)}, {vr(U+16*b+2*i,2)}, {vr(XF+4*b,2)}")
    for b in range(2): e(f"v_add_f32 v{VAR[b]}, v{XF+4*b}, v{XF+4*b+1}")
    xlane("v_add_f32", VAR, TMP, ["r8", "r4", "r2", "r1", "p16", "p32"])
    more(2)
    for b in range(2): e(f"v_mul_f32 v{VAR[b]}, 0x3a800000, v{VAR[b]}")
    rnd2(SUM[0], SUM[1], T2)
    rnd2(VAR[0], VAR[1], T3)
    for b in range(2): e(f"v_add_f32 v{VAR[b]}, 0x3727c5ac, v{VAR[b]}")
    rnd2(VAR[0], VAR[1], T3)
    for b in range(2): e(f"v_sqrt_f32 v{VAR[b]}, v{VAR[b]}")
    rnd2(VAR[0], VAR[1], T3)
    for b in range(2): e(f"v_rcp_f32 v{VAR[b]}, v{VAR[b]}")
    XN = ACC + 16
    e.wait_vm("xr")
    for b in range(2):
        for d in range(2):
            e(f"v_lshlrev_b32 v{XN+4*b+2*d}, 16, v{XR+2*b+d}")
            e(f"v_and_b32 v{XN+4*b+2*d+1}, {S_MASKH}, v{XR+2*b+d}")
    for b in range(2):
        for i in range(4): e(f"v_sub_f32 v{XN+4*b+i}, v{XN+4*b+i}, v{SUM[b]}")
    for d in range(4): rnd2(XN+2*d, XN+2*d+1, U+d)
    for b in range(2):
        for i in range(4): e(f"v_mul_f32 v{XN+4*b+i}, v{XN+4*b+i}, v{VAR[b]}")
    for d in range(4): rnd2(XN+2*d, XN+2*d+1, U+d)
    e("s_waitcnt lgkmcnt(0)")
    e(f"s_mul_i32 {S_T}, {S_T}, 1664525"); e(f"s_add_u32 {S_T}, {S_T}, 1013904223")
    e(f"v_mov_b32 v{V_T}, {S_T}")
    stamp(1)
    e(f"v_lshrrev_b32 v{T0}, 5, v{V_LANE}"); e(f"v_lshlrev_b32 v{T0}, 8, v{T0}")
    e(f"v_and_b32 v{T1}, 7, v{V_LANE}"); e(f"v_lshl_add_u32 v{T0}, v{T1}, 5, v{T0}")
    e(f"v_and_b32 v{T1}, 16, v{V_LANE}"); e(f"v_add_u32 v{T0}, v{T0}, v{T1}")
    e(f"s_lshl_b32 s7, {S_W}, 9"); e(f"v_add_u32 v{V_AL}, s7, v{T0}")
    def up_compute(src, tag, lbase, fbase, between):
        for i in range(4):
            e.wait_vm_idx(tag, i)
            for d in range(4):
                e(f"v_lshlrev_b32 v{U+2*d}, 16, v{src+4*i+d}")
                e(f"v_and_b32 v{U+2*d+1}, {S_MASKH}, v{src+4*i+d}")
            for b in range(2):
                for c in range(0, 8, 2):
                    xr = XN + 4*b + i
                    base = xr & ~1; sel = xr & 1
                    if i == 0: e(f"v_pk_mul_f32 {vr(ACC+8*b+c,2)}, {vr(U+c,2)}, {vr(base,2)} op_sel:[0,{sel}] op_sel_hi:[1,{sel}]")
                    else: e(f"v_pk_fma_f32 {vr(ACC+8*b+c,2)}, {vr(U+c,2)}, {vr(base,2)}, {vr(ACC+8*b+c,2)} op_sel:[0,{sel},0] op_sel_hi:[1,{sel},1]")
            between(i)
        for c in range(8): e(f"v_permlane32_swap_b32 v{ACC+c}, v{ACC+8+c}")
        for c in range(8): e(f"v_add_f32 v{ACC+c}, v{ACC+c}, v{ACC+8+c}")
        for c in range(4): e(f"v_permlane16_swap_b32 v{ACC+c}, v{ACC+4+c}")
        for c in range(4): e(f"v_add_f32 v{ACC+c}, v{ACC+c}, v{ACC+4+c}")
        for c in range(4): dpp("v_add_f32", ACC+c, ACC+c, ACC+c, "row_ror:8")
        e(f"ds_write_b128 v{V_AL}, {vr(ACC)} offset:{lbase}")
        setflag(fbase)
    def up_publish(lbase, fbase, colreg_expr, name):
        waitflags(fbase, 8, name)
        e("s_mov_b32 exec_hi, 0")
        for w in range(8): e(f"ds_read_b128 {vr(U+4*w)}, v{V_V} offset:{lbase + w*512}")
        e(f"v_lshrrev_b32 v{T0}, 4, v{V_LANE}"); e(f"v_mul_u32_u24 v{T0}, {QP_B}, v{T0}")
        e(f"v_and_b32 v{T1}, 15, v{V_LANE}"); e(f"v_lshl_add_u32 v{T0}, v{T1}, 4, v{T0}")
        e("s_and_b32 s7, s2, 3"); e(f"s_mul_i32 s7, s7, {QP_K}")
        colreg_expr()
        e("s_add_u32 s7, s7, s72")
        e("s_waitcnt lgkmcnt(0)")
        for w in range(1, 8):
            e(f"v_pk_add_f32 {vr(U,2)}, {vr(U,2)}, {vr(U+4*w,2)}"); e(f"v_pk_add_f32 {vr(U+2,2)}, {vr(U+2,2)}, {vr(U+4*w+2,2)}")
        for c in range(4): e(f"v_add_u32 v{U+c}, 0x80, v{U+c}")
        tagput(U+4, [U, U+1, U+2, U+3])
        e(f"buffer_store_dwordx4 {vr(U+4)}, v{T0}, {R_WS}, s7 offen sc1", tag="pub")
        e("s_mov_b64 exec, -1")
    up_compute(UPS, "upq", L_REDQ, L_FA, lambda i: None)
    stamp(2)
    with cond(f"s_cmp_lg_u32 {S_W}, 7", "s_cbranch_scc1"):
        up_publish(L_REDQ, L_FA, lambda: (e("s_lshr_b32 s72, s2, 2"), e("s_lshl_b32 s72, s72, 8"), e(f"s_add_u32 s72, s72, {WS_QP}")), "wfa")
    stamp(3)
    setprio(2)
    e("s_lshr_b32 s7, s2, 3"); e("s_lshl_b32 s7, s7, 8"); e(f"s_add_u32 s7, s7, {WS_CT}")
    e("s_add_u32 s92, s56, s7"); e("s_addc_u32 s93, s57, 0")
    e("s_and_b32 s72, s2, 7"); e(f"s_or_b32 s72, s72, {S_W}")
    with cond("s_cmp_lg_u32 s72, 0", "s_cbranch_scc1"):
        e("s_mov_b64 exec, 1")
        e(f"v_mov_b32 v{U+8}, 0"); e(f"v_mov_b32 v{U+9}, {S_T}")
        e(f"buffer_store_dwordx2 {vr(U+8,2)}, off, {R_WS}, s7 sc1", tag="ct")
        e("s_mov_b64 exec, -1")
    up_compute(UPS+16, "uph", L_REDH, L_FH, lambda i: more(1))
    e(f"v_lshrrev_b32 v{T0}, 4, v{V_LANE}"); e(f"v_lshlrev_b32 v{V_DN}, 12, v{T0}")
    e(f"v_and_b32 v{T1}, 15, v{V_LANE}"); e(f"v_lshl_add_u32 v{V_DN}, v{T1}, 4, v{V_DN}")
    more(16)
    with cond([f"s_cmp_lg_u32 {S_W}, 6", f"s_cmp_eq_u32 {S_HASH}, 0"], "s_cbranch_scc1"):
        up_publish(L_REDH, L_FH, lambda: (e(f"s_lshl_b32 s72, {S_CBH}, 8"), e(f"s_add_u32 s72, s72, {WS_QP + 4096*4}")), "wfh")
    issueK(1, 2)
    issueV(1, 3)
    setprio(1)
    issueDN(4, 0, 4)
    QG = SC
    e("s_lshr_b32 s77, s2, 7"); e(f"s_mul_i32 s77, s77, {QP_B}")
    e("s_lshr_b32 s7, s2, 5"); e("s_and_b32 s7, s7, 3"); e("s_lshl_b32 s7, s7, 12"); e("s_add_u32 s77, s77, s7")
    e(f"s_lshl_b32 s7, {S_W}, 10"); e("s_add_u32 s77, s77, s7"); e(f"s_add_u32 s77, s77, {WS_QP}")
    e(f"s_add_u32 s78, s77, {2*QP_K}")
    VQ2 = Q0
    e(f"v_add_u32 v{VQ2}, {QP_K}, v{V_V}")
    def q_issue():
        for kq in range(4):
            e(f"buffer_load_dwordx4 {vr(QG+4*kq)}, v{VQ2 if kq & 1 else V_V}, {R_WS}, s{77 + (kq >> 1)} offen sc1", tag="qp")
    def q_check():
        for kq in range(4): tagcheck(QG+4*kq, T3, kq == 0, T5)
    VH = Q0 + 1
    e(f"v_lshrrev_b32 v{T0}, 3, v{V_LANE}"); e(f"v_mul_u32_u24 v{VH}, {QP_B}, v{T0}")
    e(f"v_and_b32 v{T1}, 7, v{V_LANE}"); e(f"v_lshl_add_u32 v{VH}, v{T1}, 4, v{VH}")
    e(f"s_lshl_b32 s79, {S_KS}, 7"); e(f"s_add_u32 s79, s79, {WS_QP + 4096*4}")
    def h_issue(): e(f"buffer_load_dwordx4 {vr(QG)}, v{VH}, {R_WS}, s79 offen sc1", tag="hp")
    def h_check(): tagcheck(QG, T3, True, T5)
    with cond(f"s_cmp_ge_u32 {S_W}, 4", "s_cbranch_scc1"): q_issue()
    with cond([f"s_cmp_lg_u32 {S_W}, 4", f"s_cmp_eq_u32 {S_HASF}, 0"], "s_cbranch_scc1"): h_issue()
    issueDN(4, 4, 8)
    with cond(f"s_cmp_ge_u32 {S_W}, 4", "s_cbranch_scc1"):
        poll(q_issue, q_check, lambda: e("s_waitcnt vmcnt(4)"), "q")
        untag(range(QG, QG+16))
        for kq in range(1, 4):
            e(f"v_pk_add_f32 {vr(QG,2)}, {vr(QG,2)}, {vr(QG+4*kq,2)}"); e(f"v_pk_add_f32 {vr(QG+2,2)}, {vr(QG+2,2)}, {vr(QG+4*kq+2,2)}")
        e(f"v_cvt_pk_bf16_f32 v{QG}, v{QG}, v{QG+1}")
        e(f"v_cvt_pk_bf16_f32 v{QG+1}, v{QG+2}, v{QG+3}")
        e(f"v_lshlrev_b32 v{T0}, 3, v{V_LANE}"); e(f"s_lshl_b32 s7, {S_W}, 9"); e(f"v_add_u32 v{T0}, s7, v{T0}")
        e(f"ds_write_b64 v{T0}, {vr(QG,2)} offset:{L_Q}")
        setflag(L_FQ)
    with cond([f"s_cmp_lg_u32 {S_W}, 4", f"s_cmp_eq_u32 {S_HASF}, 0"], "s_cbranch_scc1"):
        poll(h_issue, h_check, lambda: e("s_waitcnt vmcnt(4)"), "h")
        HG = QG
        untag(range(HG, HG+4))
        xlane("v_add_f32", [HG, HG+1, HG+2, HG+3], [HG+4, HG+5, HG+6, HG+7], ["p16", "p32"])
        for d in range(2): rnd2(HG+2*d, HG+2*d+1, HG+8+d)
        for i in range(4): e(f"v_mul_f32 v{HG+8+i}, {S_LOG2E}, v{HG+i}")
        for i in range(4): e(f"v_exp_f32 v{HG+8+i}, -v{HG+8+i}")
        for i in range(4): e(f"v_add_f32 v{HG+8+i}, 1.0, v{HG+8+i}")
        for i in range(4): e(f"v_rcp_f32 v{HG+8+i}, v{HG+8+i}")
        for i in range(4): e(f"v_mul_f32 v{HG+i}, v{HG+i}, v{HG+8+i}")
        for d in range(2): e(f"v_cvt_pk_bf16_f32 v{HG+4+d}, v{HG+2*d}, v{HG+2*d+1}")
        e(f"v_and_b32 v{T0}, 1, v{V_LANE}"); e(f"v_lshlrev_b32 v{T0}, 5, v{T0}")
        e(f"v_bfe_u32 v{T1}, v{V_LANE}, 1, 2"); e(f"v_lshl_add_u32 v{T0}, v{T1}, 1, v{T0}")
        e(f"v_bfe_u32 v{T1}, v{V_LANE}, 3, 1"); e(f"v_lshl_add_u32 v{T0}, v{T1}, 6, v{T0}")
        e("s_mov_b64 exec, 0xffff")
        for d in range(2):
            e(f"ds_write_b16 v{T0}, v{HG+4+d} offset:{L_OL + 16*d}")
            e(f"ds_write_b16_d16_hi v{T0}, v{HG+4+d} offset:{L_OL + 16*d + 8}")
        e("s_mov_b64 exec, -1")
        setflag(L_FQ)
    stamp(4)
    e(f"v_and_b32 v{T0}, 7, v{V_LANE}"); e(f"v_lshlrev_b32 v{T0}, 8, v{T0}")
    e(f"v_lshrrev_b32 v{T1}, 4, v{V_LANE}"); e(f"v_lshl_add_u32 v{T0}, v{T1}, 5, v{T0}")
    e(f"v_bfe_u32 v{T1}, v{V_LANE}, 3, 1"); e(f"v_lshl_add_u32 v{T0}, v{T1}, 4, v{T0}")
    waitflags(L_FQ, 4, "wfq")
    e(f"ds_read_b128 {vr(Q0)}, v{T0} offset:{L_Q}")
    e(f"ds_read_b128 {vr(Q1)}, v{T0} offset:{L_Q+128}")
    stamp(5)

    def S_phase(u, slot):
        K = SLOT(slot)
        e.wait_vm(f"k{u}", " lgkmcnt(0)" if u == 0 else "")
        for t in range(2):
            for beta in range(4):
                c = "0" if t == 0 else vr(SC+4*beta)
                e(f"v_mfma_f32_16x16x32_bf16 {vr(SC+4*beta)}, {vr(K+8*beta+4*t)}, {vr(Q0 if t == 0 else Q1)}, {c}")
        yield
        S = SC + 16
        for beta in range(4):
            for eps in range(2):
                dpp("v_add_f32", S+2*beta+eps, SC+4*beta+2*eps+1, SC+4*beta+2*eps, "row_ror:8")
        for d in range(4): rnd2(S+2*d, S+2*d+1, SC+24+d)
        for i in range(8): e(f"v_mul_f32 v{S+i}, {S_SCALE}, v{S+i}")
        for d in range(4): rnd2(S+2*d, S+2*d+1, SC+24+d)
        e(f"v_max3_f32 v{T0}, v{S}, v{S+1}, v{S+2}")
        e(f"v_max3_f32 v{T1}, v{S+3}, v{S+4}, v{S+5}")
        e(f"v_max3_f32 v{T0}, v{T0}, v{S+6}, v{S+7}")
        e(f"v_max_f32 v{T0}, v{T0}, v{T1}")
        xlane("v_max_f32", [T0], [T1], ["p16", "p32"])
        e(f"v_mul_f32 v{T0}, {S_LOG2E}, v{T0}")
        if u > 0:
            e(f"v_max_f32 v{T0}, v{T0}, v{V_ML}")
            e(f"v_sub_f32 v{V_AL}, v{V_ML}, v{T0}")
            e(f"v_exp_f32 v{V_AL}, v{V_AL}")
        e(f"v_mov_b32 v{V_ML}, v{T0}")
        for i in range(8): e(f"v_fma_f32 v{S+i}, v{S+i}, {S_LOG2E}, -v{T0}")
        for i in range(8): e(f"v_exp_f32 v{S+i}, v{S+i}")
        if u > 0:
            e(f"v_mul_f32 v{V_L}, v{V_L}, v{V_AL}")
            for i in range(32): e(f"v_mul_f32 v{ACC+i}, v{ACC+i}, v{V_AL}")
        for d in range(4): e(f"v_cvt_pk_bf16_f32 v{P+d}, v{S+2*d}, v{S+2*d+1}")
        if u == 0: e(f"v_add_f32 v{V_L}, v{S}, v{S+1}")
        else:
            e(f"v_add_f32 v{V_L}, v{V_L}, v{S}"); e(f"v_add_f32 v{V_L}, v{V_L}, v{S+1}")
        for i in range(2, 8): e(f"v_add_f32 v{V_L}, v{V_L}, v{S+i}")
        yield
    def perms32(src, dst):
        for p in range(4):
            for d in range(4):
                for x in range(2):
                    e(f"v_perm_b32 v{dst+4*(2*d+x)+p}, v{src+4*(2*p+1)+d}, v{src+4*(2*p)+d}, {S_HI if x else S_LO}")
    def PV_phase(u, slot):
        e.wait_vm(f"v{u}")
        perms32(SLOT(slot), SC)
        for ee in range(8):
            c = "0" if u == 0 else vr(ACC+4*ee)
            e(f"v_mfma_f32_16x16x32_bf16 {vr(ACC+4*ee)}, {vr(SC+4*ee)}, {vr(P)}, {c}")
    KB, VB = SLOT(0), SLOT(0) + 16
    WP = SLOT(1)
    def tileK(sreg, tag, sreg2=None):
        for i in range(4):
            e(f"buffer_load_dwordx4 {vr(KB+4*i)}, v{V_K}, {R_K}, {sreg if (i < 2 or not sreg2) else sreg2} offen offset:{(i>>1)*2048 + (i&1)*128} nt", tag=tag)
    def tileV(sreg, tag, sreg2=None):
        for j in range(4):
            e(f"buffer_load_dwordx4 {vr(VB+4*j)}, v{V_V}, {R_V}, {sreg if (j < 2 or not sreg2) else sreg2} offen offset:{j*1024} nt", tag=tag)
    def down_mfma_publish(A, W, D, ST):
        for ee in range(8):
            e(f"v_mfma_f32_16x16x32_bf16 {vr(D+4*ee)}, {vr(A)}, {vr(W+4*ee)}, 0")
        e("s_mov_b64 exec, 0xffff")
        for q4 in range(4):
            b, eh = q4 >> 1, q4 & 1
            tagput(ST+4*q4, [D+4*(4*eh+i)+b for i in range(4)])
            e(f"buffer_store_dwordx4 {vr(ST+4*q4)}, v{V_V}, {R_WS}, s38 offen offset:{q4*256} sc1", tag="pubD")
        e("s_mov_b64 exec, -1")
    g = S_phase(0, 0); next(g)
    e("s_load_dwordx2 s[94:95], s[92:93], 0 glc")
    e(f"s_add_u32 s74, {S_KV}, {4*32768}")
    tileK("s74", "k4"); tileV("s74", "v4")
    next(g)
    PV_phase(0, 1)
    Lc1, Lc2 = newlab("ctpoll"), newlab("ctok")
    e(f"s_mov_b32 {S_CNT}, 0")
    e.label(Lc1)
    e("s_waitcnt lgkmcnt(0)")
    e(f"s_cmp_eq_u32 s95, {S_T}"); e(f"s_cbranch_scc1 {Lc2}")
    e(f"s_add_u32 {S_CNT}, {S_CNT}, 1"); e(f"s_cmp_gt_u32 {S_CNT}, {POLL_LIMIT}"); e(f"s_cbranch_scc1 {Lc2}")
    e("s_load_dwordx2 s[94:95], s[92:93], 0 glc")
    e(f"s_branch {Lc1}")
    e.label(Lc2)
    S_NX, S_ST = "s96", "s97"
    def grab():
        e(f"s_mov_b32 {S_NX}, 1")
        e(f"s_atomic_add {S_NX}, s[92:93], 0 glc")
    for _ in S_phase(1, 2): pass
    PV_phase(1, 3)
    e.wait_vm("dn")
    perms32(SLOT(4), WP)
    WA = SLOT(4)
    e(f"v_and_b32 v{T0}, 15, v{V_LANE}"); e(f"v_mul_u32_u24 v{WA}, {512+16}, v{T0}")
    e(f"v_lshrrev_b32 v{T1}, 4, v{V_LANE}"); e(f"v_lshl_add_u32 v{WA}, v{T1}, 7, v{WA}")
    e(f"s_lshl_b32 s7, {S_W}, 12"); e(f"v_add_u32 v{WA}, s7, v{WA}")
    for ee in range(1, 8): e(f"v_xor_b32 v{WA+ee}, {ee*16}, v{WA}")
    RA, GA, VO, VM, MA, MW, ADA, OLW = WA + 8, WA + 9, WA + 10, WA + 11, WA + 12, WA + 13, WA + 14, WA + 15
    e(f"s_lshl_b32 s7, {S_W}, 6"); e(f"v_add_u32 v{T0}, s7, v{V_LANE}")
    e(f"v_lshlrev_b32 v{GA}, 4, v{T0}")
    e(f"v_lshrrev_b32 v{T1}, 5, v{T0}"); e(f"v_and_b32 v{T1}, 7, v{T1}"); e(f"v_lshlrev_b32 v{MA}, 6, v{T1}"); e(f"v_lshlrev_b32 v{T1}, 4, v{T1}")
    e(f"v_xor_b32 v{RA}, v{GA}, v{T1}")
    e(f"v_lshlrev_b32 v{MW}, 6, v{V_LANE}"); e(f"s_lshl_b32 s7, {S_W}, 3"); e(f"v_add_u32 v{MW}, s7, v{MW}")
    e(f"v_and_b32 v{T0}, 1, v{V_LANE}"); e(f"v_lshlrev_b32 v{T0}, 6, v{T0}")
    e(f"v_and_b32 v{T1}, 48, v{V_LANE}"); e(f"v_add_u32 v{ADA}, v{T0}, v{T1}")
    e(f"s_and_b32 s7, {S_W}, 1"); e("s_lshl_b32 s7, s7, 6"); e(f"s_lshr_b32 s78, {S_W}, 1"); e("s_lshl_b32 s78, s78, 5"); e("s_add_u32 s7, s7, s78")
    e(f"v_and_b32 v{OLW}, 3, v{V_LANE}"); e(f"v_lshlrev_b32 v{OLW}, 3, v{OLW}"); e(f"v_lshrrev_b32 v{T0}, 4, v{V_LANE}"); e(f"v_lshl_add_u32 v{OLW}, v{T0}, 1, v{OLW}"); e(f"v_add_u32 v{OLW}, s7, v{OLW}")
    e(f"s_lshr_b32 s7, {S_IDX}, 5"); e(f"s_and_b32 s79, {S_W}, 1"); e("s_lshl_b32 s79, s79, 2"); e("s_add_u32 s7, s7, s79"); e("s_lshl_b32 s7, s7, 17")
    e("s_lshl_b32 s78, s78, 1"); e("s_add_u32 s78, s78, s7")
    e(f"s_and_b32 s7, {S_IDX}, 31"); e("s_lshl_b32 s7, s7, 7"); e("s_add_u32 s78, s78, s7"); e(f"s_add_u32 s78, s78, {WS_OP}")
    e(f"s_add_u32 s79, s78, {16*4096}")
    e(f"v_lshrrev_b32 v{T0}, 2, v{V_LANE}"); e(f"v_and_b32 v{T1}, 3, v{V_LANE}")
    e(f"v_lshlrev_b32 v{VO}, 12, v{T0}"); e(f"v_lshl_add_u32 v{VO}, v{T1}, 4, v{VO}")
    e("s_lshl_b32 s100, s2, 12"); e(f"s_add_u32 s100, s100, {WS_OP - 4096}")
    e("s_lshl_b32 s101, s2, 7"); e(f"s_add_u32 s101, s101, {WS_ML}")
    e(f"s_lshl_b32 s38, {S_TYPE}, 7"); e(f"s_add_u32 s38, s38, {S_KS}"); e("s_lshl_b32 s38, s38, 13")
    e(f"s_lshl_b32 s7, {S_W}, 10"); e("s_add_u32 s38, s38, s7"); e(f"s_add_u32 s38, s38, {WS_AP}")
    VA3, VX3, VL3, SH4 = WA + 18, WA + 19, WA + 20, WA + 21
    GF = SLOT(3)
    XQ = SLOT(3) + 4
    e(f"v_lshrrev_b32 v{VA3}, 2, v{V_LANE}"); e(f"v_lshlrev_b32 v{VA3}, 13, v{VA3}")
    e(f"v_and_b32 v{VX3}, 3, v{V_LANE}"); e(f"v_lshlrev_b32 v{SH4}, 3, v{VX3}"); e(f"v_lshlrev_b32 v{VX3}, 4, v{VX3}"); e(f"v_add_u32 v{VA3}, v{VA3}, v{VX3}")
    e(f"s_lshl_b32 s7, {S_W}, 6"); e(f"v_add_u32 v{VL3}, s7, v{VX3}")
    e(f"s_lshl_b32 s16, {S_IDX}, 6"); e(f"s_add_u32 s16, s16, {WS_AP}"); e(f"s_lshl_b32 s7, {S_W}, 17"); e("s_add_u32 s16, s16, s7")
    e(f"s_add_u32 s17, s16, {128*8192}")
    e(f"s_lshr_b32 s7, {S_IDX}, 3"); e("s_and_b32 s7, s7, 1"); e("s_lshl_b32 s18, s7, 11")
    e(f"s_lshr_b32 s7, {S_IDX}, 4"); e("s_lshl_b32 s7, s7, 8"); e("s_add_u32 s18, s18, s7")
    e(f"s_and_b32 s7, {S_IDX}, 3"); e("s_lshl_b32 s7, s7, 6"); e("s_add_u32 s18, s18, s7")
    e(f"s_and_b32 s7, {S_IDX}, 4"); e("s_lshl_b32 s7, s7, 1"); e("s_add_u32 s18, s18, s7")
    e(f"s_cmp_lg_u32 {S_W}, 7"); e(f"s_cselect_b32 s19, {S_TYPE}, 0")
    e(f"s_and_b32 s20, {S_T}, 0xffffff"); e("s_mov_b32 s21, 0x0c040100")
    def gf_issue(): e(f"buffer_load_dwordx4 {vr(GF)}, v{VA3}, {R_WS}, s17 offen sc1", tag="g")
    FR = 64 - 8*NS - HF
    P1 = FR * 8
    POOL = P1 + HF * 16
    assert NS == 5
    e("s_and_b32 s98, s2, 0xf8"); e("s_lshl_b32 s98, s98, 18"); e(f"s_add_u32 s98, s98, {NS*8*4096}")
    if not late_ffn:
      with cond(f"s_cmp_eq_u32 {S_HASF}, 0", "s_cbranch_scc1"):
        waitflags(L_FQ + 16, 1, "wfh2")
        e(f"ds_read_b128 {vr(AD)}, v{ADA} offset:{L_OL}")
        e("s_waitcnt lgkmcnt(0)")
        down_mfma_publish(AD, WP, SLOT(2), SC)
    if tlb:
        with cond(f"s_cmp_lg_u32 {S_W}, 1", "s_cbranch_scc1"):
            e("s_mov_b64 exec, 1")
            e(f"buffer_load_dword v{SLOT(3)+8}, off, {R_DN}, {S_DNB}", tag="tl")
            e(f"buffer_load_dword v{SLOT(3)+9}, off, {R_WS}, s17", tag="tl")
            e(f"buffer_load_dword v{SLOT(3)+10}, off, {R_OUT}, s18", tag="tl")
            e("s_mov_b64 exec, -1")
    grab()
    stamp(6)
    setprio(0)
    Lloop, Lskip = newlab("loop"), newlab("noresc")
    e("s_mov_b32 s99, 0")
    e.label(Lloop)
    e("s_waitcnt vmcnt(4)")
    for t in range(2):
        for beta in range(2):
            c = "0" if t == 0 else vr(SC+4*beta)
            e(f"v_mfma_f32_16x16x32_bf16 {vr(SC+4*beta)}, {vr(KB+8*beta+4*t)}, {vr(Q0 if t == 0 else Q1)}, {c}")
    e("s_waitcnt lgkmcnt(0)")
    if pmap == 0:
        e(f"s_and_b32 s74, {S_NX}, 7"); e("s_lshl_b32 s74, s74, 18"); e("s_add_u32 s74, s74, s98")
        e(f"s_lshr_b32 s75, {S_NX}, 3"); e("s_lshl_b32 s76, s75, 12"); e("s_lshl_b32 s75, s75, 11"); e(f"s_add_u32 s75, s75, {FR*4096 - FR*2048}")
    else:
        assert FR % 8 == 0 and HF == 8
        e(f"s_and_b32 s74, {S_NX}, 7"); e("s_lshl_b32 s74, s74, 12"); e("s_add_u32 s74, s74, s98")
        e(f"s_bfe_u32 s75, {S_NX}, 0x30003"); e("s_lshl_b32 s75, s75, 18"); e("s_add_u32 s74, s74, s75")
        e(f"s_lshr_b32 s75, {S_NX}, 6"); e("s_lshl_b32 s76, s75, 15"); e("s_lshl_b32 s75, s75, 11"); e(f"s_add_u32 s75, s75, {FR*4096 - (FR//8)*2048}")
    e(f"s_cmp_lt_u32 {S_NX}, {P1}"); e("s_cselect_b32 s75, s76, s75"); e("s_cselect_b32 s77, 0, 0xff800000"); e("s_cselect_b32 s76, 0, 0x40000000")
    e("s_add_u32 s74, s74, s75"); e("s_add_u32 s76, s76, s74")
    e(f"s_cmp_lt_u32 {S_NX}, {POOL}"); e("s_cselect_b32 s74, s74, 0x40000000"); e("s_cselect_b32 s75, 1, 0")
    def dn_at(jjs):
        for jj in jjs:
            e(f"s_add_u32 s22, {S_DNB}, {(8*(jj&3) + (jj>>2))*2048}")
            e(f"buffer_load_dwordx4 {vr(SLOT(2)+4*jj)}, v{V_DN}, {R_DN}, s22 offen nt", tag="dn3")
    ea = list(range(8 - LA - EA, 8 - LA))
    ea_exit = []
    if xmode == 1: ea_exit = ea; ea = []
    if xmode == 2: ea_exit = ea[4:]; ea = ea[:4]
    if EA >= 4 and xmode == 0:
        Lk, Lk2 = newlab("kdn"), newlab("kdn2")
        e(f"s_or_b32 s22, s75, {S_TYPE}"); e(f"s_cbranch_scc1 {Lk}")
        e.cond_depth += 1; dn_at(ea[:4]); e.cond_depth -= 1
        e(f"s_branch {Lk2}")
        e.label(Lk)
        tileK("s74", "kl", "s76")
        e.label(Lk2)
        ea = ea[4:]
    else:
        tileK("s74", "kl", "s76")
    S = SC + 8
    for beta in range(2):
        for eps in range(2):
            dpp("v_add_f32", S+2*beta+eps, SC+4*beta+2*eps+1, SC+4*beta+2*eps, "row_ror:8")
    for d in range(2): rnd2(S+2*d, S+2*d+1, SC+12+d)
    for i in range(4): e(f"v_mul_f32 v{S+i}, {S_SCALE}, v{S+i}")
    for d in range(2): rnd2(S+2*d, S+2*d+1, SC+12+d)
    e(f"v_add_f32 v{S+2}, s99, v{S+2}"); e(f"v_add_f32 v{S+3}, s99, v{S+3}")
    e("s_mov_b32 s99, s77")
    e(f"v_max3_f32 v{T0}, v{S}, v{S+1}, v{S+2}")
    e(f"v_max_f32 v{T0}, v{T0}, v{S+3}")
    xlane("v_max_f32", [T0], [T1], ["p16", "p32"])
    e(f"v_mul_f32 v{T0}, {S_LOG2E}, v{T0}")
    e(f"v_cmp_gt_f32 vcc, v{T0}, v{V_ML}")
    e(f"s_and_b64 vcc, vcc, {S_N8}")
    e(f"s_cbranch_scc0 {Lskip}")
    e(f"v_max_f32 v{T0}, v{T0}, v{V_ML}")
    e(f"v_sub_f32 v{V_AL}, v{V_ML}, v{T0}")
    e(f"v_exp_f32 v{V_AL}, v{V_AL}")
    e(f"v_mov_b32 v{V_ML}, v{T0}")
    e(f"v_mul_f32 v{V_L}, v{V_L}, v{V_AL}")
    for i in range(32): e(f"v_mul_f32 v{ACC+i}, v{ACC+i}, v{V_AL}")
    e.label(Lskip)
    for i in range(4): e(f"v_fma_f32 v{S+i}, v{S+i}, {S_LOG2E}, -v{V_ML}")
    for i in range(4): e(f"v_exp_f32 v{S+i}, v{S+i}")
    for d in range(2): e(f"v_cvt_pk_bf16_f32 v{P+d}, v{S+2*d}, v{S+2*d+1}")
    for i in range(4): e(f"v_add_f32 v{V_L}, v{V_L}, v{S+i}")
    PS = SC + 16
    for p in range(2):
        e(f"s_waitcnt vmcnt({6 - 2*p})")
        for d in range(4):
            for x in range(2):
                e(f"v_perm_b32 v{PS+2*(2*d+x)+p}, v{VB+4*(2*p+1)+d}, v{VB+4*(2*p)+d}, {S_HI if x else S_LO}")
    with cond("s_cmp_eq_u32 s75, 0", "s_cbranch_scc1"):
        tileV("s74", "vl", "s76")
        grab()
    if ea:
        with cond(f"s_or_b32 s22, s75, {S_TYPE}", "s_cbranch_scc1"): dn_at(ea)
    with cond("s_cmp_le_u32 s19, s75", "s_cbranch_scc1"):
        gf_issue()
    for ee in range(8):
        e(f"v_mfma_f32_16x16x16_bf16 {vr(ACC+4*ee)}, {vr(PS+2*ee,2)}, {vr(P,2)}, {vr(ACC+4*ee)}")
    e("s_cmp_lg_u32 s75, 0"); e(f"s_cbranch_scc1 {Lloop}")
    stamp(7)
    xlane("v_add_f32", [V_L], [T1], ["p16", "p32"])
    e("s_mov_b64 exec, 0xff")
    e(f"ds_write_b64 v{MW}, {vr(V_ML,2)} offset:{L_MX}")
    e(f"s_mov_b64 exec, {S_N8}")
    for ee in range(8): e(f"ds_write_b128 v{WA+ee}, {vr(ACC+4*ee)} offset:{L_ORED}")
    e("s_mov_b64 exec, -1")
    if ea_exit:
        with cond(f"s_cmp_eq_u32 {S_TYPE}, 1", "s_cbranch_scc1"): dn_at(ea_exit)
    stamp(8)
    e("s_waitcnt lgkmcnt(0)")
    e("s_barrier")
    L4, Lp = newlab("w4"), newlab("pubdone")
    ML8 = SC
    def wg_factors():
        e(f"v_max3_f32 v{T0}, v{ML8}, v{ML8+2}, v{ML8+4}")
        e(f"v_max3_f32 v{T1}, v{ML8+6}, v{ML8+8}, v{ML8+10}")
        e(f"v_max3_f32 v{T0}, v{T0}, v{ML8+12}, v{ML8+14}")
        e(f"v_max_f32 v{T0}, v{T0}, v{T1}")
        for w in range(8): e(f"v_sub_f32 v{ML8+2*w}, v{ML8+2*w}, v{T0}")
        for w in range(8): e(f"v_exp_f32 v{ML8+2*w}, v{ML8+2*w}")
    e(f"s_cmp_lt_u32 {S_W}, 4"); e(f"s_cbranch_scc1 {Lp}")
    e.cond_depth += 1
    for i in range(4): e(f"ds_read_b128 {vr(ML8+4*i)}, v{MA} offset:{L_MX + 16*i}")
    for w in range(8): e(f"ds_read_b128 {vr(ACC+4*w)}, v{RA} offset:{L_ORED - 4096 + w*4096}")
    e("s_waitcnt lgkmcnt(8)")
    wg_factors()
    e(f"v_mul_f32 v{T2}, v{ML8+1}, v{ML8}")
    e(f"v_mul_f32 v{T3}, v{ML8+3}, v{ML8+2}")
    for w in range(2, 8): e(f"v_fmac_f32 v{T2 + (w & 1)}, v{ML8+2*w+1}, v{ML8+2*w}")
    e(f"v_add_f32 v{T2}, v{T2}, v{T3}")
    e(f"v_log_f32 v{T3}, v{T2}")
    e(f"v_rcp_f32 v{T2}, v{T2}")
    for w in range(8):
        e(f"s_waitcnt lgkmcnt({7-w})")
        for c in range(0, 4, 2):
            if w == 0: e(f"v_pk_mul_f32 {vr(ACC+c,2)}, {vr(ACC+c,2)}, {vr(ML8,2)} op_sel_hi:[1,0]")
            else: e(f"v_pk_fma_f32 {vr(ACC+c,2)}, {vr(ACC+4*w+c,2)}, {vr(ML8+2*w,2)}, {vr(ACC+c,2)} op_sel_hi:[1,0,1]")
        if w == 1:
            e(f"v_add_f32 v{T3}, v{T3}, v{T0}")
            e(f"v_lshrrev_b32 v{T3}, v{SH4}, v{T3}")
    for c in range(0, 4, 2): e(f"v_pk_mul_f32 {vr(ACC+c,2)}, {vr(ACC+c,2)}, {vr(T2,2)} op_sel_hi:[1,0]")
    tagput(ACC+4, [ACC, ACC+1, ACC+2])
    e(f"v_perm_b32 v{ACC+7}, v{ACC+3}, v{T3}, {S_TI[0]}")
    e(f"buffer_store_dwordx4 {vr(ACC+4)}, v{GA}, {R_WS}, s100 offen sc1", tag="pubO")
    e.cond_depth -= 1
    e.label(Lp)
    stamp(9)
    if dbgt:
        e("s_memrealtime s[16:17]"); e("s_waitcnt lgkmcnt(0)")
    def late_dn(L):
        for jj in range(8 - L, 8):
            e(f"s_add_u32 s76, {S_DNB}, {(8*(jj&3) + (jj>>2))*2048}")
            e(f"buffer_load_dwordx4 {vr(SLOT(0)+4*jj)}, v{V_DN}, {R_DN}, s76 offen nt", tag="dn2")
        for p in range((8 - L) // 2, 4):
            e(f"s_waitcnt vmcnt({6-2*p})")
            for d in range(4):
                for x in range(2):
                    e(f"v_perm_b32 v{WP+4*(2*d+x)+p}, v{SLOT(0)+4*(2*p+1)+d}, v{SLOT(0)+4*(2*p)+d}, {S_HI if x else S_LO}")
    if pbar: e("s_barrier")
    LF = newlab("ftype")
    e(f"s_cmp_eq_u32 {S_TYPE}, 1"); e(f"s_cbranch_scc1 {LF}")
    e.cond_depth += 1
    OG, MG = ACC + 16, ACC + 24
    def o_issue():
        e(f"buffer_load_dwordx4 {vr(OG)}, v{VO}, {R_WS}, s78 offen sc1", tag="og")
        e(f"buffer_load_dwordx4 {vr(OG+4)}, v{VO}, {R_WS}, s79 offen sc1", tag="og")
    def o_check():
        e(f"v_perm_b32 v{T3}, v{OG+1}, v{OG}, {S_G2}")
        e(f"v_perm_b32 v{T4}, v{OG+5}, v{OG+4}, {S_G2}")
        e(f"v_perm_b32 v{T3}, v{OG+2}, v{T3}, s21")
        e(f"v_perm_b32 v{T4}, v{OG+6}, v{T4}, s21")
        e(f"v_xor_b32 v{T3}, s20, v{T3}"); e(f"v_xor_b32 v{T4}, s20, v{T4}")
        e(f"v_or_b32 v{T5}, v{T3}, v{T4}")
    if EA:
        if not LA: e("s_waitcnt vmcnt(0)")
        else: e("s_waitcnt vmcnt(0)")
        for p in range((8 - LA - EA) // 2, (8 - LA) // 2):
            for d in range(4):
                for x in range(2):
                    e(f"v_perm_b32 v{WP+4*(2*d+x)+p}, v{SLOT(2)+4*(2*p+1)+d}, v{SLOT(2)+4*(2*p)+d}, {S_HI if x else S_LO}")
    late_dn(LA)
    if THO:
        with cond(f"s_cmp_lg_u32 {S_W}, 0", "s_cbranch_scc1"):
            Lr, Lx = newlab("so"), newlab("sox")
            e("s_mov_b32 exec_lo, 0x01010101"); e("s_mov_b32 exec_hi, 0x01010101")
            e(f"s_mov_b32 {S_CNT}, 0")
            e.label(Lr)
            e(f"buffer_load_dwordx4 {vr(OG)}, v{VO}, {R_WS}, s78 offen sc1", tag="og")
            e(f"s_add_u32 {S_CNT}, {S_CNT}, 1"); e(f"s_cmp_gt_u32 {S_CNT}, {POLL_LIMIT}")
            e("s_waitcnt vmcnt(0)")
            e(f"s_cbranch_scc1 {Lx}")
            e(f"v_perm_b32 v{T3}, v{OG+1}, v{OG}, {S_G2}")
            e(f"v_perm_b32 v{T3}, v{OG+2}, v{T3}, s21")
            e(f"v_cmp_eq_u32 vcc, s20, v{T3}")
            e("s_bcnt1_i32_b64 s7, vcc")
            e(f"s_cmp_ge_u32 s7, {THO}"); e(f"s_cbranch_scc1 {Lx}")
            e("s_sleep 1")
            e(f"s_branch {Lr}")
            e.label(Lx)
            e("s_mov_b64 exec, -1")
        e("s_barrier")
    with cond(f"s_cmp_ge_u32 {S_W}, 4", "s_cbranch_scc1"):
        if dly_o and not THO: e(f"s_sleep {dly_o}")
        o_issue()
        poll(o_issue, o_check, lambda: e("s_waitcnt vmcnt(0)"), "o", sleep=slp_o)
        stamp(10)
        for i in range(2): e(f"v_and_b32 v{MG+i}, 0xff, v{OG+4*i+3}")
        for i in range(2): e(f"v_lshlrev_b32 v{MG+i}, v{SH4}, v{MG+i}")
        untag(range(OG, OG+4))
        for i in range(2): dpp("v_or_b32", MG+i, MG+i, MG+i, "quad_perm:[1,0,3,2]")
        untag(range(OG+4, OG+8))
        for i in range(2): dpp("v_or_b32", MG+i, MG+i, MG+i, "quad_perm:[2,3,0,1]")
        e(f"v_max_f32 v{T0}, v{MG}, v{MG+1}")
        xlane("v_max_f32", [T0], [T1], ["r4", "r8", "p16", "p32"])
        for i in range(2): e(f"v_sub_f32 v{MG+i}, v{MG+i}, v{T0}")
        for i in range(2): e(f"v_exp_f32 v{MG+i}, v{MG+i}")
        for c in range(0, 4, 2): e(f"v_pk_mul_f32 {vr(OG+c,2)}, {vr(OG+c,2)}, {vr(MG,2)} op_sel_hi:[1,0]")
        for c in range(0, 4, 2): e(f"v_pk_fma_f32 {vr(OG+c,2)}, {vr(OG+4+c,2)}, {vr(MG,2)}, {vr(OG+c,2)} op_sel:[0,1,0] op_sel_hi:[1,1,1]")
        e(f"v_add_f32 v{T1}, v{MG}, v{MG+1}")
        e(f"v_mov_b32 v{T4}, v{T1}")
        e(f"v_permlane32_swap_b32 v{OG}, v{OG+2}"); e(f"v_permlane32_swap_b32 v{OG+1}, v{OG+3}"); e(f"v_permlane32_swap_b32 v{T1}, v{T4}")
        e(f"v_add_f32 v{T1}, v{T1}, v{T4}"); e(f"v_add_f32 v{OG}, v{OG}, v{OG+2}"); e(f"v_add_f32 v{OG+1}, v{OG+1}, v{OG+3}")
        e(f"v_mov_b32 v{T4}, v{T1}")
        e(f"v_permlane16_swap_b32 v{OG}, v{OG+1}"); e(f"v_permlane16_swap_b32 v{T1}, v{T4}")
        e(f"v_add_f32 v{OG}, v{OG}, v{OG+1}"); e(f"v_add_f32 v{T1}, v{T1}, v{T4}")
        for st in (8, 4):
            dpp("v_add_f32", OG, OG, OG, f"row_ror:{st}"); dpp("v_add_f32", T1, T1, T1, f"row_ror:{st}")
        e(f"v_rcp_f32 v{T0}, v{T1}")
        e(f"v_mul_f32 v{OG}, v{OG}, v{T0}")
        e(f"v_cvt_pk_bf16_f32 v{OG}, v{OG}, v{OG}")
        e("s_mov_b32 exec_lo, 0x000f000f"); e("s_mov_b32 exec_hi, 0x000f000f")
        e(f"ds_write_b16 v{OLW}, v{OG} offset:{L_OL}")
        e("s_mov_b64 exec, -1")
        e("s_waitcnt lgkmcnt(0)")
    e("s_barrier")
    e(f"ds_read_b128 {vr(AD)}, v{ADA} offset:{L_OL}")
    e("s_waitcnt lgkmcnt(0)")
    down_mfma_publish(AD, WP, ACC, SLOT(3))
    stamp(11)
    e("s_branch L_fini")
    e.label(LF)
    if late_ffn:
      with cond(f"s_cmp_eq_u32 {S_HASF}, 0", "s_cbranch_scc1"):
        e(f"ds_read_b128 {vr(AD)}, v{ADA} offset:{L_OL}")
        late_dn(LF_)
        e("s_waitcnt lgkmcnt(0)")
        down_mfma_publish(AD, WP, SLOT(2), SLOT(3))
      stamp(11)
    VA, VX = VA3, VX3
    G = SLOT(1)
    def ga_issue(): e(f"buffer_load_dwordx4 {vr(G)}, v{VA}, {R_WS}, s16 offen sc1", tag="g")
    def tred(R):
        e(f"v_permlane32_swap_b32 v{R}, v{R+2}"); e(f"v_permlane32_swap_b32 v{R+1}, v{R+3}")
        e(f"v_add_f32 v{R}, v{R}, v{R+2}"); e(f"v_add_f32 v{R+1}, v{R+1}, v{R+3}")
        e(f"v_permlane16_swap_b32 v{R}, v{R+1}")
        e(f"v_add_f32 v{R}, v{R}, v{R+1}")
        dpp("v_add_f32", R, R, R, "row_ror:8"); dpp("v_add_f32", R, R, R, "row_ror:4")
    VL = T0
    e(f"v_lshrrev_b32 v{VL}, 4, v{V_LANE}"); e(f"v_lshl_add_u32 v{VL}, v{VL}, 2, v{VL3}")
    e("s_mov_b32 s24, 0x000f000f"); e("s_mov_b32 s25, 0x000f000f")
    Lz, Lz2 = newlab("zf"), newlab("zf2")
    e(f"s_cmp_eq_u32 {S_W}, 7"); e(f"s_cbranch_scc1 {Lz}")
    poll(gf_issue, lambda: tagcheck(GF, T3, True, T5), lambda: e("s_waitcnt vmcnt(0)"), "gf", sleep=2)
    untag(range(GF, GF+4))
    tred(GF)
    e(f"s_branch {Lz2}")
    e.label(Lz)
    e(f"v_mov_b32 v{GF}, 0")
    e.label(Lz2)
    e("s_mov_b64 exec, s[24:25]")
    e(f"ds_write_b32 v{VL}, v{GF} offset:{L_REDQ+512}")
    e("s_mov_b64 exec, -1")
    e("s_waitcnt lgkmcnt(0)")
    e("s_barrier")
    FV, XV, VR, VS = G + 8, G + 9, G + 10, G + 11
    with cond(f"s_cmp_lg_u32 {S_W}, 0", "s_cbranch_scc1"):
        e(f"v_lshlrev_b32 v{VR}, 2, v{V_LANE}")
        e(f"ds_read2_b32 {vr(G+12,2)}, v{VR} offset0:{(L_REDQ+512)//4} offset1:{(L_REDQ+512+256)//4}")
        e(f"v_and_b32 v{VS}, 12, v{V_LANE}"); e(f"v_lshlrev_b32 v{VS}, 2, v{VS}"); e(f"v_and_b32 v{T1}, 3, v{V_LANE}"); e(f"v_lshl_add_u32 v{VS}, v{T1}, 1, v{VS}")
        e(f"buffer_load_ushort v{XV}, v{VS}, {R_X}, s18 offen", tag="xq")
        e("s_waitcnt lgkmcnt(0)")
        e(f"v_add_f32 v{FV}, v{G+12}, v{G+13}")
        xlane("v_add_f32", [FV], [T1], ["p16", "p32"])
        e(f"v_cvt_pk_bf16_f32 v{FV}, v{FV}, v{FV}"); e(f"v_and_b32 v{FV}, {S_MASKH}, v{FV}")
        e("s_waitcnt vmcnt(0)")
        e(f"v_lshlrev_b32 v{XV}, 16, v{XV}")
        Lr, Lx = newlab("sp"), newlab("spx")
        e("s_mov_b32 exec_lo, 0x11111111"); e("s_mov_b32 exec_hi, 0x11111111")
        e(f"s_mov_b32 {S_CNT}, 0")
        e.label(Lr)
        ga_issue()
        e(f"s_add_u32 {S_CNT}, {S_CNT}, 1"); e(f"s_cmp_gt_u32 {S_CNT}, {POLL_LIMIT}")
        e("s_waitcnt vmcnt(0)")
        e(f"s_cbranch_scc1 {Lx}")
        tagcheck(G, T3, True, T5)
        e(f"v_cmp_eq_u32 vcc, 0, v{T5}")
        e("s_bcnt1_i32_b64 s7, vcc")
        e(f"s_cmp_ge_u32 s7, {THR}"); e(f"s_cbranch_scc1 {Lx}")
        if slp_pre: e(f"s_sleep {slp_pre}")
        e(f"s_branch {Lr}")
        e.label(Lx)
        e("s_mov_b64 exec, -1")
    e("s_barrier")
    if dly_g: e(f"s_sleep {dly_g}")
    ga_issue()
    poll(ga_issue, lambda: tagcheck(G, T3, True, T5), lambda: e("s_waitcnt vmcnt(0)"), "ga", sleep=slp_g)
    stamp(12)
    untag(range(G, G+4))
    tred(G)
    e("s_mov_b64 exec, s[24:25]")
    e(f"ds_write_b32 v{VL}, v{G} offset:{L_REDQ}")
    e("s_waitcnt lgkmcnt(0)")
    e("s_barrier")
    e(f"s_cmp_lg_u32 {S_W}, 0"); e("s_cbranch_scc1 L_fini")
    e("s_mov_b64 exec, -1")
    e(f"ds_read2_b32 {vr(G,2)}, v{VR} offset0:{L_REDQ//4} offset1:{(L_REDQ+256)//4}")
    e("s_waitcnt lgkmcnt(0)")
    e(f"v_add_f32 v{G}, v{G}, v{G+1}")
    xlane("v_add_f32", [G], [G+1], ["p16", "p32"])
    e(f"v_cvt_pk_bf16_f32 v{G}, v{G}, v{G}"); e(f"v_and_b32 v{G}, {S_MASKH}, v{G}")
    e(f"v_add_f32 v{G}, v{XV}, v{G}")
    e(f"v_cvt_pk_bf16_f32 v{G}, v{G}, v{G}"); e(f"v_and_b32 v{G}, {S_MASKH}, v{G}")
    e(f"v_add_f32 v{G}, v{G}, v{FV}")
    e(f"v_cvt_pk_bf16_f32 v{G}, v{G}, v{G}")
    e("s_mov_b64 exec, 0xffff")
    e(f"buffer_store_short v{G}, v{VS}, {R_OUT}, s18 offen")
    e(f"s_cmp_lg_u32 {S_IDX}, 0"); e("s_cbranch_scc1 L_fini")
    e("s_mov_b64 exec, 1")
    e(f"buffer_store_dword v{V_T}, off, {R_WS}, 0")
    e.cond_depth -= 1
    e.label("L_fini")
    if dbgt:
        e("s_memrealtime s[72:73]"); e("s_waitcnt lgkmcnt(0)")
        e("s_cmp_lg_u32 s3, 0"); e("s_cbranch_scc1 L_dbg1")
        e("s_atomic_umax s72, s[34:35], 4"); e("s_waitcnt lgkmcnt(0)")
        e.label("L_dbg1")
    if dbgt:
        e("s_cmp_lg_u32 s3, 0"); e("s_cbranch_scc1 L_end")
        e("s_atomic_umax s16, s[34:35], 12")
        e("s_not_b32 s72, s90"); e("s_atomic_umax s72, s[34:35], 0"); e("s_atomic_umax s90, s[34:35], 8"); e("s_waitcnt lgkmcnt(0)")
    if stamps:
        e("s_mov_b64 exec, -1")
        stamp(13)
        e("s_mov_b64 exec, 0xffff")
        e(f"v_lshlrev_b32 v{T0}, 2, v{V_LANE}")
        e("s_lshl_b32 s7, s2, 3"); e(f"s_add_u32 s7, s7, {S_W}"); e("s_lshl_b32 s7, s7, 6"); e(f"s_add_u32 s7, s7, {WS_SIZE}")
        e("s_mov_b32 s58, 0x1000000")
        e(f"buffer_store_dword v0, v{T0}, {R_WS}, s7 offen")
    e.label("L_end")
    e("s_endpgm")

    out = HEADER
    out += f"; @launch grid=(256,1,1) block=(512,1,1) lds={LDS_BYTES}\n"
    out += '.amdgcn_target "amdgcn-amd-amdhsa--gfx950"\n.text\n'
    out += f".globl {KNAME}\n.p2align 8\n.type {KNAME},@function\n{KNAME}:\n"
    out += e.text()
    out += f""".section .rodata,"a"
.p2align 6
.amdhsa_kernel {KNAME}
  .amdhsa_next_free_vgpr 256
  .amdhsa_next_free_sgpr 102
  .amdhsa_accum_offset 256
  .amdhsa_group_segment_fixed_size 0
  .amdhsa_kernarg_size 88
  .amdhsa_user_sgpr_count 2
  .amdhsa_user_sgpr_kernarg_segment_ptr 1
  .amdhsa_system_sgpr_workgroup_id_x 1
.end_amdhsa_kernel
"""
    return out

if __name__ == "__main__":
    import argparse
    ap = argparse.ArgumentParser()
    ap.add_argument("-o", default="parallel_sum__gqa_block_cached__dense_activation_silu__decode.s")
    ap.add_argument("--inf", type=int, default=5)
    ap.add_argument("--stamps", action="store_true")
    ap.add_argument("--kw", default="")
    a = ap.parse_args()
    kw = eval("dict(%s)" % a.kw)
    open(a.o, "w").write(gen(INF=a.inf, stamps=a.stamps, **kw))
```

```python
import sys
from emit import Emit
KNAME = "parallel_sum__gqa_block_cached__dense_activation_silu__decode_kernel"
HEADER = open("parallel_sum__gqa_block_cached__dense_activation_silu__decode.s.ref").read().split("; Override launch geometry")[0]

WS_QP = 0x1000
QP_B = 7680 * 4
QP_K = 2 * QP_B
WS_ML = 0x40000
WS_CT = 0x50000
WS_OP = 0x80000
WS_AP = 0x200000
WS_SIZE = 0x400000
L_REDQ = 0
L_REDH = 4096
L_Q = 8192
L_MX = 10240
L_OL = 10752
L_FA = 11008; L_FH = 11040; L_FQ = 11072
L_S2 = 0
L_S2M = 1024
L_ORED = 12288
LDS_BYTES = L_ORED + 8 * 4096
V_LANE, V_K, V_V, V_UP, V_DN, V_T, V_AL, V_ML, V_L = 1, 2, 3, 4, 5, 6, 7, 8, 9
T0, T1, T2, T3, T4, T5 = 10, 11, 12, 13, 14, 15
ACC = 16
Q0, Q1 = 48, 52
P = 56
AD = 60
SC = 64
def SLOT(k): return 96 + 32 * k
S_W, S_TYPE, S_IDX, S_T = "s3", "s4", "s5", "s6"
S_LO, S_HI = "s8", "s9"
S_TI = ["s10", "s11", "s12", "s13"]
S_G2 = "s14"
S_CNT = "s15"
R_K, R_V, R_UP, R_DN, R_WS, R_X, R_OUT, R_W1 = "s[40:43]", "s[44:47]", "s[48:51]", "s[52:55]", "s[56:59]", "s[60:63]", "s[64:67]", "s[28:31]"
S_KV, S_UPQ, S_UPH, S_DNB = "s68", "s69", "s70", "s71"
S_LOG2E, S_SCALE, S_MASKH, S_HASF, S_HASH, S_KS = "s82", "s83", "s84", "s85", "s86", "s87"
S_N8 = "s[88:89]"
S_CBH = "s39"
POLL_LIMIT = 1 << 17
def vr(a, n=4): return f"v[{a}:{a+n-1}]"

def gen(INF=5, stamps=False, NS=5, HF=8, pf=False, prio=True, slp_o=0, slp_g=0, slp_pre=2, prepoll=True, late_ffn=False, LA=0, LF_=0, pbar=False, dbgt=False, dly_o=8, dly_g=0, pre1=True, upfirst=False, lite=False, early=1, early_k=4, pmap=0, EA=8, xmode=0, THR=6, THO=6, tlb=True, tlb0=0, EF=True, fx=0):
    e = Emit()
    lab = [0]
    def newlab(p):
        lab[0] += 1
        return f"L_{p}_{lab[0]}"
    def stamp(k):
        if not stamps: return
        if lite and k not in (7, 13): return
        e("s_memrealtime s[90:91]"); e("s_waitcnt lgkmcnt(0)"); e(f"v_writelane_b32 v0, s90, {k}")
    def throttle():
        if INF: e(f"s_waitcnt vmcnt({INF-1})")
    def setprio(n):
        if prio: e(f"s_setprio {n}")
    def dpp(op, d, a, b, ctl):
        e(f"{op}_dpp v{d}, v{a}, v{b} {ctl} row_mask:0xf bank_mask:0xf")
    def xlane(op, regs, tmps, steps):
        for st in steps:
            if st[0] == "r":
                for r in regs: dpp(op, r, r, r, f"row_ror:{st[1:]}")
            else:
                for r, t in zip(regs, tmps): e(f"v_mov_b32 v{t}, v{r}")
                for r, t in zip(regs, tmps): e(f"v_permlane{st[1:]}_swap_b32 v{r}, v{t}")
                for r, t in zip(regs, tmps): e(f"{op} v{r}, v{r}, v{t}")
    def tagcheck(g, tmp, first, accum):
        e(f"v_perm_b32 v{tmp}, v{g+1}, v{g}, {S_G2}")
        e(f"v_perm_b32 v{tmp+1}, v{g+3}, v{g+2}, {S_G2}")
        e(f"v_perm_b32 v{tmp}, v{tmp+1}, v{tmp}, {S_LO}")
        if first: e(f"v_xor_b32 v{accum}, v{tmp}, v{V_T}")
        else:
            e(f"v_xor_b32 v{tmp}, v{tmp}, v{V_T}")
            e(f"v_or_b32 v{accum}, v{accum}, v{tmp}")
    def untag(regs):
        for r in regs: e(f"v_and_b32 v{r}, s23, v{r}")
    def tagput(dst, srcs):
        for i, s in enumerate(srcs): e(f"v_perm_b32 v{dst+i}, v{s}, v{V_T}, {S_TI[i]}")
    def rnd2(a, b_, tmp):
        e(f"v_cvt_pk_bf16_f32 v{tmp}, v{a}, v{b_}")
        e(f"v_lshlrev_b32 v{a}, 16, v{tmp}")
        e(f"v_and_b32 v{b_}, {S_MASKH}, v{tmp}")
    def poll(issue, check, waitfirst, name, sleep=0):
        Lr, Ld, Lx = newlab(name + "_retry"), newlab(name + "_done"), newlab(name + "_exit")
        waitfirst()
        check()
        e(f"v_cmp_ne_u32 vcc, 0, v{T5}")
        e(f"s_cbranch_vccz {Ld}")
        e(f"s_mov_b32 {S_CNT}, 0")
        e("s_mov_b64 s[80:81], exec")
        e.label(Lr)
        e("s_mov_b64 exec, vcc")
        if sleep: e(f"s_sleep {sleep}")
        e("s_nop 4")
        e.cond_depth += 1
        issue()
        e.cond_depth -= 1
        e(f"s_add_u32 {S_CNT}, {S_CNT}, 1")
        e(f"s_cmp_gt_u32 {S_CNT}, {POLL_LIMIT}")
        e("s_waitcnt vmcnt(0)")
        e(f"s_cbranch_scc1 {Lx}")
        check()
        e(f"v_cmp_ne_u32 vcc, 0, v{T5}")
        e(f"s_cbranch_vccnz {Lr}")
        e.label(Lx)
        e("s_mov_b64 exec, s[80:81]")
        e.label(Ld)
    def setflag(base, idx=None):
        if idx is None:
            e(f"s_lshl_b32 s7, {S_W}, 2"); e(f"v_mov_b32 v{T1}, s7")
        else: e(f"v_mov_b32 v{T1}, {4*idx}")
        e("s_waitcnt lgkmcnt(0)")
        e("s_mov_b64 exec, 1")
        e(f"v_mov_b32 v{T2}, 1")
        e(f"ds_write_b32 v{T1}, v{T2} offset:{base}")
        e("s_mov_b64 exec, -1")
    def waitflags(base, n, name):
        Lr, Lx = newlab(name), newlab(name + "x")
        e(f"v_and_b32 v{T1}, {n-1}, v{V_LANE}"); e(f"v_lshlrev_b32 v{T1}, 2, v{T1}")
        e(f"s_mov_b32 {S_CNT}, 0")
        e.label(Lr)
        e(f"ds_read_b32 v{T2}, v{T1} offset:{base}")
        e(f"s_add_u32 {S_CNT}, {S_CNT}, 1"); e(f"s_cmp_gt_u32 {S_CNT}, {POLL_LIMIT*4}")
        e("s_waitcnt lgkmcnt(0)")
        e(f"s_cbranch_scc1 {Lx}")
        e(f"v_cmp_ne_u32 vcc, 1, v{T2}")
        e(f"s_cbranch_vccnz {Lr}")
        e.label(Lx)
    def srd(base, lo, hi, n):
        e(f"s_mov_b32 s{base}, {lo}"); e(f"s_mov_b32 s{base+1}, {hi}"); e(f"s_mov_b32 s{base+2}, {n}"); e(f"s_mov_b32 s{base+3}, 0x00020000")
    class cond:
        def __init__(self, cmp, br):
            self.L = newlab("skip"); self.cmp = cmp if isinstance(cmp, list) else [cmp]; self.br = br
        def __enter__(self):
            for c in self.cmp:
                e(c); e(f"{self.br} {self.L}")
            e.cond_depth += 1
        def __exit__(self, *a):
            e.cond_depth -= 1; e.label(self.L)

    if stamps or dbgt: e("s_memrealtime s[90:91]")
    e("s_cmp_ge_u32 s2, 256")
    e("s_cbranch_scc1 L_end")
    e("s_load_dwordx2 s[48:49], s[0:1], 24")
    e("s_load_dwordx2 s[60:61], s[0:1], 0")
    e("s_load_dwordx4 s[16:19], s[0:1], 8")
    e("s_load_dwordx2 s[28:29], s[0:1], 48")
    setprio(3)
    e(f"v_lshrrev_b32 v{T0}, 6, v0")
    e(f"v_and_b32 v{V_LANE}, 63, v0")
    e(f"v_readfirstlane_b32 {S_W}, v{T0}")
    if stamps: e("v_mov_b32 v0, 0")
    e(f"v_lshrrev_b32 v{T0}, 3, v{V_LANE}"); e(f"v_and_b32 v{T1}, 7, v{V_LANE}"); e(f"v_lshlrev_b32 v{T1}, 4, v{T1}")
    e(f"v_lshl_add_u32 v{V_UP}, v{T0}, 15, v{T1}")
    e("s_and_b32 s7, s2, 3"); e("s_lshl_b32 s72, s7, 8"); e(f"s_lshl_b32 s73, {S_W}, 5"); e("s_add_u32 s72, s72, s73")
    e("s_lshr_b32 s73, s2, 2")
    e(f"s_lshl_b32 {S_UPQ}, s72, 13"); e("s_lshl_b32 s74, s73, 7"); e(f"s_add_u32 {S_UPQ}, {S_UPQ}, s74")
    e(f"s_mov_b32 s50, {8<<20}"); e("s_mov_b32 s51, 0x00020000"); e("s_movk_i32 s62, 4096"); e("s_mov_b32 s63, s51")
    e(f"v_lshlrev_b32 v{T3}, 5, v{V_LANE}")
    e("s_waitcnt lgkmcnt(0)")
    if stamps:
        e("v_writelane_b32 v0, s90, 15"); stamp(14)
    XF, XR = SC, SC + 16
    UPS = SLOT(4)
    def xl():
        for b in range(2):
            for hf in range(2):
                e(f"buffer_load_dwordx4 {vr(XF+8*b+4*hf)}, v{T3}, {R_X}, 0 offen offset:{b*2048+hf*16}", tag="xf")
    def ul():
        for i in range(4):
            e(f"buffer_load_dwordx4 {vr(UPS+4*i)}, v{V_UP}, {R_UP}, {S_UPQ} offen nt", tag="upq")
            if i < 3: e(f"s_add_u32 {S_UPQ}, {S_UPQ}, 8192")
    if upfirst: ul(); xl()
    else: xl(); ul()
    if pf:
        e("s_getpc_b64 s[78:79]")
        e.raw("L_pc:")
        e("s_bfe_u32 s76, s2, 0x20003"); e("s_lshl_b32 s76, s76, 3"); e(f"s_add_u32 s76, s76, {S_W}"); e("s_lshl_b32 s76, s76, 9")
        e(f"v_lshlrev_b32 v{T4}, 3, v{V_LANE}"); e(f"v_add_u32 v{T4}, s76, v{T4}")
        e(f"v_min_u32 v{T4}, L_end-L_pc-8, v{T4}")
        e(f"global_load_dwordx2 {vr(SLOT(1),2)}, v{T4}, s[78:79]", tag="pf")
    e(f"s_lshr_b32 {S_TYPE}, s2, 3"); e(f"s_xor_b32 {S_TYPE}, {S_TYPE}, s2"); e(f"s_and_b32 {S_TYPE}, {S_TYPE}, 1")
    e("s_load_dwordx2 s[56:57], s[0:1], 80")
    e(f"s_mul_i32 s76, {S_TYPE}, 24"); e("s_add_u32 s76, s76, 32")
    e("s_load_dwordx2 s[52:53], s[0:1], s76")
    e("s_load_dwordx2 s[64:65], s[0:1], 64")
    if dbgt: e("s_load_dwordx2 s[34:35], s[0:1], 72")
    e(f"v_lshlrev_b32 v{T2}, 3, v{T0}"); e("s_lshl_b32 s74, s72, 1"); e(f"v_add_u32 v{T2}, s74, v{T2}")
    for b in range(2):
        e(f"buffer_load_dwordx2 {vr(XR+2*b,2)}, v{T2}, {R_X}, 0 offen offset:{b*2048}", tag="xr")
    e(f"v_mul_u32_u24 v{V_DN}, {4*7168}, v{T0}"); e(f"v_add_u32 v{V_DN}, v{V_DN}, v{T1}")
    e("s_lshl_b32 s7, s7, 1"); e("s_add_u32 s7, s7, 1"); e("s_and_b32 s74, s73, 7")
    e("s_cmp_lg_u32 s74, s7"); e(f"s_cselect_b32 {S_HASH}, 1, 0")
    e("s_lshr_b32 s75, s73, 3"); e("s_mul_i32 s75, s75, 7"); e("s_add_u32 s75, s75, s74")
    e("s_cmp_gt_u32 s74, s7"); e(f"s_subb_u32 {S_CBH}, s75, 0")
    e(f"s_mul_i32 {S_UPH}, s72, 7168"); e(f"s_lshl_b32 s74, {S_CBH}, 7"); e(f"s_add_u32 {S_UPH}, {S_UPH}, s74")
    e(f"s_mul_i32 s30, {S_HASH}, {7<<20}"); e("s_mov_b32 s31, 0x00020000")
    def uh():
        for i in range(4):
            e(f"buffer_load_dwordx4 {vr(UPS+16+4*i)}, v{V_DN}, {R_W1}, {S_UPH} offen nt", tag="uph")
            if i < 3: e(f"s_add_u32 {S_UPH}, {S_UPH}, 7168")
    if early >= 1: uh()
    srd(40, "s16", "s17", 64 << 20)
    srd(44, "s18", "s19", 64 << 20)
    e(f"v_lshlrev_b32 v{V_V}, 4, v{V_LANE}")
    e(f"v_bfe_u32 v{T0}, v{V_LANE}, 1, 1"); e(f"v_bfe_u32 v{T1}, v{V_LANE}, 2, 2")
    e(f"v_lshl_add_u32 v{T0}, v{T0}, 2, v{T1}"); e(f"v_lshlrev_b32 v{V_K}, 8, v{T0}")
    e(f"v_lshrrev_b32 v{T1}, 4, v{V_LANE}"); e(f"v_lshl_add_u32 v{V_K}, v{T1}, 5, v{V_K}")
    e(f"v_and_b32 v{T1}, 1, v{V_LANE}"); e(f"v_lshl_add_u32 v{V_K}, v{T1}, 4, v{V_K}")
    e(f"s_lshl_b32 {S_KV}, s2, 18"); e(f"s_lshl_b32 s7, {S_W}, 12"); e(f"s_add_u32 {S_KV}, {S_KV}, s7")
    e(f"v_lshlrev_b32 v{T4}, 2, v{V_LANE}"); e(f"v_mov_b32 v{T5}, 0")
    e(f"ds_write_b32 v{T4}, v{T5} offset:{L_FA}")
    for base, n in ((56, WS_SIZE), (64, 4096)):
        e(f"s_mov_b32 s{base+2}, {n}"); e(f"s_mov_b32 s{base+3}, 0x00020000")
    e("s_waitcnt lgkmcnt(0)")
    e("s_load_dword s6, s[56:57], 0")
    e("s_barrier")
    for i in range(early_k):
        e(f"buffer_load_dwordx4 {vr(SLOT(0)+4*i)}, v{V_K}, {R_K}, {S_KV} offen offset:{(i>>1)*2048 + (i&1)*128} nt", tag="k0")
    e(f"s_mov_b32 {S_MASKH}, 0xffff0000")
    e(f"s_lshr_b32 {S_IDX}, s2, 1"); e(f"s_and_b32 s7, {S_IDX}, 7")
    e(f"s_sub_u32 s54, 8, {S_TYPE}"); e("s_lshl_b32 s54, s54, 20")
    e("s_mov_b32 s55, 0x00020000")
    e("s_cmp_lg_u32 s7, 7"); e(f"s_cselect_b32 {S_HASF}, {S_TYPE}, 0")
    e(f"s_lshr_b32 s7, {S_IDX}, 3"); e(f"s_mul_i32 s7, s7, {S_TYPE}"); e(f"s_sub_u32 {S_KS}, {S_IDX}, s7")
    e(f"s_cmp_eq_u32 {S_TYPE}, {S_HASF}")
    e("s_cselect_b32 s54, s54, 0")
    e(f"s_mov_b32 {S_LO}, 0x05040100"); e(f"s_mov_b32 {S_HI}, 0x07060302")
    for i in range(4): e(f"s_mov_b32 {S_TI[i]}, 0x{0x07060500 + i:08x}")
    e(f"s_mov_b32 {S_G2}, 0x0c0c0400"); e("s_mov_b32 s23, 0xffffff00")
    e(f"s_mov_b32 {S_LOG2E}, 0x3fb8aa3b"); e(f"s_mov_b32 {S_SCALE}, 0x3db504f3")
    e("s_mov_b32 s88, 0x00ff00ff"); e("s_mov_b32 s89, 0x00ff00ff")
    e(f"s_lshl_b32 {S_DNB}, {S_KS}, 16"); e(f"s_lshl_b32 s7, {S_W}, 8"); e(f"s_add_u32 {S_DNB}, {S_DNB}, s7")
    if tlb0:
        with cond(f"s_cmp_lg_u32 {S_W}, {tlb0 - 1}", "s_cbranch_scc1"):
            e("s_mov_b64 exec, 1")
            e(f"buffer_load_dword v{P}, off, {R_V}, {S_KV} nt", tag="tl")
            e(f"buffer_load_dword v{P+1}, off, {R_DN}, {S_DNB} nt", tag="tl")
            e(f"s_mov_b32 s7, {WS_CT + 0x8000}")
            e(f"buffer_load_dword v{P+2}, off, {R_WS}, s7", tag="tl")
            e(f"s_mov_b32 s7, {WS_SIZE - 256}")
            e(f"buffer_load_dword v{P+3}, off, {R_WS}, s7", tag="tl")
            e(f"buffer_load_dword v{AD}, off, {R_OUT}, 0", tag="tl")
            e("s_mov_b64 exec, -1")

    def kload(u, slot, i, thr=True):
        beta, t = i >> 1, i & 1
        if i % 4 == 0: e(f"s_add_u32 s74, {S_KV}, {(2*u + (beta >> 1)) * 32768}")
        if thr: throttle()
        e(f"buffer_load_dwordx4 {vr(SLOT(slot)+4*i)}, v{V_K}, {R_K}, s74 offen offset:{(beta&1)*2048 + t*128} nt", tag=f"k{u}")
    def vload(u, slot, j, thr=True):
        if j % 4 == 0: e(f"s_add_u32 s75, {S_KV}, {(2*u + (j >> 2)) * 32768}")
        if thr: throttle()
        e(f"buffer_load_dwordx4 {vr(SLOT(slot)+4*j)}, v{V_V}, {R_V}, s75 offen offset:{(j&3)*1024} nt", tag=f"v{u}")
    def issueK(u, slot, lo=0, hi=8):
        for i in range(lo, hi): kload(u, slot, i)
    def issueV(u, slot, lo=0, hi=8):
        for j in range(lo, hi): vload(u, slot, j)
    def issueDN(slot, lo=0, hi=8):
        for jj in range(lo, hi):
            a_on, f_on = jj < 8 - LA - EA, jj < 8 - LF_
            e(f"s_add_u32 s76, {S_DNB}, {(8*(jj&3) + (jj>>2))*2048}")
            if not a_on and not f_on: e("s_mov_b32 s76, 0x40000000")
            elif a_on != f_on:
                e(f"s_cmp_eq_u32 {S_TYPE}, {0 if a_on else 1}"); e("s_cselect_b32 s76, s76, 0x40000000")
            throttle()
            e(f"buffer_load_dwordx4 {vr(SLOT(slot)+4*jj)}, v{V_DN}, {R_DN}, s76 offen nt", tag="dn")

    stamp(0)
    U = SLOT(3)
    e.wait_vm("xf")
    if early < 1: uh()
    pend = [("k", i) for i in range(early_k, 8)] + [("v", j) for j in range(8)]
    def more(n):
        for _ in range(n):
            if not pend: return
            t, i = pend.pop(0)
            if t == "k":
                if i % 4 and i == early_k: e(f"s_mov_b32 s74, {S_KV}")
                kload(0, 0, i)
            else: vload(0, 1, i)
    for b in range(2):
        for d in range(8):
            e(f"v_lshlrev_b32 v{U+16*b+2*d}, 16, v{XF+8*b+d}")
            e(f"v_and_b32 v{U+16*b+2*d+1}, {S_MASKH}, v{XF+8*b+d}")
    SUM = [T0, T1]; TMP = [T2, T3]; VAR = [T4, T5]
    for b in range(2):
        e(f"v_pk_add_f32 {vr(XF+4*b,2)}, {vr(U+16*b,2)}, {vr(U+16*b+2,2)}")
        e(f"v_pk_add_f32 {vr(XF+4*b+2,2)}, {vr(U+16*b+4,2)}, {vr(U+16*b+6,2)}")
    for i in range(4, 8):
        for b in range(2):
            e(f"v_pk_add_f32 {vr(XF+4*b+2*(i&1),2)}, {vr(XF+4*b+2*(i&1),2)}, {vr(U+16*b+2*i,2)}")
    for b in range(2): e(f"v_pk_add_f32 {vr(XF+4*b,2)}, {vr(XF+4*b,2)}, {vr(XF+4*b+2,2)}")
    for b in range(2): e(f"v_add_f32 v{SUM[b]}, v{XF+4*b}, v{XF+4*b+1}")
    xlane("v_add_f32", SUM, TMP, ["r8", "r4", "r2", "r1", "p16", "p32"])
    for b in range(2): e(f"v_mul_f32 v{SUM[b]}, 0x3a800000, v{SUM[b]}")
    more(2)
    for i in range(8):
        for b in range(2):
            e(f"v_pk_add_f32 {vr(U+16*b+2*i,2)}, {vr(U+16*b+2*i,2)}, {vr(T0,2)} op_sel:[0,{b}] op_sel_hi:[1,{b}] neg_lo:[0,1] neg_hi:[0,1]")
    for b in range(2): e(f"v_pk_mul_f32 {vr(XF+4*b,2)}, {vr(U+16*b,2)}, {vr(U+16*b,2)}")
    for i in range(1, 8):
        for b in range(2): e(f"v_pk_fma_f32 {vr(XF+4*b,2)}, {vr(U+16*b+2*i,2)}, {vr(U+16*b+2*i,2)}, {vr(XF+4*b,2)}")
    for b in range(2): e(f"v_add_f32 v{VAR[b]}, v{XF+4*b}, v{XF+4*b+1}")
    xlane("v_add_f32", VAR, TMP, ["r8", "r4", "r2", "r1", "p16", "p32"])
    more(2)
    for b in range(2): e(f"v_mul_f32 v{VAR[b]}, 0x3a800000, v{VAR[b]}")
    rnd2(SUM[0], SUM[1], T2)
    rnd2(VAR[0], VAR[1], T3)
    for b in range(2): e(f"v_add_f32 v{VAR[b]}, 0x3727c5ac, v{VAR[b]}")
    rnd2(VAR[0], VAR[1], T3)
    for b in range(2): e(f"v_sqrt_f32 v{VAR[b]}, v{VAR[b]}")
    rnd2(VAR[0], VAR[1], T3)
    for b in range(2): e(f"v_rcp_f32 v{VAR[b]}, v{VAR[b]}")
    XN = ACC + 16
    e.wait_vm("xr")
    for b in range(2):
        for d in range(2):
            e(f"v_lshlrev_b32 v{XN+4*b+2*d}, 16, v{XR+2*b+d}")
            e(f"v_and_b32 v{XN+4*b+2*d+1}, {S_MASKH}, v{XR+2*b+d}")
    for b in range(2):
        for i in range(4): e(f"v_sub_f32 v{XN+4*b+i}, v{XN+4*b+i}, v{SUM[b]}")
    for d in range(4): rnd2(XN+2*d, XN+2*d+1, U+d)
    for b in range(2):
        for i in range(4): e(f"v_mul_f32 v{XN+4*b+i}, v{XN+4*b+i}, v{VAR[b]}")
    for d in range(4): rnd2(XN+2*d, XN+2*d+1, U+d)
    e("s_waitcnt lgkmcnt(0)")
    e(f"s_mul_i32 {S_T}, {S_T}, 1664525"); e(f"s_add_u32 {S_T}, {S_T}, 1013904223")
    e(f"v_mov_b32 v{V_T}, {S_T}")
    stamp(1)
    e(f"v_lshrrev_b32 v{T0}, 5, v{V_LANE}"); e(f"v_lshlrev_b32 v{T0}, 8, v{T0}")
    e(f"v_and_b32 v{T1}, 7, v{V_LANE}"); e(f"v_lshl_add_u32 v{T0}, v{T1}, 5, v{T0}")
    e(f"v_and_b32 v{T1}, 16, v{V_LANE}"); e(f"v_add_u32 v{T0}, v{T0}, v{T1}")
    e(f"s_lshl_b32 s7, {S_W}, 9"); e(f"v_add_u32 v{V_AL}, s7, v{T0}")
    def up_compute(src, tag, lbase, fbase, between):
        for i in range(4):
            e.wait_vm_idx(tag, i)
            for d in range(4):
                e(f"v_lshlrev_b32 v{U+2*d}, 16, v{src+4*i+d}")
                e(f"v_and_b32 v{U+2*d+1}, {S_MASKH}, v{src+4*i+d}")
            for b in range(2):
                for c in range(0, 8, 2):
                    xr = XN + 4*b + i
                    base = xr & ~1; sel = xr & 1
                    if i == 0: e(f"v_pk_mul_f32 {vr(ACC+8*b+c,2)}, {vr(U+c,2)}, {vr(base,2)} op_sel:[0,{sel}] op_sel_hi:[1,{sel}]")
                    else: e(f"v_pk_fma_f32 {vr(ACC+8*b+c,2)}, {vr(U+c,2)}, {vr(base,2)}, {vr(ACC+8*b+c,2)} op_sel:[0,{sel},0] op_sel_hi:[1,{sel},1]")
            between(i)
        for c in range(8): e(f"v_permlane32_swap_b32 v{ACC+c}, v{ACC+8+c}")
        for c in range(8): e(f"v_add_f32 v{ACC+c}, v{ACC+c}, v{ACC+8+c}")
        for c in range(4): e(f"v_permlane16_swap_b32 v{ACC+c}, v{ACC+4+c}")
        for c in range(4): e(f"v_add_f32 v{ACC+c}, v{ACC+c}, v{ACC+4+c}")
        for c in range(4): dpp("v_add_f32", ACC+c, ACC+c, ACC+c, "row_ror:8")
        e(f"ds_write_b128 v{V_AL}, {vr(ACC)} offset:{lbase}")
        setflag(fbase)
    def up_publish(lbase, fbase, colreg_expr, name):
        waitflags(fbase, 8, name)
        e("s_mov_b32 exec_hi, 0")
        for w in range(8): e(f"ds_read_b128 {vr(U+4*w)}, v{V_V} offset:{lbase + w*512}")
        e(f"v_lshrrev_b32 v{T0}, 4, v{V_LANE}"); e(f"v_mul_u32_u24 v{T0}, {QP_B}, v{T0}")
        e(f"v_and_b32 v{T1}, 15, v{V_LANE}"); e(f"v_lshl_add_u32 v{T0}, v{T1}, 4, v{T0}")
        e("s_and_b32 s7, s2, 3"); e(f"s_mul_i32 s7, s7, {QP_K}")
        colreg_expr()
        e("s_add_u32 s7, s7, s72")
        e("s_waitcnt lgkmcnt(0)")
        for w in range(1, 8):
            e(f"v_pk_add_f32 {vr(U,2)}, {vr(U,2)}, {vr(U+4*w,2)}"); e(f"v_pk_add_f32 {vr(U+2,2)}, {vr(U+2,2)}, {vr(U+4*w+2,2)}")
        for c in range(4): e(f"v_add_u32 v{U+c}, 0x80, v{U+c}")
        tagput(U+4, [U, U+1, U+2, U+3])
        e(f"buffer_store_dwordx4 {vr(U+4)}, v{T0}, {R_WS}, s7 offen sc1", tag="pub")
        e("s_mov_b64 exec, -1")
    up_compute(UPS, "upq", L_REDQ, L_FA, lambda i: None)
    stamp(2)
    with cond(f"s_cmp_lg_u32 {S_W}, 7", "s_cbranch_scc1"):
        up_publish(L_REDQ, L_FA, lambda: (e("s_lshr_b32 s72, s2, 2"), e("s_lshl_b32 s72, s72, 8"), e(f"s_add_u32 s72, s72, {WS_QP}")), "wfa")
    stamp(3)
    setprio(2)
    e("s_lshr_b32 s7, s2, 3"); e("s_lshl_b32 s7, s7, 8"); e(f"s_add_u32 s7, s7, {WS_CT}")
    e("s_add_u32 s92, s56, s7"); e("s_addc_u32 s93, s57, 0")
    e("s_and_b32 s72, s2, 7"); e(f"s_or_b32 s72, s72, {S_W}")
    with cond("s_cmp_lg_u32 s72, 0", "s_cbranch_scc1"):
        e("s_mov_b64 exec, 1")
        e(f"v_mov_b32 v{U+8}, 0"); e(f"v_mov_b32 v{U+9}, {S_T}")
        e(f"buffer_store_dwordx2 {vr(U+8,2)}, off, {R_WS}, s7 sc1", tag="ct")
        e("s_mov_b64 exec, -1")
    up_compute(UPS+16, "uph", L_REDH, L_FH, lambda i: more(1))
    e(f"v_lshrrev_b32 v{T0}, 4, v{V_LANE}"); e(f"v_lshlrev_b32 v{V_DN}, 12, v{T0}")
    e(f"v_and_b32 v{T1}, 15, v{V_LANE}"); e(f"v_lshl_add_u32 v{V_DN}, v{T1}, 4, v{V_DN}")
    more(16)
    with cond([f"s_cmp_lg_u32 {S_W}, 6", f"s_cmp_eq_u32 {S_HASH}, 0"], "s_cbranch_scc1"):
        up_publish(L_REDH, L_FH, lambda: (e(f"s_lshl_b32 s72, {S_CBH}, 8"), e(f"s_add_u32 s72, s72, {WS_QP + 4096*4}")), "wfh")
    issueK(1, 2)
    if EF:
        issueV(1, 3, 0, 4)
        setprio(1)
    else:
        issueV(1, 3)
        setprio(1)
        issueDN(4, 0, 4)
    QG = SC
    e("s_lshr_b32 s77, s2, 7"); e(f"s_mul_i32 s77, s77, {QP_B}")
    e("s_lshr_b32 s7, s2, 5"); e("s_and_b32 s7, s7, 3"); e("s_lshl_b32 s7, s7, 12"); e("s_add_u32 s77, s77, s7")
    e(f"s_lshl_b32 s7, {S_W}, 10"); e("s_add_u32 s77, s77, s7"); e(f"s_add_u32 s77, s77, {WS_QP}")
    e(f"s_add_u32 s78, s77, {2*QP_K}")
    VQ2 = Q0
    e(f"v_add_u32 v{VQ2}, {QP_K}, v{V_V}")
    def q_issue():
        for kq in range(4):
            e(f"buffer_load_dwordx4 {vr(QG+4*kq)}, v{VQ2 if kq & 1 else V_V}, {R_WS}, s{77 + (kq >> 1)} offen sc1", tag="qp")
    def q_check():
        for kq in range(4): tagcheck(QG+4*kq, T3, kq == 0, T5)
    VH = Q0 + 1
    e(f"v_lshrrev_b32 v{T0}, 3, v{V_LANE}"); e(f"v_mul_u32_u24 v{VH}, {QP_B}, v{T0}")
    e(f"v_and_b32 v{T1}, 7, v{V_LANE}"); e(f"v_lshl_add_u32 v{VH}, v{T1}, 4, v{VH}")
    e(f"s_lshl_b32 s79, {S_KS}, 7"); e(f"s_add_u32 s79, s79, {WS_QP + 4096*4}")
    def h_issue(): e(f"buffer_load_dwordx4 {vr(QG)}, v{VH}, {R_WS}, s79 offen sc1", tag="hp")
    def h_check(): tagcheck(QG, T3, True, T5)
    with cond(f"s_cmp_ge_u32 {S_W}, 4", "s_cbranch_scc1"): q_issue()
    with cond([f"s_cmp_lg_u32 {S_W}, 4", f"s_cmp_eq_u32 {S_HASF}, 0"], "s_cbranch_scc1"): h_issue()
    if EF: issueV(1, 3, 4, 8)
    else: issueDN(4, 4, 8)
    with cond(f"s_cmp_ge_u32 {S_W}, 4", "s_cbranch_scc1"):
        poll(q_issue, q_check, lambda: e("s_waitcnt vmcnt(4)"), "q")
        untag(range(QG, QG+16))
        for kq in range(1, 4):
            e(f"v_pk_add_f32 {vr(QG,2)}, {vr(QG,2)}, {vr(QG+4*kq,2)}"); e(f"v_pk_add_f32 {vr(QG+2,2)}, {vr(QG+2,2)}, {vr(QG+4*kq+2,2)}")
        e(f"v_cvt_pk_bf16_f32 v{QG}, v{QG}, v{QG+1}")
        e(f"v_cvt_pk_bf16_f32 v{QG+1}, v{QG+2}, v{QG+3}")
        e(f"v_lshlrev_b32 v{T0}, 3, v{V_LANE}"); e(f"s_lshl_b32 s7, {S_W}, 9"); e(f"v_add_u32 v{T0}, s7, v{T0}")
        e(f"ds_write_b64 v{T0}, {vr(QG,2)} offset:{L_Q}")
        setflag(L_FQ)
    with cond([f"s_cmp_lg_u32 {S_W}, 4", f"s_cmp_eq_u32 {S_HASF}, 0"], "s_cbranch_scc1"):
        poll(h_issue, h_check, lambda: e("s_waitcnt vmcnt(4)"), "h")
        HG = QG
        untag(range(HG, HG+4))
        xlane("v_add_f32", [HG, HG+1, HG+2, HG+3], [HG+4, HG+5, HG+6, HG+7], ["p16", "p32"])
        for d in range(2): rnd2(HG+2*d, HG+2*d+1, HG+8+d)
        for i in range(4): e(f"v_mul_f32 v{HG+8+i}, {S_LOG2E}, v{HG+i}")
        for i in range(4): e(f"v_exp_f32 v{HG+8+i}, -v{HG+8+i}")
        for i in range(4): e(f"v_add_f32 v{HG+8+i}, 1.0, v{HG+8+i}")
        for i in range(4): e(f"v_rcp_f32 v{HG+8+i}, v{HG+8+i}")
        for i in range(4): e(f"v_mul_f32 v{HG+i}, v{HG+i}, v{HG+8+i}")
        for d in range(2): e(f"v_cvt_pk_bf16_f32 v{HG+4+d}, v{HG+2*d}, v{HG+2*d+1}")
        e(f"v_and_b32 v{T0}, 1, v{V_LANE}"); e(f"v_lshlrev_b32 v{T0}, 5, v{T0}")
        e(f"v_bfe_u32 v{T1}, v{V_LANE}, 1, 2"); e(f"v_lshl_add_u32 v{T0}, v{T1}, 1, v{T0}")
        e(f"v_bfe_u32 v{T1}, v{V_LANE}, 3, 1"); e(f"v_lshl_add_u32 v{T0}, v{T1}, 6, v{T0}")
        e("s_mov_b64 exec, 0xffff")
        for d in range(2):
            e(f"ds_write_b16 v{T0}, v{HG+4+d} offset:{L_OL + 16*d}")
            e(f"ds_write_b16_d16_hi v{T0}, v{HG+4+d} offset:{L_OL + 16*d + 8}")
        e("s_mov_b64 exec, -1")
        setflag(L_FQ)
    stamp(4)
    e(f"v_and_b32 v{T0}, 7, v{V_LANE}"); e(f"v_lshlrev_b32 v{T0}, 8, v{T0}")
    e(f"v_lshrrev_b32 v{T1}, 4, v{V_LANE}"); e(f"v_lshl_add_u32 v{T0}, v{T1}, 5, v{T0}")
    e(f"v_bfe_u32 v{T1}, v{V_LANE}, 3, 1"); e(f"v_lshl_add_u32 v{T0}, v{T1}, 4, v{T0}")
    waitflags(L_FQ, 4, "wfq")
    e(f"ds_read_b128 {vr(Q0)}, v{T0} offset:{L_Q}")
    e(f"ds_read_b128 {vr(Q1)}, v{T0} offset:{L_Q+128}")
    stamp(5)

    def S_phase(u, slot):
        K = SLOT(slot)
        e.wait_vm(f"k{u}", " lgkmcnt(0)" if u == 0 else "")
        for t in range(2):
            for beta in range(4):
                c = "0" if t == 0 else vr(SC+4*beta)
                e(f"v_mfma_f32_16x16x32_bf16 {vr(SC+4*beta)}, {vr(K+8*beta+4*t)}, {vr(Q0 if t == 0 else Q1)}, {c}")
        yield
        S = SC + 16
        for beta in range(4):
            for eps in range(2):
                dpp("v_add_f32", S+2*beta+eps, SC+4*beta+2*eps+1, SC+4*beta+2*eps, "row_ror:8")
        for d in range(4): rnd2(S+2*d, S+2*d+1, SC+24+d)
        for i in range(8): e(f"v_mul_f32 v{S+i}, {S_SCALE}, v{S+i}")
        for d in range(4): rnd2(S+2*d, S+2*d+1, SC+24+d)
        e(f"v_max3_f32 v{T0}, v{S}, v{S+1}, v{S+2}")
        e(f"v_max3_f32 v{T1}, v{S+3}, v{S+4}, v{S+5}")
        e(f"v_max3_f32 v{T0}, v{T0}, v{S+6}, v{S+7}")
        e(f"v_max_f32 v{T0}, v{T0}, v{T1}")
        xlane("v_max_f32", [T0], [T1], ["p16", "p32"])
        e(f"v_mul_f32 v{T0}, {S_LOG2E}, v{T0}")
        if u > 0:
            e(f"v_max_f32 v{T0}, v{T0}, v{V_ML}")
            e(f"v_sub_f32 v{V_AL}, v{V_ML}, v{T0}")
            e(f"v_exp_f32 v{V_AL}, v{V_AL}")
        e(f"v_mov_b32 v{V_ML}, v{T0}")
        for i in range(8): e(f"v_fma_f32 v{S+i}, v{S+i}, {S_LOG2E}, -v{T0}")
        for i in range(8): e(f"v_exp_f32 v{S+i}, v{S+i}")
        if u > 0:
            e(f"v_mul_f32 v{V_L}, v{V_L}, v{V_AL}")
            for i in range(32): e(f"v_mul_f32 v{ACC+i}, v{ACC+i}, v{V_AL}")
        for d in range(4): e(f"v_cvt_pk_bf16_f32 v{P+d}, v{S+2*d}, v{S+2*d+1}")
        if u == 0: e(f"v_add_f32 v{V_L}, v{S}, v{S+1}")
        else:
            e(f"v_add_f32 v{V_L}, v{V_L}, v{S}"); e(f"v_add_f32 v{V_L}, v{V_L}, v{S+1}")
        for i in range(2, 8): e(f"v_add_f32 v{V_L}, v{V_L}, v{S+i}")
        yield
    def perms32(src, dst):
        for p in range(4):
            for d in range(4):
                for x in range(2):
                    e(f"v_perm_b32 v{dst+4*(2*d+x)+p}, v{src+4*(2*p+1)+d}, v{src+4*(2*p)+d}, {S_HI if x else S_LO}")
    def PV_phase(u, slot):
        e.wait_vm(f"v{u}")
        perms32(SLOT(slot), SC)
        for ee in range(8):
            c = "0" if u == 0 else vr(ACC+4*ee)
            e(f"v_mfma_f32_16x16x32_bf16 {vr(ACC+4*ee)}, {vr(SC+4*ee)}, {vr(P)}, {c}")
    KB, VB = SLOT(0), SLOT(0) + 16
    WP = SLOT(1)
    def tileK(sreg, tag, sreg2=None):
        for i in range(4):
            e(f"buffer_load_dwordx4 {vr(KB+4*i)}, v{V_K}, {R_K}, {sreg if (i < 2 or not sreg2) else sreg2} offen offset:{(i>>1)*2048 + (i&1)*128} nt", tag=tag)
    def tileV(sreg, tag, sreg2=None):
        for j in range(4):
            e(f"buffer_load_dwordx4 {vr(VB+4*j)}, v{V_V}, {R_V}, {sreg if (j < 2 or not sreg2) else sreg2} offen offset:{j*1024} nt", tag=tag)
    def down_mfma_publish(A, W, D, ST):
        for ee in range(8):
            e(f"v_mfma_f32_16x16x32_bf16 {vr(D+4*ee)}, {vr(A)}, {vr(W+4*ee)}, 0")
        e("s_mov_b64 exec, 0xffff")
        for q4 in range(4):
            b, eh = q4 >> 1, q4 & 1
            tagput(ST+4*q4, [D+4*(4*eh+i)+b for i in range(4)])
            e(f"buffer_store_dwordx4 {vr(ST+4*q4)}, v{V_V}, {R_WS}, s38 offen offset:{q4*256} sc1", tag="pubD")
        e("s_mov_b64 exec, -1")
    g = S_phase(0, 0); next(g)
    e("s_load_dwordx2 s[94:95], s[92:93], 0 glc")
    e(f"s_add_u32 s74, {S_KV}, {4*32768}")
    tileK("s74", "k4"); tileV("s74", "v4")
    next(g)
    PV_phase(0, 1)
    Lc1, Lc2 = newlab("ctpoll"), newlab("ctok")
    e(f"s_mov_b32 {S_CNT}, 0")
    e.label(Lc1)
    e("s_waitcnt lgkmcnt(0)")
    e(f"s_cmp_eq_u32 s95, {S_T}"); e(f"s_cbranch_scc1 {Lc2}")
    e(f"s_add_u32 {S_CNT}, {S_CNT}, 1"); e(f"s_cmp_gt_u32 {S_CNT}, {POLL_LIMIT}"); e(f"s_cbranch_scc1 {Lc2}")
    e("s_load_dwordx2 s[94:95], s[92:93], 0 glc")
    e(f"s_branch {Lc1}")
    e.label(Lc2)
    S_NX, S_ST = "s96", "s97"
    def grab():
        e(f"s_mov_b32 {S_NX}, 1")
        e(f"s_atomic_add {S_NX}, s[92:93], 0 glc")
    for _ in S_phase(1, 2): pass
    PV_phase(1, 3)
    if not EF:
        e.wait_vm("dn")
        perms32(SLOT(4), WP)
    WA = SLOT(4)
    e(f"v_and_b32 v{T0}, 15, v{V_LANE}"); e(f"v_mul_u32_u24 v{WA}, {512+16}, v{T0}")
    e(f"v_lshrrev_b32 v{T1}, 4, v{V_LANE}"); e(f"v_lshl_add_u32 v{WA}, v{T1}, 7, v{WA}")
    e(f"s_lshl_b32 s7, {S_W}, 12"); e(f"v_add_u32 v{WA}, s7, v{WA}")
    for ee in range(1, 8): e(f"v_xor_b32 v{WA+ee}, {ee*16}, v{WA}")
    RA, GA, VO, VM, MA, MW, ADA, OLW = WA + 8, WA + 9, WA + 10, WA + 11, WA + 12, WA + 13, WA + 14, WA + 15
    e(f"s_lshl_b32 s7, {S_W}, 6"); e(f"v_add_u32 v{T0}, s7, v{V_LANE}")
    e(f"v_lshlrev_b32 v{GA}, 4, v{T0}")
    e(f"v_lshrrev_b32 v{T1}, 5, v{T0}"); e(f"v_and_b32 v{T1}, 7, v{T1}"); e(f"v_lshlrev_b32 v{MA}, 6, v{T1}"); e(f"v_lshlrev_b32 v{T1}, 4, v{T1}")
    e(f"v_xor_b32 v{RA}, v{GA}, v{T1}")
    e(f"v_lshlrev_b32 v{MW}, 6, v{V_LANE}"); e(f"s_lshl_b32 s7, {S_W}, 3"); e(f"v_add_u32 v{MW}, s7, v{MW}")
    e(f"v_and_b32 v{T0}, 1, v{V_LANE}"); e(f"v_lshlrev_b32 v{T0}, 6, v{T0}")
    e(f"v_and_b32 v{T1}, 48, v{V_LANE}"); e(f"v_add_u32 v{ADA}, v{T0}, v{T1}")
    e(f"s_and_b32 s7, {S_W}, 1"); e("s_lshl_b32 s7, s7, 6"); e(f"s_lshr_b32 s78, {S_W}, 1"); e("s_lshl_b32 s78, s78, 5"); e("s_add_u32 s7, s7, s78")
    e(f"v_and_b32 v{OLW}, 3, v{V_LANE}"); e(f"v_lshlrev_b32 v{OLW}, 3, v{OLW}"); e(f"v_lshrrev_b32 v{T0}, 4, v{V_LANE}"); e(f"v_lshl_add_u32 v{OLW}, v{T0}, 1, v{OLW}"); e(f"v_add_u32 v{OLW}, s7, v{OLW}")
    e(f"s_lshr_b32 s7, {S_IDX}, 5"); e(f"s_and_b32 s79, {S_W}, 1"); e("s_lshl_b32 s79, s79, 2"); e("s_add_u32 s7, s7, s79"); e("s_lshl_b32 s7, s7, 17")
    e("s_lshl_b32 s78, s78, 1"); e("s_add_u32 s78, s78, s7")
    e(f"s_and_b32 s7, {S_IDX}, 31"); e("s_lshl_b32 s7, s7, 7"); e("s_add_u32 s78, s78, s7"); e(f"s_add_u32 s78, s78, {WS_OP}")
    e(f"s_add_u32 s79, s78, {16*4096}")
    e(f"v_lshrrev_b32 v{T0}, 2, v{V_LANE}"); e(f"v_and_b32 v{T1}, 3, v{V_LANE}")
    e(f"v_lshlrev_b32 v{VO}, 12, v{T0}"); e(f"v_lshl_add_u32 v{VO}, v{T1}, 4, v{VO}")
    e("s_lshl_b32 s100, s2, 12"); e(f"s_add_u32 s100, s100, {WS_OP - 4096}")
    e("s_lshl_b32 s101, s2, 7"); e(f"s_add_u32 s101, s101, {WS_ML}")
    e(f"s_lshl_b32 s38, {S_TYPE}, 7"); e(f"s_add_u32 s38, s38, {S_KS}"); e("s_lshl_b32 s38, s38, 13")
    e(f"s_lshl_b32 s7, {S_W}, 10"); e("s_add_u32 s38, s38, s7"); e(f"s_add_u32 s38, s38, {WS_AP}")
    VA3, VX3, VL3, SH4 = WA + 18, WA + 19, WA + 20, WA + 21
    GF = SLOT(3)
    XQ = SLOT(3) + 4
    e(f"v_lshrrev_b32 v{VA3}, 2, v{V_LANE}"); e(f"v_lshlrev_b32 v{VA3}, 13, v{VA3}")
    e(f"v_and_b32 v{VX3}, 3, v{V_LANE}"); e(f"v_lshlrev_b32 v{SH4}, 3, v{VX3}"); e(f"v_lshlrev_b32 v{VX3}, 4, v{VX3}"); e(f"v_add_u32 v{VA3}, v{VA3}, v{VX3}")
    e(f"s_lshl_b32 s7, {S_W}, 6"); e(f"v_add_u32 v{VL3}, s7, v{VX3}")
    e(f"s_lshl_b32 s16, {S_IDX}, 6"); e(f"s_add_u32 s16, s16, {WS_AP}"); e(f"s_lshl_b32 s7, {S_W}, 17"); e("s_add_u32 s16, s16, s7")
    e(f"s_add_u32 s17, s16, {128*8192}")
    e(f"s_lshr_b32 s7, {S_IDX}, 3"); e("s_and_b32 s7, s7, 1"); e("s_lshl_b32 s18, s7, 11")
    e(f"s_lshr_b32 s7, {S_IDX}, 4"); e("s_lshl_b32 s7, s7, 8"); e("s_add_u32 s18, s18, s7")
    e(f"s_and_b32 s7, {S_IDX}, 3"); e("s_lshl_b32 s7, s7, 6"); e("s_add_u32 s18, s18, s7")
    e(f"s_and_b32 s7, {S_IDX}, 4"); e("s_lshl_b32 s7, s7, 1"); e("s_add_u32 s18, s18, s7")
    e(f"s_cmp_lg_u32 {S_W}, 7"); e(f"s_cselect_b32 s19, {S_TYPE}, 0")
    e(f"s_and_b32 s20, {S_T}, 0xffffff"); e("s_mov_b32 s21, 0x0c040100")
    def gf_issue(): e(f"buffer_load_dwordx4 {vr(GF)}, v{VA3}, {R_WS}, s17 offen sc1", tag="g")
    FR = 64 - 8*NS - HF
    P1 = FR * 8
    POOL = P1 + HF * 16
    assert NS == 5
    e("s_and_b32 s98, s2, 0xf8"); e("s_lshl_b32 s98, s98, 18"); e(f"s_add_u32 s98, s98, {NS*8*4096}")
    if not late_ffn and not EF:
      with cond(f"s_cmp_eq_u32 {S_HASF}, 0", "s_cbranch_scc1"):
        waitflags(L_FQ + 16, 1, "wfh2")
        e(f"ds_read_b128 {vr(AD)}, v{ADA} offset:{L_OL}")
        e("s_waitcnt lgkmcnt(0)")
        down_mfma_publish(AD, WP, SLOT(2), SC)
    if tlb:
        with cond(f"s_cmp_lg_u32 {S_W}, 1", "s_cbranch_scc1"):
            e("s_mov_b64 exec, 1")
            e(f"buffer_load_dword v{SLOT(3)+8}, off, {R_DN}, {S_DNB}", tag="tl")
            e(f"buffer_load_dword v{SLOT(3)+9}, off, {R_WS}, s17", tag="tl")
            e(f"buffer_load_dword v{SLOT(3)+10}, off, {R_OUT}, s18", tag="tl")
            e("s_mov_b64 exec, -1")
    grab()
    stamp(6)
    setprio(0)
    Lloop, Lskip = newlab("loop"), newlab("noresc")
    e("s_mov_b32 s99, 0")
    e.label(Lloop)
    e("s_waitcnt vmcnt(4)")
    for t in range(2):
        for beta in range(2):
            c = "0" if t == 0 else vr(SC+4*beta)
            e(f"v_mfma_f32_16x16x32_bf16 {vr(SC+4*beta)}, {vr(KB+8*beta+4*t)}, {vr(Q0 if t == 0 else Q1)}, {c}")
    e("s_waitcnt lgkmcnt(0)")
    if pmap == 0:
        e(f"s_and_b32 s74, {S_NX}, 7"); e("s_lshl_b32 s74, s74, 18"); e("s_add_u32 s74, s74, s98")
        e(f"s_lshr_b32 s75, {S_NX}, 3"); e("s_lshl_b32 s76, s75, 12"); e("s_lshl_b32 s75, s75, 11"); e(f"s_add_u32 s75, s75, {FR*4096 - FR*2048}")
    else:
        assert FR % 8 == 0 and HF == 8
        e(f"s_and_b32 s74, {S_NX}, 7"); e("s_lshl_b32 s74, s74, 12"); e("s_add_u32 s74, s74, s98")
        e(f"s_bfe_u32 s75, {S_NX}, 0x30003"); e("s_lshl_b32 s75, s75, 18"); e("s_add_u32 s74, s74, s75")
        e(f"s_lshr_b32 s75, {S_NX}, 6"); e("s_lshl_b32 s76, s75, 15"); e("s_lshl_b32 s75, s75, 11"); e(f"s_add_u32 s75, s75, {FR*4096 - (FR//8)*2048}")
    e(f"s_cmp_lt_u32 {S_NX}, {P1}"); e("s_cselect_b32 s75, s76, s75"); e("s_cselect_b32 s77, 0, 0xff800000"); e("s_cselect_b32 s76, 0, 0x40000000")
    e("s_add_u32 s74, s74, s75"); e("s_add_u32 s76, s76, s74")
    e(f"s_cmp_lt_u32 {S_NX}, {POOL}"); e("s_cselect_b32 s74, s74, 0x40000000"); e("s_cselect_b32 s75, 1, 0")
    def dn_at(jjs):
        for jj in jjs:
            e(f"s_add_u32 s22, {S_DNB}, {(8*(jj&3) + (jj>>2))*2048}")
            e(f"buffer_load_dwordx4 {vr(SLOT(2)+4*jj)}, v{V_DN}, {R_DN}, s22 offen nt", tag="dn3")
    ea = list(range(8 - LA - EA, 8 - LA))
    ea_exit = []
    if xmode == 1: ea_exit = ea; ea = []
    if xmode == 2: ea_exit = ea[4:]; ea = ea[:4]
    if EA >= 4 and xmode == 0:
        Lk, Lk2 = newlab("kdn"), newlab("kdn2")
        e(f"s_or_b32 s22, s75, {'s75' if (EF and fx in (0, 3)) else S_TYPE}"); e(f"s_cbranch_scc1 {Lk}")
        e.cond_depth += 1; dn_at(ea[:4]); e.cond_depth -= 1
        e(f"s_branch {Lk2}")
        e.label(Lk)
        tileK("s74", "kl", "s76")
        e.label(Lk2)
        ea = ea[4:]
    else:
        tileK("s74", "kl", "s76")
    S = SC + 8
    for beta in range(2):
        for eps in range(2):
            dpp("v_add_f32", S+2*beta+eps, SC+4*beta+2*eps+1, SC+4*beta+2*eps, "row_ror:8")
    for d in range(2): rnd2(S+2*d, S+2*d+1, SC+12+d)
    for i in range(4): e(f"v_mul_f32 v{S+i}, {S_SCALE}, v{S+i}")
    for d in range(2): rnd2(S+2*d, S+2*d+1, SC+12+d)
    e(f"v_add_f32 v{S+2}, s99, v{S+2}"); e(f"v_add_f32 v{S+3}, s99, v{S+3}")
    e("s_mov_b32 s99, s77")
    e(f"v_max3_f32 v{T0}, v{S}, v{S+1}, v{S+2}")
    e(f"v_max_f32 v{T0}, v{T0}, v{S+3}")
    xlane("v_max_f32", [T0], [T1], ["p16", "p32"])
    e(f"v_mul_f32 v{T0}, {S_LOG2E}, v{T0}")
    e(f"v_cmp_gt_f32 vcc, v{T0}, v{V_ML}")
    e(f"s_and_b64 vcc, vcc, {S_N8}")
    e(f"s_cbranch_scc0 {Lskip}")
    e(f"v_max_f32 v{T0}, v{T0}, v{V_ML}")
    e(f"v_sub_f32 v{V_AL}, v{V_ML}, v{T0}")
    e(f"v_exp_f32 v{V_AL}, v{V_AL}")
    e(f"v_mov_b32 v{V_ML}, v{T0}")
    e(f"v_mul_f32 v{V_L}, v{V_L}, v{V_AL}")
    for i in range(32): e(f"v_mul_f32 v{ACC+i}, v{ACC+i}, v{V_AL}")
    e.label(Lskip)
    for i in range(4): e(f"v_fma_f32 v{S+i}, v{S+i}, {S_LOG2E}, -v{V_ML}")
    for i in range(4): e(f"v_exp_f32 v{S+i}, v{S+i}")
    for d in range(2): e(f"v_cvt_pk_bf16_f32 v{P+d}, v{S+2*d}, v{S+2*d+1}")
    for i in range(4): e(f"v_add_f32 v{V_L}, v{V_L}, v{S+i}")
    PS = SC + 16
    for p in range(2):
        e(f"s_waitcnt vmcnt({6 - 2*p})")
        for d in range(4):
            for x in range(2):
                e(f"v_perm_b32 v{PS+2*(2*d+x)+p}, v{VB+4*(2*p+1)+d}, v{VB+4*(2*p)+d}, {S_HI if x else S_LO}")
    with cond("s_cmp_eq_u32 s75, 0", "s_cbranch_scc1"):
        tileV("s74", "vl", "s76")
        grab()
    if ea:
        with cond(f"s_or_b32 s22, s75, {'s75' if (EF and fx == 0) else S_TYPE}", "s_cbranch_scc1"): dn_at(ea)
    if not EF:
      with cond("s_cmp_le_u32 s19, s75", "s_cbranch_scc1"):
        gf_issue()
    for ee in range(8):
        e(f"v_mfma_f32_16x16x16_bf16 {vr(ACC+4*ee)}, {vr(PS+2*ee,2)}, {vr(P,2)}, {vr(ACC+4*ee)}")
    e("s_cmp_lg_u32 s75, 0"); e(f"s_cbranch_scc1 {Lloop}")
    stamp(7)
    xlane("v_add_f32", [V_L], [T1], ["p16", "p32"])
    e("s_mov_b64 exec, 0xff")
    e(f"ds_write_b64 v{MW}, {vr(V_ML,2)} offset:{L_MX}")
    e(f"s_mov_b64 exec, {S_N8}")
    for ee in range(8): e(f"ds_write_b128 v{WA+ee}, {vr(ACC+4*ee)} offset:{L_ORED}")
    e("s_mov_b64 exec, -1")
    if ea_exit:
        with cond(f"s_cmp_eq_u32 {S_TYPE}, 1", "s_cbranch_scc1"): dn_at(ea_exit)
    if EF and fx in (1, 3):
        with cond(f"s_cmp_eq_u32 {S_TYPE}, 0", "s_cbranch_scc1"): dn_at(range(8) if fx == 1 else range(4, 8))
    stamp(8)
    e("s_waitcnt lgkmcnt(0)")
    e("s_barrier")
    L4, Lp = newlab("w4"), newlab("pubdone")
    ML8 = SC
    def wg_factors():
        e(f"v_max3_f32 v{T0}, v{ML8}, v{ML8+2}, v{ML8+4}")
        e(f"v_max3_f32 v{T1}, v{ML8+6}, v{ML8+8}, v{ML8+10}")
        e(f"v_max3_f32 v{T0}, v{T0}, v{ML8+12}, v{ML8+14}")
        e(f"v_max_f32 v{T0}, v{T0}, v{T1}")
        for w in range(8): e(f"v_sub_f32 v{ML8+2*w}, v{ML8+2*w}, v{T0}")
        for w in range(8): e(f"v_exp_f32 v{ML8+2*w}, v{ML8+2*w}")
    e(f"s_cmp_lt_u32 {S_W}, 4"); e(f"s_cbranch_scc1 {Lp}")
    e.cond_depth += 1
    for i in range(4): e(f"ds_read_b128 {vr(ML8+4*i)}, v{MA} offset:{L_MX + 16*i}")
    for w in range(8): e(f"ds_read_b128 {vr(ACC+4*w)}, v{RA} offset:{L_ORED - 4096 + w*4096}")
    e("s_waitcnt lgkmcnt(8)")
    wg_factors()
    e(f"v_mul_f32 v{T2}, v{ML8+1}, v{ML8}")
    e(f"v_mul_f32 v{T3}, v{ML8+3}, v{ML8+2}")
    for w in range(2, 8): e(f"v_fmac_f32 v{T2 + (w & 1)}, v{ML8+2*w+1}, v{ML8+2*w}")
    e(f"v_add_f32 v{T2}, v{T2}, v{T3}")
    e(f"v_log_f32 v{T3}, v{T2}")
    e(f"v_rcp_f32 v{T2}, v{T2}")
    for w in range(8):
        e(f"s_waitcnt lgkmcnt({7-w})")
        for c in range(0, 4, 2):
            if w == 0: e(f"v_pk_mul_f32 {vr(ACC+c,2)}, {vr(ACC+c,2)}, {vr(ML8,2)} op_sel_hi:[1,0]")
            else: e(f"v_pk_fma_f32 {vr(ACC+c,2)}, {vr(ACC+4*w+c,2)}, {vr(ML8+2*w,2)}, {vr(ACC+c,2)} op_sel_hi:[1,0,1]")
        if w == 1:
            e(f"v_add_f32 v{T3}, v{T3}, v{T0}")
            e(f"v_lshrrev_b32 v{T3}, v{SH4}, v{T3}")
    for c in range(0, 4, 2): e(f"v_pk_mul_f32 {vr(ACC+c,2)}, {vr(ACC+c,2)}, {vr(T2,2)} op_sel_hi:[1,0]")
    tagput(ACC+4, [ACC, ACC+1, ACC+2])
    e(f"v_perm_b32 v{ACC+7}, v{ACC+3}, v{T3}, {S_TI[0]}")
    e(f"buffer_store_dwordx4 {vr(ACC+4)}, v{GA}, {R_WS}, s100 offen sc1", tag="pubO")
    e.cond_depth -= 1
    e.label(Lp)
    stamp(9)
    if dbgt:
        e("s_memrealtime s[16:17]"); e("s_waitcnt lgkmcnt(0)")
    def late_dn(L):
        for jj in range(8 - L, 8):
            e(f"s_add_u32 s76, {S_DNB}, {(8*(jj&3) + (jj>>2))*2048}")
            e(f"buffer_load_dwordx4 {vr(SLOT(0)+4*jj)}, v{V_DN}, {R_DN}, s76 offen nt", tag="dn2")
        for p in range((8 - L) // 2, 4):
            e(f"s_waitcnt vmcnt({6-2*p})")
            for d in range(4):
                for x in range(2):
                    e(f"v_perm_b32 v{WP+4*(2*d+x)+p}, v{SLOT(0)+4*(2*p+1)+d}, v{SLOT(0)+4*(2*p)+d}, {S_HI if x else S_LO}")
    if pbar: e("s_barrier")
    LF = newlab("ftype")
    e(f"s_cmp_eq_u32 {S_TYPE}, 1"); e(f"s_cbranch_scc1 {LF}")
    e.cond_depth += 1
    OG, MG = ACC + 16, ACC + 24
    def o_issue():
        e(f"buffer_load_dwordx4 {vr(OG)}, v{VO}, {R_WS}, s78 offen sc1", tag="og")
        e(f"buffer_load_dwordx4 {vr(OG+4)}, v{VO}, {R_WS}, s79 offen sc1", tag="og")
    def o_check():
        e(f"v_perm_b32 v{T3}, v{OG+1}, v{OG}, {S_G2}")
        e(f"v_perm_b32 v{T4}, v{OG+5}, v{OG+4}, {S_G2}")
        e(f"v_perm_b32 v{T3}, v{OG+2}, v{T3}, s21")
        e(f"v_perm_b32 v{T4}, v{OG+6}, v{T4}, s21")
        e(f"v_xor_b32 v{T3}, s20, v{T3}"); e(f"v_xor_b32 v{T4}, s20, v{T4}")
        e(f"v_or_b32 v{T5}, v{T3}, v{T4}")
    if EA:
        if not LA: e("s_waitcnt vmcnt(0)")
        else: e("s_waitcnt vmcnt(0)")
        for p in range((8 - LA - EA) // 2, (8 - LA) // 2):
            for d in range(4):
                for x in range(2):
                    e(f"v_perm_b32 v{WP+4*(2*d+x)+p}, v{SLOT(2)+4*(2*p+1)+d}, v{SLOT(2)+4*(2*p)+d}, {S_HI if x else S_LO}")
    late_dn(LA)
    if THO:
        with cond(f"s_cmp_lg_u32 {S_W}, 0", "s_cbranch_scc1"):
            Lr, Lx = newlab("so"), newlab("sox")
            e("s_mov_b32 exec_lo, 0x01010101"); e("s_mov_b32 exec_hi, 0x01010101")
            e(f"s_mov_b32 {S_CNT}, 0")
            e.label(Lr)
            e(f"buffer_load_dwordx4 {vr(OG)}, v{VO}, {R_WS}, s78 offen sc1", tag="og")
            e(f"s_add_u32 {S_CNT}, {S_CNT}, 1"); e(f"s_cmp_gt_u32 {S_CNT}, {POLL_LIMIT}")
            e("s_waitcnt vmcnt(0)")
            e(f"s_cbranch_scc1 {Lx}")
            e(f"v_perm_b32 v{T3}, v{OG+1}, v{OG}, {S_G2}")
            e(f"v_perm_b32 v{T3}, v{OG+2}, v{T3}, s21")
            e(f"v_cmp_eq_u32 vcc, s20, v{T3}")
            e("s_bcnt1_i32_b64 s7, vcc")
            e(f"s_cmp_ge_u32 s7, {THO}"); e(f"s_cbranch_scc1 {Lx}")
            e("s_sleep 1")
            e(f"s_branch {Lr}")
            e.label(Lx)
            e("s_mov_b64 exec, -1")
        e("s_barrier")
    with cond(f"s_cmp_ge_u32 {S_W}, 4", "s_cbranch_scc1"):
        if dly_o and not THO: e(f"s_sleep {dly_o}")
        o_issue()
        poll(o_issue, o_check, lambda: e("s_waitcnt vmcnt(0)"), "o", sleep=slp_o)
        stamp(10)
        for i in range(2): e(f"v_and_b32 v{MG+i}, 0xff, v{OG+4*i+3}")
        for i in range(2): e(f"v_lshlrev_b32 v{MG+i}, v{SH4}, v{MG+i}")
        untag(range(OG, OG+4))
        for i in range(2): dpp("v_or_b32", MG+i, MG+i, MG+i, "quad_perm:[1,0,3,2]")
        untag(range(OG+4, OG+8))
        for i in range(2): dpp("v_or_b32", MG+i, MG+i, MG+i, "quad_perm:[2,3,0,1]")
        e(f"v_max_f32 v{T0}, v{MG}, v{MG+1}")
        xlane("v_max_f32", [T0], [T1], ["r4", "r8", "p16", "p32"])
        for i in range(2): e(f"v_sub_f32 v{MG+i}, v{MG+i}, v{T0}")
        for i in range(2): e(f"v_exp_f32 v{MG+i}, v{MG+i}")
        for c in range(0, 4, 2): e(f"v_pk_mul_f32 {vr(OG+c,2)}, {vr(OG+c,2)}, {vr(MG,2)} op_sel_hi:[1,0]")
        for c in range(0, 4, 2): e(f"v_pk_fma_f32 {vr(OG+c,2)}, {vr(OG+4+c,2)}, {vr(MG,2)}, {vr(OG+c,2)} op_sel:[0,1,0] op_sel_hi:[1,1,1]")
        e(f"v_add_f32 v{T1}, v{MG}, v{MG+1}")
        e(f"v_mov_b32 v{T4}, v{T1}")
        e(f"v_permlane32_swap_b32 v{OG}, v{OG+2}"); e(f"v_permlane32_swap_b32 v{OG+1}, v{OG+3}"); e(f"v_permlane32_swap_b32 v{T1}, v{T4}")
        e(f"v_add_f32 v{T1}, v{T1}, v{T4}"); e(f"v_add_f32 v{OG}, v{OG}, v{OG+2}"); e(f"v_add_f32 v{OG+1}, v{OG+1}, v{OG+3}")
        e(f"v_mov_b32 v{T4}, v{T1}")
        e(f"v_permlane16_swap_b32 v{OG}, v{OG+1}"); e(f"v_permlane16_swap_b32 v{T1}, v{T4}")
        e(f"v_add_f32 v{OG}, v{OG}, v{OG+1}"); e(f"v_add_f32 v{T1}, v{T1}, v{T4}")
        for st in (8, 4):
            dpp("v_add_f32", OG, OG, OG, f"row_ror:{st}"); dpp("v_add_f32", T1, T1, T1, f"row_ror:{st}")
        e(f"v_rcp_f32 v{T0}, v{T1}")
        e(f"v_mul_f32 v{OG}, v{OG}, v{T0}")
        e(f"v_cvt_pk_bf16_f32 v{OG}, v{OG}, v{OG}")
        e("s_mov_b32 exec_lo, 0x000f000f"); e("s_mov_b32 exec_hi, 0x000f000f")
        e(f"ds_write_b16 v{OLW}, v{OG} offset:{L_OL}")
        e("s_mov_b64 exec, -1")
        e("s_waitcnt lgkmcnt(0)")
    e("s_barrier")
    e(f"ds_read_b128 {vr(AD)}, v{ADA} offset:{L_OL}")
    e("s_waitcnt lgkmcnt(0)")
    down_mfma_publish(AD, WP, ACC, SLOT(3))
    stamp(11)
    e("s_branch L_fini")
    e.label(LF)
    if late_ffn:
      with cond(f"s_cmp_eq_u32 {S_HASF}, 0", "s_cbranch_scc1"):
        e(f"ds_read_b128 {vr(AD)}, v{ADA} offset:{L_OL}")
        late_dn(LF_)
        e("s_waitcnt lgkmcnt(0)")
        down_mfma_publish(AD, WP, SLOT(2), SLOT(3))
      stamp(11)
    VA, VX = VA3, VX3
    G = SLOT(1)
    def ga_issue(): e(f"buffer_load_dwordx4 {vr(G)}, v{VA}, {R_WS}, s16 offen sc1", tag="g")
    def tred(R):
        e(f"v_permlane32_swap_b32 v{R}, v{R+2}"); e(f"v_permlane32_swap_b32 v{R+1}, v{R+3}")
        e(f"v_add_f32 v{R}, v{R}, v{R+2}"); e(f"v_add_f32 v{R+1}, v{R+1}, v{R+3}")
        e(f"v_permlane16_swap_b32 v{R}, v{R+1}")
        e(f"v_add_f32 v{R}, v{R}, v{R+1}")
        dpp("v_add_f32", R, R, R, "row_ror:8"); dpp("v_add_f32", R, R, R, "row_ror:4")
    VL = T0
    e(f"v_lshrrev_b32 v{VL}, 4, v{V_LANE}"); e(f"v_lshl_add_u32 v{VL}, v{VL}, 2, v{VL3}")
    e("s_mov_b32 s24, 0x000f000f"); e("s_mov_b32 s25, 0x000f000f")
    if EF:
        with cond(f"s_cmp_eq_u32 {S_HASF}, 0", "s_cbranch_scc1"):
            if fx == 2: dn_at(range(8))
            e(f"ds_read_b128 {vr(AD)}, v{ADA} offset:{L_OL}")
            e("s_waitcnt vmcnt(0)")
            perms32(SLOT(2), SLOT(0))
            e("s_waitcnt lgkmcnt(0)")
            down_mfma_publish(AD, SLOT(0), ACC, SC)
        stamp(11)
        FV, XV, VR, VS = G + 8, G + 9, G + 10, G + 11
        e(f"s_cmp_eq_u32 {S_W}, 7"); e("s_cselect_b32 s17, s16, s17"); e("s_cselect_b32 s19, 0, -1")
        def gb_issue(): ga_issue(); gf_issue()
        def gb_check(): tagcheck(G, T3, True, T5); tagcheck(GF, T3, False, T5)
        with cond(f"s_cmp_lg_u32 {S_W}, 0", "s_cbranch_scc1"):
            e(f"v_lshlrev_b32 v{VR}, 2, v{V_LANE}")
            e(f"v_and_b32 v{VS}, 12, v{V_LANE}"); e(f"v_lshlrev_b32 v{VS}, 2, v{VS}"); e(f"v_and_b32 v{T1}, 3, v{V_LANE}"); e(f"v_lshl_add_u32 v{VS}, v{T1}, 1, v{VS}")
            e(f"buffer_load_ushort v{XV}, v{VS}, {R_X}, s18 offen", tag="xq")
            Lr, Lx = newlab("sp"), newlab("spx")
            e("s_mov_b32 exec_lo, 0x11111111"); e("s_mov_b32 exec_hi, 0x11111111")
            e(f"s_mov_b32 {S_CNT}, 0")
            e.label(Lr)
            ga_issue()
            e(f"s_add_u32 {S_CNT}, {S_CNT}, 1"); e(f"s_cmp_gt_u32 {S_CNT}, {POLL_LIMIT}")
            e("s_waitcnt vmcnt(0)")
            e(f"s_cbranch_scc1 {Lx}")
            tagcheck(G, T3, True, T5)
            e(f"v_cmp_eq_u32 vcc, 0, v{T5}")
            e("s_bcnt1_i32_b64 s7, vcc")
            e(f"s_cmp_ge_u32 s7, {THR}"); e(f"s_cbranch_scc1 {Lx}")
            if slp_pre: e(f"s_sleep {slp_pre}")
            e(f"s_branch {Lr}")
            e.label(Lx)
            e("s_mov_b64 exec, -1")
            e(f"v_lshlrev_b32 v{XV}, 16, v{XV}")
        e("s_and_b32 s19, s19, s23")
        e("s_barrier")
        gb_issue()
        poll(gb_issue, gb_check, lambda: e("s_waitcnt vmcnt(0)"), "ga", sleep=slp_g)
        stamp(12)
        untag(range(G, G+4))
        for r in range(GF, GF+4): e(f"v_and_b32 v{r}, s19, v{r}")
        tred(G); tred(GF)
        e("s_mov_b64 exec, s[24:25]")
        e(f"ds_write_b32 v{VL}, v{G} offset:{L_REDQ}")
        e(f"ds_write_b32 v{VL}, v{GF} offset:{L_REDQ+512}")
        e("s_waitcnt lgkmcnt(0)")
        e("s_barrier")
        e(f"s_cmp_lg_u32 {S_W}, 0"); e("s_cbranch_scc1 L_fini")
        e("s_mov_b64 exec, -1")
        e(f"ds_read2_b32 {vr(G,2)}, v{VR} offset0:{L_REDQ//4} offset1:{(L_REDQ+256)//4}")
        e(f"ds_read2_b32 {vr(G+2,2)}, v{VR} offset0:{(L_REDQ+512)//4} offset1:{(L_REDQ+768)//4}")
        e("s_waitcnt lgkmcnt(0)")
        e(f"v_add_f32 v{G}, v{G}, v{G+1}"); e(f"v_add_f32 v{FV}, v{G+2}, v{G+3}")
        xlane("v_add_f32", [G, FV], [G+1, G+2], ["p16", "p32"])
        rnd2(G, FV, G+1)
        e(f"v_add_f32 v{G}, v{XV}, v{G}")
        e(f"v_cvt_pk_bf16_f32 v{G}, v{G}, v{G}"); e(f"v_and_b32 v{G}, {S_MASKH}, v{G}")
        e(f"v_add_f32 v{G}, v{G}, v{FV}")
        e(f"v_cvt_pk_bf16_f32 v{G}, v{G}, v{G}")
    else:
        Lz, Lz2 = newlab("zf"), newlab("zf2")
        e(f"s_cmp_eq_u32 {S_W}, 7"); e(f"s_cbranch_scc1 {Lz}")
        poll(gf_issue, lambda: tagcheck(GF, T3, True, T5), lambda: e("s_waitcnt vmcnt(0)"), "gf", sleep=2)
        untag(range(GF, GF+4))
        tred(GF)
        e(f"s_branch {Lz2}")
        e.label(Lz)
        e(f"v_mov_b32 v{GF}, 0")
        e.label(Lz2)
        e("s_mov_b64 exec, s[24:25]")
        e(f"ds_write_b32 v{VL}, v{GF} offset:{L_REDQ+512}")
        e("s_mov_b64 exec, -1")
        e("s_waitcnt lgkmcnt(0)")
        e("s_barrier")
        FV, XV, VR, VS = G + 8, G + 9, G + 10, G + 11
        with cond(f"s_cmp_lg_u32 {S_W}, 0", "s_cbranch_scc1"):
            e(f"v_lshlrev_b32 v{VR}, 2, v{V_LANE}")
            e(f"ds_read2_b32 {vr(G+12,2)}, v{VR} offset0:{(L_REDQ+512)//4} offset1:{(L_REDQ+512+256)//4}")
            e(f"v_and_b32 v{VS}, 12, v{V_LANE}"); e(f"v_lshlrev_b32 v{VS}, 2, v{VS}"); e(f"v_and_b32 v{T1}, 3, v{V_LANE}"); e(f"v_lshl_add_u32 v{VS}, v{T1}, 1, v{VS}")
            e(f"buffer_load_ushort v{XV}, v{VS}, {R_X}, s18 offen", tag="xq")
            e("s_waitcnt lgkmcnt(0)")
            e(f"v_add_f32 v{FV}, v{G+12}, v{G+13}")
            xlane("v_add_f32", [FV], [T1], ["p16", "p32"])
            e(f"v_cvt_pk_bf16_f32 v{FV}, v{FV}, v{FV}"); e(f"v_and_b32 v{FV}, {S_MASKH}, v{FV}")
            e("s_waitcnt vmcnt(0)")
            e(f"v_lshlrev_b32 v{XV}, 16, v{XV}")
            Lr, Lx = newlab("sp"), newlab("spx")
            e("s_mov_b32 exec_lo, 0x11111111"); e("s_mov_b32 exec_hi, 0x11111111")
            e(f"s_mov_b32 {S_CNT}, 0")
            e.label(Lr)
            ga_issue()
            e(f"s_add_u32 {S_CNT}, {S_CNT}, 1"); e(f"s_cmp_gt_u32 {S_CNT}, {POLL_LIMIT}")
            e("s_waitcnt vmcnt(0)")
            e(f"s_cbranch_scc1 {Lx}")
            tagcheck(G, T3, True, T5)
            e(f"v_cmp_eq_u32 vcc, 0, v{T5}")
            e("s_bcnt1_i32_b64 s7, vcc")
            e(f"s_cmp_ge_u32 s7, {THR}"); e(f"s_cbranch_scc1 {Lx}")
            if slp_pre: e(f"s_sleep {slp_pre}")
            e(f"s_branch {Lr}")
            e.label(Lx)
            e("s_mov_b64 exec, -1")
        e("s_barrier")
        if dly_g: e(f"s_sleep {dly_g}")
        ga_issue()
        poll(ga_issue, lambda: tagcheck(G, T3, True, T5), lambda: e("s_waitcnt vmcnt(0)"), "ga", sleep=slp_g)
        stamp(12)
        untag(range(G, G+4))
        tred(G)
        e("s_mov_b64 exec, s[24:25]")
        e(f"ds_write_b32 v{VL}, v{G} offset:{L_REDQ}")
        e("s_waitcnt lgkmcnt(0)")
        e("s_barrier")
        e(f"s_cmp_lg_u32 {S_W}, 0"); e("s_cbranch_scc1 L_fini")
        e("s_mov_b64 exec, -1")
        e(f"ds_read2_b32 {vr(G,2)}, v{VR} offset0:{L_REDQ//4} offset1:{(L_REDQ+256)//4}")
        e("s_waitcnt lgkmcnt(0)")
        e(f"v_add_f32 v{G}, v{G}, v{G+1}")
        xlane("v_add_f32", [G], [G+1], ["p16", "p32"])
        e(f"v_cvt_pk_bf16_f32 v{G}, v{G}, v{G}"); e(f"v_and_b32 v{G}, {S_MASKH}, v{G}")
        e(f"v_add_f32 v{G}, v{XV}, v{G}")
        e(f"v_cvt_pk_bf16_f32 v{G}, v{G}, v{G}"); e(f"v_and_b32 v{G}, {S_MASKH}, v{G}")
        e(f"v_add_f32 v{G}, v{G}, v{FV}")
        e(f"v_cvt_pk_bf16_f32 v{G}, v{G}, v{G}")
    e("s_mov_b64 exec, 0xffff")
    e(f"buffer_store_short v{G}, v{VS}, {R_OUT}, s18 offen")
    e(f"s_cmp_lg_u32 {S_IDX}, 0"); e("s_cbranch_scc1 L_fini")
    e("s_mov_b64 exec, 1")
    e(f"buffer_store_dword v{V_T}, off, {R_WS}, 0")
    e.cond_depth -= 1
    e.label("L_fini")
    if dbgt:
        e("s_memrealtime s[72:73]"); e("s_waitcnt lgkmcnt(0)")
        e("s_cmp_lg_u32 s3, 0"); e("s_cbranch_scc1 L_dbg1")
        e("s_atomic_umax s72, s[34:35], 4"); e("s_waitcnt lgkmcnt(0)")
        e.label("L_dbg1")
    if dbgt:
        e("s_cmp_lg_u32 s3, 0"); e("s_cbranch_scc1 L_end")
        e("s_atomic_umax s16, s[34:35], 12")
        e("s_not_b32 s72, s90"); e("s_atomic_umax s72, s[34:35], 0"); e("s_atomic_umax s90, s[34:35], 8"); e("s_waitcnt lgkmcnt(0)")
    if stamps:
        e("s_mov_b64 exec, -1")
        stamp(13)
        e("s_mov_b64 exec, 0xffff")
        e(f"v_lshlrev_b32 v{T0}, 2, v{V_LANE}")
        e("s_lshl_b32 s7, s2, 3"); e(f"s_add_u32 s7, s7, {S_W}"); e("s_lshl_b32 s7, s7, 6"); e(f"s_add_u32 s7, s7, {WS_SIZE}")
        e("s_mov_b32 s58, 0x1000000")
        e(f"buffer_store_dword v0, v{T0}, {R_WS}, s7 offen")
    e.label("L_end")
    e("s_endpgm")

    out = HEADER
    out += f"; @launch grid=(256,1,1) block=(512,1,1) lds={LDS_BYTES}\n"
    out += '.amdgcn_target "amdgcn-amd-amdhsa--gfx950"\n.text\n'
    out += f".globl {KNAME}\n.p2align 8\n.type {KNAME},@function\n{KNAME}:\n"
    out += e.text()
    out += f""".section .rodata,"a"
.p2align 6
.amdhsa_kernel {KNAME}
  .amdhsa_next_free_vgpr 256
  .amdhsa_next_free_sgpr 102
  .amdhsa_accum_offset 256
  .amdhsa_group_segment_fixed_size 0
  .amdhsa_kernarg_size 88
  .amdhsa_user_sgpr_count 2
  .amdhsa_user_sgpr_kernarg_segment_ptr 1
  .amdhsa_system_sgpr_workgroup_id_x 1
.end_amdhsa_kernel
"""
    return out

if __name__ == "__main__":
    import argparse
    ap = argparse.ArgumentParser()
    ap.add_argument("-o", default="parallel_sum__gqa_block_cached__dense_activation_silu__decode.s")
    ap.add_argument("--inf", type=int, default=5)
    ap.add_argument("--stamps", action="store_true")
    ap.add_argument("--kw", default="")
    a = ap.parse_args()
    kw = eval("dict(%s)" % a.kw)
    open(a.o, "w").write(gen(INF=a.inf, stamps=a.stamps, **kw))
```

```python
import sys
from emit import Emit
KNAME = "parallel_sum__gqa_block_cached__dense_activation_silu__decode_kernel"
HEADER = open("parallel_sum__gqa_block_cached__dense_activation_silu__decode.s.ref").read().split("; Override launch geometry")[0]

WS_QP = 0x1000
QP_B = 7680 * 4
QP_K = 2 * QP_B
WS_ML = 0x40000
WS_CT = 0x50000
WS_OP = 0x80000
WS_AP = 0x200000
WS_SIZE = 0x400000
L_REDQ = 0
L_REDH = 4096
L_Q = 8192
L_MX = 10240
L_OL = 10752
L_FA = 11008; L_FH = 11040; L_FQ = 11072
L_S2 = 0
L_S2M = 1024
L_ORED = 12288
LDS_BYTES = L_ORED + 8 * 4096
V_LANE, V_K, V_V, V_UP, V_DN, V_T, V_AL, V_ML, V_L = 1, 2, 3, 4, 5, 6, 7, 8, 9
T0, T1, T2, T3, T4, T5 = 10, 11, 12, 13, 14, 15
ACC = 16
Q0, Q1 = 48, 52
P = 56
AD = 60
SC = 64
def SLOT(k): return 96 + 32 * k
S_W, S_TYPE, S_IDX, S_T = "s3", "s4", "s5", "s6"
S_LO, S_HI = "s8", "s9"
S_TI = ["s10", "s11", "s12", "s13"]
S_G2 = "s14"
S_CNT = "s15"
R_K, R_V, R_UP, R_DN, R_WS, R_X, R_OUT, R_W1 = "s[40:43]", "s[44:47]", "s[48:51]", "s[52:55]", "s[56:59]", "s[60:63]", "s[64:67]", "s[28:31]"
S_KV, S_UPQ, S_UPH, S_DNB = "s68", "s69", "s70", "s71"
S_LOG2E, S_SCALE, S_MASKH, S_HASF, S_HASH, S_KS = "s82", "s83", "s84", "s85", "s86", "s87"
S_N8 = "s[88:89]"
S_CBH = "s39"
POLL_LIMIT = 1 << 17
def vr(a, n=4): return f"v[{a}:{a+n-1}]"

def gen(INF=5, stamps=False, NS=5, HF=8, pf=False, prio=True, slp_o=0, slp_g=0, slp_pre=2, prepoll=True, late_ffn=False, LA=0, LF_=0, pbar=False, dbgt=False, dly_o=8, dly_g=0, pre1=True, upfirst=False, lite=False, early=1, early_k=4, pmap=0, EA=8, xmode=0, THR=6, THO=6, tlb=True, tlb0=0, EF=True, fx=4, bar_early=True, t4early=False):
    e = Emit()
    lab = [0]
    def newlab(p):
        lab[0] += 1
        return f"L_{p}_{lab[0]}"
    def stamp(k):
        if not stamps: return
        if lite and k not in (7, 13): return
        e("s_memrealtime s[90:91]"); e("s_waitcnt lgkmcnt(0)"); e(f"v_writelane_b32 v0, s90, {k}")
    def throttle():
        if INF: e(f"s_waitcnt vmcnt({INF-1})")
    def setprio(n):
        if prio: e(f"s_setprio {n}")
    def dpp(op, d, a, b, ctl):
        e(f"{op}_dpp v{d}, v{a}, v{b} {ctl} row_mask:0xf bank_mask:0xf")
    def xlane(op, regs, tmps, steps):
        for st in steps:
            if st[0] == "r":
                for r in regs: dpp(op, r, r, r, f"row_ror:{st[1:]}")
            else:
                for r, t in zip(regs, tmps): e(f"v_mov_b32 v{t}, v{r}")
                for r, t in zip(regs, tmps): e(f"v_permlane{st[1:]}_swap_b32 v{r}, v{t}")
                for r, t in zip(regs, tmps): e(f"{op} v{r}, v{r}, v{t}")
    def tagcheck(g, tmp, first, accum):
        e(f"v_perm_b32 v{tmp}, v{g+1}, v{g}, {S_G2}")
        e(f"v_perm_b32 v{tmp+1}, v{g+3}, v{g+2}, {S_G2}")
        e(f"v_perm_b32 v{tmp}, v{tmp+1}, v{tmp}, {S_LO}")
        if first: e(f"v_xor_b32 v{accum}, v{tmp}, v{V_T}")
        else:
            e(f"v_xor_b32 v{tmp}, v{tmp}, v{V_T}")
            e(f"v_or_b32 v{accum}, v{accum}, v{tmp}")
    def untag(regs):
        for r in regs: e(f"v_and_b32 v{r}, s23, v{r}")
    def tagput(dst, srcs):
        for i, s in enumerate(srcs): e(f"v_perm_b32 v{dst+i}, v{s}, v{V_T}, {S_TI[i]}")
    def rnd2(a, b_, tmp):
        e(f"v_cvt_pk_bf16_f32 v{tmp}, v{a}, v{b_}")
        e(f"v_lshlrev_b32 v{a}, 16, v{tmp}")
        e(f"v_and_b32 v{b_}, {S_MASKH}, v{tmp}")
    def poll(issue, check, waitfirst, name, sleep=0):
        Lr, Ld, Lx = newlab(name + "_retry"), newlab(name + "_done"), newlab(name + "_exit")
        waitfirst()
        check()
        e(f"v_cmp_ne_u32 vcc, 0, v{T5}")
        e(f"s_cbranch_vccz {Ld}")
        e(f"s_mov_b32 {S_CNT}, 0")
        e("s_mov_b64 s[80:81], exec")
        e.label(Lr)
        e("s_mov_b64 exec, vcc")
        if sleep: e(f"s_sleep {sleep}")
        e("s_nop 4")
        e.cond_depth += 1
        issue()
        e.cond_depth -= 1
        e(f"s_add_u32 {S_CNT}, {S_CNT}, 1")
        e(f"s_cmp_gt_u32 {S_CNT}, {POLL_LIMIT}")
        e("s_waitcnt vmcnt(0)")
        e(f"s_cbranch_scc1 {Lx}")
        check()
        e(f"v_cmp_ne_u32 vcc, 0, v{T5}")
        e(f"s_cbranch_vccnz {Lr}")
        e.label(Lx)
        e("s_mov_b64 exec, s[80:81]")
        e.label(Ld)
    def setflag(base, idx=None):
        if idx is None:
            e(f"s_lshl_b32 s7, {S_W}, 2"); e(f"v_mov_b32 v{T1}, s7")
        else: e(f"v_mov_b32 v{T1}, {4*idx}")
        e("s_waitcnt lgkmcnt(0)")
        e("s_mov_b64 exec, 1")
        e(f"v_mov_b32 v{T2}, 1")
        e(f"ds_write_b32 v{T1}, v{T2} offset:{base}")
        e("s_mov_b64 exec, -1")
    def waitflags(base, n, name):
        Lr, Lx = newlab(name), newlab(name + "x")
        e(f"v_and_b32 v{T1}, {n-1}, v{V_LANE}"); e(f"v_lshlrev_b32 v{T1}, 2, v{T1}")
        e(f"s_mov_b32 {S_CNT}, 0")
        e.label(Lr)
        e(f"ds_read_b32 v{T2}, v{T1} offset:{base}")
        e(f"s_add_u32 {S_CNT}, {S_CNT}, 1"); e(f"s_cmp_gt_u32 {S_CNT}, {POLL_LIMIT*4}")
        e("s_waitcnt lgkmcnt(0)")
        e(f"s_cbranch_scc1 {Lx}")
        e(f"v_cmp_ne_u32 vcc, 1, v{T2}")
        e(f"s_cbranch_vccnz {Lr}")
        e.label(Lx)
    def srd(base, lo, hi, n):
        e(f"s_mov_b32 s{base}, {lo}"); e(f"s_mov_b32 s{base+1}, {hi}"); e(f"s_mov_b32 s{base+2}, {n}"); e(f"s_mov_b32 s{base+3}, 0x00020000")
    class cond:
        def __init__(self, cmp, br):
            self.L = newlab("skip"); self.cmp = cmp if isinstance(cmp, list) else [cmp]; self.br = br
        def __enter__(self):
            for c in self.cmp:
                e(c); e(f"{self.br} {self.L}")
            e.cond_depth += 1
        def __exit__(self, *a):
            e.cond_depth -= 1; e.label(self.L)

    if stamps or dbgt: e("s_memrealtime s[90:91]")
    e("s_cmp_ge_u32 s2, 256")
    e("s_cbranch_scc1 L_end")
    e("s_load_dwordx2 s[48:49], s[0:1], 24")
    e("s_load_dwordx2 s[60:61], s[0:1], 0")
    e("s_load_dwordx4 s[16:19], s[0:1], 8")
    e("s_load_dwordx2 s[28:29], s[0:1], 48")
    setprio(3)
    e(f"v_lshrrev_b32 v{T0}, 6, v0")
    e(f"v_and_b32 v{V_LANE}, 63, v0")
    e(f"v_readfirstlane_b32 {S_W}, v{T0}")
    if stamps: e("v_mov_b32 v0, 0")
    e(f"v_lshrrev_b32 v{T0}, 3, v{V_LANE}"); e(f"v_and_b32 v{T1}, 7, v{V_LANE}"); e(f"v_lshlrev_b32 v{T1}, 4, v{T1}")
    e(f"v_lshl_add_u32 v{V_UP}, v{T0}, 15, v{T1}")
    e("s_and_b32 s7, s2, 3"); e("s_lshl_b32 s72, s7, 8"); e(f"s_lshl_b32 s73, {S_W}, 5"); e("s_add_u32 s72, s72, s73")
    e("s_lshr_b32 s73, s2, 2")
    e(f"s_lshl_b32 {S_UPQ}, s72, 13"); e("s_lshl_b32 s74, s73, 7"); e(f"s_add_u32 {S_UPQ}, {S_UPQ}, s74")
    e(f"s_mov_b32 s50, {8<<20}"); e("s_mov_b32 s51, 0x00020000"); e("s_movk_i32 s62, 4096"); e("s_mov_b32 s63, s51")
    e(f"v_lshlrev_b32 v{T3}, 5, v{V_LANE}")
    e("s_waitcnt lgkmcnt(0)")
    if stamps:
        e("v_writelane_b32 v0, s90, 15"); stamp(14)
    XF, XR = SC, SC + 16
    UPS = SLOT(4)
    def xl():
        for b in range(2):
            for hf in range(2):
                e(f"buffer_load_dwordx4 {vr(XF+8*b+4*hf)}, v{T3}, {R_X}, 0 offen offset:{b*2048+hf*16}", tag="xf")
    def ul():
        for i in range(4):
            e(f"buffer_load_dwordx4 {vr(UPS+4*i)}, v{V_UP}, {R_UP}, {S_UPQ} offen nt", tag="upq")
            if i < 3: e(f"s_add_u32 {S_UPQ}, {S_UPQ}, 8192")
    if upfirst: ul(); xl()
    else: xl(); ul()
    e(f"v_lshlrev_b32 v{T4}, 2, v{V_LANE}"); e(f"v_mov_b32 v{T5}, 0")
    e(f"ds_write_b32 v{T4}, v{T5} offset:{L_FA}")
    if bar_early:
        e("s_waitcnt lgkmcnt(0)")
        e("s_barrier")
    if pf:
        e("s_getpc_b64 s[78:79]")
        e.raw("L_pc:")
        e("s_bfe_u32 s76, s2, 0x20003"); e("s_lshl_b32 s76, s76, 3"); e(f"s_add_u32 s76, s76, {S_W}"); e("s_lshl_b32 s76, s76, 9")
        e(f"v_lshlrev_b32 v{T4}, 3, v{V_LANE}"); e(f"v_add_u32 v{T4}, s76, v{T4}")
        e(f"v_min_u32 v{T4}, L_end-L_pc-8, v{T4}")
        e(f"global_load_dwordx2 {vr(SLOT(1),2)}, v{T4}, s[78:79]", tag="pf")
    e(f"s_lshr_b32 {S_TYPE}, s2, 3"); e(f"s_xor_b32 {S_TYPE}, {S_TYPE}, s2"); e(f"s_and_b32 {S_TYPE}, {S_TYPE}, 1")
    e("s_load_dwordx2 s[56:57], s[0:1], 80")
    e(f"s_mul_i32 s76, {S_TYPE}, 24"); e("s_add_u32 s76, s76, 32")
    e("s_load_dwordx2 s[52:53], s[0:1], s76")
    e("s_load_dwordx2 s[64:65], s[0:1], 64")
    if dbgt: e("s_load_dwordx2 s[34:35], s[0:1], 72")
    e(f"v_lshlrev_b32 v{T2}, 3, v{T0}"); e("s_lshl_b32 s74, s72, 1"); e(f"v_add_u32 v{T2}, s74, v{T2}")
    for b in range(2):
        e(f"buffer_load_dwordx2 {vr(XR+2*b,2)}, v{T2}, {R_X}, 0 offen offset:{b*2048}", tag="xr")
    e(f"v_mul_u32_u24 v{V_DN}, {4*7168}, v{T0}"); e(f"v_add_u32 v{V_DN}, v{V_DN}, v{T1}")
    e("s_lshl_b32 s7, s7, 1"); e("s_add_u32 s7, s7, 1"); e("s_and_b32 s74, s73, 7")
    e("s_cmp_lg_u32 s74, s7"); e(f"s_cselect_b32 {S_HASH}, 1, 0")
    e("s_lshr_b32 s75, s73, 3"); e("s_mul_i32 s75, s75, 7"); e("s_add_u32 s75, s75, s74")
    e("s_cmp_gt_u32 s74, s7"); e(f"s_subb_u32 {S_CBH}, s75, 0")
    e(f"s_mul_i32 {S_UPH}, s72, 7168"); e(f"s_lshl_b32 s74, {S_CBH}, 7"); e(f"s_add_u32 {S_UPH}, {S_UPH}, s74")
    e(f"s_mul_i32 s30, {S_HASH}, {7<<20}"); e("s_mov_b32 s31, 0x00020000")
    def uh():
        for i in range(4):
            e(f"buffer_load_dwordx4 {vr(UPS+16+4*i)}, v{V_DN}, {R_W1}, {S_UPH} offen nt", tag="uph")
            if i < 3: e(f"s_add_u32 {S_UPH}, {S_UPH}, 7168")
    if early >= 1: uh()
    srd(40, "s16", "s17", 64 << 20)
    srd(44, "s18", "s19", 64 << 20)
    e(f"v_lshlrev_b32 v{V_V}, 4, v{V_LANE}")
    e(f"v_bfe_u32 v{T0}, v{V_LANE}, 1, 1"); e(f"v_bfe_u32 v{T1}, v{V_LANE}, 2, 2")
    e(f"v_lshl_add_u32 v{T0}, v{T0}, 2, v{T1}"); e(f"v_lshlrev_b32 v{V_K}, 8, v{T0}")
    e(f"v_lshrrev_b32 v{T1}, 4, v{V_LANE}"); e(f"v_lshl_add_u32 v{V_K}, v{T1}, 5, v{V_K}")
    e(f"v_and_b32 v{T1}, 1, v{V_LANE}"); e(f"v_lshl_add_u32 v{V_K}, v{T1}, 4, v{V_K}")
    e(f"s_lshl_b32 {S_KV}, s2, 18"); e(f"s_lshl_b32 s7, {S_W}, 12"); e(f"s_add_u32 {S_KV}, {S_KV}, s7")
    for base, n in ((56, WS_SIZE), (64, 4096)):
        e(f"s_mov_b32 s{base+2}, {n}"); e(f"s_mov_b32 s{base+3}, 0x00020000")
    e("s_waitcnt lgkmcnt(0)")
    e("s_load_dword s6, s[56:57], 0")
    if not bar_early: e("s_barrier")
    for i in range(early_k):
        e(f"buffer_load_dwordx4 {vr(SLOT(0)+4*i)}, v{V_K}, {R_K}, {S_KV} offen offset:{(i>>1)*2048 + (i&1)*128} nt", tag="k0")
    e(f"s_mov_b32 {S_MASKH}, 0xffff0000")
    e(f"s_lshr_b32 {S_IDX}, s2, 1"); e(f"s_and_b32 s7, {S_IDX}, 7")
    e(f"s_sub_u32 s54, 8, {S_TYPE}"); e("s_lshl_b32 s54, s54, 20")
    e("s_mov_b32 s55, 0x00020000")
    e("s_cmp_lg_u32 s7, 7"); e(f"s_cselect_b32 {S_HASF}, {S_TYPE}, 0")
    e(f"s_lshr_b32 s7, {S_IDX}, 3"); e(f"s_mul_i32 s7, s7, {S_TYPE}"); e(f"s_sub_u32 {S_KS}, {S_IDX}, s7")
    e(f"s_cmp_eq_u32 {S_TYPE}, {S_HASF}")
    e("s_cselect_b32 s54, s54, 0")
    e(f"s_mov_b32 {S_LO}, 0x05040100"); e(f"s_mov_b32 {S_HI}, 0x07060302")
    for i in range(4): e(f"s_mov_b32 {S_TI[i]}, 0x{0x07060500 + i:08x}")
    e(f"s_mov_b32 {S_G2}, 0x0c0c0400"); e("s_mov_b32 s23, 0xffffff00")
    e(f"s_mov_b32 {S_LOG2E}, 0x3fb8aa3b"); e(f"s_mov_b32 {S_SCALE}, 0x3db504f3")
    e("s_mov_b32 s88, 0x00ff00ff"); e("s_mov_b32 s89, 0x00ff00ff")
    e(f"s_lshl_b32 {S_DNB}, {S_KS}, 16"); e(f"s_lshl_b32 s7, {S_W}, 8"); e(f"s_add_u32 {S_DNB}, {S_DNB}, s7")
    if tlb0:
        with cond(f"s_cmp_lg_u32 {S_W}, {tlb0 - 1}", "s_cbranch_scc1"):
            e("s_mov_b64 exec, 1")
            e(f"buffer_load_dword v{P}, off, {R_V}, {S_KV} nt", tag="tl")
            e(f"buffer_load_dword v{P+1}, off, {R_DN}, {S_DNB} nt", tag="tl")
            e(f"s_mov_b32 s7, {WS_CT + 0x8000}")
            e(f"buffer_load_dword v{P+2}, off, {R_WS}, s7", tag="tl")
            e(f"s_mov_b32 s7, {WS_SIZE - 256}")
            e(f"buffer_load_dword v{P+3}, off, {R_WS}, s7", tag="tl")
            e(f"buffer_load_dword v{AD}, off, {R_OUT}, 0", tag="tl")
            e("s_mov_b64 exec, -1")

    def kload(u, slot, i, thr=True):
        beta, t = i >> 1, i & 1
        if i % 4 == 0: e(f"s_add_u32 s74, {S_KV}, {(2*u + (beta >> 1)) * 32768}")
        if thr: throttle()
        e(f"buffer_load_dwordx4 {vr(SLOT(slot)+4*i)}, v{V_K}, {R_K}, s74 offen offset:{(beta&1)*2048 + t*128} nt", tag=f"k{u}")
    def vload(u, slot, j, thr=True):
        if j % 4 == 0: e(f"s_add_u32 s75, {S_KV}, {(2*u + (j >> 2)) * 32768}")
        if thr: throttle()
        e(f"buffer_load_dwordx4 {vr(SLOT(slot)+4*j)}, v{V_V}, {R_V}, s75 offen offset:{(j&3)*1024} nt", tag=f"v{u}")
    def issueK(u, slot, lo=0, hi=8):
        for i in range(lo, hi): kload(u, slot, i)
    def issueV(u, slot, lo=0, hi=8):
        for j in range(lo, hi): vload(u, slot, j)
    def issueDN(slot, lo=0, hi=8):
        for jj in range(lo, hi):
            a_on, f_on = jj < 8 - LA - EA, jj < 8 - LF_
            e(f"s_add_u32 s76, {S_DNB}, {(8*(jj&3) + (jj>>2))*2048}")
            if not a_on and not f_on: e("s_mov_b32 s76, 0x40000000")
            elif a_on != f_on:
                e(f"s_cmp_eq_u32 {S_TYPE}, {0 if a_on else 1}"); e("s_cselect_b32 s76, s76, 0x40000000")
            throttle()
            e(f"buffer_load_dwordx4 {vr(SLOT(slot)+4*jj)}, v{V_DN}, {R_DN}, s76 offen nt", tag="dn")

    stamp(0)
    U = SLOT(3)
    e.wait_vm("xf")
    if early < 1: uh()
    pend = [("k", i) for i in range(early_k, 8)] + [("v", j) for j in range(8)]
    def more(n):
        for _ in range(n):
            if not pend: return
            t, i = pend.pop(0)
            if t == "k":
                if i % 4 and i == early_k: e(f"s_mov_b32 s74, {S_KV}")
                kload(0, 0, i)
            else: vload(0, 1, i)
    for b in range(2):
        for d in range(8):
            e(f"v_lshlrev_b32 v{U+16*b+2*d}, 16, v{XF+8*b+d}")
            e(f"v_and_b32 v{U+16*b+2*d+1}, {S_MASKH}, v{XF+8*b+d}")
    SUM = [T0, T1]; TMP = [T2, T3]; VAR = [T4, T5]
    for b in range(2):
        e(f"v_pk_add_f32 {vr(XF+4*b,2)}, {vr(U+16*b,2)}, {vr(U+16*b+2,2)}")
        e(f"v_pk_add_f32 {vr(XF+4*b+2,2)}, {vr(U+16*b+4,2)}, {vr(U+16*b+6,2)}")
    for i in range(4, 8):
        for b in range(2):
            e(f"v_pk_add_f32 {vr(XF+4*b+2*(i&1),2)}, {vr(XF+4*b+2*(i&1),2)}, {vr(U+16*b+2*i,2)}")
    for b in range(2): e(f"v_pk_add_f32 {vr(XF+4*b,2)}, {vr(XF+4*b,2)}, {vr(XF+4*b+2,2)}")
    for b in range(2): e(f"v_add_f32 v{SUM[b]}, v{XF+4*b}, v{XF+4*b+1}")
    xlane("v_add_f32", SUM, TMP, ["r8", "r4", "r2", "r1", "p16", "p32"])
    for b in range(2): e(f"v_mul_f32 v{SUM[b]}, 0x3a800000, v{SUM[b]}")
    more(2)
    for i in range(8):
        for b in range(2):
            e(f"v_pk_add_f32 {vr(U+16*b+2*i,2)}, {vr(U+16*b+2*i,2)}, {vr(T0,2)} op_sel:[0,{b}] op_sel_hi:[1,{b}] neg_lo:[0,1] neg_hi:[0,1]")
    for b in range(2): e(f"v_pk_mul_f32 {vr(XF+4*b,2)}, {vr(U+16*b,2)}, {vr(U+16*b,2)}")
    for i in range(1, 8):
        for b in range(2): e(f"v_pk_fma_f32 {vr(XF+4*b,2)}, {vr(U+16*b+2*i,2)}, {vr(U+16*b+2*i,2)}, {vr(XF+4*b,2)}")
    for b in range(2): e(f"v_add_f32 v{VAR[b]}, v{XF+4*b}, v{XF+4*b+1}")
    xlane("v_add_f32", VAR, TMP, ["r8", "r4", "r2", "r1", "p16", "p32"])
    more(2)
    for b in range(2): e(f"v_mul_f32 v{VAR[b]}, 0x3a800000, v{VAR[b]}")
    rnd2(SUM[0], SUM[1], T2)
    rnd2(VAR[0], VAR[1], T3)
    for b in range(2): e(f"v_add_f32 v{VAR[b]}, 0x3727c5ac, v{VAR[b]}")
    rnd2(VAR[0], VAR[1], T3)
    for b in range(2): e(f"v_sqrt_f32 v{VAR[b]}, v{VAR[b]}")
    rnd2(VAR[0], VAR[1], T3)
    for b in range(2): e(f"v_rcp_f32 v{VAR[b]}, v{VAR[b]}")
    XN = ACC + 16
    e.wait_vm("xr")
    for b in range(2):
        for d in range(2):
            e(f"v_lshlrev_b32 v{XN+4*b+2*d}, 16, v{XR+2*b+d}")
            e(f"v_and_b32 v{XN+4*b+2*d+1}, {S_MASKH}, v{XR+2*b+d}")
    for b in range(2):
        for i in range(4): e(f"v_sub_f32 v{XN+4*b+i}, v{XN+4*b+i}, v{SUM[b]}")
    for d in range(4): rnd2(XN+2*d, XN+2*d+1, U+d)
    for b in range(2):
        for i in range(4): e(f"v_mul_f32 v{XN+4*b+i}, v{XN+4*b+i}, v{VAR[b]}")
    for d in range(4): rnd2(XN+2*d, XN+2*d+1, U+d)
    e("s_waitcnt lgkmcnt(0)")
    e(f"s_mul_i32 {S_T}, {S_T}, 1664525"); e(f"s_add_u32 {S_T}, {S_T}, 1013904223")
    e(f"v_mov_b32 v{V_T}, {S_T}")
    stamp(1)
    e(f"v_lshrrev_b32 v{T0}, 5, v{V_LANE}"); e(f"v_lshlrev_b32 v{T0}, 8, v{T0}")
    e(f"v_and_b32 v{T1}, 7, v{V_LANE}"); e(f"v_lshl_add_u32 v{T0}, v{T1}, 5, v{T0}")
    e(f"v_and_b32 v{T1}, 16, v{V_LANE}"); e(f"v_add_u32 v{T0}, v{T0}, v{T1}")
    e(f"s_lshl_b32 s7, {S_W}, 9"); e(f"v_add_u32 v{V_AL}, s7, v{T0}")
    def up_compute(src, tag, lbase, fbase, between):
        for i in range(4):
            e.wait_vm_idx(tag, i)
            for d in range(4):
                e(f"v_lshlrev_b32 v{U+2*d}, 16, v{src+4*i+d}")
                e(f"v_and_b32 v{U+2*d+1}, {S_MASKH}, v{src+4*i+d}")
            for b in range(2):
                for c in range(0, 8, 2):
                    xr = XN + 4*b + i
                    base = xr & ~1; sel = xr & 1
                    if i == 0: e(f"v_pk_mul_f32 {vr(ACC+8*b+c,2)}, {vr(U+c,2)}, {vr(base,2)} op_sel:[0,{sel}] op_sel_hi:[1,{sel}]")
                    else: e(f"v_pk_fma_f32 {vr(ACC+8*b+c,2)}, {vr(U+c,2)}, {vr(base,2)}, {vr(ACC+8*b+c,2)} op_sel:[0,{sel},0] op_sel_hi:[1,{sel},1]")
            between(i)
        for c in range(8): e(f"v_permlane32_swap_b32 v{ACC+c}, v{ACC+8+c}")
        for c in range(8): e(f"v_add_f32 v{ACC+c}, v{ACC+c}, v{ACC+8+c}")
        for c in range(4): e(f"v_permlane16_swap_b32 v{ACC+c}, v{ACC+4+c}")
        for c in range(4): e(f"v_add_f32 v{ACC+c}, v{ACC+c}, v{ACC+4+c}")
        for c in range(4): dpp("v_add_f32", ACC+c, ACC+c, ACC+c, "row_ror:8")
        e(f"ds_write_b128 v{V_AL}, {vr(ACC)} offset:{lbase}")
        setflag(fbase)
    def up_publish(lbase, fbase, colreg_expr, name):
        waitflags(fbase, 8, name)
        e("s_mov_b32 exec_hi, 0")
        for w in range(8): e(f"ds_read_b128 {vr(U+4*w)}, v{V_V} offset:{lbase + w*512}")
        e(f"v_lshrrev_b32 v{T0}, 4, v{V_LANE}"); e(f"v_mul_u32_u24 v{T0}, {QP_B}, v{T0}")
        e(f"v_and_b32 v{T1}, 15, v{V_LANE}"); e(f"v_lshl_add_u32 v{T0}, v{T1}, 4, v{T0}")
        e("s_and_b32 s7, s2, 3"); e(f"s_mul_i32 s7, s7, {QP_K}")
        colreg_expr()
        e("s_add_u32 s7, s7, s72")
        e("s_waitcnt lgkmcnt(0)")
        for w in range(1, 8):
            e(f"v_pk_add_f32 {vr(U,2)}, {vr(U,2)}, {vr(U+4*w,2)}"); e(f"v_pk_add_f32 {vr(U+2,2)}, {vr(U+2,2)}, {vr(U+4*w+2,2)}")
        for c in range(4): e(f"v_add_u32 v{U+c}, 0x80, v{U+c}")
        tagput(U+4, [U, U+1, U+2, U+3])
        e(f"buffer_store_dwordx4 {vr(U+4)}, v{T0}, {R_WS}, s7 offen sc1", tag="pub")
        e("s_mov_b64 exec, -1")
    up_compute(UPS, "upq", L_REDQ, L_FA, lambda i: None)
    stamp(2)
    with cond(f"s_cmp_lg_u32 {S_W}, 7", "s_cbranch_scc1"):
        up_publish(L_REDQ, L_FA, lambda: (e("s_lshr_b32 s72, s2, 2"), e("s_lshl_b32 s72, s72, 8"), e(f"s_add_u32 s72, s72, {WS_QP}")), "wfa")
    stamp(3)
    setprio(2)
    e("s_lshr_b32 s7, s2, 3"); e("s_lshl_b32 s7, s7, 8"); e(f"s_add_u32 s7, s7, {WS_CT}")
    e("s_add_u32 s92, s56, s7"); e("s_addc_u32 s93, s57, 0")
    e("s_and_b32 s72, s2, 7"); e(f"s_or_b32 s72, s72, {S_W}")
    with cond("s_cmp_lg_u32 s72, 0", "s_cbranch_scc1"):
        e("s_mov_b64 exec, 1")
        e(f"v_mov_b32 v{U+8}, 0"); e(f"v_mov_b32 v{U+9}, {S_T}")
        e(f"buffer_store_dwordx2 {vr(U+8,2)}, off, {R_WS}, s7 sc1", tag="ct")
        e("s_mov_b64 exec, -1")
    up_compute(UPS+16, "uph", L_REDH, L_FH, lambda i: more(1))
    e(f"v_lshrrev_b32 v{T0}, 4, v{V_LANE}"); e(f"v_lshlrev_b32 v{V_DN}, 12, v{T0}")
    e(f"v_and_b32 v{T1}, 15, v{V_LANE}"); e(f"v_lshl_add_u32 v{V_DN}, v{T1}, 4, v{V_DN}")
    more(16)
    with cond([f"s_cmp_lg_u32 {S_W}, 6", f"s_cmp_eq_u32 {S_HASH}, 0"], "s_cbranch_scc1"):
        up_publish(L_REDH, L_FH, lambda: (e(f"s_lshl_b32 s72, {S_CBH}, 8"), e(f"s_add_u32 s72, s72, {WS_QP + 4096*4}")), "wfh")
    issueK(1, 2)
    KB, VB = (SLOT(4), SLOT(4) + 16) if t4early else (SLOT(0), SLOT(0) + 16)
    def tileK(sreg, tag, sreg2=None, thr=False):
        for i in range(4):
            if thr: throttle()
            e(f"buffer_load_dwordx4 {vr(KB+4*i)}, v{V_K}, {R_K}, {sreg if (i < 2 or not sreg2) else sreg2} offen offset:{(i>>1)*2048 + (i&1)*128} nt", tag=tag)
    def tileV(sreg, tag, sreg2=None, thr=False):
        for j in range(4):
            if thr: throttle()
            e(f"buffer_load_dwordx4 {vr(VB+4*j)}, v{V_V}, {R_V}, {sreg if (j < 2 or not sreg2) else sreg2} offen offset:{j*1024} nt", tag=tag)
    if EF and t4early:
        issueV(1, 3)
        setprio(1)
        e(f"s_add_u32 s74, {S_KV}, {4*32768}")
        tileK("s74", "k4", thr=True)
    elif EF:
        issueV(1, 3, 0, 4)
        setprio(1)
    else:
        issueV(1, 3)
        setprio(1)
        issueDN(4, 0, 4)
    QG = SC
    e("s_lshr_b32 s77, s2, 7"); e(f"s_mul_i32 s77, s77, {QP_B}")
    e("s_lshr_b32 s7, s2, 5"); e("s_and_b32 s7, s7, 3"); e("s_lshl_b32 s7, s7, 12"); e("s_add_u32 s77, s77, s7")
    e(f"s_lshl_b32 s7, {S_W}, 10"); e("s_add_u32 s77, s77, s7"); e(f"s_add_u32 s77, s77, {WS_QP}")
    e(f"s_add_u32 s78, s77, {2*QP_K}")
    VQ2 = Q0
    e(f"v_add_u32 v{VQ2}, {QP_K}, v{V_V}")
    def q_issue():
        for kq in range(4):
            e(f"buffer_load_dwordx4 {vr(QG+4*kq)}, v{VQ2 if kq & 1 else V_V}, {R_WS}, s{77 + (kq >> 1)} offen sc1", tag="qp")
    def q_check():
        for kq in range(4): tagcheck(QG+4*kq, T3, kq == 0, T5)
    VH = Q0 + 1
    e(f"v_lshrrev_b32 v{T0}, 3, v{V_LANE}"); e(f"v_mul_u32_u24 v{VH}, {QP_B}, v{T0}")
    e(f"v_and_b32 v{T1}, 7, v{V_LANE}"); e(f"v_lshl_add_u32 v{VH}, v{T1}, 4, v{VH}")
    e(f"s_lshl_b32 s79, {S_KS}, 7"); e(f"s_add_u32 s79, s79, {WS_QP + 4096*4}")
    def h_issue(): e(f"buffer_load_dwordx4 {vr(QG)}, v{VH}, {R_WS}, s79 offen sc1", tag="hp")
    def h_check(): tagcheck(QG, T3, True, T5)
    with cond(f"s_cmp_ge_u32 {S_W}, 4", "s_cbranch_scc1"): q_issue()
    with cond([f"s_cmp_lg_u32 {S_W}, 4", f"s_cmp_eq_u32 {S_HASF}, 0"], "s_cbranch_scc1"): h_issue()
    if EF and t4early: tileV("s74", "v4", thr=True)
    elif EF: issueV(1, 3, 4, 8)
    else: issueDN(4, 4, 8)
    with cond(f"s_cmp_ge_u32 {S_W}, 4", "s_cbranch_scc1"):
        poll(q_issue, q_check, lambda: e("s_waitcnt vmcnt(4)"), "q")
        untag(range(QG, QG+16))
        for kq in range(1, 4):
            e(f"v_pk_add_f32 {vr(QG,2)}, {vr(QG,2)}, {vr(QG+4*kq,2)}"); e(f"v_pk_add_f32 {vr(QG+2,2)}, {vr(QG+2,2)}, {vr(QG+4*kq+2,2)}")
        e(f"v_cvt_pk_bf16_f32 v{QG}, v{QG}, v{QG+1}")
        e(f"v_cvt_pk_bf16_f32 v{QG+1}, v{QG+2}, v{QG+3}")
        e(f"v_lshlrev_b32 v{T0}, 3, v{V_LANE}"); e(f"s_lshl_b32 s7, {S_W}, 9"); e(f"v_add_u32 v{T0}, s7, v{T0}")
        e(f"ds_write_b64 v{T0}, {vr(QG,2)} offset:{L_Q}")
        setflag(L_FQ)
    with cond([f"s_cmp_lg_u32 {S_W}, 4", f"s_cmp_eq_u32 {S_HASF}, 0"], "s_cbranch_scc1"):
        poll(h_issue, h_check, lambda: e("s_waitcnt vmcnt(4)"), "h")
        HG = QG
        untag(range(HG, HG+4))
        xlane("v_add_f32", [HG, HG+1, HG+2, HG+3], [HG+4, HG+5, HG+6, HG+7], ["p16", "p32"])
        for d in range(2): rnd2(HG+2*d, HG+2*d+1, HG+8+d)
        for i in range(4): e(f"v_mul_f32 v{HG+8+i}, {S_LOG2E}, v{HG+i}")
        for i in range(4): e(f"v_exp_f32 v{HG+8+i}, -v{HG+8+i}")
        for i in range(4): e(f"v_add_f32 v{HG+8+i}, 1.0, v{HG+8+i}")
        for i in range(4): e(f"v_rcp_f32 v{HG+8+i}, v{HG+8+i}")
        for i in range(4): e(f"v_mul_f32 v{HG+i}, v{HG+i}, v{HG+8+i}")
        for d in range(2): e(f"v_cvt_pk_bf16_f32 v{HG+4+d}, v{HG+2*d}, v{HG+2*d+1}")
        e(f"v_and_b32 v{T0}, 1, v{V_LANE}"); e(f"v_lshlrev_b32 v{T0}, 5, v{T0}")
        e(f"v_bfe_u32 v{T1}, v{V_LANE}, 1, 2"); e(f"v_lshl_add_u32 v{T0}, v{T1}, 1, v{T0}")
        e(f"v_bfe_u32 v{T1}, v{V_LANE}, 3, 1"); e(f"v_lshl_add_u32 v{T0}, v{T1}, 6, v{T0}")
        e("s_mov_b64 exec, 0xffff")
        for d in range(2):
            e(f"ds_write_b16 v{T0}, v{HG+4+d} offset:{L_OL + 16*d}")
            e(f"ds_write_b16_d16_hi v{T0}, v{HG+4+d} offset:{L_OL + 16*d + 8}")
        e("s_mov_b64 exec, -1")
        setflag(L_FQ)
    stamp(4)
    e(f"v_and_b32 v{T0}, 7, v{V_LANE}"); e(f"v_lshlrev_b32 v{T0}, 8, v{T0}")
    e(f"v_lshrrev_b32 v{T1}, 4, v{V_LANE}"); e(f"v_lshl_add_u32 v{T0}, v{T1}, 5, v{T0}")
    e(f"v_bfe_u32 v{T1}, v{V_LANE}, 3, 1"); e(f"v_lshl_add_u32 v{T0}, v{T1}, 4, v{T0}")
    waitflags(L_FQ, 4, "wfq")
    e(f"ds_read_b128 {vr(Q0)}, v{T0} offset:{L_Q}")
    e(f"ds_read_b128 {vr(Q1)}, v{T0} offset:{L_Q+128}")
    stamp(5)

    def S_phase(u, slot):
        K = SLOT(slot)
        e.wait_vm(f"k{u}", " lgkmcnt(0)" if u == 0 else "")
        for t in range(2):
            for beta in range(4):
                c = "0" if t == 0 else vr(SC+4*beta)
                e(f"v_mfma_f32_16x16x32_bf16 {vr(SC+4*beta)}, {vr(K+8*beta+4*t)}, {vr(Q0 if t == 0 else Q1)}, {c}")
        yield
        S = SC + 16
        for beta in range(4):
            for eps in range(2):
                dpp("v_add_f32", S+2*beta+eps, SC+4*beta+2*eps+1, SC+4*beta+2*eps, "row_ror:8")
        for d in range(4): rnd2(S+2*d, S+2*d+1, SC+24+d)
        for i in range(8): e(f"v_mul_f32 v{S+i}, {S_SCALE}, v{S+i}")
        for d in range(4): rnd2(S+2*d, S+2*d+1, SC+24+d)
        e(f"v_max3_f32 v{T0}, v{S}, v{S+1}, v{S+2}")
        e(f"v_max3_f32 v{T1}, v{S+3}, v{S+4}, v{S+5}")
        e(f"v_max3_f32 v{T0}, v{T0}, v{S+6}, v{S+7}")
        e(f"v_max_f32 v{T0}, v{T0}, v{T1}")
        xlane("v_max_f32", [T0], [T1], ["p16", "p32"])
        e(f"v_mul_f32 v{T0}, {S_LOG2E}, v{T0}")
        if u > 0:
            e(f"v_max_f32 v{T0}, v{T0}, v{V_ML}")
            e(f"v_sub_f32 v{V_AL}, v{V_ML}, v{T0}")
            e(f"v_exp_f32 v{V_AL}, v{V_AL}")
        e(f"v_mov_b32 v{V_ML}, v{T0}")
        for i in range(8): e(f"v_fma_f32 v{S+i}, v{S+i}, {S_LOG2E}, -v{T0}")
        for i in range(8): e(f"v_exp_f32 v{S+i}, v{S+i}")
        if u > 0:
            e(f"v_mul_f32 v{V_L}, v{V_L}, v{V_AL}")
            for i in range(32): e(f"v_mul_f32 v{ACC+i}, v{ACC+i}, v{V_AL}")
        for d in range(4): e(f"v_cvt_pk_bf16_f32 v{P+d}, v{S+2*d}, v{S+2*d+1}")
        if u == 0: e(f"v_add_f32 v{V_L}, v{S}, v{S+1}")
        else:
            e(f"v_add_f32 v{V_L}, v{V_L}, v{S}"); e(f"v_add_f32 v{V_L}, v{V_L}, v{S+1}")
        for i in range(2, 8): e(f"v_add_f32 v{V_L}, v{V_L}, v{S+i}")
        yield
    def perms32(src, dst):
        for p in range(4):
            for d in range(4):
                for x in range(2):
                    e(f"v_perm_b32 v{dst+4*(2*d+x)+p}, v{src+4*(2*p+1)+d}, v{src+4*(2*p)+d}, {S_HI if x else S_LO}")
    def PV_phase(u, slot):
        e.wait_vm(f"v{u}")
        perms32(SLOT(slot), SC)
        for ee in range(8):
            c = "0" if u == 0 else vr(ACC+4*ee)
            e(f"v_mfma_f32_16x16x32_bf16 {vr(ACC+4*ee)}, {vr(SC+4*ee)}, {vr(P)}, {c}")
    WP = SLOT(1)
    def down_mfma_publish(A, W, D, ST):
        for ee in range(8):
            e(f"v_mfma_f32_16x16x32_bf16 {vr(D+4*ee)}, {vr(A)}, {vr(W+4*ee)}, 0")
        e("s_mov_b64 exec, 0xffff")
        for q4 in range(4):
            b, eh = q4 >> 1, q4 & 1
            tagput(ST+4*q4, [D+4*(4*eh+i)+b for i in range(4)])
            e(f"buffer_store_dwordx4 {vr(ST+4*q4)}, v{V_V}, {R_WS}, s38 offen offset:{q4*256} sc1", tag="pubD")
        e("s_mov_b64 exec, -1")
    g = S_phase(0, 0); next(g)
    e("s_load_dwordx2 s[94:95], s[92:93], 0 glc")
    if not t4early:
        e(f"s_add_u32 s74, {S_KV}, {4*32768}")
        tileK("s74", "k4"); tileV("s74", "v4")
    next(g)
    PV_phase(0, 1)
    Lc1, Lc2 = newlab("ctpoll"), newlab("ctok")
    e(f"s_mov_b32 {S_CNT}, 0")
    e.label(Lc1)
    e("s_waitcnt lgkmcnt(0)")
    e(f"s_cmp_eq_u32 s95, {S_T}"); e(f"s_cbranch_scc1 {Lc2}")
    e(f"s_add_u32 {S_CNT}, {S_CNT}, 1"); e(f"s_cmp_gt_u32 {S_CNT}, {POLL_LIMIT}"); e(f"s_cbranch_scc1 {Lc2}")
    e("s_load_dwordx2 s[94:95], s[92:93], 0 glc")
    e(f"s_branch {Lc1}")
    e.label(Lc2)
    S_NX, S_ST = "s96", "s97"
    def grab():
        e(f"s_mov_b32 {S_NX}, 1")
        e(f"s_atomic_add {S_NX}, s[92:93], 0 glc")
    for _ in S_phase(1, 2): pass
    PV_phase(1, 3)
    if not EF:
        e.wait_vm("dn")
        perms32(SLOT(4), WP)
    WA = SLOT(0) if t4early else SLOT(4)
    e(f"v_and_b32 v{T0}, 15, v{V_LANE}"); e(f"v_mul_u32_u24 v{WA}, {512+16}, v{T0}")
    e(f"v_lshrrev_b32 v{T1}, 4, v{V_LANE}"); e(f"v_lshl_add_u32 v{WA}, v{T1}, 7, v{WA}")
    e(f"s_lshl_b32 s7, {S_W}, 12"); e(f"v_add_u32 v{WA}, s7, v{WA}")
    for ee in range(1, 8): e(f"v_xor_b32 v{WA+ee}, {ee*16}, v{WA}")
    RA, GA, VO, VM, MA, MW, ADA, OLW = WA + 8, WA + 9, WA + 10, WA + 11, WA + 12, WA + 13, WA + 14, WA + 15
    e(f"s_lshl_b32 s7, {S_W}, 6"); e(f"v_add_u32 v{T0}, s7, v{V_LANE}")
    e(f"v_lshlrev_b32 v{GA}, 4, v{T0}")
    e(f"v_lshrrev_b32 v{T1}, 5, v{T0}"); e(f"v_and_b32 v{T1}, 7, v{T1}"); e(f"v_lshlrev_b32 v{MA}, 6, v{T1}"); e(f"v_lshlrev_b32 v{T1}, 4, v{T1}")
    e(f"v_xor_b32 v{RA}, v{GA}, v{T1}")
    e(f"v_lshlrev_b32 v{MW}, 6, v{V_LANE}"); e(f"s_lshl_b32 s7, {S_W}, 3"); e(f"v_add_u32 v{MW}, s7, v{MW}")
    e(f"v_and_b32 v{T0}, 1, v{V_LANE}"); e(f"v_lshlrev_b32 v{T0}, 6, v{T0}")
    e(f"v_and_b32 v{T1}, 48, v{V_LANE}"); e(f"v_add_u32 v{ADA}, v{T0}, v{T1}")
    e(f"s_and_b32 s7, {S_W}, 1"); e("s_lshl_b32 s7, s7, 6"); e(f"s_lshr_b32 s78, {S_W}, 1"); e("s_lshl_b32 s78, s78, 5"); e("s_add_u32 s7, s7, s78")
    e(f"v_and_b32 v{OLW}, 3, v{V_LANE}"); e(f"v_lshlrev_b32 v{OLW}, 3, v{OLW}"); e(f"v_lshrrev_b32 v{T0}, 4, v{V_LANE}"); e(f"v_lshl_add_u32 v{OLW}, v{T0}, 1, v{OLW}"); e(f"v_add_u32 v{OLW}, s7, v{OLW}")
    e(f"s_lshr_b32 s7, {S_IDX}, 5"); e(f"s_and_b32 s79, {S_W}, 1"); e("s_lshl_b32 s79, s79, 2"); e("s_add_u32 s7, s7, s79"); e("s_lshl_b32 s7, s7, 17")
    e("s_lshl_b32 s78, s78, 1"); e("s_add_u32 s78, s78, s7")
    e(f"s_and_b32 s7, {S_IDX}, 31"); e("s_lshl_b32 s7, s7, 7"); e("s_add_u32 s78, s78, s7"); e(f"s_add_u32 s78, s78, {WS_OP}")
    e(f"s_add_u32 s79, s78, {16*4096}")
    e(f"v_lshrrev_b32 v{T0}, 2, v{V_LANE}"); e(f"v_and_b32 v{T1}, 3, v{V_LANE}")
    e(f"v_lshlrev_b32 v{VO}, 12, v{T0}"); e(f"v_lshl_add_u32 v{VO}, v{T1}, 4, v{VO}")
    e("s_lshl_b32 s100, s2, 12"); e(f"s_add_u32 s100, s100, {WS_OP - 4096}")
    e("s_lshl_b32 s101, s2, 7"); e(f"s_add_u32 s101, s101, {WS_ML}")
    e(f"s_lshl_b32 s38, {S_TYPE}, 7"); e(f"s_add_u32 s38, s38, {S_KS}"); e("s_lshl_b32 s38, s38, 13")
    e(f"s_lshl_b32 s7, {S_W}, 10"); e("s_add_u32 s38, s38, s7"); e(f"s_add_u32 s38, s38, {WS_AP}")
    VA3, VX3, VL3, SH4 = WA + 18, WA + 19, WA + 20, WA + 21
    GF = SLOT(3)
    XQ = SLOT(3) + 4
    e(f"v_lshrrev_b32 v{VA3}, 2, v{V_LANE}"); e(f"v_lshlrev_b32 v{VA3}, 13, v{VA3}")
    e(f"v_and_b32 v{VX3}, 3, v{V_LANE}"); e(f"v_lshlrev_b32 v{SH4}, 3, v{VX3}"); e(f"v_lshlrev_b32 v{VX3}, 4, v{VX3}"); e(f"v_add_u32 v{VA3}, v{VA3}, v{VX3}")
    e(f"s_lshl_b32 s7, {S_W}, 6"); e(f"v_add_u32 v{VL3}, s7, v{VX3}")
    e(f"s_lshl_b32 s16, {S_IDX}, 6"); e(f"s_add_u32 s16, s16, {WS_AP}"); e(f"s_lshl_b32 s7, {S_W}, 17"); e("s_add_u32 s16, s16, s7")
    e(f"s_add_u32 s17, s16, {128*8192}")
    e(f"s_lshr_b32 s7, {S_IDX}, 3"); e("s_and_b32 s7, s7, 1"); e("s_lshl_b32 s18, s7, 11")
    e(f"s_lshr_b32 s7, {S_IDX}, 4"); e("s_lshl_b32 s7, s7, 8"); e("s_add_u32 s18, s18, s7")
    e(f"s_and_b32 s7, {S_IDX}, 3"); e("s_lshl_b32 s7, s7, 6"); e("s_add_u32 s18, s18, s7")
    e(f"s_and_b32 s7, {S_IDX}, 4"); e("s_lshl_b32 s7, s7, 1"); e("s_add_u32 s18, s18, s7")
    e(f"s_cmp_lg_u32 {S_W}, 7"); e(f"s_cselect_b32 s19, {S_TYPE}, 0")
    e(f"s_and_b32 s20, {S_T}, 0xffffff"); e("s_mov_b32 s21, 0x0c040100")
    def gf_issue(): e(f"buffer_load_dwordx4 {vr(GF)}, v{VA3}, {R_WS}, s17 offen sc1", tag="g")
    FR = 64 - 8*NS - HF
    P1 = FR * 8
    POOL = P1 + HF * 16
    assert NS == 5
    e("s_and_b32 s98, s2, 0xf8"); e("s_lshl_b32 s98, s98, 18"); e(f"s_add_u32 s98, s98, {NS*8*4096}")
    if not late_ffn and not EF:
      with cond(f"s_cmp_eq_u32 {S_HASF}, 0", "s_cbranch_scc1"):
        waitflags(L_FQ + 16, 1, "wfh2")
        e(f"ds_read_b128 {vr(AD)}, v{ADA} offset:{L_OL}")
        e("s_waitcnt lgkmcnt(0)")
        down_mfma_publish(AD, WP, SLOT(2), SC)
    if tlb:
        with cond(f"s_cmp_lg_u32 {S_W}, 1", "s_cbranch_scc1"):
            e("s_mov_b64 exec, 1")
            e(f"buffer_load_dword v{SLOT(3)+8}, off, {R_DN}, {S_DNB}", tag="tl")
            e(f"buffer_load_dword v{SLOT(3)+9}, off, {R_WS}, s17", tag="tl")
            e(f"buffer_load_dword v{SLOT(3)+10}, off, {R_OUT}, s18", tag="tl")
            e("s_mov_b64 exec, -1")
    grab()
    stamp(6)
    setprio(0)
    Lloop, Lskip = newlab("loop"), newlab("noresc")
    e("s_mov_b32 s99, 0")
    e.label(Lloop)
    e("s_waitcnt vmcnt(4)")
    for t in range(2):
        for beta in range(2):
            c = "0" if t == 0 else vr(SC+4*beta)
            e(f"v_mfma_f32_16x16x32_bf16 {vr(SC+4*beta)}, {vr(KB+8*beta+4*t)}, {vr(Q0 if t == 0 else Q1)}, {c}")
    e("s_waitcnt lgkmcnt(0)")
    if pmap == 0:
        e(f"s_and_b32 s74, {S_NX}, 7"); e("s_lshl_b32 s74, s74, 18"); e("s_add_u32 s74, s74, s98")
        e(f"s_lshr_b32 s75, {S_NX}, 3"); e("s_lshl_b32 s76, s75, 12"); e("s_lshl_b32 s75, s75, 11"); e(f"s_add_u32 s75, s75, {FR*4096 - FR*2048}")
    else:
        assert FR % 8 == 0 and HF == 8
        e(f"s_and_b32 s74, {S_NX}, 7"); e("s_lshl_b32 s74, s74, 12"); e("s_add_u32 s74, s74, s98")
        e(f"s_bfe_u32 s75, {S_NX}, 0x30003"); e("s_lshl_b32 s75, s75, 18"); e("s_add_u32 s74, s74, s75")
        e(f"s_lshr_b32 s75, {S_NX}, 6"); e("s_lshl_b32 s76, s75, 15"); e("s_lshl_b32 s75, s75, 11"); e(f"s_add_u32 s75, s75, {FR*4096 - (FR//8)*2048}")
    e(f"s_cmp_lt_u32 {S_NX}, {P1}"); e("s_cselect_b32 s75, s76, s75"); e("s_cselect_b32 s77, 0, 0xff800000"); e("s_cselect_b32 s76, 0, 0x40000000")
    e("s_add_u32 s74, s74, s75"); e("s_add_u32 s76, s76, s74")
    e(f"s_cmp_lt_u32 {S_NX}, {POOL}"); e("s_cselect_b32 s74, s74, 0x40000000"); e("s_cselect_b32 s75, 1, 0")
    def dn_at(jjs):
        for jj in jjs:
            e(f"s_add_u32 s22, {S_DNB}, {(8*(jj&3) + (jj>>2))*2048}")
            e(f"buffer_load_dwordx4 {vr(SLOT(2)+4*jj)}, v{V_DN}, {R_DN}, s22 offen nt", tag="dn3")
    ea = list(range(8 - LA - EA, 8 - LA))
    ea_exit = []
    if xmode == 1: ea_exit = ea; ea = []
    if xmode == 2: ea_exit = ea[4:]; ea = ea[:4]
    if EA >= 4 and xmode == 0:
        Lk, Lk2 = newlab("kdn"), newlab("kdn2")
        e(f"s_or_b32 s22, s75, {'s75' if (EF and fx in (0, 3, 4)) else S_TYPE}"); e(f"s_cbranch_scc1 {Lk}")
        e.cond_depth += 1; dn_at(ea[:4]); e.cond_depth -= 1
        e(f"s_branch {Lk2}")
        e.label(Lk)
        tileK("s74", "kl", "s76")
        e.label(Lk2)
        ea = ea[4:]
    else:
        tileK("s74", "kl", "s76")
    S = SC + 8
    for beta in range(2):
        for eps in range(2):
            dpp("v_add_f32", S+2*beta+eps, SC+4*beta+2*eps+1, SC+4*beta+2*eps, "row_ror:8")
    for d in range(2): rnd2(S+2*d, S+2*d+1, SC+12+d)
    for i in range(4): e(f"v_mul_f32 v{S+i}, {S_SCALE}, v{S+i}")
    for d in range(2): rnd2(S+2*d, S+2*d+1, SC+12+d)
    e(f"v_add_f32 v{S+2}, s99, v{S+2}"); e(f"v_add_f32 v{S+3}, s99, v{S+3}")
    e("s_mov_b32 s99, s77")
    e(f"v_max3_f32 v{T0}, v{S}, v{S+1}, v{S+2}")
    e(f"v_max_f32 v{T0}, v{T0}, v{S+3}")
    xlane("v_max_f32", [T0], [T1], ["p16", "p32"])
    e(f"v_mul_f32 v{T0}, {S_LOG2E}, v{T0}")
    e(f"v_cmp_gt_f32 vcc, v{T0}, v{V_ML}")
    e(f"s_and_b64 vcc, vcc, {S_N8}")
    e(f"s_cbranch_scc0 {Lskip}")
    e(f"v_max_f32 v{T0}, v{T0}, v{V_ML}")
    e(f"v_sub_f32 v{V_AL}, v{V_ML}, v{T0}")
    e(f"v_exp_f32 v{V_AL}, v{V_AL}")
    e(f"v_mov_b32 v{V_ML}, v{T0}")
    e(f"v_mul_f32 v{V_L}, v{V_L}, v{V_AL}")
    for i in range(32): e(f"v_mul_f32 v{ACC+i}, v{ACC+i}, v{V_AL}")
    e.label(Lskip)
    for i in range(4): e(f"v_fma_f32 v{S+i}, v{S+i}, {S_LOG2E}, -v{V_ML}")
    for i in range(4): e(f"v_exp_f32 v{S+i}, v{S+i}")
    for d in range(2): e(f"v_cvt_pk_bf16_f32 v{P+d}, v{S+2*d}, v{S+2*d+1}")
    for i in range(4): e(f"v_add_f32 v{V_L}, v{V_L}, v{S+i}")
    PS = SC + 16
    for p in range(2):
        e(f"s_waitcnt vmcnt({6 - 2*p})")
        for d in range(4):
            for x in range(2):
                e(f"v_perm_b32 v{PS+2*(2*d+x)+p}, v{VB+4*(2*p+1)+d}, v{VB+4*(2*p)+d}, {S_HI if x else S_LO}")
    with cond("s_cmp_eq_u32 s75, 0", "s_cbranch_scc1"):
        tileV("s74", "vl", "s76")
        grab()
    if ea:
        with cond(f"s_or_b32 s22, s75, {'s75' if (EF and fx == 0) else S_TYPE}", "s_cbranch_scc1"): dn_at(ea)
    if not EF:
      with cond("s_cmp_le_u32 s19, s75", "s_cbranch_scc1"):
        gf_issue()
    for ee in range(8):
        e(f"v_mfma_f32_16x16x16_bf16 {vr(ACC+4*ee)}, {vr(PS+2*ee,2)}, {vr(P,2)}, {vr(ACC+4*ee)}")
    e("s_cmp_lg_u32 s75, 0"); e(f"s_cbranch_scc1 {Lloop}")
    stamp(7)
    xlane("v_add_f32", [V_L], [T1], ["p16", "p32"])
    e("s_mov_b64 exec, 0xff")
    e(f"ds_write_b64 v{MW}, {vr(V_ML,2)} offset:{L_MX}")
    e(f"s_mov_b64 exec, {S_N8}")
    for ee in range(8): e(f"ds_write_b128 v{WA+ee}, {vr(ACC+4*ee)} offset:{L_ORED}")
    e("s_mov_b64 exec, -1")
    if ea_exit:
        with cond(f"s_cmp_eq_u32 {S_TYPE}, 1", "s_cbranch_scc1"): dn_at(ea_exit)
    if EF and fx in (1, 3):
        with cond(f"s_cmp_eq_u32 {S_TYPE}, 0", "s_cbranch_scc1"): dn_at(range(8) if fx == 1 else range(4, 8))
    stamp(8)
    e("s_waitcnt lgkmcnt(0)")
    e("s_barrier")
    L4, Lp = newlab("w4"), newlab("pubdone")
    ML8 = SC
    def wg_factors():
        e(f"v_max3_f32 v{T0}, v{ML8}, v{ML8+2}, v{ML8+4}")
        e(f"v_max3_f32 v{T1}, v{ML8+6}, v{ML8+8}, v{ML8+10}")
        e(f"v_max3_f32 v{T0}, v{T0}, v{ML8+12}, v{ML8+14}")
        e(f"v_max_f32 v{T0}, v{T0}, v{T1}")
        for w in range(8): e(f"v_sub_f32 v{ML8+2*w}, v{ML8+2*w}, v{T0}")
        for w in range(8): e(f"v_exp_f32 v{ML8+2*w}, v{ML8+2*w}")
    e(f"s_cmp_lt_u32 {S_W}, 4"); e(f"s_cbranch_scc1 {Lp}")
    e.cond_depth += 1
    for i in range(4): e(f"ds_read_b128 {vr(ML8+4*i)}, v{MA} offset:{L_MX + 16*i}")
    for w in range(8): e(f"ds_read_b128 {vr(ACC+4*w)}, v{RA} offset:{L_ORED - 4096 + w*4096}")
    e("s_waitcnt lgkmcnt(8)")
    wg_factors()
    e(f"v_mul_f32 v{T2}, v{ML8+1}, v{ML8}")
    e(f"v_mul_f32 v{T3}, v{ML8+3}, v{ML8+2}")
    for w in range(2, 8): e(f"v_fmac_f32 v{T2 + (w & 1)}, v{ML8+2*w+1}, v{ML8+2*w}")
    e(f"v_add_f32 v{T2}, v{T2}, v{T3}")
    e(f"v_log_f32 v{T3}, v{T2}")
    e(f"v_rcp_f32 v{T2}, v{T2}")
    for w in range(8):
        e(f"s_waitcnt lgkmcnt({7-w})")
        for c in range(0, 4, 2):
            if w == 0: e(f"v_pk_mul_f32 {vr(ACC+c,2)}, {vr(ACC+c,2)}, {vr(ML8,2)} op_sel_hi:[1,0]")
            else: e(f"v_pk_fma_f32 {vr(ACC+c,2)}, {vr(ACC+4*w+c,2)}, {vr(ML8+2*w,2)}, {vr(ACC+c,2)} op_sel_hi:[1,0,1]")
        if w == 1:
            e(f"v_add_f32 v{T3}, v{T3}, v{T0}")
            e(f"v_lshrrev_b32 v{T3}, v{SH4}, v{T3}")
    for c in range(0, 4, 2): e(f"v_pk_mul_f32 {vr(ACC+c,2)}, {vr(ACC+c,2)}, {vr(T2,2)} op_sel_hi:[1,0]")
    tagput(ACC+4, [ACC, ACC+1, ACC+2])
    e(f"v_perm_b32 v{ACC+7}, v{ACC+3}, v{T3}, {S_TI[0]}")
    e(f"buffer_store_dwordx4 {vr(ACC+4)}, v{GA}, {R_WS}, s100 offen sc1", tag="pubO")
    e.cond_depth -= 1
    e.label(Lp)
    stamp(9)
    if dbgt:
        e("s_memrealtime s[16:17]"); e("s_waitcnt lgkmcnt(0)")
    def late_dn(L):
        for jj in range(8 - L, 8):
            e(f"s_add_u32 s76, {S_DNB}, {(8*(jj&3) + (jj>>2))*2048}")
            e(f"buffer_load_dwordx4 {vr(SLOT(0)+4*jj)}, v{V_DN}, {R_DN}, s76 offen nt", tag="dn2")
        for p in range((8 - L) // 2, 4):
            e(f"s_waitcnt vmcnt({6-2*p})")
            for d in range(4):
                for x in range(2):
                    e(f"v_perm_b32 v{WP+4*(2*d+x)+p}, v{SLOT(0)+4*(2*p+1)+d}, v{SLOT(0)+4*(2*p)+d}, {S_HI if x else S_LO}")
    if pbar: e("s_barrier")
    LF = newlab("ftype")
    e(f"s_cmp_eq_u32 {S_TYPE}, 1"); e(f"s_cbranch_scc1 {LF}")
    e.cond_depth += 1
    OG, MG = ACC + 16, ACC + 24
    def o_issue():
        e(f"buffer_load_dwordx4 {vr(OG)}, v{VO}, {R_WS}, s78 offen sc1", tag="og")
        e(f"buffer_load_dwordx4 {vr(OG+4)}, v{VO}, {R_WS}, s79 offen sc1", tag="og")
    def o_check():
        e(f"v_perm_b32 v{T3}, v{OG+1}, v{OG}, {S_G2}")
        e(f"v_perm_b32 v{T4}, v{OG+5}, v{OG+4}, {S_G2}")
        e(f"v_perm_b32 v{T3}, v{OG+2}, v{T3}, s21")
        e(f"v_perm_b32 v{T4}, v{OG+6}, v{T4}, s21")
        e(f"v_xor_b32 v{T3}, s20, v{T3}"); e(f"v_xor_b32 v{T4}, s20, v{T4}")
        e(f"v_or_b32 v{T5}, v{T3}, v{T4}")
    if EA:
        if not LA: e("s_waitcnt vmcnt(0)")
        else: e("s_waitcnt vmcnt(0)")
        for p in range((8 - LA - EA) // 2, (8 - LA) // 2):
            for d in range(4):
                for x in range(2):
                    e(f"v_perm_b32 v{WP+4*(2*d+x)+p}, v{SLOT(2)+4*(2*p+1)+d}, v{SLOT(2)+4*(2*p)+d}, {S_HI if x else S_LO}")
    late_dn(LA)
    if THO:
        with cond(f"s_cmp_lg_u32 {S_W}, 0", "s_cbranch_scc1"):
            Lr, Lx = newlab("so"), newlab("sox")
            e("s_mov_b32 exec_lo, 0x01010101"); e("s_mov_b32 exec_hi, 0x01010101")
            e(f"s_mov_b32 {S_CNT}, 0")
            e.label(Lr)
            e(f"buffer_load_dwordx4 {vr(OG)}, v{VO}, {R_WS}, s78 offen sc1", tag="og")
            e(f"s_add_u32 {S_CNT}, {S_CNT}, 1"); e(f"s_cmp_gt_u32 {S_CNT}, {POLL_LIMIT}")
            e("s_waitcnt vmcnt(0)")
            e(f"s_cbranch_scc1 {Lx}")
            e(f"v_perm_b32 v{T3}, v{OG+1}, v{OG}, {S_G2}")
            e(f"v_perm_b32 v{T3}, v{OG+2}, v{T3}, s21")
            e(f"v_cmp_eq_u32 vcc, s20, v{T3}")
            e("s_bcnt1_i32_b64 s7, vcc")
            e(f"s_cmp_ge_u32 s7, {THO}"); e(f"s_cbranch_scc1 {Lx}")
            e("s_sleep 1")
            e(f"s_branch {Lr}")
            e.label(Lx)
            e("s_mov_b64 exec, -1")
        e("s_barrier")
    with cond(f"s_cmp_ge_u32 {S_W}, 4", "s_cbranch_scc1"):
        if dly_o and not THO: e(f"s_sleep {dly_o}")
        o_issue()
        poll(o_issue, o_check, lambda: e("s_waitcnt vmcnt(0)"), "o", sleep=slp_o)
        stamp(10)
        for i in range(2): e(f"v_and_b32 v{MG+i}, 0xff, v{OG+4*i+3}")
        for i in range(2): e(f"v_lshlrev_b32 v{MG+i}, v{SH4}, v{MG+i}")
        untag(range(OG, OG+4))
        for i in range(2): dpp("v_or_b32", MG+i, MG+i, MG+i, "quad_perm:[1,0,3,2]")
        untag(range(OG+4, OG+8))
        for i in range(2): dpp("v_or_b32", MG+i, MG+i, MG+i, "quad_perm:[2,3,0,1]")
        e(f"v_max_f32 v{T0}, v{MG}, v{MG+1}")
        xlane("v_max_f32", [T0], [T1], ["r4", "r8", "p16", "p32"])
        for i in range(2): e(f"v_sub_f32 v{MG+i}, v{MG+i}, v{T0}")
        for i in range(2): e(f"v_exp_f32 v{MG+i}, v{MG+i}")
        for c in range(0, 4, 2): e(f"v_pk_mul_f32 {vr(OG+c,2)}, {vr(OG+c,2)}, {vr(MG,2)} op_sel_hi:[1,0]")
        for c in range(0, 4, 2): e(f"v_pk_fma_f32 {vr(OG+c,2)}, {vr(OG+4+c,2)}, {vr(MG,2)}, {vr(OG+c,2)} op_sel:[0,1,0] op_sel_hi:[1,1,1]")
        e(f"v_add_f32 v{T1}, v{MG}, v{MG+1}")
        e(f"v_mov_b32 v{T4}, v{T1}")
        e(f"v_permlane32_swap_b32 v{OG}, v{OG+2}"); e(f"v_permlane32_swap_b32 v{OG+1}, v{OG+3}"); e(f"v_permlane32_swap_b32 v{T1}, v{T4}")
        e(f"v_add_f32 v{T1}, v{T1}, v{T4}"); e(f"v_add_f32 v{OG}, v{OG}, v{OG+2}"); e(f"v_add_f32 v{OG+1}, v{OG+1}, v{OG+3}")
        e(f"v_mov_b32 v{T4}, v{T1}")
        e(f"v_permlane16_swap_b32 v{OG}, v{OG+1}"); e(f"v_permlane16_swap_b32 v{T1}, v{T4}")
        e(f"v_add_f32 v{OG}, v{OG}, v{OG+1}"); e(f"v_add_f32 v{T1}, v{T1}, v{T4}")
        for st in (8, 4):
            dpp("v_add_f32", OG, OG, OG, f"row_ror:{st}"); dpp("v_add_f32", T1, T1, T1, f"row_ror:{st}")
        e(f"v_rcp_f32 v{T0}, v{T1}")
        e(f"v_mul_f32 v{OG}, v{OG}, v{T0}")
        e(f"v_cvt_pk_bf16_f32 v{OG}, v{OG}, v{OG}")
        e("s_mov_b32 exec_lo, 0x000f000f"); e("s_mov_b32 exec_hi, 0x000f000f")
        e(f"ds_write_b16 v{OLW}, v{OG} offset:{L_OL}")
        e("s_mov_b64 exec, -1")
        e("s_waitcnt lgkmcnt(0)")
    e("s_barrier")
    e(f"ds_read_b128 {vr(AD)}, v{ADA} offset:{L_OL}")
    e("s_waitcnt lgkmcnt(0)")
    down_mfma_publish(AD, WP, ACC, SLOT(3))
    stamp(11)
    e("s_branch L_fini")
    e.label(LF)
    if late_ffn:
      with cond(f"s_cmp_eq_u32 {S_HASF}, 0", "s_cbranch_scc1"):
        e(f"ds_read_b128 {vr(AD)}, v{ADA} offset:{L_OL}")
        late_dn(LF_)
        e("s_waitcnt lgkmcnt(0)")
        down_mfma_publish(AD, WP, SLOT(2), SLOT(3))
      stamp(11)
    VA, VX = VA3, VX3
    G = SLOT(1)
    def ga_issue(): e(f"buffer_load_dwordx4 {vr(G)}, v{VA}, {R_WS}, s16 offen sc1", tag="g")
    def tred(R):
        e(f"v_permlane32_swap_b32 v{R}, v{R+2}"); e(f"v_permlane32_swap_b32 v{R+1}, v{R+3}")
        e(f"v_add_f32 v{R}, v{R}, v{R+2}"); e(f"v_add_f32 v{R+1}, v{R+1}, v{R+3}")
        e(f"v_permlane16_swap_b32 v{R}, v{R+1}")
        e(f"v_add_f32 v{R}, v{R}, v{R+1}")
        dpp("v_add_f32", R, R, R, "row_ror:8"); dpp("v_add_f32", R, R, R, "row_ror:4")
    VL = T0
    e(f"v_lshrrev_b32 v{VL}, 4, v{V_LANE}"); e(f"v_lshl_add_u32 v{VL}, v{VL}, 2, v{VL3}")
    e("s_mov_b32 s24, 0x000f000f"); e("s_mov_b32 s25, 0x000f000f")
    if EF:
        with cond(f"s_cmp_eq_u32 {S_HASF}, 0", "s_cbranch_scc1"):
            if fx == 2: dn_at(range(8))
            if fx == 4: dn_at(range(4, 8))
            e(f"ds_read_b128 {vr(AD)}, v{ADA} offset:{L_OL}")
            e("s_waitcnt vmcnt(0)")
            perms32(SLOT(2), KB)
            e("s_waitcnt lgkmcnt(0)")
            down_mfma_publish(AD, KB, ACC, SC)
        stamp(11)
        FV, XV, VR, VS = G + 8, G + 9, G + 10, G + 11
        e(f"s_cmp_eq_u32 {S_W}, 7"); e("s_cselect_b32 s17, s16, s17"); e("s_cselect_b32 s19, 0, -1")
        def gb_issue(): ga_issue(); gf_issue()
        def gb_check(): tagcheck(G, T3, True, T5); tagcheck(GF, T3, False, T5)
        with cond(f"s_cmp_lg_u32 {S_W}, 0", "s_cbranch_scc1"):
            e(f"v_lshlrev_b32 v{VR}, 2, v{V_LANE}")
            e(f"v_and_b32 v{VS}, 12, v{V_LANE}"); e(f"v_lshlrev_b32 v{VS}, 2, v{VS}"); e(f"v_and_b32 v{T1}, 3, v{V_LANE}"); e(f"v_lshl_add_u32 v{VS}, v{T1}, 1, v{VS}")
            e(f"buffer_load_ushort v{XV}, v{VS}, {R_X}, s18 offen", tag="xq")
            Lr, Lx = newlab("sp"), newlab("spx")
            e("s_mov_b32 exec_lo, 0x11111111"); e("s_mov_b32 exec_hi, 0x11111111")
            e(f"s_mov_b32 {S_CNT}, 0")
            e.label(Lr)
            ga_issue()
            e(f"s_add_u32 {S_CNT}, {S_CNT}, 1"); e(f"s_cmp_gt_u32 {S_CNT}, {POLL_LIMIT}")
            e("s_waitcnt vmcnt(0)")
            e(f"s_cbranch_scc1 {Lx}")
            tagcheck(G, T3, True, T5)
            e(f"v_cmp_eq_u32 vcc, 0, v{T5}")
            e("s_bcnt1_i32_b64 s7, vcc")
            e(f"s_cmp_ge_u32 s7, {THR}"); e(f"s_cbranch_scc1 {Lx}")
            if slp_pre: e(f"s_sleep {slp_pre}")
            e(f"s_branch {Lr}")
            e.label(Lx)
            e("s_mov_b64 exec, -1")
            e(f"v_lshlrev_b32 v{XV}, 16, v{XV}")
        e("s_and_b32 s19, s19, s23")
        e("s_barrier")
        gb_issue()
        poll(gb_issue, gb_check, lambda: e("s_waitcnt vmcnt(0)"), "ga", sleep=slp_g)
        stamp(12)
        untag(range(G, G+4))
        for r in range(GF, GF+4): e(f"v_and_b32 v{r}, s19, v{r}")
        tred(G); tred(GF)
        e("s_mov_b64 exec, s[24:25]")
        e(f"ds_write_b32 v{VL}, v{G} offset:{L_REDQ}")
        e(f"ds_write_b32 v{VL}, v{GF} offset:{L_REDQ+512}")
        e("s_waitcnt lgkmcnt(0)")
        e("s_barrier")
        e(f"s_cmp_lg_u32 {S_W}, 0"); e("s_cbranch_scc1 L_fini")
        e("s_mov_b64 exec, -1")
        e(f"ds_read2_b32 {vr(G,2)}, v{VR} offset0:{L_REDQ//4} offset1:{(L_REDQ+256)//4}")
        e(f"ds_read2_b32 {vr(G+2,2)}, v{VR} offset0:{(L_REDQ+512)//4} offset1:{(L_REDQ+768)//4}")
        e("s_waitcnt lgkmcnt(0)")
        e(f"v_add_f32 v{G}, v{G}, v{G+1}"); e(f"v_add_f32 v{FV}, v{G+2}, v{G+3}")
        xlane("v_add_f32", [G, FV], [G+1, G+2], ["p16", "p32"])
        rnd2(G, FV, G+1)
        e(f"v_add_f32 v{G}, v{XV}, v{G}")
        e(f"v_cvt_pk_bf16_f32 v{G}, v{G}, v{G}"); e(f"v_and_b32 v{G}, {S_MASKH}, v{G}")
        e(f"v_add_f32 v{G}, v{G}, v{FV}")
        e(f"v_cvt_pk_bf16_f32 v{G}, v{G}, v{G}")
    else:
        Lz, Lz2 = newlab("zf"), newlab("zf2")
        e(f"s_cmp_eq_u32 {S_W}, 7"); e(f"s_cbranch_scc1 {Lz}")
        poll(gf_issue, lambda: tagcheck(GF, T3, True, T5), lambda: e("s_waitcnt vmcnt(0)"), "gf", sleep=2)
        untag(range(GF, GF+4))
        tred(GF)
        e(f"s_branch {Lz2}")
        e.label(Lz)
        e(f"v_mov_b32 v{GF}, 0")
        e.label(Lz2)
        e("s_mov_b64 exec, s[24:25]")
        e(f"ds_write_b32 v{VL}, v{GF} offset:{L_REDQ+512}")
        e("s_mov_b64 exec, -1")
        e("s_waitcnt lgkmcnt(0)")
        e("s_barrier")
        FV, XV, VR, VS = G + 8, G + 9, G + 10, G + 11
        with cond(f"s_cmp_lg_u32 {S_W}, 0", "s_cbranch_scc1"):
            e(f"v_lshlrev_b32 v{VR}, 2, v{V_LANE}")
            e(f"ds_read2_b32 {vr(G+12,2)}, v{VR} offset0:{(L_REDQ+512)//4} offset1:{(L_REDQ+512+256)//4}")
            e(f"v_and_b32 v{VS}, 12, v{V_LANE}"); e(f"v_lshlrev_b32 v{VS}, 2, v{VS}"); e(f"v_and_b32 v{T1}, 3, v{V_LANE}"); e(f"v_lshl_add_u32 v{VS}, v{T1}, 1, v{VS}")
            e(f"buffer_load_ushort v{XV}, v{VS}, {R_X}, s18 offen", tag="xq")
            e("s_waitcnt lgkmcnt(0)")
            e(f"v_add_f32 v{FV}, v{G+12}, v{G+13}")
            xlane("v_add_f32", [FV], [T1], ["p16", "p32"])
            e(f"v_cvt_pk_bf16_f32 v{FV}, v{FV}, v{FV}"); e(f"v_and_b32 v{FV}, {S_MASKH}, v{FV}")
            e("s_waitcnt vmcnt(0)")
            e(f"v_lshlrev_b32 v{XV}, 16, v{XV}")
            Lr, Lx = newlab("sp"), newlab("spx")
            e("s_mov_b32 exec_lo, 0x11111111"); e("s_mov_b32 exec_hi, 0x11111111")
            e(f"s_mov_b32 {S_CNT}, 0")
            e.label(Lr)
            ga_issue()
            e(f"s_add_u32 {S_CNT}, {S_CNT}, 1"); e(f"s_cmp_gt_u32 {S_CNT}, {POLL_LIMIT}")
            e("s_waitcnt vmcnt(0)")
            e(f"s_cbranch_scc1 {Lx}")
            tagcheck(G, T3, True, T5)
            e(f"v_cmp_eq_u32 vcc, 0, v{T5}")
            e("s_bcnt1_i32_b64 s7, vcc")
            e(f"s_cmp_ge_u32 s7, {THR}"); e(f"s_cbranch_scc1 {Lx}")
            if slp_pre: e(f"s_sleep {slp_pre}")
            e(f"s_branch {Lr}")
            e.label(Lx)
            e("s_mov_b64 exec, -1")
        e("s_barrier")
        if dly_g: e(f"s_sleep {dly_g}")
        ga_issue()
        poll(ga_issue, lambda: tagcheck(G, T3, True, T5), lambda: e("s_waitcnt vmcnt(0)"), "ga", sleep=slp_g)
        stamp(12)
        untag(range(G, G+4))
        tred(G)
        e("s_mov_b64 exec, s[24:25]")
        e(f"ds_write_b32 v{VL}, v{G} offset:{L_REDQ}")
        e("s_waitcnt lgkmcnt(0)")
        e("s_barrier")
        e(f"s_cmp_lg_u32 {S_W}, 0"); e("s_cbranch_scc1 L_fini")
        e("s_mov_b64 exec, -1")
        e(f"ds_read2_b32 {vr(G,2)}, v{VR} offset0:{L_REDQ//4} offset1:{(L_REDQ+256)//4}")
        e("s_waitcnt lgkmcnt(0)")
        e(f"v_add_f32 v{G}, v{G}, v{G+1}")
        xlane("v_add_f32", [G], [G+1], ["p16", "p32"])
        e(f"v_cvt_pk_bf16_f32 v{G}, v{G}, v{G}"); e(f"v_and_b32 v{G}, {S_MASKH}, v{G}")
        e(f"v_add_f32 v{G}, v{XV}, v{G}")
        e(f"v_cvt_pk_bf16_f32 v{G}, v{G}, v{G}"); e(f"v_and_b32 v{G}, {S_MASKH}, v{G}")
        e(f"v_add_f32 v{G}, v{G}, v{FV}")
        e(f"v_cvt_pk_bf16_f32 v{G}, v{G}, v{G}")
    e("s_mov_b64 exec, 0xffff")
    e(f"buffer_store_short v{G}, v{VS}, {R_OUT}, s18 offen")
    e(f"s_cmp_lg_u32 {S_IDX}, 0"); e("s_cbranch_scc1 L_fini")
    e("s_mov_b64 exec, 1")
    e(f"buffer_store_dword v{V_T}, off, {R_WS}, 0")
    e.cond_depth -= 1
    e.label("L_fini")
    if dbgt:
        e("s_memrealtime s[72:73]"); e("s_waitcnt lgkmcnt(0)")
        e("s_cmp_lg_u32 s3, 0"); e("s_cbranch_scc1 L_dbg1")
        e("s_atomic_umax s72, s[34:35], 4"); e("s_waitcnt lgkmcnt(0)")
        e.label("L_dbg1")
    if dbgt:
        e("s_cmp_lg_u32 s3, 0"); e("s_cbranch_scc1 L_end")
        e("s_atomic_umax s16, s[34:35], 12")
        e("s_not_b32 s72, s90"); e("s_atomic_umax s72, s[34:35], 0"); e("s_atomic_umax s90, s[34:35], 8"); e("s_waitcnt lgkmcnt(0)")
    if stamps:
        e("s_mov_b64 exec, -1")
        stamp(13)
        e("s_mov_b64 exec, 0xffff")
        e(f"v_lshlrev_b32 v{T0}, 2, v{V_LANE}")
        e("s_lshl_b32 s7, s2, 3"); e(f"s_add_u32 s7, s7, {S_W}"); e("s_lshl_b32 s7, s7, 6"); e(f"s_add_u32 s7, s7, {WS_SIZE}")
        e("s_mov_b32 s58, 0x1000000")
        e(f"buffer_store_dword v0, v{T0}, {R_WS}, s7 offen")
    e.label("L_end")
    e("s_endpgm")

    out = HEADER
    out += f"; @launch grid=(256,1,1) block=(512,1,1) lds={LDS_BYTES}\n"
    out += '.amdgcn_target "amdgcn-amd-amdhsa--gfx950"\n.text\n'
    out += f".globl {KNAME}\n.p2align 8\n.type {KNAME},@function\n{KNAME}:\n"
    out += e.text()
    out += f""".section .rodata,"a"
.p2align 6
.amdhsa_kernel {KNAME}
  .amdhsa_next_free_vgpr 256
  .amdhsa_next_free_sgpr 102
  .amdhsa_accum_offset 256
  .amdhsa_group_segment_fixed_size 0
  .amdhsa_kernarg_size 88
  .amdhsa_user_sgpr_count 2
  .amdhsa_user_sgpr_kernarg_segment_ptr 1
  .amdhsa_system_sgpr_workgroup_id_x 1
.end_amdhsa_kernel
"""
    return out

if __name__ == "__main__":
    import argparse
    ap = argparse.ArgumentParser()
    ap.add_argument("-o", default="parallel_sum__gqa_block_cached__dense_activation_silu__decode.s")
    ap.add_argument("--inf", type=int, default=5)
    ap.add_argument("--stamps", action="store_true")
    ap.add_argument("--kw", default="")
    a = ap.parse_args()
    kw = eval("dict(%s)" % a.kw)
    open(a.o, "w").write(gen(INF=a.inf, stamps=a.stamps, **kw))
```

```python
import sys
from emit import Emit
KNAME = "parallel_sum__gqa_block_cached__dense_activation_silu__decode_kernel"
HEADER = open("parallel_sum__gqa_block_cached__dense_activation_silu__decode.s.ref").read().split("; Override launch geometry")[0]

WS_QP = 0x1000
QP_B = 7680 * 4
QP_K = 2 * QP_B
WS_ML = 0x40000
WS_CT = 0x50000
WS_OP = 0x80000
WS_AP = 0x200000
WS_SIZE = 0x400000
L_REDQ = 0
L_REDH = 4096
L_Q = 8192
L_MX = 10240
L_OL = 10752
L_FA = 11008; L_FH = 11040; L_FQ = 11072
L_S2 = 0
L_S2M = 1024
L_ORED = 12288
LDS_BYTES = L_ORED + 8 * 4096
V_LANE, V_K, V_V, V_UP, V_DN, V_T, V_AL, V_ML, V_L = 1, 2, 3, 4, 5, 6, 7, 8, 9
T0, T1, T2, T3, T4, T5 = 10, 11, 12, 13, 14, 15
ACC = 16
Q0, Q1 = 48, 52
P = 56
AD = 60
SC = 64
def SLOT(k): return 96 + 32 * k
S_W, S_TYPE, S_IDX, S_T = "s3", "s4", "s5", "s6"
S_LO, S_HI = "s8", "s9"
S_TI = ["s10", "s11", "s12", "s13"]
S_G2 = "s14"
S_CNT = "s15"
R_K, R_V, R_UP, R_DN, R_WS, R_X, R_OUT, R_W1 = "s[40:43]", "s[44:47]", "s[48:51]", "s[52:55]", "s[56:59]", "s[60:63]", "s[64:67]", "s[28:31]"
S_KV, S_UPQ, S_UPH, S_DNB = "s68", "s69", "s70", "s71"
S_LOG2E, S_SCALE, S_MASKH, S_HASF, S_HASH, S_KS = "s82", "s83", "s84", "s85", "s86", "s87"
S_N8 = "s[88:89]"
S_CBH = "s39"
POLL_LIMIT = 1 << 17
def vr(a, n=4): return f"v[{a}:{a+n-1}]"

def gen(INF=5, stamps=False, NS=5, HF=8, pf=False, prio=True, slp_o=0, slp_g=0, slp_pre=2, prepoll=True, late_ffn=False, LA=0, LF_=0, pbar=False, dbgt=False, dly_o=8, dly_g=0, pre1=True, upfirst=False, lite=False, early=1, early_k=4, pmap=0, EA=8, xmode=0, THR=6, THO=6, tlb=True, tlb0=0, EF=True, fx=4, bar_early=True, t4early=False, LC=5, LS=2):
    e = Emit()
    lab = [0]
    def newlab(p):
        lab[0] += 1
        return f"L_{p}_{lab[0]}"
    def stamp(k):
        if not stamps: return
        if lite and k not in (7, 13): return
        e("s_memrealtime s[90:91]"); e("s_waitcnt lgkmcnt(0)"); e(f"v_writelane_b32 v0, s90, {k}")
    def throttle():
        if INF: e(f"s_waitcnt vmcnt({INF-1})")
    def setprio(n):
        if prio: e(f"s_setprio {n}")
    def dpp(op, d, a, b, ctl):
        e(f"{op}_dpp v{d}, v{a}, v{b} {ctl} row_mask:0xf bank_mask:0xf")
    def xlane(op, regs, tmps, steps):
        for st in steps:
            if st[0] == "r":
                for r in regs: dpp(op, r, r, r, f"row_ror:{st[1:]}")
            else:
                for r, t in zip(regs, tmps): e(f"v_mov_b32 v{t}, v{r}")
                for r, t in zip(regs, tmps): e(f"v_permlane{st[1:]}_swap_b32 v{r}, v{t}")
                for r, t in zip(regs, tmps): e(f"{op} v{r}, v{r}, v{t}")
    def tagcheck(g, tmp, first, accum):
        e(f"v_perm_b32 v{tmp}, v{g+1}, v{g}, {S_G2}")
        e(f"v_perm_b32 v{tmp+1}, v{g+3}, v{g+2}, {S_G2}")
        e(f"v_perm_b32 v{tmp}, v{tmp+1}, v{tmp}, {S_LO}")
        if first: e(f"v_xor_b32 v{accum}, v{tmp}, v{V_T}")
        else:
            e(f"v_xor_b32 v{tmp}, v{tmp}, v{V_T}")
            e(f"v_or_b32 v{accum}, v{accum}, v{tmp}")
    def untag(regs):
        for r in regs: e(f"v_and_b32 v{r}, s23, v{r}")
    def tagput(dst, srcs):
        for i, s in enumerate(srcs): e(f"v_perm_b32 v{dst+i}, v{s}, v{V_T}, {S_TI[i]}")
    def rnd2(a, b_, tmp):
        e(f"v_cvt_pk_bf16_f32 v{tmp}, v{a}, v{b_}")
        e(f"v_lshlrev_b32 v{a}, 16, v{tmp}")
        e(f"v_and_b32 v{b_}, {S_MASKH}, v{tmp}")
    def poll(issue, check, waitfirst, name, sleep=0):
        Lr, Ld, Lx = newlab(name + "_retry"), newlab(name + "_done"), newlab(name + "_exit")
        waitfirst()
        check()
        e(f"v_cmp_ne_u32 vcc, 0, v{T5}")
        e(f"s_cbranch_vccz {Ld}")
        e(f"s_mov_b32 {S_CNT}, 0")
        e("s_mov_b64 s[80:81], exec")
        e.label(Lr)
        e("s_mov_b64 exec, vcc")
        if sleep: e(f"s_sleep {sleep}")
        e("s_nop 4")
        e.cond_depth += 1
        issue()
        e.cond_depth -= 1
        e(f"s_add_u32 {S_CNT}, {S_CNT}, 1")
        e(f"s_cmp_gt_u32 {S_CNT}, {POLL_LIMIT}")
        e("s_waitcnt vmcnt(0)")
        e(f"s_cbranch_scc1 {Lx}")
        check()
        e(f"v_cmp_ne_u32 vcc, 0, v{T5}")
        e(f"s_cbranch_vccnz {Lr}")
        e.label(Lx)
        e("s_mov_b64 exec, s[80:81]")
        e.label(Ld)
    def setflag(base, idx=None):
        if idx is None:
            e(f"s_lshl_b32 s7, {S_W}, 2"); e(f"v_mov_b32 v{T1}, s7")
        else: e(f"v_mov_b32 v{T1}, {4*idx}")
        e("s_waitcnt lgkmcnt(0)")
        e("s_mov_b64 exec, 1")
        e(f"v_mov_b32 v{T2}, 1")
        e(f"ds_write_b32 v{T1}, v{T2} offset:{base}")
        e("s_mov_b64 exec, -1")
    def waitflags(base, n, name):
        Lr, Lx = newlab(name), newlab(name + "x")
        e(f"v_and_b32 v{T1}, {n-1}, v{V_LANE}"); e(f"v_lshlrev_b32 v{T1}, 2, v{T1}")
        e(f"s_mov_b32 {S_CNT}, 0")
        e.label(Lr)
        e(f"ds_read_b32 v{T2}, v{T1} offset:{base}")
        e(f"s_add_u32 {S_CNT}, {S_CNT}, 1"); e(f"s_cmp_gt_u32 {S_CNT}, {POLL_LIMIT*4}")
        e("s_waitcnt lgkmcnt(0)")
        e(f"s_cbranch_scc1 {Lx}")
        e(f"v_cmp_ne_u32 vcc, 1, v{T2}")
        e(f"s_cbranch_vccnz {Lr}")
        e.label(Lx)
    def srd(base, lo, hi, n):
        e(f"s_mov_b32 s{base}, {lo}"); e(f"s_mov_b32 s{base+1}, {hi}"); e(f"s_mov_b32 s{base+2}, {n}"); e(f"s_mov_b32 s{base+3}, 0x00020000")
    class cond:
        def __init__(self, cmp, br):
            self.L = newlab("skip"); self.cmp = cmp if isinstance(cmp, list) else [cmp]; self.br = br
        def __enter__(self):
            for c in self.cmp:
                e(c); e(f"{self.br} {self.L}")
            e.cond_depth += 1
        def __exit__(self, *a):
            e.cond_depth -= 1; e.label(self.L)

    if stamps or dbgt: e("s_memrealtime s[90:91]")
    e("s_cmp_ge_u32 s2, 256")
    e("s_cbranch_scc1 L_end")
    e("s_load_dwordx2 s[48:49], s[0:1], 24")
    e("s_load_dwordx2 s[60:61], s[0:1], 0")
    e("s_load_dwordx4 s[16:19], s[0:1], 8")
    e("s_load_dwordx2 s[28:29], s[0:1], 48")
    setprio(3)
    e(f"v_lshrrev_b32 v{T0}, 6, v0")
    e(f"v_and_b32 v{V_LANE}, 63, v0")
    e(f"v_readfirstlane_b32 {S_W}, v{T0}")
    if stamps: e("v_mov_b32 v0, 0")
    e(f"v_lshrrev_b32 v{T0}, 3, v{V_LANE}"); e(f"v_and_b32 v{T1}, 7, v{V_LANE}"); e(f"v_lshlrev_b32 v{T1}, 4, v{T1}")
    e(f"v_lshl_add_u32 v{V_UP}, v{T0}, 15, v{T1}")
    e("s_and_b32 s7, s2, 3"); e("s_lshl_b32 s72, s7, 8"); e(f"s_lshl_b32 s73, {S_W}, 5"); e("s_add_u32 s72, s72, s73")
    e("s_lshr_b32 s73, s2, 2")
    e(f"s_lshl_b32 {S_UPQ}, s72, 13"); e("s_lshl_b32 s74, s73, 7"); e(f"s_add_u32 {S_UPQ}, {S_UPQ}, s74")
    e(f"s_mov_b32 s50, {8<<20}"); e("s_mov_b32 s51, 0x00020000"); e("s_movk_i32 s62, 4096"); e("s_mov_b32 s63, s51")
    e(f"v_lshlrev_b32 v{T3}, 5, v{V_LANE}")
    e("s_waitcnt lgkmcnt(0)")
    if stamps:
        e("v_writelane_b32 v0, s90, 15"); stamp(14)
    XF, XR = SC, SC + 16
    UPS = SLOT(4)
    def xl():
        for b in range(2):
            for hf in range(2):
                e(f"buffer_load_dwordx4 {vr(XF+8*b+4*hf)}, v{T3}, {R_X}, 0 offen offset:{b*2048+hf*16}", tag="xf")
    def ul():
        for i in range(4):
            e(f"buffer_load_dwordx4 {vr(UPS+4*i)}, v{V_UP}, {R_UP}, {S_UPQ} offen nt", tag="upq")
            if i < 3: e(f"s_add_u32 {S_UPQ}, {S_UPQ}, 8192")
    if upfirst: ul(); xl()
    else: xl(); ul()
    e(f"v_lshlrev_b32 v{T4}, 2, v{V_LANE}"); e(f"v_mov_b32 v{T5}, 0")
    e(f"ds_write_b32 v{T4}, v{T5} offset:{L_FA}")
    if bar_early:
        e("s_waitcnt lgkmcnt(0)")
        e("s_barrier")
    if pf:
        e("s_getpc_b64 s[78:79]")
        e.raw("L_pc:")
        e("s_bfe_u32 s76, s2, 0x20003"); e("s_lshl_b32 s76, s76, 3"); e(f"s_add_u32 s76, s76, {S_W}"); e("s_lshl_b32 s76, s76, 9")
        e(f"v_lshlrev_b32 v{T4}, 3, v{V_LANE}"); e(f"v_add_u32 v{T4}, s76, v{T4}")
        e(f"v_min_u32 v{T4}, L_end-L_pc-8, v{T4}")
        e(f"global_load_dwordx2 {vr(SLOT(1),2)}, v{T4}, s[78:79]", tag="pf")
    e(f"s_lshr_b32 {S_TYPE}, s2, 3"); e(f"s_xor_b32 {S_TYPE}, {S_TYPE}, s2"); e(f"s_and_b32 {S_TYPE}, {S_TYPE}, 1")
    e("s_load_dwordx2 s[56:57], s[0:1], 80")
    e(f"s_mul_i32 s76, {S_TYPE}, 24"); e("s_add_u32 s76, s76, 32")
    e("s_load_dwordx2 s[52:53], s[0:1], s76")
    e("s_load_dwordx2 s[64:65], s[0:1], 64")
    if dbgt: e("s_load_dwordx2 s[34:35], s[0:1], 72")
    e(f"v_lshlrev_b32 v{T2}, 3, v{T0}"); e("s_lshl_b32 s74, s72, 1"); e(f"v_add_u32 v{T2}, s74, v{T2}")
    for b in range(2):
        e(f"buffer_load_dwordx2 {vr(XR+2*b,2)}, v{T2}, {R_X}, 0 offen offset:{b*2048}", tag="xr")
    e(f"v_mul_u32_u24 v{V_DN}, {4*7168}, v{T0}"); e(f"v_add_u32 v{V_DN}, v{V_DN}, v{T1}")
    e("s_lshl_b32 s7, s7, 1"); e("s_add_u32 s7, s7, 1"); e("s_and_b32 s74, s73, 7")
    e("s_cmp_lg_u32 s74, s7"); e(f"s_cselect_b32 {S_HASH}, 1, 0")
    e("s_lshr_b32 s75, s73, 3"); e("s_mul_i32 s75, s75, 7"); e("s_add_u32 s75, s75, s74")
    e("s_cmp_gt_u32 s74, s7"); e(f"s_subb_u32 {S_CBH}, s75, 0")
    e(f"s_mul_i32 {S_UPH}, s72, 7168"); e(f"s_lshl_b32 s74, {S_CBH}, 7"); e(f"s_add_u32 {S_UPH}, {S_UPH}, s74")
    e(f"s_mul_i32 s30, {S_HASH}, {7<<20}"); e("s_mov_b32 s31, 0x00020000")
    def uh():
        for i in range(4):
            e(f"buffer_load_dwordx4 {vr(UPS+16+4*i)}, v{V_DN}, {R_W1}, {S_UPH} offen nt", tag="uph")
            if i < 3: e(f"s_add_u32 {S_UPH}, {S_UPH}, 7168")
    if early >= 1: uh()
    srd(40, "s16", "s17", 64 << 20)
    srd(44, "s18", "s19", 64 << 20)
    e(f"v_lshlrev_b32 v{V_V}, 4, v{V_LANE}")
    e(f"v_bfe_u32 v{T0}, v{V_LANE}, 1, 1"); e(f"v_bfe_u32 v{T1}, v{V_LANE}, 2, 2")
    e(f"v_lshl_add_u32 v{T0}, v{T0}, 2, v{T1}"); e(f"v_lshlrev_b32 v{V_K}, 8, v{T0}")
    e(f"v_lshrrev_b32 v{T1}, 4, v{V_LANE}"); e(f"v_lshl_add_u32 v{V_K}, v{T1}, 5, v{V_K}")
    e(f"v_and_b32 v{T1}, 1, v{V_LANE}"); e(f"v_lshl_add_u32 v{V_K}, v{T1}, 4, v{V_K}")
    e(f"s_lshl_b32 {S_KV}, s2, 18"); e(f"s_lshl_b32 s7, {S_W}, 12"); e(f"s_add_u32 {S_KV}, {S_KV}, s7")
    for base, n in ((56, WS_SIZE), (64, 4096)):
        e(f"s_mov_b32 s{base+2}, {n}"); e(f"s_mov_b32 s{base+3}, 0x00020000")
    e("s_waitcnt lgkmcnt(0)")
    e("s_load_dword s6, s[56:57], 0")
    if not bar_early: e("s_barrier")
    for i in range(early_k):
        e(f"buffer_load_dwordx4 {vr(SLOT(0)+4*i)}, v{V_K}, {R_K}, {S_KV} offen offset:{(i>>1)*2048 + (i&1)*128} nt", tag="k0")
    e(f"s_mov_b32 {S_MASKH}, 0xffff0000")
    e(f"s_lshr_b32 {S_IDX}, s2, 1"); e(f"s_and_b32 s7, {S_IDX}, 7")
    e(f"s_sub_u32 s54, 8, {S_TYPE}"); e("s_lshl_b32 s54, s54, 20")
    e("s_mov_b32 s55, 0x00020000")
    e("s_cmp_lg_u32 s7, 7"); e(f"s_cselect_b32 {S_HASF}, {S_TYPE}, 0")
    e(f"s_lshr_b32 s7, {S_IDX}, 3"); e(f"s_mul_i32 s7, s7, {S_TYPE}"); e(f"s_sub_u32 {S_KS}, {S_IDX}, s7")
    e(f"s_cmp_eq_u32 {S_TYPE}, {S_HASF}")
    e("s_cselect_b32 s54, s54, 0")
    e(f"s_mov_b32 {S_LO}, 0x05040100"); e(f"s_mov_b32 {S_HI}, 0x07060302")
    for i in range(4): e(f"s_mov_b32 {S_TI[i]}, 0x{0x07060500 + i:08x}")
    e(f"s_mov_b32 {S_G2}, 0x0c0c0400"); e("s_mov_b32 s23, 0xffffff00")
    e(f"s_mov_b32 {S_LOG2E}, 0x3fb8aa3b"); e(f"s_mov_b32 {S_SCALE}, 0x3db504f3")
    e("s_mov_b32 s88, 0x00ff00ff"); e("s_mov_b32 s89, 0x00ff00ff")
    e(f"s_lshl_b32 {S_DNB}, {S_KS}, 16"); e(f"s_lshl_b32 s7, {S_W}, 8"); e(f"s_add_u32 {S_DNB}, {S_DNB}, s7")
    if tlb0:
        with cond(f"s_cmp_lg_u32 {S_W}, {tlb0 - 1}", "s_cbranch_scc1"):
            e("s_mov_b64 exec, 1")
            e(f"buffer_load_dword v{P}, off, {R_V}, {S_KV} nt", tag="tl")
            e(f"buffer_load_dword v{P+1}, off, {R_DN}, {S_DNB} nt", tag="tl")
            e(f"s_mov_b32 s7, {WS_CT + 0x8000}")
            e(f"buffer_load_dword v{P+2}, off, {R_WS}, s7", tag="tl")
            e(f"s_mov_b32 s7, {WS_SIZE - 256}")
            e(f"buffer_load_dword v{P+3}, off, {R_WS}, s7", tag="tl")
            e(f"buffer_load_dword v{AD}, off, {R_OUT}, 0", tag="tl")
            e("s_mov_b64 exec, -1")

    def kload(u, slot, i, thr=True):
        beta, t = i >> 1, i & 1
        if i % 4 == 0: e(f"s_add_u32 s74, {S_KV}, {(2*u + (beta >> 1)) * 32768}")
        if thr: throttle()
        e(f"buffer_load_dwordx4 {vr(SLOT(slot)+4*i)}, v{V_K}, {R_K}, s74 offen offset:{(beta&1)*2048 + t*128} nt", tag=f"k{u}")
    def vload(u, slot, j, thr=True):
        if j % 4 == 0: e(f"s_add_u32 s75, {S_KV}, {(2*u + (j >> 2)) * 32768}")
        if thr: throttle()
        e(f"buffer_load_dwordx4 {vr(SLOT(slot)+4*j)}, v{V_V}, {R_V}, s75 offen offset:{(j&3)*1024} nt", tag=f"v{u}")
    def issueK(u, slot, lo=0, hi=8):
        for i in range(lo, hi): kload(u, slot, i)
    def issueV(u, slot, lo=0, hi=8):
        for j in range(lo, hi): vload(u, slot, j)
    def issueDN(slot, lo=0, hi=8):
        for jj in range(lo, hi):
            a_on, f_on = jj < 8 - LA - EA, jj < 8 - LF_
            e(f"s_add_u32 s76, {S_DNB}, {(8*(jj&3) + (jj>>2))*2048}")
            if not a_on and not f_on: e("s_mov_b32 s76, 0x40000000")
            elif a_on != f_on:
                e(f"s_cmp_eq_u32 {S_TYPE}, {0 if a_on else 1}"); e("s_cselect_b32 s76, s76, 0x40000000")
            throttle()
            e(f"buffer_load_dwordx4 {vr(SLOT(slot)+4*jj)}, v{V_DN}, {R_DN}, s76 offen nt", tag="dn")

    stamp(0)
    U = SLOT(3)
    e.wait_vm("xf")
    if early < 1: uh()
    pend = [("k", i) for i in range(early_k, 8)] + [("v", j) for j in range(8)]
    def more(n):
        for _ in range(n):
            if not pend: return
            t, i = pend.pop(0)
            if t == "k":
                if i % 4 and i == early_k: e(f"s_mov_b32 s74, {S_KV}")
                kload(0, 0, i)
            else: vload(0, 1, i)
    for b in range(2):
        for d in range(8):
            e(f"v_lshlrev_b32 v{U+16*b+2*d}, 16, v{XF+8*b+d}")
            e(f"v_and_b32 v{U+16*b+2*d+1}, {S_MASKH}, v{XF+8*b+d}")
    SUM = [T0, T1]; TMP = [T2, T3]; VAR = [T4, T5]
    for b in range(2):
        e(f"v_pk_add_f32 {vr(XF+4*b,2)}, {vr(U+16*b,2)}, {vr(U+16*b+2,2)}")
        e(f"v_pk_add_f32 {vr(XF+4*b+2,2)}, {vr(U+16*b+4,2)}, {vr(U+16*b+6,2)}")
    for i in range(4, 8):
        for b in range(2):
            e(f"v_pk_add_f32 {vr(XF+4*b+2*(i&1),2)}, {vr(XF+4*b+2*(i&1),2)}, {vr(U+16*b+2*i,2)}")
    for b in range(2): e(f"v_pk_add_f32 {vr(XF+4*b,2)}, {vr(XF+4*b,2)}, {vr(XF+4*b+2,2)}")
    for b in range(2): e(f"v_add_f32 v{SUM[b]}, v{XF+4*b}, v{XF+4*b+1}")
    xlane("v_add_f32", SUM, TMP, ["r8", "r4", "r2", "r1", "p16", "p32"])
    for b in range(2): e(f"v_mul_f32 v{SUM[b]}, 0x3a800000, v{SUM[b]}")
    more(2)
    for i in range(8):
        for b in range(2):
            e(f"v_pk_add_f32 {vr(U+16*b+2*i,2)}, {vr(U+16*b+2*i,2)}, {vr(T0,2)} op_sel:[0,{b}] op_sel_hi:[1,{b}] neg_lo:[0,1] neg_hi:[0,1]")
    for b in range(2): e(f"v_pk_mul_f32 {vr(XF+4*b,2)}, {vr(U+16*b,2)}, {vr(U+16*b,2)}")
    for i in range(1, 8):
        for b in range(2): e(f"v_pk_fma_f32 {vr(XF+4*b,2)}, {vr(U+16*b+2*i,2)}, {vr(U+16*b+2*i,2)}, {vr(XF+4*b,2)}")
    for b in range(2): e(f"v_add_f32 v{VAR[b]}, v{XF+4*b}, v{XF+4*b+1}")
    xlane("v_add_f32", VAR, TMP, ["r8", "r4", "r2", "r1", "p16", "p32"])
    more(2)
    for b in range(2): e(f"v_mul_f32 v{VAR[b]}, 0x3a800000, v{VAR[b]}")
    rnd2(SUM[0], SUM[1], T2)
    rnd2(VAR[0], VAR[1], T3)
    for b in range(2): e(f"v_add_f32 v{VAR[b]}, 0x3727c5ac, v{VAR[b]}")
    rnd2(VAR[0], VAR[1], T3)
    for b in range(2): e(f"v_sqrt_f32 v{VAR[b]}, v{VAR[b]}")
    rnd2(VAR[0], VAR[1], T3)
    for b in range(2): e(f"v_rcp_f32 v{VAR[b]}, v{VAR[b]}")
    XN = ACC + 16
    e.wait_vm("xr")
    for b in range(2):
        for d in range(2):
            e(f"v_lshlrev_b32 v{XN+4*b+2*d}, 16, v{XR+2*b+d}")
            e(f"v_and_b32 v{XN+4*b+2*d+1}, {S_MASKH}, v{XR+2*b+d}")
    for b in range(2):
        for i in range(4): e(f"v_sub_f32 v{XN+4*b+i}, v{XN+4*b+i}, v{SUM[b]}")
    for d in range(4): rnd2(XN+2*d, XN+2*d+1, U+d)
    for b in range(2):
        for i in range(4): e(f"v_mul_f32 v{XN+4*b+i}, v{XN+4*b+i}, v{VAR[b]}")
    for d in range(4): rnd2(XN+2*d, XN+2*d+1, U+d)
    e("s_waitcnt lgkmcnt(0)")
    e(f"s_mul_i32 {S_T}, {S_T}, 1664525"); e(f"s_add_u32 {S_T}, {S_T}, 1013904223")
    e(f"v_mov_b32 v{V_T}, {S_T}")
    stamp(1)
    e(f"v_lshrrev_b32 v{T0}, 5, v{V_LANE}"); e(f"v_lshlrev_b32 v{T0}, 8, v{T0}")
    e(f"v_and_b32 v{T1}, 7, v{V_LANE}"); e(f"v_lshl_add_u32 v{T0}, v{T1}, 5, v{T0}")
    e(f"v_and_b32 v{T1}, 16, v{V_LANE}"); e(f"v_add_u32 v{T0}, v{T0}, v{T1}")
    e(f"s_lshl_b32 s7, {S_W}, 9"); e(f"v_add_u32 v{V_AL}, s7, v{T0}")
    def up_compute(src, tag, lbase, fbase, between):
        for i in range(4):
            e.wait_vm_idx(tag, i)
            for d in range(4):
                e(f"v_lshlrev_b32 v{U+2*d}, 16, v{src+4*i+d}")
                e(f"v_and_b32 v{U+2*d+1}, {S_MASKH}, v{src+4*i+d}")
            for b in range(2):
                for c in range(0, 8, 2):
                    xr = XN + 4*b + i
                    base = xr & ~1; sel = xr & 1
                    if i == 0: e(f"v_pk_mul_f32 {vr(ACC+8*b+c,2)}, {vr(U+c,2)}, {vr(base,2)} op_sel:[0,{sel}] op_sel_hi:[1,{sel}]")
                    else: e(f"v_pk_fma_f32 {vr(ACC+8*b+c,2)}, {vr(U+c,2)}, {vr(base,2)}, {vr(ACC+8*b+c,2)} op_sel:[0,{sel},0] op_sel_hi:[1,{sel},1]")
            between(i)
        for c in range(8): e(f"v_permlane32_swap_b32 v{ACC+c}, v{ACC+8+c}")
        for c in range(8): e(f"v_add_f32 v{ACC+c}, v{ACC+c}, v{ACC+8+c}")
        for c in range(4): e(f"v_permlane16_swap_b32 v{ACC+c}, v{ACC+4+c}")
        for c in range(4): e(f"v_add_f32 v{ACC+c}, v{ACC+c}, v{ACC+4+c}")
        for c in range(4): dpp("v_add_f32", ACC+c, ACC+c, ACC+c, "row_ror:8")
        e(f"ds_write_b128 v{V_AL}, {vr(ACC)} offset:{lbase}")
        setflag(fbase)
    def up_publish(lbase, fbase, colreg_expr, name):
        waitflags(fbase, 8, name)
        e("s_mov_b32 exec_hi, 0")
        for w in range(8): e(f"ds_read_b128 {vr(U+4*w)}, v{V_V} offset:{lbase + w*512}")
        e(f"v_lshrrev_b32 v{T0}, 4, v{V_LANE}"); e(f"v_mul_u32_u24 v{T0}, {QP_B}, v{T0}")
        e(f"v_and_b32 v{T1}, 15, v{V_LANE}"); e(f"v_lshl_add_u32 v{T0}, v{T1}, 4, v{T0}")
        e("s_and_b32 s7, s2, 3"); e(f"s_mul_i32 s7, s7, {QP_K}")
        colreg_expr()
        e("s_add_u32 s7, s7, s72")
        e("s_waitcnt lgkmcnt(0)")
        for w in range(1, 8):
            e(f"v_pk_add_f32 {vr(U,2)}, {vr(U,2)}, {vr(U+4*w,2)}"); e(f"v_pk_add_f32 {vr(U+2,2)}, {vr(U+2,2)}, {vr(U+4*w+2,2)}")
        for c in range(4): e(f"v_add_u32 v{U+c}, 0x80, v{U+c}")
        tagput(U+4, [U, U+1, U+2, U+3])
        e(f"buffer_store_dwordx4 {vr(U+4)}, v{T0}, {R_WS}, s7 offen sc1", tag="pub")
        e("s_mov_b64 exec, -1")
    up_compute(UPS, "upq", L_REDQ, L_FA, lambda i: None)
    stamp(2)
    with cond(f"s_cmp_lg_u32 {S_W}, 7", "s_cbranch_scc1"):
        up_publish(L_REDQ, L_FA, lambda: (e("s_lshr_b32 s72, s2, 2"), e("s_lshl_b32 s72, s72, 8"), e(f"s_add_u32 s72, s72, {WS_QP}")), "wfa")
    stamp(3)
    setprio(2)
    e(f"s_lshr_b32 s7, s2, {LC}"); e(f"s_lshl_b32 s7, s7, {LS}"); e(f"s_and_b32 s27, {S_W}, {(1<<LS)-1}"); e("s_add_u32 s7, s7, s27")
    e("s_lshl_b32 s7, s7, 8"); e(f"s_add_u32 s7, s7, {WS_CT}")
    e("s_add_u32 s92, s56, s7"); e("s_addc_u32 s93, s57, 0")
    e(f"s_and_b32 s72, s2, {(1<<LC)-1}"); e(f"s_lshr_b32 s73, {S_W}, {LS}"); e("s_or_b32 s72, s72, s73")
    with cond("s_cmp_lg_u32 s72, 0", "s_cbranch_scc1"):
        e("s_mov_b64 exec, 1")
        e(f"v_mov_b32 v{U+8}, 0"); e(f"v_mov_b32 v{U+9}, {S_T}")
        e(f"buffer_store_dwordx2 {vr(U+8,2)}, off, {R_WS}, s7 sc1", tag="ct")
        e("s_mov_b64 exec, -1")
    up_compute(UPS+16, "uph", L_REDH, L_FH, lambda i: more(1))
    e(f"v_lshrrev_b32 v{T0}, 4, v{V_LANE}"); e(f"v_lshlrev_b32 v{V_DN}, 12, v{T0}")
    e(f"v_and_b32 v{T1}, 15, v{V_LANE}"); e(f"v_lshl_add_u32 v{V_DN}, v{T1}, 4, v{V_DN}")
    more(16)
    with cond([f"s_cmp_lg_u32 {S_W}, 6", f"s_cmp_eq_u32 {S_HASH}, 0"], "s_cbranch_scc1"):
        up_publish(L_REDH, L_FH, lambda: (e(f"s_lshl_b32 s72, {S_CBH}, 8"), e(f"s_add_u32 s72, s72, {WS_QP + 4096*4}")), "wfh")
    issueK(1, 2)
    KB, VB = (SLOT(4), SLOT(4) + 16) if t4early else (SLOT(0), SLOT(0) + 16)
    def tileK(sreg, tag, sreg2=None, thr=False):
        for i in range(4):
            if thr: throttle()
            e(f"buffer_load_dwordx4 {vr(KB+4*i)}, v{V_K}, {R_K}, {sreg if (i < 2 or not sreg2) else sreg2} offen offset:{(i>>1)*2048 + (i&1)*128} nt", tag=tag)
    def tileV(sreg, tag, sreg2=None, thr=False):
        for j in range(4):
            if thr: throttle()
            e(f"buffer_load_dwordx4 {vr(VB+4*j)}, v{V_V}, {R_V}, {sreg if (j < 2 or not sreg2) else sreg2} offen offset:{j*1024} nt", tag=tag)
    if EF and t4early:
        issueV(1, 3)
        setprio(1)
        e(f"s_add_u32 s74, {S_KV}, {4*32768}")
        tileK("s74", "k4", thr=True)
    elif EF:
        issueV(1, 3, 0, 4)
        setprio(1)
    else:
        issueV(1, 3)
        setprio(1)
        issueDN(4, 0, 4)
    QG = SC
    e("s_lshr_b32 s77, s2, 7"); e(f"s_mul_i32 s77, s77, {QP_B}")
    e("s_lshr_b32 s7, s2, 5"); e("s_and_b32 s7, s7, 3"); e("s_lshl_b32 s7, s7, 12"); e("s_add_u32 s77, s77, s7")
    e(f"s_lshl_b32 s7, {S_W}, 10"); e("s_add_u32 s77, s77, s7"); e(f"s_add_u32 s77, s77, {WS_QP}")
    e(f"s_add_u32 s78, s77, {2*QP_K}")
    VQ2 = Q0
    e(f"v_add_u32 v{VQ2}, {QP_K}, v{V_V}")
    def q_issue():
        for kq in range(4):
            e(f"buffer_load_dwordx4 {vr(QG+4*kq)}, v{VQ2 if kq & 1 else V_V}, {R_WS}, s{77 + (kq >> 1)} offen sc1", tag="qp")
    def q_check():
        for kq in range(4): tagcheck(QG+4*kq, T3, kq == 0, T5)
    VH = Q0 + 1
    e(f"v_lshrrev_b32 v{T0}, 3, v{V_LANE}"); e(f"v_mul_u32_u24 v{VH}, {QP_B}, v{T0}")
    e(f"v_and_b32 v{T1}, 7, v{V_LANE}"); e(f"v_lshl_add_u32 v{VH}, v{T1}, 4, v{VH}")
    e(f"s_lshl_b32 s79, {S_KS}, 7"); e(f"s_add_u32 s79, s79, {WS_QP + 4096*4}")
    def h_issue(): e(f"buffer_load_dwordx4 {vr(QG)}, v{VH}, {R_WS}, s79 offen sc1", tag="hp")
    def h_check(): tagcheck(QG, T3, True, T5)
    with cond(f"s_cmp_ge_u32 {S_W}, 4", "s_cbranch_scc1"): q_issue()
    with cond([f"s_cmp_lg_u32 {S_W}, 4", f"s_cmp_eq_u32 {S_HASF}, 0"], "s_cbranch_scc1"): h_issue()
    if EF and t4early: tileV("s74", "v4", thr=True)
    elif EF: issueV(1, 3, 4, 8)
    else: issueDN(4, 4, 8)
    with cond(f"s_cmp_ge_u32 {S_W}, 4", "s_cbranch_scc1"):
        poll(q_issue, q_check, lambda: e("s_waitcnt vmcnt(4)"), "q")
        untag(range(QG, QG+16))
        for kq in range(1, 4):
            e(f"v_pk_add_f32 {vr(QG,2)}, {vr(QG,2)}, {vr(QG+4*kq,2)}"); e(f"v_pk_add_f32 {vr(QG+2,2)}, {vr(QG+2,2)}, {vr(QG+4*kq+2,2)}")
        e(f"v_cvt_pk_bf16_f32 v{QG}, v{QG}, v{QG+1}")
        e(f"v_cvt_pk_bf16_f32 v{QG+1}, v{QG+2}, v{QG+3}")
        e(f"v_lshlrev_b32 v{T0}, 3, v{V_LANE}"); e(f"s_lshl_b32 s7, {S_W}, 9"); e(f"v_add_u32 v{T0}, s7, v{T0}")
        e(f"ds_write_b64 v{T0}, {vr(QG,2)} offset:{L_Q}")
        setflag(L_FQ)
    with cond([f"s_cmp_lg_u32 {S_W}, 4", f"s_cmp_eq_u32 {S_HASF}, 0"], "s_cbranch_scc1"):
        poll(h_issue, h_check, lambda: e("s_waitcnt vmcnt(4)"), "h")
        HG = QG
        untag(range(HG, HG+4))
        xlane("v_add_f32", [HG, HG+1, HG+2, HG+3], [HG+4, HG+5, HG+6, HG+7], ["p16", "p32"])
        for d in range(2): rnd2(HG+2*d, HG+2*d+1, HG+8+d)
        for i in range(4): e(f"v_mul_f32 v{HG+8+i}, {S_LOG2E}, v{HG+i}")
        for i in range(4): e(f"v_exp_f32 v{HG+8+i}, -v{HG+8+i}")
        for i in range(4): e(f"v_add_f32 v{HG+8+i}, 1.0, v{HG+8+i}")
        for i in range(4): e(f"v_rcp_f32 v{HG+8+i}, v{HG+8+i}")
        for i in range(4): e(f"v_mul_f32 v{HG+i}, v{HG+i}, v{HG+8+i}")
        for d in range(2): e(f"v_cvt_pk_bf16_f32 v{HG+4+d}, v{HG+2*d}, v{HG+2*d+1}")
        e(f"v_and_b32 v{T0}, 1, v{V_LANE}"); e(f"v_lshlrev_b32 v{T0}, 5, v{T0}")
        e(f"v_bfe_u32 v{T1}, v{V_LANE}, 1, 2"); e(f"v_lshl_add_u32 v{T0}, v{T1}, 1, v{T0}")
        e(f"v_bfe_u32 v{T1}, v{V_LANE}, 3, 1"); e(f"v_lshl_add_u32 v{T0}, v{T1}, 6, v{T0}")
        e("s_mov_b64 exec, 0xffff")
        for d in range(2):
            e(f"ds_write_b16 v{T0}, v{HG+4+d} offset:{L_OL + 16*d}")
            e(f"ds_write_b16_d16_hi v{T0}, v{HG+4+d} offset:{L_OL + 16*d + 8}")
        e("s_mov_b64 exec, -1")
        setflag(L_FQ)
    stamp(4)
    e(f"v_and_b32 v{T0}, 7, v{V_LANE}"); e(f"v_lshlrev_b32 v{T0}, 8, v{T0}")
    e(f"v_lshrrev_b32 v{T1}, 4, v{V_LANE}"); e(f"v_lshl_add_u32 v{T0}, v{T1}, 5, v{T0}")
    e(f"v_bfe_u32 v{T1}, v{V_LANE}, 3, 1"); e(f"v_lshl_add_u32 v{T0}, v{T1}, 4, v{T0}")
    waitflags(L_FQ, 4, "wfq")
    e(f"ds_read_b128 {vr(Q0)}, v{T0} offset:{L_Q}")
    e(f"ds_read_b128 {vr(Q1)}, v{T0} offset:{L_Q+128}")
    stamp(5)

    def S_phase(u, slot):
        K = SLOT(slot)
        e.wait_vm(f"k{u}", " lgkmcnt(0)" if u == 0 else "")
        for t in range(2):
            for beta in range(4):
                c = "0" if t == 0 else vr(SC+4*beta)
                e(f"v_mfma_f32_16x16x32_bf16 {vr(SC+4*beta)}, {vr(K+8*beta+4*t)}, {vr(Q0 if t == 0 else Q1)}, {c}")
        yield
        S = SC + 16
        for beta in range(4):
            for eps in range(2):
                dpp("v_add_f32", S+2*beta+eps, SC+4*beta+2*eps+1, SC+4*beta+2*eps, "row_ror:8")
        for d in range(4): rnd2(S+2*d, S+2*d+1, SC+24+d)
        for i in range(8): e(f"v_mul_f32 v{S+i}, {S_SCALE}, v{S+i}")
        for d in range(4): rnd2(S+2*d, S+2*d+1, SC+24+d)
        e(f"v_max3_f32 v{T0}, v{S}, v{S+1}, v{S+2}")
        e(f"v_max3_f32 v{T1}, v{S+3}, v{S+4}, v{S+5}")
        e(f"v_max3_f32 v{T0}, v{T0}, v{S+6}, v{S+7}")
        e(f"v_max_f32 v{T0}, v{T0}, v{T1}")
        xlane("v_max_f32", [T0], [T1], ["p16", "p32"])
        e(f"v_mul_f32 v{T0}, {S_LOG2E}, v{T0}")
        if u > 0:
            e(f"v_max_f32 v{T0}, v{T0}, v{V_ML}")
            e(f"v_sub_f32 v{V_AL}, v{V_ML}, v{T0}")
            e(f"v_exp_f32 v{V_AL}, v{V_AL}")
        e(f"v_mov_b32 v{V_ML}, v{T0}")
        for i in range(8): e(f"v_fma_f32 v{S+i}, v{S+i}, {S_LOG2E}, -v{T0}")
        for i in range(8): e(f"v_exp_f32 v{S+i}, v{S+i}")
        if u > 0:
            e(f"v_mul_f32 v{V_L}, v{V_L}, v{V_AL}")
            for i in range(32): e(f"v_mul_f32 v{ACC+i}, v{ACC+i}, v{V_AL}")
        for d in range(4): e(f"v_cvt_pk_bf16_f32 v{P+d}, v{S+2*d}, v{S+2*d+1}")
        if u == 0: e(f"v_add_f32 v{V_L}, v{S}, v{S+1}")
        else:
            e(f"v_add_f32 v{V_L}, v{V_L}, v{S}"); e(f"v_add_f32 v{V_L}, v{V_L}, v{S+1}")
        for i in range(2, 8): e(f"v_add_f32 v{V_L}, v{V_L}, v{S+i}")
        yield
    def perms32(src, dst):
        for p in range(4):
            for d in range(4):
                for x in range(2):
                    e(f"v_perm_b32 v{dst+4*(2*d+x)+p}, v{src+4*(2*p+1)+d}, v{src+4*(2*p)+d}, {S_HI if x else S_LO}")
    def PV_phase(u, slot):
        e.wait_vm(f"v{u}")
        perms32(SLOT(slot), SC)
        for ee in range(8):
            c = "0" if u == 0 else vr(ACC+4*ee)
            e(f"v_mfma_f32_16x16x32_bf16 {vr(ACC+4*ee)}, {vr(SC+4*ee)}, {vr(P)}, {c}")
    WP = SLOT(1)
    def down_mfma_publish(A, W, D, ST):
        for ee in range(8):
            e(f"v_mfma_f32_16x16x32_bf16 {vr(D+4*ee)}, {vr(A)}, {vr(W+4*ee)}, 0")
        e("s_mov_b64 exec, 0xffff")
        for q4 in range(4):
            b, eh = q4 >> 1, q4 & 1
            tagput(ST+4*q4, [D+4*(4*eh+i)+b for i in range(4)])
            e(f"buffer_store_dwordx4 {vr(ST+4*q4)}, v{V_V}, {R_WS}, s38 offen offset:{q4*256} sc1", tag="pubD")
        e("s_mov_b64 exec, -1")
    g = S_phase(0, 0); next(g)
    e("s_load_dwordx2 s[94:95], s[92:93], 0 glc")
    if not t4early:
        e(f"s_add_u32 s74, {S_KV}, {4*32768}")
        tileK("s74", "k4"); tileV("s74", "v4")
    next(g)
    PV_phase(0, 1)
    Lc1, Lc2 = newlab("ctpoll"), newlab("ctok")
    e(f"s_mov_b32 {S_CNT}, 0")
    e.label(Lc1)
    e("s_waitcnt lgkmcnt(0)")
    e(f"s_cmp_eq_u32 s95, {S_T}"); e(f"s_cbranch_scc1 {Lc2}")
    e(f"s_add_u32 {S_CNT}, {S_CNT}, 1"); e(f"s_cmp_gt_u32 {S_CNT}, {POLL_LIMIT}"); e(f"s_cbranch_scc1 {Lc2}")
    e("s_load_dwordx2 s[94:95], s[92:93], 0 glc")
    e(f"s_branch {Lc1}")
    e.label(Lc2)
    S_NX, S_ST = "s96", "s97"
    def grab():
        e(f"s_mov_b32 {S_NX}, 1")
        e(f"s_atomic_add {S_NX}, s[92:93], 0 glc")
    for _ in S_phase(1, 2): pass
    PV_phase(1, 3)
    if not EF:
        e.wait_vm("dn")
        perms32(SLOT(4), WP)
    WA = SLOT(0) if t4early else SLOT(4)
    e(f"v_and_b32 v{T0}, 15, v{V_LANE}"); e(f"v_mul_u32_u24 v{WA}, {512+16}, v{T0}")
    e(f"v_lshrrev_b32 v{T1}, 4, v{V_LANE}"); e(f"v_lshl_add_u32 v{WA}, v{T1}, 7, v{WA}")
    e(f"s_lshl_b32 s7, {S_W}, 12"); e(f"v_add_u32 v{WA}, s7, v{WA}")
    for ee in range(1, 8): e(f"v_xor_b32 v{WA+ee}, {ee*16}, v{WA}")
    RA, GA, VO, VM, MA, MW, ADA, OLW = WA + 8, WA + 9, WA + 10, WA + 11, WA + 12, WA + 13, WA + 14, WA + 15
    e(f"s_lshl_b32 s7, {S_W}, 6"); e(f"v_add_u32 v{T0}, s7, v{V_LANE}")
    e(f"v_lshlrev_b32 v{GA}, 4, v{T0}")
    e(f"v_lshrrev_b32 v{T1}, 5, v{T0}"); e(f"v_and_b32 v{T1}, 7, v{T1}"); e(f"v_lshlrev_b32 v{MA}, 6, v{T1}"); e(f"v_lshlrev_b32 v{T1}, 4, v{T1}")
    e(f"v_xor_b32 v{RA}, v{GA}, v{T1}")
    e(f"v_lshlrev_b32 v{MW}, 6, v{V_LANE}"); e(f"s_lshl_b32 s7, {S_W}, 3"); e(f"v_add_u32 v{MW}, s7, v{MW}")
    e(f"v_and_b32 v{T0}, 1, v{V_LANE}"); e(f"v_lshlrev_b32 v{T0}, 6, v{T0}")
    e(f"v_and_b32 v{T1}, 48, v{V_LANE}"); e(f"v_add_u32 v{ADA}, v{T0}, v{T1}")
    e(f"s_and_b32 s7, {S_W}, 1"); e("s_lshl_b32 s7, s7, 6"); e(f"s_lshr_b32 s78, {S_W}, 1"); e("s_lshl_b32 s78, s78, 5"); e("s_add_u32 s7, s7, s78")
    e(f"v_and_b32 v{OLW}, 3, v{V_LANE}"); e(f"v_lshlrev_b32 v{OLW}, 3, v{OLW}"); e(f"v_lshrrev_b32 v{T0}, 4, v{V_LANE}"); e(f"v_lshl_add_u32 v{OLW}, v{T0}, 1, v{OLW}"); e(f"v_add_u32 v{OLW}, s7, v{OLW}")
    e(f"s_lshr_b32 s7, {S_IDX}, 5"); e(f"s_and_b32 s79, {S_W}, 1"); e("s_lshl_b32 s79, s79, 2"); e("s_add_u32 s7, s7, s79"); e("s_lshl_b32 s7, s7, 17")
    e("s_lshl_b32 s78, s78, 1"); e("s_add_u32 s78, s78, s7")
    e(f"s_and_b32 s7, {S_IDX}, 31"); e("s_lshl_b32 s7, s7, 7"); e("s_add_u32 s78, s78, s7"); e(f"s_add_u32 s78, s78, {WS_OP}")
    e(f"s_add_u32 s79, s78, {16*4096}")
    e(f"v_lshrrev_b32 v{T0}, 2, v{V_LANE}"); e(f"v_and_b32 v{T1}, 3, v{V_LANE}")
    e(f"v_lshlrev_b32 v{VO}, 12, v{T0}"); e(f"v_lshl_add_u32 v{VO}, v{T1}, 4, v{VO}")
    e("s_lshl_b32 s100, s2, 12"); e(f"s_add_u32 s100, s100, {WS_OP - 4096}")
    e("s_lshl_b32 s101, s2, 7"); e(f"s_add_u32 s101, s101, {WS_ML}")
    e(f"s_lshl_b32 s38, {S_TYPE}, 7"); e(f"s_add_u32 s38, s38, {S_KS}"); e("s_lshl_b32 s38, s38, 13")
    e(f"s_lshl_b32 s7, {S_W}, 10"); e("s_add_u32 s38, s38, s7"); e(f"s_add_u32 s38, s38, {WS_AP}")
    VA3, VX3, VL3, SH4 = WA + 18, WA + 19, WA + 20, WA + 21
    GF = SLOT(3)
    XQ = SLOT(3) + 4
    e(f"v_lshrrev_b32 v{VA3}, 2, v{V_LANE}"); e(f"v_lshlrev_b32 v{VA3}, 13, v{VA3}")
    e(f"v_and_b32 v{VX3}, 3, v{V_LANE}"); e(f"v_lshlrev_b32 v{SH4}, 3, v{VX3}"); e(f"v_lshlrev_b32 v{VX3}, 4, v{VX3}"); e(f"v_add_u32 v{VA3}, v{VA3}, v{VX3}")
    e(f"s_lshl_b32 s7, {S_W}, 6"); e(f"v_add_u32 v{VL3}, s7, v{VX3}")
    e(f"s_lshl_b32 s16, {S_IDX}, 6"); e(f"s_add_u32 s16, s16, {WS_AP}"); e(f"s_lshl_b32 s7, {S_W}, 17"); e("s_add_u32 s16, s16, s7")
    e(f"s_add_u32 s17, s16, {128*8192}")
    e(f"s_lshr_b32 s7, {S_IDX}, 3"); e("s_and_b32 s7, s7, 1"); e("s_lshl_b32 s18, s7, 11")
    e(f"s_lshr_b32 s7, {S_IDX}, 4"); e("s_lshl_b32 s7, s7, 8"); e("s_add_u32 s18, s18, s7")
    e(f"s_and_b32 s7, {S_IDX}, 3"); e("s_lshl_b32 s7, s7, 6"); e("s_add_u32 s18, s18, s7")
    e(f"s_and_b32 s7, {S_IDX}, 4"); e("s_lshl_b32 s7, s7, 1"); e("s_add_u32 s18, s18, s7")
    e(f"s_cmp_lg_u32 {S_W}, 7"); e(f"s_cselect_b32 s19, {S_TYPE}, 0")
    e(f"s_and_b32 s20, {S_T}, 0xffffff"); e("s_mov_b32 s21, 0x0c040100")
    def gf_issue(): e(f"buffer_load_dwordx4 {vr(GF)}, v{VA3}, {R_WS}, s17 offen sc1", tag="g")
    FR = 64 - 8*NS - HF
    P1 = (FR >> LS) << LC
    POOL = P1 + ((HF >> LS) << (LC + 1))
    assert NS == 5
    e(f"s_and_b32 s98, s2, {0x100 - (1<<LC)}"); e("s_lshl_b32 s98, s98, 18"); e(f"s_add_u32 s98, s98, {NS*8*4096}")
    if not late_ffn and not EF:
      with cond(f"s_cmp_eq_u32 {S_HASF}, 0", "s_cbranch_scc1"):
        waitflags(L_FQ + 16, 1, "wfh2")
        e(f"ds_read_b128 {vr(AD)}, v{ADA} offset:{L_OL}")
        e("s_waitcnt lgkmcnt(0)")
        down_mfma_publish(AD, WP, SLOT(2), SC)
    if tlb:
        with cond(f"s_cmp_lg_u32 {S_W}, 1", "s_cbranch_scc1"):
            e("s_mov_b64 exec, 1")
            e(f"buffer_load_dword v{SLOT(3)+8}, off, {R_DN}, {S_DNB}", tag="tl")
            e(f"buffer_load_dword v{SLOT(3)+9}, off, {R_WS}, s17", tag="tl")
            e(f"buffer_load_dword v{SLOT(3)+10}, off, {R_OUT}, s18", tag="tl")
            e("s_mov_b64 exec, -1")
    grab()
    stamp(6)
    setprio(0)
    Lloop, Lskip = newlab("loop"), newlab("noresc")
    e("s_mov_b32 s99, 0")
    e.label(Lloop)
    e("s_waitcnt vmcnt(4)")
    for t in range(2):
        for beta in range(2):
            c = "0" if t == 0 else vr(SC+4*beta)
            e(f"v_mfma_f32_16x16x32_bf16 {vr(SC+4*beta)}, {vr(KB+8*beta+4*t)}, {vr(Q0 if t == 0 else Q1)}, {c}")
    e("s_waitcnt lgkmcnt(0)")
    if pmap == 0:
        e(f"s_and_b32 s74, {S_NX}, {(1<<LC)-1}"); e("s_lshl_b32 s74, s74, 18"); e("s_add_u32 s74, s74, s98")
        e(f"s_lshr_b32 s75, {S_NX}, {LC}")
        if LS: e(f"s_lshl_b32 s75, s75, {LS}"); e("s_add_u32 s75, s75, s27")
        e("s_lshl_b32 s76, s75, 12"); e("s_lshl_b32 s75, s75, 11"); e(f"s_add_u32 s75, s75, {FR*4096 - FR*2048}")
    else:
        assert FR % 8 == 0 and HF == 8
        e(f"s_and_b32 s74, {S_NX}, 7"); e("s_lshl_b32 s74, s74, 12"); e("s_add_u32 s74, s74, s98")
        e(f"s_bfe_u32 s75, {S_NX}, 0x30003"); e("s_lshl_b32 s75, s75, 18"); e("s_add_u32 s74, s74, s75")
        e(f"s_lshr_b32 s75, {S_NX}, 6"); e("s_lshl_b32 s76, s75, 15"); e("s_lshl_b32 s75, s75, 11"); e(f"s_add_u32 s75, s75, {FR*4096 - (FR//8)*2048}")
    e(f"s_cmp_lt_u32 {S_NX}, {P1}"); e("s_cselect_b32 s75, s76, s75"); e("s_cselect_b32 s77, 0, 0xff800000"); e("s_cselect_b32 s76, 0, 0x40000000")
    e("s_add_u32 s74, s74, s75"); e("s_add_u32 s76, s76, s74")
    e(f"s_cmp_lt_u32 {S_NX}, {POOL}"); e("s_cselect_b32 s74, s74, 0x40000000"); e("s_cselect_b32 s75, 1, 0")
    def dn_at(jjs):
        for jj in jjs:
            e(f"s_add_u32 s22, {S_DNB}, {(8*(jj&3) + (jj>>2))*2048}")
            e(f"buffer_load_dwordx4 {vr(SLOT(2)+4*jj)}, v{V_DN}, {R_DN}, s22 offen nt", tag="dn3")
    ea = list(range(8 - LA - EA, 8 - LA))
    ea_exit = []
    if xmode == 1: ea_exit = ea; ea = []
    if xmode == 2: ea_exit = ea[4:]; ea = ea[:4]
    if EA >= 4 and xmode == 0:
        Lk, Lk2 = newlab("kdn"), newlab("kdn2")
        e(f"s_or_b32 s22, s75, {'s75' if (EF and fx in (0, 3, 4)) else S_TYPE}"); e(f"s_cbranch_scc1 {Lk}")
        e.cond_depth += 1; dn_at(ea[:4]); e.cond_depth -= 1
        e(f"s_branch {Lk2}")
        e.label(Lk)
        tileK("s74", "kl", "s76")
        e.label(Lk2)
        ea = ea[4:]
    else:
        tileK("s74", "kl", "s76")
    S = SC + 8
    for beta in range(2):
        for eps in range(2):
            dpp("v_add_f32", S+2*beta+eps, SC+4*beta+2*eps+1, SC+4*beta+2*eps, "row_ror:8")
    for d in range(2): rnd2(S+2*d, S+2*d+1, SC+12+d)
    for i in range(4): e(f"v_mul_f32 v{S+i}, {S_SCALE}, v{S+i}")
    for d in range(2): rnd2(S+2*d, S+2*d+1, SC+12+d)
    e(f"v_add_f32 v{S+2}, s99, v{S+2}"); e(f"v_add_f32 v{S+3}, s99, v{S+3}")
    e("s_mov_b32 s99, s77")
    e(f"v_max3_f32 v{T0}, v{S}, v{S+1}, v{S+2}")
    e(f"v_max_f32 v{T0}, v{T0}, v{S+3}")
    xlane("v_max_f32", [T0], [T1], ["p16", "p32"])
    e(f"v_mul_f32 v{T0}, {S_LOG2E}, v{T0}")
    e(f"v_cmp_gt_f32 vcc, v{T0}, v{V_ML}")
    e(f"s_and_b64 vcc, vcc, {S_N8}")
    e(f"s_cbranch_scc0 {Lskip}")
    e(f"v_max_f32 v{T0}, v{T0}, v{V_ML}")
    e(f"v_sub_f32 v{V_AL}, v{V_ML}, v{T0}")
    e(f"v_exp_f32 v{V_AL}, v{V_AL}")
    e(f"v_mov_b32 v{V_ML}, v{T0}")
    e(f"v_mul_f32 v{V_L}, v{V_L}, v{V_AL}")
    for i in range(32): e(f"v_mul_f32 v{ACC+i}, v{ACC+i}, v{V_AL}")
    e.label(Lskip)
    for i in range(4): e(f"v_fma_f32 v{S+i}, v{S+i}, {S_LOG2E}, -v{V_ML}")
    for i in range(4): e(f"v_exp_f32 v{S+i}, v{S+i}")
    for d in range(2): e(f"v_cvt_pk_bf16_f32 v{P+d}, v{S+2*d}, v{S+2*d+1}")
    for i in range(4): e(f"v_add_f32 v{V_L}, v{V_L}, v{S+i}")
    PS = SC + 16
    for p in range(2):
        e(f"s_waitcnt vmcnt({6 - 2*p})")
        for d in range(4):
            for x in range(2):
                e(f"v_perm_b32 v{PS+2*(2*d+x)+p}, v{VB+4*(2*p+1)+d}, v{VB+4*(2*p)+d}, {S_HI if x else S_LO}")
    with cond("s_cmp_eq_u32 s75, 0", "s_cbranch_scc1"):
        tileV("s74", "vl", "s76")
        grab()
    if ea:
        with cond(f"s_or_b32 s22, s75, {'s75' if (EF and fx == 0) else S_TYPE}", "s_cbranch_scc1"): dn_at(ea)
    if not EF:
      with cond("s_cmp_le_u32 s19, s75", "s_cbranch_scc1"):
        gf_issue()
    for ee in range(8):
        e(f"v_mfma_f32_16x16x16_bf16 {vr(ACC+4*ee)}, {vr(PS+2*ee,2)}, {vr(P,2)}, {vr(ACC+4*ee)}")
    e("s_cmp_lg_u32 s75, 0"); e(f"s_cbranch_scc1 {Lloop}")
    stamp(7)
    xlane("v_add_f32", [V_L], [T1], ["p16", "p32"])
    e("s_mov_b64 exec, 0xff")
    e(f"ds_write_b64 v{MW}, {vr(V_ML,2)} offset:{L_MX}")
    e(f"s_mov_b64 exec, {S_N8}")
    for ee in range(8): e(f"ds_write_b128 v{WA+ee}, {vr(ACC+4*ee)} offset:{L_ORED}")
    e("s_mov_b64 exec, -1")
    if ea_exit:
        with cond(f"s_cmp_eq_u32 {S_TYPE}, 1", "s_cbranch_scc1"): dn_at(ea_exit)
    if EF and fx in (1, 3):
        with cond(f"s_cmp_eq_u32 {S_TYPE}, 0", "s_cbranch_scc1"): dn_at(range(8) if fx == 1 else range(4, 8))
    stamp(8)
    e("s_waitcnt lgkmcnt(0)")
    e("s_barrier")
    L4, Lp = newlab("w4"), newlab("pubdone")
    ML8 = SC
    def wg_factors():
        e(f"v_max3_f32 v{T0}, v{ML8}, v{ML8+2}, v{ML8+4}")
        e(f"v_max3_f32 v{T1}, v{ML8+6}, v{ML8+8}, v{ML8+10}")
        e(f"v_max3_f32 v{T0}, v{T0}, v{ML8+12}, v{ML8+14}")
        e(f"v_max_f32 v{T0}, v{T0}, v{T1}")
        for w in range(8): e(f"v_sub_f32 v{ML8+2*w}, v{ML8+2*w}, v{T0}")
        for w in range(8): e(f"v_exp_f32 v{ML8+2*w}, v{ML8+2*w}")
    e(f"s_cmp_lt_u32 {S_W}, 4"); e(f"s_cbranch_scc1 {Lp}")
    e.cond_depth += 1
    for i in range(4): e(f"ds_read_b128 {vr(ML8+4*i)}, v{MA} offset:{L_MX + 16*i}")
    for w in range(8): e(f"ds_read_b128 {vr(ACC+4*w)}, v{RA} offset:{L_ORED - 4096 + w*4096}")
    e("s_waitcnt lgkmcnt(8)")
    wg_factors()
    e(f"v_mul_f32 v{T2}, v{ML8+1}, v{ML8}")
    e(f"v_mul_f32 v{T3}, v{ML8+3}, v{ML8+2}")
    for w in range(2, 8): e(f"v_fmac_f32 v{T2 + (w & 1)}, v{ML8+2*w+1}, v{ML8+2*w}")
    e(f"v_add_f32 v{T2}, v{T2}, v{T3}")
    e(f"v_log_f32 v{T3}, v{T2}")
    e(f"v_rcp_f32 v{T2}, v{T2}")
    for w in range(8):
        e(f"s_waitcnt lgkmcnt({7-w})")
        for c in range(0, 4, 2):
            if w == 0: e(f"v_pk_mul_f32 {vr(ACC+c,2)}, {vr(ACC+c,2)}, {vr(ML8,2)} op_sel_hi:[1,0]")
            else: e(f"v_pk_fma_f32 {vr(ACC+c,2)}, {vr(ACC+4*w+c,2)}, {vr(ML8+2*w,2)}, {vr(ACC+c,2)} op_sel_hi:[1,0,1]")
        if w == 1:
            e(f"v_add_f32 v{T3}, v{T3}, v{T0}")
            e(f"v_lshrrev_b32 v{T3}, v{SH4}, v{T3}")
    for c in range(0, 4, 2): e(f"v_pk_mul_f32 {vr(ACC+c,2)}, {vr(ACC+c,2)}, {vr(T2,2)} op_sel_hi:[1,0]")
    tagput(ACC+4, [ACC, ACC+1, ACC+2])
    e(f"v_perm_b32 v{ACC+7}, v{ACC+3}, v{T3}, {S_TI[0]}")
    e(f"buffer_store_dwordx4 {vr(ACC+4)}, v{GA}, {R_WS}, s100 offen sc1", tag="pubO")
    e.cond_depth -= 1
    e.label(Lp)
    stamp(9)
    if dbgt:
        e("s_memrealtime s[16:17]"); e("s_waitcnt lgkmcnt(0)")
    def late_dn(L):
        for jj in range(8 - L, 8):
            e(f"s_add_u32 s76, {S_DNB}, {(8*(jj&3) + (jj>>2))*2048}")
            e(f"buffer_load_dwordx4 {vr(SLOT(0)+4*jj)}, v{V_DN}, {R_DN}, s76 offen nt", tag="dn2")
        for p in range((8 - L) // 2, 4):
            e(f"s_waitcnt vmcnt({6-2*p})")
            for d in range(4):
                for x in range(2):
                    e(f"v_perm_b32 v{WP+4*(2*d+x)+p}, v{SLOT(0)+4*(2*p+1)+d}, v{SLOT(0)+4*(2*p)+d}, {S_HI if x else S_LO}")
    if pbar: e("s_barrier")
    LF = newlab("ftype")
    e(f"s_cmp_eq_u32 {S_TYPE}, 1"); e(f"s_cbranch_scc1 {LF}")
    e.cond_depth += 1
    OG, MG = ACC + 16, ACC + 24
    def o_issue():
        e(f"buffer_load_dwordx4 {vr(OG)}, v{VO}, {R_WS}, s78 offen sc1", tag="og")
        e(f"buffer_load_dwordx4 {vr(OG+4)}, v{VO}, {R_WS}, s79 offen sc1", tag="og")
    def o_check():
        e(f"v_perm_b32 v{T3}, v{OG+1}, v{OG}, {S_G2}")
        e(f"v_perm_b32 v{T4}, v{OG+5}, v{OG+4}, {S_G2}")
        e(f"v_perm_b32 v{T3}, v{OG+2}, v{T3}, s21")
        e(f"v_perm_b32 v{T4}, v{OG+6}, v{T4}, s21")
        e(f"v_xor_b32 v{T3}, s20, v{T3}"); e(f"v_xor_b32 v{T4}, s20, v{T4}")
        e(f"v_or_b32 v{T5}, v{T3}, v{T4}")
    if EA:
        if not LA: e("s_waitcnt vmcnt(0)")
        else: e("s_waitcnt vmcnt(0)")
        for p in range((8 - LA - EA) // 2, (8 - LA) // 2):
            for d in range(4):
                for x in range(2):
                    e(f"v_perm_b32 v{WP+4*(2*d+x)+p}, v{SLOT(2)+4*(2*p+1)+d}, v{SLOT(2)+4*(2*p)+d}, {S_HI if x else S_LO}")
    late_dn(LA)
    if THO:
        with cond(f"s_cmp_lg_u32 {S_W}, 0", "s_cbranch_scc1"):
            Lr, Lx = newlab("so"), newlab("sox")
            e("s_mov_b32 exec_lo, 0x01010101"); e("s_mov_b32 exec_hi, 0x01010101")
            e(f"s_mov_b32 {S_CNT}, 0")
            e.label(Lr)
            e(f"buffer_load_dwordx4 {vr(OG)}, v{VO}, {R_WS}, s78 offen sc1", tag="og")
            e(f"s_add_u32 {S_CNT}, {S_CNT}, 1"); e(f"s_cmp_gt_u32 {S_CNT}, {POLL_LIMIT}")
            e("s_waitcnt vmcnt(0)")
            e(f"s_cbranch_scc1 {Lx}")
            e(f"v_perm_b32 v{T3}, v{OG+1}, v{OG}, {S_G2}")
            e(f"v_perm_b32 v{T3}, v{OG+2}, v{T3}, s21")
            e(f"v_cmp_eq_u32 vcc, s20, v{T3}")
            e("s_bcnt1_i32_b64 s7, vcc")
            e(f"s_cmp_ge_u32 s7, {THO}"); e(f"s_cbranch_scc1 {Lx}")
            e("s_sleep 1")
            e(f"s_branch {Lr}")
            e.label(Lx)
            e("s_mov_b64 exec, -1")
        e("s_barrier")
    with cond(f"s_cmp_ge_u32 {S_W}, 4", "s_cbranch_scc1"):
        if dly_o and not THO: e(f"s_sleep {dly_o}")
        o_issue()
        poll(o_issue, o_check, lambda: e("s_waitcnt vmcnt(0)"), "o", sleep=slp_o)
        stamp(10)
        for i in range(2): e(f"v_and_b32 v{MG+i}, 0xff, v{OG+4*i+3}")
        for i in range(2): e(f"v_lshlrev_b32 v{MG+i}, v{SH4}, v{MG+i}")
        untag(range(OG, OG+4))
        for i in range(2): dpp("v_or_b32", MG+i, MG+i, MG+i, "quad_perm:[1,0,3,2]")
        untag(range(OG+4, OG+8))
        for i in range(2): dpp("v_or_b32", MG+i, MG+i, MG+i, "quad_perm:[2,3,0,1]")
        e(f"v_max_f32 v{T0}, v{MG}, v{MG+1}")
        xlane("v_max_f32", [T0], [T1], ["r4", "r8", "p16", "p32"])
        for i in range(2): e(f"v_sub_f32 v{MG+i}, v{MG+i}, v{T0}")
        for i in range(2): e(f"v_exp_f32 v{MG+i}, v{MG+i}")
        for c in range(0, 4, 2): e(f"v_pk_mul_f32 {vr(OG+c,2)}, {vr(OG+c,2)}, {vr(MG,2)} op_sel_hi:[1,0]")
        for c in range(0, 4, 2): e(f"v_pk_fma_f32 {vr(OG+c,2)}, {vr(OG+4+c,2)}, {vr(MG,2)}, {vr(OG+c,2)} op_sel:[0,1,0] op_sel_hi:[1,1,1]")
        e(f"v_add_f32 v{T1}, v{MG}, v{MG+1}")
        e(f"v_mov_b32 v{T4}, v{T1}")
        e(f"v_permlane32_swap_b32 v{OG}, v{OG+2}"); e(f"v_permlane32_swap_b32 v{OG+1}, v{OG+3}"); e(f"v_permlane32_swap_b32 v{T1}, v{T4}")
        e(f"v_add_f32 v{T1}, v{T1}, v{T4}"); e(f"v_add_f32 v{OG}, v{OG}, v{OG+2}"); e(f"v_add_f32 v{OG+1}, v{OG+1}, v{OG+3}")
        e(f"v_mov_b32 v{T4}, v{T1}")
        e(f"v_permlane16_swap_b32 v{OG}, v{OG+1}"); e(f"v_permlane16_swap_b32 v{T1}, v{T4}")
        e(f"v_add_f32 v{OG}, v{OG}, v{OG+1}"); e(f"v_add_f32 v{T1}, v{T1}, v{T4}")
        for st in (8, 4):
            dpp("v_add_f32", OG, OG, OG, f"row_ror:{st}"); dpp("v_add_f32", T1, T1, T1, f"row_ror:{st}")
        e(f"v_rcp_f32 v{T0}, v{T1}")
        e(f"v_mul_f32 v{OG}, v{OG}, v{T0}")
        e(f"v_cvt_pk_bf16_f32 v{OG}, v{OG}, v{OG}")
        e("s_mov_b32 exec_lo, 0x000f000f"); e("s_mov_b32 exec_hi, 0x000f000f")
        e(f"ds_write_b16 v{OLW}, v{OG} offset:{L_OL}")
        e("s_mov_b64 exec, -1")
        e("s_waitcnt lgkmcnt(0)")
    e("s_barrier")
    e(f"ds_read_b128 {vr(AD)}, v{ADA} offset:{L_OL}")
    e("s_waitcnt lgkmcnt(0)")
    down_mfma_publish(AD, WP, ACC, SLOT(3))
    stamp(11)
    e("s_branch L_fini")
    e.label(LF)
    if late_ffn:
      with cond(f"s_cmp_eq_u32 {S_HASF}, 0", "s_cbranch_scc1"):
        e(f"ds_read_b128 {vr(AD)}, v{ADA} offset:{L_OL}")
        late_dn(LF_)
        e("s_waitcnt lgkmcnt(0)")
        down_mfma_publish(AD, WP, SLOT(2), SLOT(3))
      stamp(11)
    VA, VX = VA3, VX3
    G = SLOT(1)
    def ga_issue(): e(f"buffer_load_dwordx4 {vr(G)}, v{VA}, {R_WS}, s16 offen sc1", tag="g")
    def tred(R):
        e(f"v_permlane32_swap_b32 v{R}, v{R+2}"); e(f"v_permlane32_swap_b32 v{R+1}, v{R+3}")
        e(f"v_add_f32 v{R}, v{R}, v{R+2}"); e(f"v_add_f32 v{R+1}, v{R+1}, v{R+3}")
        e(f"v_permlane16_swap_b32 v{R}, v{R+1}")
        e(f"v_add_f32 v{R}, v{R}, v{R+1}")
        dpp("v_add_f32", R, R, R, "row_ror:8"); dpp("v_add_f32", R, R, R, "row_ror:4")
    VL = T0
    e(f"v_lshrrev_b32 v{VL}, 4, v{V_LANE}"); e(f"v_lshl_add_u32 v{VL}, v{VL}, 2, v{VL3}")
    e("s_mov_b32 s24, 0x000f000f"); e("s_mov_b32 s25, 0x000f000f")
    if EF:
        with cond(f"s_cmp_eq_u32 {S_HASF}, 0", "s_cbranch_scc1"):
            if fx == 2: dn_at(range(8))
            if fx == 4: dn_at(range(4, 8))
            e(f"ds_read_b128 {vr(AD)}, v{ADA} offset:{L_OL}")
            e("s_waitcnt vmcnt(0)")
            perms32(SLOT(2), KB)
            e("s_waitcnt lgkmcnt(0)")
            down_mfma_publish(AD, KB, ACC, SC)
        stamp(11)
        FV, XV, VR, VS = G + 8, G + 9, G + 10, G + 11
        e(f"s_cmp_eq_u32 {S_W}, 7"); e("s_cselect_b32 s17, s16, s17"); e("s_cselect_b32 s19, 0, -1")
        def gb_issue(): ga_issue(); gf_issue()
        def gb_check(): tagcheck(G, T3, True, T5); tagcheck(GF, T3, False, T5)
        with cond(f"s_cmp_lg_u32 {S_W}, 0", "s_cbranch_scc1"):
            e(f"v_lshlrev_b32 v{VR}, 2, v{V_LANE}")
            e(f"v_and_b32 v{VS}, 12, v{V_LANE}"); e(f"v_lshlrev_b32 v{VS}, 2, v{VS}"); e(f"v_and_b32 v{T1}, 3, v{V_LANE}"); e(f"v_lshl_add_u32 v{VS}, v{T1}, 1, v{VS}")
            e(f"buffer_load_ushort v{XV}, v{VS}, {R_X}, s18 offen", tag="xq")
            Lr, Lx = newlab("sp"), newlab("spx")
            e("s_mov_b32 exec_lo, 0x11111111"); e("s_mov_b32 exec_hi, 0x11111111")
            e(f"s_mov_b32 {S_CNT}, 0")
            e.label(Lr)
            ga_issue()
            e(f"s_add_u32 {S_CNT}, {S_CNT}, 1"); e(f"s_cmp_gt_u32 {S_CNT}, {POLL_LIMIT}")
            e("s_waitcnt vmcnt(0)")
            e(f"s_cbranch_scc1 {Lx}")
            tagcheck(G, T3, True, T5)
            e(f"v_cmp_eq_u32 vcc, 0, v{T5}")
            e("s_bcnt1_i32_b64 s7, vcc")
            e(f"s_cmp_ge_u32 s7, {THR}"); e(f"s_cbranch_scc1 {Lx}")
            if slp_pre: e(f"s_sleep {slp_pre}")
            e(f"s_branch {Lr}")
            e.label(Lx)
            e("s_mov_b64 exec, -1")
            e(f"v_lshlrev_b32 v{XV}, 16, v{XV}")
        e("s_and_b32 s19, s19, s23")
        e("s_barrier")
        gb_issue()
        poll(gb_issue, gb_check, lambda: e("s_waitcnt vmcnt(0)"), "ga", sleep=slp_g)
        stamp(12)
        untag(range(G, G+4))
        for r in range(GF, GF+4): e(f"v_and_b32 v{r}, s19, v{r}")
        tred(G); tred(GF)
        e("s_mov_b64 exec, s[24:25]")
        e(f"ds_write_b32 v{VL}, v{G} offset:{L_REDQ}")
        e(f"ds_write_b32 v{VL}, v{GF} offset:{L_REDQ+512}")
        e("s_waitcnt lgkmcnt(0)")
        e("s_barrier")
        e(f"s_cmp_lg_u32 {S_W}, 0"); e("s_cbranch_scc1 L_fini")
        e("s_mov_b64 exec, -1")
        e(f"ds_read2_b32 {vr(G,2)}, v{VR} offset0:{L_REDQ//4} offset1:{(L_REDQ+256)//4}")
        e(f"ds_read2_b32 {vr(G+2,2)}, v{VR} offset0:{(L_REDQ+512)//4} offset1:{(L_REDQ+768)//4}")
        e("s_waitcnt lgkmcnt(0)")
        e(f"v_add_f32 v{G}, v{G}, v{G+1}"); e(f"v_add_f32 v{FV}, v{G+2}, v{G+3}")
        xlane("v_add_f32", [G, FV], [G+1, G+2], ["p16", "p32"])
        rnd2(G, FV, G+1)
        e(f"v_add_f32 v{G}, v{XV}, v{G}")
        e(f"v_cvt_pk_bf16_f32 v{G}, v{G}, v{G}"); e(f"v_and_b32 v{G}, {S_MASKH}, v{G}")
        e(f"v_add_f32 v{G}, v{G}, v{FV}")
        e(f"v_cvt_pk_bf16_f32 v{G}, v{G}, v{G}")
    else:
        Lz, Lz2 = newlab("zf"), newlab("zf2")
        e(f"s_cmp_eq_u32 {S_W}, 7"); e(f"s_cbranch_scc1 {Lz}")
        poll(gf_issue, lambda: tagcheck(GF, T3, True, T5), lambda: e("s_waitcnt vmcnt(0)"), "gf", sleep=2)
        untag(range(GF, GF+4))
        tred(GF)
        e(f"s_branch {Lz2}")
        e.label(Lz)
        e(f"v_mov_b32 v{GF}, 0")
        e.label(Lz2)
        e("s_mov_b64 exec, s[24:25]")
        e(f"ds_write_b32 v{VL}, v{GF} offset:{L_REDQ+512}")
        e("s_mov_b64 exec, -1")
        e("s_waitcnt lgkmcnt(0)")
        e("s_barrier")
        FV, XV, VR, VS = G + 8, G + 9, G + 10, G + 11
        with cond(f"s_cmp_lg_u32 {S_W}, 0", "s_cbranch_scc1"):
            e(f"v_lshlrev_b32 v{VR}, 2, v{V_LANE}")
            e(f"ds_read2_b32 {vr(G+12,2)}, v{VR} offset0:{(L_REDQ+512)//4} offset1:{(L_REDQ+512+256)//4}")
            e(f"v_and_b32 v{VS}, 12, v{V_LANE}"); e(f"v_lshlrev_b32 v{VS}, 2, v{VS}"); e(f"v_and_b32 v{T1}, 3, v{V_LANE}"); e(f"v_lshl_add_u32 v{VS}, v{T1}, 1, v{VS}")
            e(f"buffer_load_ushort v{XV}, v{VS}, {R_X}, s18 offen", tag="xq")
            e("s_waitcnt lgkmcnt(0)")
            e(f"v_add_f32 v{FV}, v{G+12}, v{G+13}")
            xlane("v_add_f32", [FV], [T1], ["p16", "p32"])
            e(f"v_cvt_pk_bf16_f32 v{FV}, v{FV}, v{FV}"); e(f"v_and_b32 v{FV}, {S_MASKH}, v{FV}")
            e("s_waitcnt vmcnt(0)")
            e(f"v_lshlrev_b32 v{XV}, 16, v{XV}")
            Lr, Lx = newlab("sp"), newlab("spx")
            e("s_mov_b32 exec_lo, 0x11111111"); e("s_mov_b32 exec_hi, 0x11111111")
            e(f"s_mov_b32 {S_CNT}, 0")
            e.label(Lr)
            ga_issue()
            e(f"s_add_u32 {S_CNT}, {S_CNT}, 1"); e(f"s_cmp_gt_u32 {S_CNT}, {POLL_LIMIT}")
            e("s_waitcnt vmcnt(0)")
            e(f"s_cbranch_scc1 {Lx}")
            tagcheck(G, T3, True, T5)
            e(f"v_cmp_eq_u32 vcc, 0, v{T5}")
            e("s_bcnt1_i32_b64 s7, vcc")
            e(f"s_cmp_ge_u32 s7, {THR}"); e(f"s_cbranch_scc1 {Lx}")
            if slp_pre: e(f"s_sleep {slp_pre}")
            e(f"s_branch {Lr}")
            e.label(Lx)
            e("s_mov_b64 exec, -1")
        e("s_barrier")
        if dly_g: e(f"s_sleep {dly_g}")
        ga_issue()
        poll(ga_issue, lambda: tagcheck(G, T3, True, T5), lambda: e("s_waitcnt vmcnt(0)"), "ga", sleep=slp_g)
        stamp(12)
        untag(range(G, G+4))
        tred(G)
        e("s_mov_b64 exec, s[24:25]")
        e(f"ds_write_b32 v{VL}, v{G} offset:{L_REDQ}")
        e("s_waitcnt lgkmcnt(0)")
        e("s_barrier")
        e(f"s_cmp_lg_u32 {S_W}, 0"); e("s_cbranch_scc1 L_fini")
        e("s_mov_b64 exec, -1")
        e(f"ds_read2_b32 {vr(G,2)}, v{VR} offset0:{L_REDQ//4} offset1:{(L_REDQ+256)//4}")
        e("s_waitcnt lgkmcnt(0)")
        e(f"v_add_f32 v{G}, v{G}, v{G+1}")
        xlane("v_add_f32", [G], [G+1], ["p16", "p32"])
        e(f"v_cvt_pk_bf16_f32 v{G}, v{G}, v{G}"); e(f"v_and_b32 v{G}, {S_MASKH}, v{G}")
        e(f"v_add_f32 v{G}, v{XV}, v{G}")
        e(f"v_cvt_pk_bf16_f32 v{G}, v{G}, v{G}"); e(f"v_and_b32 v{G}, {S_MASKH}, v{G}")
        e(f"v_add_f32 v{G}, v{G}, v{FV}")
        e(f"v_cvt_pk_bf16_f32 v{G}, v{G}, v{G}")
    e("s_mov_b64 exec, 0xffff")
    e(f"buffer_store_short v{G}, v{VS}, {R_OUT}, s18 offen")
    e(f"s_cmp_lg_u32 {S_IDX}, 0"); e("s_cbranch_scc1 L_fini")
    e("s_mov_b64 exec, 1")
    e(f"buffer_store_dword v{V_T}, off, {R_WS}, 0")
    e.cond_depth -= 1
    e.label("L_fini")
    if dbgt:
        e("s_memrealtime s[72:73]"); e("s_waitcnt lgkmcnt(0)")
        e("s_cmp_lg_u32 s3, 0"); e("s_cbranch_scc1 L_dbg1")
        e("s_atomic_umax s72, s[34:35], 4"); e("s_waitcnt lgkmcnt(0)")
        e.label("L_dbg1")
    if dbgt:
        e("s_cmp_lg_u32 s3, 0"); e("s_cbranch_scc1 L_end")
        e("s_atomic_umax s16, s[34:35], 12")
        e("s_not_b32 s72, s90"); e("s_atomic_umax s72, s[34:35], 0"); e("s_atomic_umax s90, s[34:35], 8"); e("s_waitcnt lgkmcnt(0)")
    if stamps:
        e("s_mov_b64 exec, -1")
        stamp(13)
        e("s_mov_b64 exec, 0xffff")
        e(f"v_lshlrev_b32 v{T0}, 2, v{V_LANE}")
        e("s_lshl_b32 s7, s2, 3"); e(f"s_add_u32 s7, s7, {S_W}"); e("s_lshl_b32 s7, s7, 6"); e(f"s_add_u32 s7, s7, {WS_SIZE}")
        e("s_mov_b32 s58, 0x1000000")
        e(f"buffer_store_dword v0, v{T0}, {R_WS}, s7 offen")
    e.label("L_end")
    e("s_endpgm")

    out = HEADER
    out += f"; @launch grid=(256,1,1) block=(512,1,1) lds={LDS_BYTES}\n"
    out += '.amdgcn_target "amdgcn-amd-amdhsa--gfx950"\n.text\n'
    out += f".globl {KNAME}\n.p2align 8\n.type {KNAME},@function\n{KNAME}:\n"
    out += e.text()
    out += f""".section .rodata,"a"
.p2align 6
.amdhsa_kernel {KNAME}
  .amdhsa_next_free_vgpr 256
  .amdhsa_next_free_sgpr 102
  .amdhsa_accum_offset 256
  .amdhsa_group_segment_fixed_size 0
  .amdhsa_kernarg_size 88
  .amdhsa_user_sgpr_count 2
  .amdhsa_user_sgpr_kernarg_segment_ptr 1
  .amdhsa_system_sgpr_workgroup_id_x 1
.end_amdhsa_kernel
"""
    return out

if __name__ == "__main__":
    import argparse
    ap = argparse.ArgumentParser()
    ap.add_argument("-o", default="parallel_sum__gqa_block_cached__dense_activation_silu__decode.s")
    ap.add_argument("--inf", type=int, default=5)
    ap.add_argument("--stamps", action="store_true")
    ap.add_argument("--kw", default="")
    a = ap.parse_args()
    kw = eval("dict(%s)" % a.kw)
    open(a.o, "w").write(gen(INF=a.inf, stamps=a.stamps, **kw))
```

```python
import sys
from emit import Emit
KNAME = "parallel_sum__gqa_block_cached__dense_activation_silu__decode_kernel"
HEADER = open("parallel_sum__gqa_block_cached__dense_activation_silu__decode.s.ref").read().split("; Override launch geometry")[0]

DOC = "; ---------------------------------------------------------------------------------------------\n; ---------------------------------------------------------------------------------------------\n"
WS_QP = 0x1000
QP_B = 7680 * 4
QP_K = 2 * QP_B
WS_ML = 0x40000
WS_CT = 0x50000
WS_OP = 0x80000
WS_AP = 0x200000
WS_SIZE = 0x400000
L_REDQ = 0
L_REDH = 4096
L_Q = 8192
L_MX = 10240
L_OL = 10752
L_FA = 11008; L_FH = 11040; L_FQ = 11072
L_S2 = 0
L_S2M = 1024
L_ORED = 12288
LDS_BYTES = L_ORED + 8 * 4096
V_LANE, V_K, V_V, V_UP, V_DN, V_T, V_AL, V_ML, V_L = 1, 2, 3, 4, 5, 6, 7, 8, 9
T0, T1, T2, T3, T4, T5 = 10, 11, 12, 13, 14, 15
ACC = 16
Q0, Q1 = 48, 52
P = 56
AD = 60
SC = 64
def SLOT(k): return 96 + 32 * k
S_W, S_TYPE, S_IDX, S_T = "s3", "s4", "s5", "s6"
S_LO, S_HI = "s8", "s9"
S_TI = ["s10", "s11", "s12", "s13"]
S_G2 = "s14"
S_CNT = "s15"
R_K, R_V, R_UP, R_DN, R_WS, R_X, R_OUT, R_W1 = "s[40:43]", "s[44:47]", "s[48:51]", "s[52:55]", "s[56:59]", "s[60:63]", "s[64:67]", "s[28:31]"
S_KV, S_UPQ, S_UPH, S_DNB = "s68", "s69", "s70", "s71"
S_LOG2E, S_SCALE, S_MASKH, S_HASF, S_HASH, S_KS = "s82", "s83", "s84", "s85", "s86", "s87"
S_N8 = "s[88:89]"
S_CBH = "s39"
POLL_LIMIT = 1 << 17
def vr(a, n=4): return f"v[{a}:{a+n-1}]"

def gen(INF=5, stamps=False, NS=5, HF=8, pf=False, prio=True, slp_o=0, slp_g=0, slp_pre=2, prepoll=True, late_ffn=False, LA=0, LF_=0, pbar=False, dbgt=False, dly_o=8, dly_g=0, pre1=True, upfirst=False, lite=False, early=1, early_k=4, pmap=0, EA=8, xmode=0, THR=6, THO=6, tlb=True, tlb0=0, EF=True, fx=4, bar_early=True, t4early=False, LC=5, LS=2):
    e = Emit()
    lab = [0]
    def newlab(p):
        lab[0] += 1
        return f"L_{p}_{lab[0]}"
    def stamp(k):
        if not stamps: return
        if lite and k not in (7, 13): return
        e("s_memrealtime s[90:91]"); e("s_waitcnt lgkmcnt(0)"); e(f"v_writelane_b32 v0, s90, {k}")
    def throttle():
        if INF: e(f"s_waitcnt vmcnt({INF-1})")
    def setprio(n):
        if prio: e(f"s_setprio {n}")
    def dpp(op, d, a, b, ctl):
        e(f"{op}_dpp v{d}, v{a}, v{b} {ctl} row_mask:0xf bank_mask:0xf")
    def xlane(op, regs, tmps, steps):
        for st in steps:
            if st[0] == "r":
                for r in regs: dpp(op, r, r, r, f"row_ror:{st[1:]}")
            else:
                for r, t in zip(regs, tmps): e(f"v_mov_b32 v{t}, v{r}")
                for r, t in zip(regs, tmps): e(f"v_permlane{st[1:]}_swap_b32 v{r}, v{t}")
                for r, t in zip(regs, tmps): e(f"{op} v{r}, v{r}, v{t}")
    def tagcheck(g, tmp, first, accum):
        e(f"v_perm_b32 v{tmp}, v{g+1}, v{g}, {S_G2}")
        e(f"v_perm_b32 v{tmp+1}, v{g+3}, v{g+2}, {S_G2}")
        e(f"v_perm_b32 v{tmp}, v{tmp+1}, v{tmp}, {S_LO}")
        if first: e(f"v_xor_b32 v{accum}, v{tmp}, v{V_T}")
        else:
            e(f"v_xor_b32 v{tmp}, v{tmp}, v{V_T}")
            e(f"v_or_b32 v{accum}, v{accum}, v{tmp}")
    def untag(regs):
        for r in regs: e(f"v_and_b32 v{r}, s23, v{r}")
    def tagput(dst, srcs):
        for i, s in enumerate(srcs): e(f"v_perm_b32 v{dst+i}, v{s}, v{V_T}, {S_TI[i]}")
    def rnd2(a, b_, tmp):
        e(f"v_cvt_pk_bf16_f32 v{tmp}, v{a}, v{b_}")
        e(f"v_lshlrev_b32 v{a}, 16, v{tmp}")
        e(f"v_and_b32 v{b_}, {S_MASKH}, v{tmp}")
    def poll(issue, check0, waitfirst, name, sleep=0):
        Lr, Ld, Lx = newlab(name + "_retry"), newlab(name + "_done"), newlab(name + "_exit")
        def check():
            check0()
            dpp("v_or_b32", T5, T5, T5, "quad_perm:[1,0,3,2]")
            dpp("v_or_b32", T5, T5, T5, "quad_perm:[2,3,0,1]")
        waitfirst()
        check()
        e(f"v_cmp_ne_u32 vcc, 0, v{T5}")
        e(f"s_cbranch_vccz {Ld}")
        e(f"s_mov_b32 {S_CNT}, 0")
        e("s_mov_b64 s[80:81], exec")
        e.label(Lr)
        e("s_mov_b64 exec, vcc")
        if sleep: e(f"s_sleep {sleep}")
        e("s_nop 4")
        e.cond_depth += 1
        issue()
        e.cond_depth -= 1
        e(f"s_add_u32 {S_CNT}, {S_CNT}, 1")
        e(f"s_cmp_gt_u32 {S_CNT}, {POLL_LIMIT}")
        e("s_waitcnt vmcnt(0)")
        e(f"s_cbranch_scc1 {Lx}")
        check()
        e(f"v_cmp_ne_u32 vcc, 0, v{T5}")
        e(f"s_cbranch_vccnz {Lr}")
        e.label(Lx)
        e("s_mov_b64 exec, s[80:81]")
        e.label(Ld)
    def setflag(base, idx=None):
        if idx is None:
            e(f"s_lshl_b32 s7, {S_W}, 2"); e(f"v_mov_b32 v{T1}, s7")
        else: e(f"v_mov_b32 v{T1}, {4*idx}")
        e("s_waitcnt lgkmcnt(0)")
        e("s_mov_b64 exec, 1")
        e(f"v_mov_b32 v{T2}, 1")
        e(f"ds_write_b32 v{T1}, v{T2} offset:{base}")
        e("s_mov_b64 exec, -1")
    def waitflags(base, n, name):
        Lr, Lx = newlab(name), newlab(name + "x")
        e(f"v_and_b32 v{T1}, {n-1}, v{V_LANE}"); e(f"v_lshlrev_b32 v{T1}, 2, v{T1}")
        e(f"s_mov_b32 {S_CNT}, 0")
        e.label(Lr)
        e(f"ds_read_b32 v{T2}, v{T1} offset:{base}")
        e(f"s_add_u32 {S_CNT}, {S_CNT}, 1"); e(f"s_cmp_gt_u32 {S_CNT}, {POLL_LIMIT*4}")
        e("s_waitcnt lgkmcnt(0)")
        e(f"s_cbranch_scc1 {Lx}")
        e(f"v_cmp_ne_u32 vcc, 1, v{T2}")
        e(f"s_cbranch_vccnz {Lr}")
        e.label(Lx)
    def srd(base, lo, hi, n):
        e(f"s_mov_b32 s{base}, {lo}"); e(f"s_mov_b32 s{base+1}, {hi}"); e(f"s_mov_b32 s{base+2}, {n}"); e(f"s_mov_b32 s{base+3}, 0x00020000")
    class cond:
        def __init__(self, cmp, br):
            self.L = newlab("skip"); self.cmp = cmp if isinstance(cmp, list) else [cmp]; self.br = br
        def __enter__(self):
            for c in self.cmp:
                e(c); e(f"{self.br} {self.L}")
            e.cond_depth += 1
        def __exit__(self, *a):
            e.cond_depth -= 1; e.label(self.L)

    if stamps or dbgt: e("s_memrealtime s[90:91]")
    e("s_cmp_ge_u32 s2, 256")
    e("s_cbranch_scc1 L_end")
    e("s_load_dwordx2 s[48:49], s[0:1], 24")
    e("s_load_dwordx2 s[60:61], s[0:1], 0")
    e("s_load_dwordx4 s[16:19], s[0:1], 8")
    e("s_load_dwordx2 s[28:29], s[0:1], 48")
    setprio(3)
    e(f"v_lshrrev_b32 v{T0}, 6, v0")
    e(f"v_and_b32 v{V_LANE}, 63, v0")
    e(f"v_readfirstlane_b32 {S_W}, v{T0}")
    if stamps: e("v_mov_b32 v0, 0")
    e(f"v_lshrrev_b32 v{T0}, 3, v{V_LANE}"); e(f"v_and_b32 v{T1}, 7, v{V_LANE}"); e(f"v_lshlrev_b32 v{T1}, 4, v{T1}")
    e(f"v_lshl_add_u32 v{V_UP}, v{T0}, 15, v{T1}")
    e("s_and_b32 s7, s2, 3"); e("s_lshl_b32 s72, s7, 8"); e(f"s_lshl_b32 s73, {S_W}, 5"); e("s_add_u32 s72, s72, s73")
    e("s_lshr_b32 s73, s2, 2")
    e(f"s_lshl_b32 {S_UPQ}, s72, 13"); e("s_lshl_b32 s74, s73, 7"); e(f"s_add_u32 {S_UPQ}, {S_UPQ}, s74")
    e(f"s_mov_b32 s50, {8<<20}"); e("s_mov_b32 s51, 0x00020000"); e("s_movk_i32 s62, 4096"); e("s_mov_b32 s63, s51")
    e(f"v_lshlrev_b32 v{T3}, 5, v{V_LANE}")
    e("s_waitcnt lgkmcnt(0)")
    if stamps:
        e("v_writelane_b32 v0, s90, 15"); stamp(14)
    XF, XR = SC, SC + 16
    UPS = SLOT(4)
    def xl():
        for b in range(2):
            for hf in range(2):
                e(f"buffer_load_dwordx4 {vr(XF+8*b+4*hf)}, v{T3}, {R_X}, 0 offen offset:{b*2048+hf*16}", tag="xf")
    def ul():
        for i in range(4):
            e(f"buffer_load_dwordx4 {vr(UPS+4*i)}, v{V_UP}, {R_UP}, {S_UPQ} offen nt", tag="upq")
            if i < 3: e(f"s_add_u32 {S_UPQ}, {S_UPQ}, 8192")
    if upfirst: ul(); xl()
    else: xl(); ul()
    e(f"v_lshlrev_b32 v{T4}, 2, v{V_LANE}"); e(f"v_mov_b32 v{T5}, 0")
    e(f"ds_write_b32 v{T4}, v{T5} offset:{L_FA}")
    if bar_early:
        e("s_waitcnt lgkmcnt(0)")
        e("s_barrier")
    if pf:
        e("s_getpc_b64 s[78:79]")
        e.raw("L_pc:")
        e("s_bfe_u32 s76, s2, 0x20003"); e("s_lshl_b32 s76, s76, 3"); e(f"s_add_u32 s76, s76, {S_W}"); e("s_lshl_b32 s76, s76, 9")
        e(f"v_lshlrev_b32 v{T4}, 3, v{V_LANE}"); e(f"v_add_u32 v{T4}, s76, v{T4}")
        e(f"v_min_u32 v{T4}, L_end-L_pc-8, v{T4}")
        e(f"global_load_dwordx2 {vr(SLOT(1),2)}, v{T4}, s[78:79]", tag="pf")
    e(f"s_lshr_b32 {S_TYPE}, s2, 3"); e(f"s_xor_b32 {S_TYPE}, {S_TYPE}, s2"); e(f"s_and_b32 {S_TYPE}, {S_TYPE}, 1")
    e("s_load_dwordx2 s[56:57], s[0:1], 80")
    e(f"s_mul_i32 s76, {S_TYPE}, 24"); e("s_add_u32 s76, s76, 32")
    e("s_load_dwordx2 s[52:53], s[0:1], s76")
    e("s_load_dwordx2 s[64:65], s[0:1], 64")
    if dbgt: e("s_load_dwordx2 s[34:35], s[0:1], 72")
    e(f"v_lshlrev_b32 v{T2}, 3, v{T0}"); e("s_lshl_b32 s74, s72, 1"); e(f"v_add_u32 v{T2}, s74, v{T2}")
    for b in range(2):
        e(f"buffer_load_dwordx2 {vr(XR+2*b,2)}, v{T2}, {R_X}, 0 offen offset:{b*2048}", tag="xr")
    e(f"v_mul_u32_u24 v{V_DN}, {4*7168}, v{T0}"); e(f"v_add_u32 v{V_DN}, v{V_DN}, v{T1}")
    e("s_lshl_b32 s7, s7, 1"); e("s_add_u32 s7, s7, 1"); e("s_and_b32 s74, s73, 7")
    e("s_cmp_lg_u32 s74, s7"); e(f"s_cselect_b32 {S_HASH}, 1, 0")
    e("s_lshr_b32 s75, s73, 3"); e("s_mul_i32 s75, s75, 7"); e("s_add_u32 s75, s75, s74")
    e("s_cmp_gt_u32 s74, s7"); e(f"s_subb_u32 {S_CBH}, s75, 0")
    e(f"s_mul_i32 {S_UPH}, s72, 7168"); e(f"s_lshl_b32 s74, {S_CBH}, 7"); e(f"s_add_u32 {S_UPH}, {S_UPH}, s74")
    e(f"s_mul_i32 s30, {S_HASH}, {7<<20}"); e("s_mov_b32 s31, 0x00020000")
    def uh():
        for i in range(4):
            e(f"buffer_load_dwordx4 {vr(UPS+16+4*i)}, v{V_DN}, {R_W1}, {S_UPH} offen nt", tag="uph")
            if i < 3: e(f"s_add_u32 {S_UPH}, {S_UPH}, 7168")
    if early >= 1: uh()
    srd(40, "s16", "s17", 64 << 20)
    srd(44, "s18", "s19", 64 << 20)
    e(f"v_lshlrev_b32 v{V_V}, 4, v{V_LANE}")
    e(f"v_bfe_u32 v{T0}, v{V_LANE}, 1, 1"); e(f"v_bfe_u32 v{T1}, v{V_LANE}, 2, 2")
    e(f"v_lshl_add_u32 v{T0}, v{T0}, 2, v{T1}"); e(f"v_lshlrev_b32 v{V_K}, 8, v{T0}")
    e(f"v_lshrrev_b32 v{T1}, 4, v{V_LANE}"); e(f"v_lshl_add_u32 v{V_K}, v{T1}, 5, v{V_K}")
    e(f"v_and_b32 v{T1}, 1, v{V_LANE}"); e(f"v_lshl_add_u32 v{V_K}, v{T1}, 4, v{V_K}")
    e(f"s_lshl_b32 {S_KV}, s2, 18"); e(f"s_lshl_b32 s7, {S_W}, 12"); e(f"s_add_u32 {S_KV}, {S_KV}, s7")
    for base, n in ((56, WS_SIZE), (64, 4096)):
        e(f"s_mov_b32 s{base+2}, {n}"); e(f"s_mov_b32 s{base+3}, 0x00020000")
    e("s_waitcnt lgkmcnt(0)")
    e("s_load_dword s6, s[56:57], 0")
    if not bar_early: e("s_barrier")
    for i in range(early_k):
        e(f"buffer_load_dwordx4 {vr(SLOT(0)+4*i)}, v{V_K}, {R_K}, {S_KV} offen offset:{(i>>1)*2048 + (i&1)*128} nt", tag="k0")
    e(f"s_mov_b32 {S_MASKH}, 0xffff0000")
    e(f"s_lshr_b32 {S_IDX}, s2, 1"); e(f"s_and_b32 s7, {S_IDX}, 7")
    e(f"s_sub_u32 s54, 8, {S_TYPE}"); e("s_lshl_b32 s54, s54, 20")
    e("s_mov_b32 s55, 0x00020000")
    e("s_cmp_lg_u32 s7, 7"); e(f"s_cselect_b32 {S_HASF}, {S_TYPE}, 0")
    e(f"s_lshr_b32 s7, {S_IDX}, 3"); e(f"s_mul_i32 s7, s7, {S_TYPE}"); e(f"s_sub_u32 {S_KS}, {S_IDX}, s7")
    e(f"s_cmp_eq_u32 {S_TYPE}, {S_HASF}")
    e("s_cselect_b32 s54, s54, 0")
    e(f"s_mov_b32 {S_LO}, 0x05040100"); e(f"s_mov_b32 {S_HI}, 0x07060302")
    for i in range(4): e(f"s_mov_b32 {S_TI[i]}, 0x{0x07060500 + i:08x}")
    e(f"s_mov_b32 {S_G2}, 0x0c0c0400"); e("s_mov_b32 s23, 0xffffff00")
    e(f"s_mov_b32 {S_LOG2E}, 0x3fb8aa3b"); e(f"s_mov_b32 {S_SCALE}, 0x3db504f3")
    e("s_mov_b32 s88, 0x00ff00ff"); e("s_mov_b32 s89, 0x00ff00ff")
    e(f"s_lshl_b32 {S_DNB}, {S_KS}, 16"); e(f"s_lshl_b32 s7, {S_W}, 8"); e(f"s_add_u32 {S_DNB}, {S_DNB}, s7")
    if tlb0:
        with cond(f"s_cmp_lg_u32 {S_W}, {tlb0 - 1}", "s_cbranch_scc1"):
            e("s_mov_b64 exec, 1")
            e(f"buffer_load_dword v{P}, off, {R_V}, {S_KV} nt", tag="tl")
            e(f"buffer_load_dword v{P+1}, off, {R_DN}, {S_DNB} nt", tag="tl")
            e(f"s_mov_b32 s7, {WS_CT + 0x8000}")
            e(f"buffer_load_dword v{P+2}, off, {R_WS}, s7", tag="tl")
            e(f"s_mov_b32 s7, {WS_SIZE - 256}")
            e(f"buffer_load_dword v{P+3}, off, {R_WS}, s7", tag="tl")
            e(f"buffer_load_dword v{AD}, off, {R_OUT}, 0", tag="tl")
            e("s_mov_b64 exec, -1")

    def kload(u, slot, i, thr=True):
        beta, t = i >> 1, i & 1
        if i % 4 == 0: e(f"s_add_u32 s74, {S_KV}, {(2*u + (beta >> 1)) * 32768}")
        if thr: throttle()
        e(f"buffer_load_dwordx4 {vr(SLOT(slot)+4*i)}, v{V_K}, {R_K}, s74 offen offset:{(beta&1)*2048 + t*128} nt", tag=f"k{u}")
    def vload(u, slot, j, thr=True):
        if j % 4 == 0: e(f"s_add_u32 s75, {S_KV}, {(2*u + (j >> 2)) * 32768}")
        if thr: throttle()
        e(f"buffer_load_dwordx4 {vr(SLOT(slot)+4*j)}, v{V_V}, {R_V}, s75 offen offset:{(j&3)*1024} nt", tag=f"v{u}")
    def issueK(u, slot, lo=0, hi=8):
        for i in range(lo, hi): kload(u, slot, i)
    def issueV(u, slot, lo=0, hi=8):
        for j in range(lo, hi): vload(u, slot, j)
    def issueDN(slot, lo=0, hi=8):
        for jj in range(lo, hi):
            a_on, f_on = jj < 8 - LA - EA, jj < 8 - LF_
            e(f"s_add_u32 s76, {S_DNB}, {(8*(jj&3) + (jj>>2))*2048}")
            if not a_on and not f_on: e("s_mov_b32 s76, 0x40000000")
            elif a_on != f_on:
                e(f"s_cmp_eq_u32 {S_TYPE}, {0 if a_on else 1}"); e("s_cselect_b32 s76, s76, 0x40000000")
            throttle()
            e(f"buffer_load_dwordx4 {vr(SLOT(slot)+4*jj)}, v{V_DN}, {R_DN}, s76 offen nt", tag="dn")

    stamp(0)
    U = SLOT(3)
    e.wait_vm("xf")
    if early < 1: uh()
    pend = [("k", i) for i in range(early_k, 8)] + [("v", j) for j in range(8)]
    def more(n):
        for _ in range(n):
            if not pend: return
            t, i = pend.pop(0)
            if t == "k":
                if i % 4 and i == early_k: e(f"s_mov_b32 s74, {S_KV}")
                kload(0, 0, i)
            else: vload(0, 1, i)
    for b in range(2):
        for d in range(8):
            e(f"v_lshlrev_b32 v{U+16*b+2*d}, 16, v{XF+8*b+d}")
            e(f"v_and_b32 v{U+16*b+2*d+1}, {S_MASKH}, v{XF+8*b+d}")
    SUM = [T0, T1]; TMP = [T2, T3]; VAR = [T4, T5]
    for b in range(2):
        e(f"v_pk_add_f32 {vr(XF+4*b,2)}, {vr(U+16*b,2)}, {vr(U+16*b+2,2)}")
        e(f"v_pk_add_f32 {vr(XF+4*b+2,2)}, {vr(U+16*b+4,2)}, {vr(U+16*b+6,2)}")
    for i in range(4, 8):
        for b in range(2):
            e(f"v_pk_add_f32 {vr(XF+4*b+2*(i&1),2)}, {vr(XF+4*b+2*(i&1),2)}, {vr(U+16*b+2*i,2)}")
    for b in range(2): e(f"v_pk_add_f32 {vr(XF+4*b,2)}, {vr(XF+4*b,2)}, {vr(XF+4*b+2,2)}")
    for b in range(2): e(f"v_add_f32 v{SUM[b]}, v{XF+4*b}, v{XF+4*b+1}")
    xlane("v_add_f32", SUM, TMP, ["r8", "r4", "r2", "r1", "p16", "p32"])
    for b in range(2): e(f"v_mul_f32 v{SUM[b]}, 0x3a800000, v{SUM[b]}")
    more(2)
    for i in range(8):
        for b in range(2):
            e(f"v_pk_add_f32 {vr(U+16*b+2*i,2)}, {vr(U+16*b+2*i,2)}, {vr(T0,2)} op_sel:[0,{b}] op_sel_hi:[1,{b}] neg_lo:[0,1] neg_hi:[0,1]")
    for b in range(2): e(f"v_pk_mul_f32 {vr(XF+4*b,2)}, {vr(U+16*b,2)}, {vr(U+16*b,2)}")
    for i in range(1, 8):
        for b in range(2): e(f"v_pk_fma_f32 {vr(XF+4*b,2)}, {vr(U+16*b+2*i,2)}, {vr(U+16*b+2*i,2)}, {vr(XF+4*b,2)}")
    for b in range(2): e(f"v_add_f32 v{VAR[b]}, v{XF+4*b}, v{XF+4*b+1}")
    xlane("v_add_f32", VAR, TMP, ["r8", "r4", "r2", "r1", "p16", "p32"])
    more(2)
    for b in range(2): e(f"v_mul_f32 v{VAR[b]}, 0x3a800000, v{VAR[b]}")
    rnd2(SUM[0], SUM[1], T2)
    rnd2(VAR[0], VAR[1], T3)
    for b in range(2): e(f"v_add_f32 v{VAR[b]}, 0x3727c5ac, v{VAR[b]}")
    rnd2(VAR[0], VAR[1], T3)
    for b in range(2): e(f"v_sqrt_f32 v{VAR[b]}, v{VAR[b]}")
    rnd2(VAR[0], VAR[1], T3)
    for b in range(2): e(f"v_rcp_f32 v{VAR[b]}, v{VAR[b]}")
    XN = ACC + 16
    e.wait_vm("xr")
    for b in range(2):
        for d in range(2):
            e(f"v_lshlrev_b32 v{XN+4*b+2*d}, 16, v{XR+2*b+d}")
            e(f"v_and_b32 v{XN+4*b+2*d+1}, {S_MASKH}, v{XR+2*b+d}")
    for b in range(2):
        for i in range(4): e(f"v_sub_f32 v{XN+4*b+i}, v{XN+4*b+i}, v{SUM[b]}")
    for d in range(4): rnd2(XN+2*d, XN+2*d+1, U+d)
    for b in range(2):
        for i in range(4): e(f"v_mul_f32 v{XN+4*b+i}, v{XN+4*b+i}, v{VAR[b]}")
    for d in range(4): rnd2(XN+2*d, XN+2*d+1, U+d)
    e("s_waitcnt lgkmcnt(0)")
    e(f"s_mul_i32 {S_T}, {S_T}, 1664525"); e(f"s_add_u32 {S_T}, {S_T}, 1013904223")
    e(f"v_mov_b32 v{V_T}, {S_T}")
    stamp(1)
    e(f"v_lshrrev_b32 v{T0}, 5, v{V_LANE}"); e(f"v_lshlrev_b32 v{T0}, 8, v{T0}")
    e(f"v_and_b32 v{T1}, 7, v{V_LANE}"); e(f"v_lshl_add_u32 v{T0}, v{T1}, 5, v{T0}")
    e(f"v_and_b32 v{T1}, 16, v{V_LANE}"); e(f"v_add_u32 v{T0}, v{T0}, v{T1}")
    e(f"s_lshl_b32 s7, {S_W}, 9"); e(f"v_add_u32 v{V_AL}, s7, v{T0}")
    def up_compute(src, tag, lbase, fbase, between):
        for i in range(4):
            e.wait_vm_idx(tag, i)
            for d in range(4):
                e(f"v_lshlrev_b32 v{U+2*d}, 16, v{src+4*i+d}")
                e(f"v_and_b32 v{U+2*d+1}, {S_MASKH}, v{src+4*i+d}")
            for b in range(2):
                for c in range(0, 8, 2):
                    xr = XN + 4*b + i
                    base = xr & ~1; sel = xr & 1
                    if i == 0: e(f"v_pk_mul_f32 {vr(ACC+8*b+c,2)}, {vr(U+c,2)}, {vr(base,2)} op_sel:[0,{sel}] op_sel_hi:[1,{sel}]")
                    else: e(f"v_pk_fma_f32 {vr(ACC+8*b+c,2)}, {vr(U+c,2)}, {vr(base,2)}, {vr(ACC+8*b+c,2)} op_sel:[0,{sel},0] op_sel_hi:[1,{sel},1]")
            between(i)
        for c in range(8): e(f"v_permlane32_swap_b32 v{ACC+c}, v{ACC+8+c}")
        for c in range(8): e(f"v_add_f32 v{ACC+c}, v{ACC+c}, v{ACC+8+c}")
        for c in range(4): e(f"v_permlane16_swap_b32 v{ACC+c}, v{ACC+4+c}")
        for c in range(4): e(f"v_add_f32 v{ACC+c}, v{ACC+c}, v{ACC+4+c}")
        for c in range(4): dpp("v_add_f32", ACC+c, ACC+c, ACC+c, "row_ror:8")
        e(f"ds_write_b128 v{V_AL}, {vr(ACC)} offset:{lbase}")
        setflag(fbase)
    def up_publish(lbase, fbase, colreg_expr, name):
        waitflags(fbase, 8, name)
        e("s_mov_b32 exec_hi, 0")
        for w in range(8): e(f"ds_read_b128 {vr(U+4*w)}, v{V_V} offset:{lbase + w*512}")
        e(f"v_lshrrev_b32 v{T0}, 4, v{V_LANE}"); e(f"v_mul_u32_u24 v{T0}, {QP_B}, v{T0}")
        e(f"v_and_b32 v{T1}, 15, v{V_LANE}"); e(f"v_lshl_add_u32 v{T0}, v{T1}, 4, v{T0}")
        e("s_and_b32 s7, s2, 3"); e(f"s_mul_i32 s7, s7, {QP_K}")
        colreg_expr()
        e("s_add_u32 s7, s7, s72")
        e("s_waitcnt lgkmcnt(0)")
        for w in range(1, 8):
            e(f"v_pk_add_f32 {vr(U,2)}, {vr(U,2)}, {vr(U+4*w,2)}"); e(f"v_pk_add_f32 {vr(U+2,2)}, {vr(U+2,2)}, {vr(U+4*w+2,2)}")
        for c in range(4): e(f"v_add_u32 v{U+c}, 0x80, v{U+c}")
        tagput(U+4, [U, U+1, U+2, U+3])
        e(f"buffer_store_dwordx4 {vr(U+4)}, v{T0}, {R_WS}, s7 offen sc1", tag="pub")
        e("s_mov_b64 exec, -1")
    up_compute(UPS, "upq", L_REDQ, L_FA, lambda i: None)
    stamp(2)
    with cond(f"s_cmp_lg_u32 {S_W}, 7", "s_cbranch_scc1"):
        up_publish(L_REDQ, L_FA, lambda: (e("s_lshr_b32 s72, s2, 2"), e("s_lshl_b32 s72, s72, 8"), e(f"s_add_u32 s72, s72, {WS_QP}")), "wfa")
    stamp(3)
    setprio(2)
    e(f"s_lshr_b32 s7, s2, {LC}"); e(f"s_lshl_b32 s7, s7, {LS}"); e(f"s_and_b32 s27, {S_W}, {(1<<LS)-1}"); e("s_add_u32 s7, s7, s27")
    e("s_lshl_b32 s7, s7, 8"); e(f"s_add_u32 s7, s7, {WS_CT}")
    e("s_add_u32 s92, s56, s7"); e("s_addc_u32 s93, s57, 0")
    e(f"s_and_b32 s72, s2, {(1<<LC)-1}"); e(f"s_lshr_b32 s73, {S_W}, {LS}"); e("s_or_b32 s72, s72, s73")
    with cond("s_cmp_lg_u32 s72, 0", "s_cbranch_scc1"):
        e("s_mov_b64 exec, 1")
        e(f"v_mov_b32 v{U+8}, 0"); e(f"v_mov_b32 v{U+9}, {S_T}")
        e(f"buffer_store_dwordx2 {vr(U+8,2)}, off, {R_WS}, s7 sc1", tag="ct")
        e("s_mov_b64 exec, -1")
    up_compute(UPS+16, "uph", L_REDH, L_FH, lambda i: more(1))
    e(f"v_lshrrev_b32 v{T0}, 4, v{V_LANE}"); e(f"v_lshlrev_b32 v{V_DN}, 12, v{T0}")
    e(f"v_and_b32 v{T1}, 15, v{V_LANE}"); e(f"v_lshl_add_u32 v{V_DN}, v{T1}, 4, v{V_DN}")
    more(16)
    with cond([f"s_cmp_lg_u32 {S_W}, 6", f"s_cmp_eq_u32 {S_HASH}, 0"], "s_cbranch_scc1"):
        up_publish(L_REDH, L_FH, lambda: (e(f"s_lshl_b32 s72, {S_CBH}, 8"), e(f"s_add_u32 s72, s72, {WS_QP + 4096*4}")), "wfh")
    issueK(1, 2)
    KB, VB = (SLOT(4), SLOT(4) + 16) if t4early else (SLOT(0), SLOT(0) + 16)
    def tileK(sreg, tag, sreg2=None, thr=False):
        for i in range(4):
            if thr: throttle()
            e(f"buffer_load_dwordx4 {vr(KB+4*i)}, v{V_K}, {R_K}, {sreg if (i < 2 or not sreg2) else sreg2} offen offset:{(i>>1)*2048 + (i&1)*128} nt", tag=tag)
    def tileV(sreg, tag, sreg2=None, thr=False):
        for j in range(4):
            if thr: throttle()
            e(f"buffer_load_dwordx4 {vr(VB+4*j)}, v{V_V}, {R_V}, {sreg if (j < 2 or not sreg2) else sreg2} offen offset:{j*1024} nt", tag=tag)
    if EF and t4early:
        issueV(1, 3)
        setprio(1)
        e(f"s_add_u32 s74, {S_KV}, {4*32768}")
        tileK("s74", "k4", thr=True)
    elif EF:
        issueV(1, 3, 0, 4)
        setprio(1)
    else:
        issueV(1, 3)
        setprio(1)
        issueDN(4, 0, 4)
    QG = SC
    e("s_lshr_b32 s77, s2, 7"); e(f"s_mul_i32 s77, s77, {QP_B}")
    e("s_lshr_b32 s7, s2, 5"); e("s_and_b32 s7, s7, 3"); e("s_lshl_b32 s7, s7, 12"); e("s_add_u32 s77, s77, s7")
    e(f"s_lshl_b32 s7, {S_W}, 10"); e("s_add_u32 s77, s77, s7"); e(f"s_add_u32 s77, s77, {WS_QP}")
    e(f"s_add_u32 s78, s77, {2*QP_K}")
    VQ2 = Q0
    e(f"v_add_u32 v{VQ2}, {QP_K}, v{V_V}")
    def q_issue():
        for kq in range(4):
            e(f"buffer_load_dwordx4 {vr(QG+4*kq)}, v{VQ2 if kq & 1 else V_V}, {R_WS}, s{77 + (kq >> 1)} offen sc1", tag="qp")
    def q_check():
        for kq in range(4): tagcheck(QG+4*kq, T3, kq == 0, T5)
    VH = Q0 + 1
    e(f"v_lshrrev_b32 v{T0}, 3, v{V_LANE}"); e(f"v_mul_u32_u24 v{VH}, {QP_B}, v{T0}")
    e(f"v_and_b32 v{T1}, 7, v{V_LANE}"); e(f"v_lshl_add_u32 v{VH}, v{T1}, 4, v{VH}")
    e(f"s_lshl_b32 s79, {S_KS}, 7"); e(f"s_add_u32 s79, s79, {WS_QP + 4096*4}")
    def h_issue(): e(f"buffer_load_dwordx4 {vr(QG)}, v{VH}, {R_WS}, s79 offen sc1", tag="hp")
    def h_check(): tagcheck(QG, T3, True, T5)
    with cond(f"s_cmp_ge_u32 {S_W}, 4", "s_cbranch_scc1"): q_issue()
    with cond([f"s_cmp_lg_u32 {S_W}, 4", f"s_cmp_eq_u32 {S_HASF}, 0"], "s_cbranch_scc1"): h_issue()
    if EF and t4early: tileV("s74", "v4", thr=True)
    elif EF: issueV(1, 3, 4, 8)
    else: issueDN(4, 4, 8)
    with cond(f"s_cmp_ge_u32 {S_W}, 4", "s_cbranch_scc1"):
        poll(q_issue, q_check, lambda: e("s_waitcnt vmcnt(4)"), "q")
        untag(range(QG, QG+16))
        for kq in range(1, 4):
            e(f"v_pk_add_f32 {vr(QG,2)}, {vr(QG,2)}, {vr(QG+4*kq,2)}"); e(f"v_pk_add_f32 {vr(QG+2,2)}, {vr(QG+2,2)}, {vr(QG+4*kq+2,2)}")
        e(f"v_cvt_pk_bf16_f32 v{QG}, v{QG}, v{QG+1}")
        e(f"v_cvt_pk_bf16_f32 v{QG+1}, v{QG+2}, v{QG+3}")
        e(f"v_lshlrev_b32 v{T0}, 3, v{V_LANE}"); e(f"s_lshl_b32 s7, {S_W}, 9"); e(f"v_add_u32 v{T0}, s7, v{T0}")
        e(f"ds_write_b64 v{T0}, {vr(QG,2)} offset:{L_Q}")
        setflag(L_FQ)
    with cond([f"s_cmp_lg_u32 {S_W}, 4", f"s_cmp_eq_u32 {S_HASF}, 0"], "s_cbranch_scc1"):
        poll(h_issue, h_check, lambda: e("s_waitcnt vmcnt(4)"), "h")
        HG = QG
        untag(range(HG, HG+4))
        xlane("v_add_f32", [HG, HG+1, HG+2, HG+3], [HG+4, HG+5, HG+6, HG+7], ["p16", "p32"])
        for d in range(2): rnd2(HG+2*d, HG+2*d+1, HG+8+d)
        for i in range(4): e(f"v_mul_f32 v{HG+8+i}, {S_LOG2E}, v{HG+i}")
        for i in range(4): e(f"v_exp_f32 v{HG+8+i}, -v{HG+8+i}")
        for i in range(4): e(f"v_add_f32 v{HG+8+i}, 1.0, v{HG+8+i}")
        for i in range(4): e(f"v_rcp_f32 v{HG+8+i}, v{HG+8+i}")
        for i in range(4): e(f"v_mul_f32 v{HG+i}, v{HG+i}, v{HG+8+i}")
        for d in range(2): e(f"v_cvt_pk_bf16_f32 v{HG+4+d}, v{HG+2*d}, v{HG+2*d+1}")
        e(f"v_and_b32 v{T0}, 1, v{V_LANE}"); e(f"v_lshlrev_b32 v{T0}, 5, v{T0}")
        e(f"v_bfe_u32 v{T1}, v{V_LANE}, 1, 2"); e(f"v_lshl_add_u32 v{T0}, v{T1}, 1, v{T0}")
        e(f"v_bfe_u32 v{T1}, v{V_LANE}, 3, 1"); e(f"v_lshl_add_u32 v{T0}, v{T1}, 6, v{T0}")
        e("s_mov_b64 exec, 0xffff")
        for d in range(2):
            e(f"ds_write_b16 v{T0}, v{HG+4+d} offset:{L_OL + 16*d}")
            e(f"ds_write_b16_d16_hi v{T0}, v{HG+4+d} offset:{L_OL + 16*d + 8}")
        e("s_mov_b64 exec, -1")
        setflag(L_FQ)
    stamp(4)
    e(f"v_and_b32 v{T0}, 7, v{V_LANE}"); e(f"v_lshlrev_b32 v{T0}, 8, v{T0}")
    e(f"v_lshrrev_b32 v{T1}, 4, v{V_LANE}"); e(f"v_lshl_add_u32 v{T0}, v{T1}, 5, v{T0}")
    e(f"v_bfe_u32 v{T1}, v{V_LANE}, 3, 1"); e(f"v_lshl_add_u32 v{T0}, v{T1}, 4, v{T0}")
    waitflags(L_FQ, 4, "wfq")
    e(f"ds_read_b128 {vr(Q0)}, v{T0} offset:{L_Q}")
    e(f"ds_read_b128 {vr(Q1)}, v{T0} offset:{L_Q+128}")
    stamp(5)

    def S_phase(u, slot):
        K = SLOT(slot)
        e.wait_vm(f"k{u}", " lgkmcnt(0)" if u == 0 else "")
        for t in range(2):
            for beta in range(4):
                c = "0" if t == 0 else vr(SC+4*beta)
                e(f"v_mfma_f32_16x16x32_bf16 {vr(SC+4*beta)}, {vr(K+8*beta+4*t)}, {vr(Q0 if t == 0 else Q1)}, {c}")
        yield
        S = SC + 16
        for beta in range(4):
            for eps in range(2):
                dpp("v_add_f32", S+2*beta+eps, SC+4*beta+2*eps+1, SC+4*beta+2*eps, "row_ror:8")
        for d in range(4): rnd2(S+2*d, S+2*d+1, SC+24+d)
        for i in range(8): e(f"v_mul_f32 v{S+i}, {S_SCALE}, v{S+i}")
        for d in range(4): rnd2(S+2*d, S+2*d+1, SC+24+d)
        e(f"v_max3_f32 v{T0}, v{S}, v{S+1}, v{S+2}")
        e(f"v_max3_f32 v{T1}, v{S+3}, v{S+4}, v{S+5}")
        e(f"v_max3_f32 v{T0}, v{T0}, v{S+6}, v{S+7}")
        e(f"v_max_f32 v{T0}, v{T0}, v{T1}")
        xlane("v_max_f32", [T0], [T1], ["p16", "p32"])
        e(f"v_mul_f32 v{T0}, {S_LOG2E}, v{T0}")
        if u > 0:
            e(f"v_max_f32 v{T0}, v{T0}, v{V_ML}")
            e(f"v_sub_f32 v{V_AL}, v{V_ML}, v{T0}")
            e(f"v_exp_f32 v{V_AL}, v{V_AL}")
        e(f"v_mov_b32 v{V_ML}, v{T0}")
        for i in range(8): e(f"v_fma_f32 v{S+i}, v{S+i}, {S_LOG2E}, -v{T0}")
        for i in range(8): e(f"v_exp_f32 v{S+i}, v{S+i}")
        if u > 0:
            e(f"v_mul_f32 v{V_L}, v{V_L}, v{V_AL}")
            for i in range(32): e(f"v_mul_f32 v{ACC+i}, v{ACC+i}, v{V_AL}")
        for d in range(4): e(f"v_cvt_pk_bf16_f32 v{P+d}, v{S+2*d}, v{S+2*d+1}")
        if u == 0: e(f"v_add_f32 v{V_L}, v{S}, v{S+1}")
        else:
            e(f"v_add_f32 v{V_L}, v{V_L}, v{S}"); e(f"v_add_f32 v{V_L}, v{V_L}, v{S+1}")
        for i in range(2, 8): e(f"v_add_f32 v{V_L}, v{V_L}, v{S+i}")
        yield
    def perms32(src, dst):
        for p in range(4):
            for d in range(4):
                for x in range(2):
                    e(f"v_perm_b32 v{dst+4*(2*d+x)+p}, v{src+4*(2*p+1)+d}, v{src+4*(2*p)+d}, {S_HI if x else S_LO}")
    def PV_phase(u, slot):
        e.wait_vm(f"v{u}")
        perms32(SLOT(slot), SC)
        for ee in range(8):
            c = "0" if u == 0 else vr(ACC+4*ee)
            e(f"v_mfma_f32_16x16x32_bf16 {vr(ACC+4*ee)}, {vr(SC+4*ee)}, {vr(P)}, {c}")
    WP = SLOT(1)
    def down_mfma_publish(A, W, D, ST):
        for ee in range(8):
            e(f"v_mfma_f32_16x16x32_bf16 {vr(D+4*ee)}, {vr(A)}, {vr(W+4*ee)}, 0")
        e("s_mov_b64 exec, 0xffff")
        for q4 in range(4):
            b, eh = q4 >> 1, q4 & 1
            tagput(ST+4*q4, [D+4*(4*eh+i)+b for i in range(4)])
            e(f"buffer_store_dwordx4 {vr(ST+4*q4)}, v{V_V}, {R_WS}, s38 offen offset:{q4*256} sc1", tag="pubD")
        e("s_mov_b64 exec, -1")
    g = S_phase(0, 0); next(g)
    e("s_load_dwordx2 s[94:95], s[92:93], 0 glc")
    if not t4early:
        e(f"s_add_u32 s74, {S_KV}, {4*32768}")
        tileK("s74", "k4"); tileV("s74", "v4")
    next(g)
    PV_phase(0, 1)
    Lc1, Lc2 = newlab("ctpoll"), newlab("ctok")
    e(f"s_mov_b32 {S_CNT}, 0")
    e.label(Lc1)
    e("s_waitcnt lgkmcnt(0)")
    e(f"s_cmp_eq_u32 s95, {S_T}"); e(f"s_cbranch_scc1 {Lc2}")
    e(f"s_add_u32 {S_CNT}, {S_CNT}, 1"); e(f"s_cmp_gt_u32 {S_CNT}, {POLL_LIMIT}"); e(f"s_cbranch_scc1 {Lc2}")
    e("s_load_dwordx2 s[94:95], s[92:93], 0 glc")
    e(f"s_branch {Lc1}")
    e.label(Lc2)
    S_NX, S_ST = "s96", "s97"
    def grab():
        e(f"s_mov_b32 {S_NX}, 1")
        e(f"s_atomic_add {S_NX}, s[92:93], 0 glc")
    for _ in S_phase(1, 2): pass
    PV_phase(1, 3)
    if not EF:
        e.wait_vm("dn")
        perms32(SLOT(4), WP)
    WA = SLOT(0) if t4early else SLOT(4)
    e(f"v_and_b32 v{T0}, 15, v{V_LANE}"); e(f"v_mul_u32_u24 v{WA}, {512+16}, v{T0}")
    e(f"v_lshrrev_b32 v{T1}, 4, v{V_LANE}"); e(f"v_lshl_add_u32 v{WA}, v{T1}, 7, v{WA}")
    e(f"s_lshl_b32 s7, {S_W}, 12"); e(f"v_add_u32 v{WA}, s7, v{WA}")
    for ee in range(1, 8): e(f"v_xor_b32 v{WA+ee}, {ee*16}, v{WA}")
    RA, GA, VO, VM, MA, MW, ADA, OLW = WA + 8, WA + 9, WA + 10, WA + 11, WA + 12, WA + 13, WA + 14, WA + 15
    e(f"s_lshl_b32 s7, {S_W}, 6"); e(f"v_add_u32 v{T0}, s7, v{V_LANE}")
    e(f"v_lshlrev_b32 v{GA}, 4, v{T0}")
    e(f"v_lshrrev_b32 v{T1}, 5, v{T0}"); e(f"v_and_b32 v{T1}, 7, v{T1}"); e(f"v_lshlrev_b32 v{MA}, 6, v{T1}"); e(f"v_lshlrev_b32 v{T1}, 4, v{T1}")
    e(f"v_xor_b32 v{RA}, v{GA}, v{T1}")
    e(f"v_lshlrev_b32 v{MW}, 6, v{V_LANE}"); e(f"s_lshl_b32 s7, {S_W}, 3"); e(f"v_add_u32 v{MW}, s7, v{MW}")
    e(f"v_and_b32 v{T0}, 1, v{V_LANE}"); e(f"v_lshlrev_b32 v{T0}, 6, v{T0}")
    e(f"v_and_b32 v{T1}, 48, v{V_LANE}"); e(f"v_add_u32 v{ADA}, v{T0}, v{T1}")
    e(f"s_and_b32 s7, {S_W}, 1"); e("s_lshl_b32 s7, s7, 6"); e(f"s_lshr_b32 s78, {S_W}, 1"); e("s_lshl_b32 s78, s78, 5"); e("s_add_u32 s7, s7, s78")
    e(f"v_and_b32 v{OLW}, 3, v{V_LANE}"); e(f"v_lshlrev_b32 v{OLW}, 3, v{OLW}"); e(f"v_lshrrev_b32 v{T0}, 4, v{V_LANE}"); e(f"v_lshl_add_u32 v{OLW}, v{T0}, 1, v{OLW}"); e(f"v_add_u32 v{OLW}, s7, v{OLW}")
    e(f"s_lshr_b32 s7, {S_IDX}, 5"); e(f"s_and_b32 s79, {S_W}, 1"); e("s_lshl_b32 s79, s79, 2"); e("s_add_u32 s7, s7, s79"); e("s_lshl_b32 s7, s7, 17")
    e("s_lshl_b32 s78, s78, 1"); e("s_add_u32 s78, s78, s7")
    e(f"s_and_b32 s7, {S_IDX}, 31"); e("s_lshl_b32 s7, s7, 7"); e("s_add_u32 s78, s78, s7"); e(f"s_add_u32 s78, s78, {WS_OP}")
    e(f"s_add_u32 s79, s78, {16*4096}")
    e(f"v_lshrrev_b32 v{T0}, 2, v{V_LANE}"); e(f"v_and_b32 v{T1}, 3, v{V_LANE}")
    e(f"v_lshlrev_b32 v{VO}, 12, v{T0}"); e(f"v_lshl_add_u32 v{VO}, v{T1}, 4, v{VO}")
    e("s_lshl_b32 s100, s2, 12"); e(f"s_add_u32 s100, s100, {WS_OP - 4096}")
    e("s_lshl_b32 s101, s2, 7"); e(f"s_add_u32 s101, s101, {WS_ML}")
    e(f"s_lshl_b32 s38, {S_TYPE}, 7"); e(f"s_add_u32 s38, s38, {S_KS}"); e("s_lshl_b32 s38, s38, 13")
    e(f"s_lshl_b32 s7, {S_W}, 10"); e("s_add_u32 s38, s38, s7"); e(f"s_add_u32 s38, s38, {WS_AP}")
    VA3, VX3, VL3, SH4 = WA + 18, WA + 19, WA + 20, WA + 21
    GF = SLOT(3)
    XQ = SLOT(3) + 4
    e(f"v_lshrrev_b32 v{VA3}, 2, v{V_LANE}"); e(f"v_lshlrev_b32 v{VA3}, 13, v{VA3}")
    e(f"v_and_b32 v{VX3}, 3, v{V_LANE}"); e(f"v_lshlrev_b32 v{SH4}, 3, v{VX3}"); e(f"v_lshlrev_b32 v{VX3}, 4, v{VX3}"); e(f"v_add_u32 v{VA3}, v{VA3}, v{VX3}")
    e(f"s_lshl_b32 s7, {S_W}, 6"); e(f"v_add_u32 v{VL3}, s7, v{VX3}")
    e(f"s_lshl_b32 s16, {S_IDX}, 6"); e(f"s_add_u32 s16, s16, {WS_AP}"); e(f"s_lshl_b32 s7, {S_W}, 17"); e("s_add_u32 s16, s16, s7")
    e(f"s_add_u32 s17, s16, {128*8192}")
    e(f"s_lshr_b32 s7, {S_IDX}, 3"); e("s_and_b32 s7, s7, 1"); e("s_lshl_b32 s18, s7, 11")
    e(f"s_lshr_b32 s7, {S_IDX}, 4"); e("s_lshl_b32 s7, s7, 8"); e("s_add_u32 s18, s18, s7")
    e(f"s_and_b32 s7, {S_IDX}, 3"); e("s_lshl_b32 s7, s7, 6"); e("s_add_u32 s18, s18, s7")
    e(f"s_and_b32 s7, {S_IDX}, 4"); e("s_lshl_b32 s7, s7, 1"); e("s_add_u32 s18, s18, s7")
    e(f"s_cmp_lg_u32 {S_W}, 7"); e(f"s_cselect_b32 s19, {S_TYPE}, 0")
    e(f"s_and_b32 s20, {S_T}, 0xffffff"); e("s_mov_b32 s21, 0x0c040100")
    def gf_issue(): e(f"buffer_load_dwordx4 {vr(GF)}, v{VA3}, {R_WS}, s17 offen sc1", tag="g")
    FR = 64 - 8*NS - HF
    P1 = (FR >> LS) << LC
    POOL = P1 + ((HF >> LS) << (LC + 1))
    assert NS == 5
    e(f"s_and_b32 s98, s2, {0x100 - (1<<LC)}"); e("s_lshl_b32 s98, s98, 18"); e(f"s_add_u32 s98, s98, {NS*8*4096}")
    if not late_ffn and not EF:
      with cond(f"s_cmp_eq_u32 {S_HASF}, 0", "s_cbranch_scc1"):
        waitflags(L_FQ + 16, 1, "wfh2")
        e(f"ds_read_b128 {vr(AD)}, v{ADA} offset:{L_OL}")
        e("s_waitcnt lgkmcnt(0)")
        down_mfma_publish(AD, WP, SLOT(2), SC)
    if tlb:
        with cond(f"s_cmp_lg_u32 {S_W}, 1", "s_cbranch_scc1"):
            e("s_mov_b64 exec, 1")
            e(f"buffer_load_dword v{SLOT(3)+8}, off, {R_DN}, {S_DNB}", tag="tl")
            e(f"buffer_load_dword v{SLOT(3)+9}, off, {R_WS}, s17", tag="tl")
            e(f"buffer_load_dword v{SLOT(3)+10}, off, {R_OUT}, s18", tag="tl")
            e("s_mov_b64 exec, -1")
    grab()
    stamp(6)
    setprio(0)
    Lloop, Lskip = newlab("loop"), newlab("noresc")
    e("s_mov_b32 s99, 0")
    e.label(Lloop)
    e("s_waitcnt vmcnt(4)")
    for t in range(2):
        for beta in range(2):
            c = "0" if t == 0 else vr(SC+4*beta)
            e(f"v_mfma_f32_16x16x32_bf16 {vr(SC+4*beta)}, {vr(KB+8*beta+4*t)}, {vr(Q0 if t == 0 else Q1)}, {c}")
    e("s_waitcnt lgkmcnt(0)")
    if pmap == 0:
        e(f"s_and_b32 s74, {S_NX}, {(1<<LC)-1}"); e("s_lshl_b32 s74, s74, 18"); e("s_add_u32 s74, s74, s98")
        e(f"s_lshr_b32 s75, {S_NX}, {LC}")
        if LS: e(f"s_lshl_b32 s75, s75, {LS}"); e("s_add_u32 s75, s75, s27")
        e("s_lshl_b32 s76, s75, 12"); e("s_lshl_b32 s75, s75, 11"); e(f"s_add_u32 s75, s75, {FR*4096 - FR*2048}")
    else:
        assert FR % 8 == 0 and HF == 8
        e(f"s_and_b32 s74, {S_NX}, 7"); e("s_lshl_b32 s74, s74, 12"); e("s_add_u32 s74, s74, s98")
        e(f"s_bfe_u32 s75, {S_NX}, 0x30003"); e("s_lshl_b32 s75, s75, 18"); e("s_add_u32 s74, s74, s75")
        e(f"s_lshr_b32 s75, {S_NX}, 6"); e("s_lshl_b32 s76, s75, 15"); e("s_lshl_b32 s75, s75, 11"); e(f"s_add_u32 s75, s75, {FR*4096 - (FR//8)*2048}")
    e(f"s_cmp_lt_u32 {S_NX}, {P1}"); e("s_cselect_b32 s75, s76, s75"); e("s_cselect_b32 s77, 0, 0xff800000"); e("s_cselect_b32 s76, 0, 0x40000000")
    e("s_add_u32 s74, s74, s75"); e("s_add_u32 s76, s76, s74")
    e(f"s_cmp_lt_u32 {S_NX}, {POOL}"); e("s_cselect_b32 s74, s74, 0x40000000"); e("s_cselect_b32 s75, 1, 0")
    def dn_at(jjs):
        for jj in jjs:
            e(f"s_add_u32 s22, {S_DNB}, {(8*(jj&3) + (jj>>2))*2048}")
            e(f"buffer_load_dwordx4 {vr(SLOT(2)+4*jj)}, v{V_DN}, {R_DN}, s22 offen nt", tag="dn3")
    ea = list(range(8 - LA - EA, 8 - LA))
    ea_exit = []
    if xmode == 1: ea_exit = ea; ea = []
    if xmode == 2: ea_exit = ea[4:]; ea = ea[:4]
    if EA >= 4 and xmode == 0:
        Lk, Lk2 = newlab("kdn"), newlab("kdn2")
        e(f"s_or_b32 s22, s75, {'s75' if (EF and fx in (0, 3, 4)) else S_TYPE}"); e(f"s_cbranch_scc1 {Lk}")
        e.cond_depth += 1; dn_at(ea[:4]); e.cond_depth -= 1
        e(f"s_branch {Lk2}")
        e.label(Lk)
        tileK("s74", "kl", "s76")
        e.label(Lk2)
        ea = ea[4:]
    else:
        tileK("s74", "kl", "s76")
    S = SC + 8
    for beta in range(2):
        for eps in range(2):
            dpp("v_add_f32", S+2*beta+eps, SC+4*beta+2*eps+1, SC+4*beta+2*eps, "row_ror:8")
    for d in range(2): rnd2(S+2*d, S+2*d+1, SC+12+d)
    for i in range(4): e(f"v_mul_f32 v{S+i}, {S_SCALE}, v{S+i}")
    for d in range(2): rnd2(S+2*d, S+2*d+1, SC+12+d)
    e(f"v_add_f32 v{S+2}, s99, v{S+2}"); e(f"v_add_f32 v{S+3}, s99, v{S+3}")
    e("s_mov_b32 s99, s77")
    e(f"v_max3_f32 v{T0}, v{S}, v{S+1}, v{S+2}")
    e(f"v_max_f32 v{T0}, v{T0}, v{S+3}")
    xlane("v_max_f32", [T0], [T1], ["p16", "p32"])
    e(f"v_mul_f32 v{T0}, {S_LOG2E}, v{T0}")
    e(f"v_cmp_gt_f32 vcc, v{T0}, v{V_ML}")
    e(f"s_and_b64 vcc, vcc, {S_N8}")
    e(f"s_cbranch_scc0 {Lskip}")
    e(f"v_max_f32 v{T0}, v{T0}, v{V_ML}")
    e(f"v_sub_f32 v{V_AL}, v{V_ML}, v{T0}")
    e(f"v_exp_f32 v{V_AL}, v{V_AL}")
    e(f"v_mov_b32 v{V_ML}, v{T0}")
    e(f"v_mul_f32 v{V_L}, v{V_L}, v{V_AL}")
    for i in range(32): e(f"v_mul_f32 v{ACC+i}, v{ACC+i}, v{V_AL}")
    e.label(Lskip)
    for i in range(4): e(f"v_fma_f32 v{S+i}, v{S+i}, {S_LOG2E}, -v{V_ML}")
    for i in range(4): e(f"v_exp_f32 v{S+i}, v{S+i}")
    for d in range(2): e(f"v_cvt_pk_bf16_f32 v{P+d}, v{S+2*d}, v{S+2*d+1}")
    for i in range(4): e(f"v_add_f32 v{V_L}, v{V_L}, v{S+i}")
    PS = SC + 16
    for p in range(2):
        e(f"s_waitcnt vmcnt({6 - 2*p})")
        for d in range(4):
            for x in range(2):
                e(f"v_perm_b32 v{PS+2*(2*d+x)+p}, v{VB+4*(2*p+1)+d}, v{VB+4*(2*p)+d}, {S_HI if x else S_LO}")
    with cond("s_cmp_eq_u32 s75, 0", "s_cbranch_scc1"):
        tileV("s74", "vl", "s76")
        grab()
    if ea:
        with cond(f"s_or_b32 s22, s75, {'s75' if (EF and fx == 0) else S_TYPE}", "s_cbranch_scc1"): dn_at(ea)
    if not EF:
      with cond("s_cmp_le_u32 s19, s75", "s_cbranch_scc1"):
        gf_issue()
    for ee in range(8):
        e(f"v_mfma_f32_16x16x16_bf16 {vr(ACC+4*ee)}, {vr(PS+2*ee,2)}, {vr(P,2)}, {vr(ACC+4*ee)}")
    e("s_cmp_lg_u32 s75, 0"); e(f"s_cbranch_scc1 {Lloop}")
    stamp(7)
    xlane("v_add_f32", [V_L], [T1], ["p16", "p32"])
    e("s_mov_b64 exec, 0xff")
    e(f"ds_write_b64 v{MW}, {vr(V_ML,2)} offset:{L_MX}")
    e(f"s_mov_b64 exec, {S_N8}")
    for ee in range(8): e(f"ds_write_b128 v{WA+ee}, {vr(ACC+4*ee)} offset:{L_ORED}")
    e("s_mov_b64 exec, -1")
    if ea_exit:
        with cond(f"s_cmp_eq_u32 {S_TYPE}, 1", "s_cbranch_scc1"): dn_at(ea_exit)
    if EF and fx in (1, 3):
        with cond(f"s_cmp_eq_u32 {S_TYPE}, 0", "s_cbranch_scc1"): dn_at(range(8) if fx == 1 else range(4, 8))
    stamp(8)
    e("s_waitcnt lgkmcnt(0)")
    e("s_barrier")
    L4, Lp = newlab("w4"), newlab("pubdone")
    ML8 = SC
    def wg_factors():
        e(f"v_max3_f32 v{T0}, v{ML8}, v{ML8+2}, v{ML8+4}")
        e(f"v_max3_f32 v{T1}, v{ML8+6}, v{ML8+8}, v{ML8+10}")
        e(f"v_max3_f32 v{T0}, v{T0}, v{ML8+12}, v{ML8+14}")
        e(f"v_max_f32 v{T0}, v{T0}, v{T1}")
        for w in range(8): e(f"v_sub_f32 v{ML8+2*w}, v{ML8+2*w}, v{T0}")
        for w in range(8): e(f"v_exp_f32 v{ML8+2*w}, v{ML8+2*w}")
    e(f"s_cmp_lt_u32 {S_W}, 4"); e(f"s_cbranch_scc1 {Lp}")
    e.cond_depth += 1
    for i in range(4): e(f"ds_read_b128 {vr(ML8+4*i)}, v{MA} offset:{L_MX + 16*i}")
    for w in range(8): e(f"ds_read_b128 {vr(ACC+4*w)}, v{RA} offset:{L_ORED - 4096 + w*4096}")
    e("s_waitcnt lgkmcnt(8)")
    wg_factors()
    e(f"v_mul_f32 v{T2}, v{ML8+1}, v{ML8}")
    e(f"v_mul_f32 v{T3}, v{ML8+3}, v{ML8+2}")
    for w in range(2, 8): e(f"v_fmac_f32 v{T2 + (w & 1)}, v{ML8+2*w+1}, v{ML8+2*w}")
    e(f"v_add_f32 v{T2}, v{T2}, v{T3}")
    e(f"v_log_f32 v{T3}, v{T2}")
    e(f"v_rcp_f32 v{T2}, v{T2}")
    for w in range(8):
        e(f"s_waitcnt lgkmcnt({7-w})")
        for c in range(0, 4, 2):
            if w == 0: e(f"v_pk_mul_f32 {vr(ACC+c,2)}, {vr(ACC+c,2)}, {vr(ML8,2)} op_sel_hi:[1,0]")
            else: e(f"v_pk_fma_f32 {vr(ACC+c,2)}, {vr(ACC+4*w+c,2)}, {vr(ML8+2*w,2)}, {vr(ACC+c,2)} op_sel_hi:[1,0,1]")
        if w == 1:
            e(f"v_add_f32 v{T3}, v{T3}, v{T0}")
            e(f"v_lshrrev_b32 v{T3}, v{SH4}, v{T3}")
    for c in range(0, 4, 2): e(f"v_pk_mul_f32 {vr(ACC+c,2)}, {vr(ACC+c,2)}, {vr(T2,2)} op_sel_hi:[1,0]")
    tagput(ACC+4, [ACC, ACC+1, ACC+2])
    e(f"v_perm_b32 v{ACC+7}, v{ACC+3}, v{T3}, {S_TI[0]}")
    e(f"buffer_store_dwordx4 {vr(ACC+4)}, v{GA}, {R_WS}, s100 offen sc1", tag="pubO")
    e.cond_depth -= 1
    e.label(Lp)
    stamp(9)
    if dbgt:
        e("s_memrealtime s[16:17]"); e("s_waitcnt lgkmcnt(0)")
    def late_dn(L):
        for jj in range(8 - L, 8):
            e(f"s_add_u32 s76, {S_DNB}, {(8*(jj&3) + (jj>>2))*2048}")
            e(f"buffer_load_dwordx4 {vr(SLOT(0)+4*jj)}, v{V_DN}, {R_DN}, s76 offen nt", tag="dn2")
        for p in range((8 - L) // 2, 4):
            e(f"s_waitcnt vmcnt({6-2*p})")
            for d in range(4):
                for x in range(2):
                    e(f"v_perm_b32 v{WP+4*(2*d+x)+p}, v{SLOT(0)+4*(2*p+1)+d}, v{SLOT(0)+4*(2*p)+d}, {S_HI if x else S_LO}")
    if pbar: e("s_barrier")
    LF = newlab("ftype")
    e(f"s_cmp_eq_u32 {S_TYPE}, 1"); e(f"s_cbranch_scc1 {LF}")
    e.cond_depth += 1
    OG, MG = ACC + 16, ACC + 24
    def o_issue():
        e(f"buffer_load_dwordx4 {vr(OG)}, v{VO}, {R_WS}, s78 offen sc1", tag="og")
        e(f"buffer_load_dwordx4 {vr(OG+4)}, v{VO}, {R_WS}, s79 offen sc1", tag="og")
    def o_check():
        e(f"v_perm_b32 v{T3}, v{OG+1}, v{OG}, {S_G2}")
        e(f"v_perm_b32 v{T4}, v{OG+5}, v{OG+4}, {S_G2}")
        e(f"v_perm_b32 v{T3}, v{OG+2}, v{T3}, s21")
        e(f"v_perm_b32 v{T4}, v{OG+6}, v{T4}, s21")
        e(f"v_xor_b32 v{T3}, s20, v{T3}"); e(f"v_xor_b32 v{T4}, s20, v{T4}")
        e(f"v_or_b32 v{T5}, v{T3}, v{T4}")
    if EA:
        if not LA: e("s_waitcnt vmcnt(0)")
        else: e("s_waitcnt vmcnt(0)")
        for p in range((8 - LA - EA) // 2, (8 - LA) // 2):
            for d in range(4):
                for x in range(2):
                    e(f"v_perm_b32 v{WP+4*(2*d+x)+p}, v{SLOT(2)+4*(2*p+1)+d}, v{SLOT(2)+4*(2*p)+d}, {S_HI if x else S_LO}")
    late_dn(LA)
    if THO:
        with cond(f"s_cmp_lg_u32 {S_W}, 0", "s_cbranch_scc1"):
            Lr, Lx = newlab("so"), newlab("sox")
            e("s_mov_b32 exec_lo, 0x01010101"); e("s_mov_b32 exec_hi, 0x01010101")
            e(f"s_mov_b32 {S_CNT}, 0")
            e.label(Lr)
            e(f"buffer_load_dwordx4 {vr(OG)}, v{VO}, {R_WS}, s78 offen sc1", tag="og")
            e(f"s_add_u32 {S_CNT}, {S_CNT}, 1"); e(f"s_cmp_gt_u32 {S_CNT}, {POLL_LIMIT}")
            e("s_waitcnt vmcnt(0)")
            e(f"s_cbranch_scc1 {Lx}")
            e(f"v_perm_b32 v{T3}, v{OG+1}, v{OG}, {S_G2}")
            e(f"v_perm_b32 v{T3}, v{OG+2}, v{T3}, s21")
            e(f"v_cmp_eq_u32 vcc, s20, v{T3}")
            e("s_bcnt1_i32_b64 s7, vcc")
            e(f"s_cmp_ge_u32 s7, {THO}"); e(f"s_cbranch_scc1 {Lx}")
            e("s_sleep 1")
            e(f"s_branch {Lr}")
            e.label(Lx)
            e("s_mov_b64 exec, -1")
        e("s_barrier")
    with cond(f"s_cmp_ge_u32 {S_W}, 4", "s_cbranch_scc1"):
        if dly_o and not THO: e(f"s_sleep {dly_o}")
        o_issue()
        poll(o_issue, o_check, lambda: e("s_waitcnt vmcnt(0)"), "o", sleep=slp_o)
        stamp(10)
        for i in range(2): e(f"v_and_b32 v{MG+i}, 0xff, v{OG+4*i+3}")
        for i in range(2): e(f"v_lshlrev_b32 v{MG+i}, v{SH4}, v{MG+i}")
        untag(range(OG, OG+4))
        for i in range(2): dpp("v_or_b32", MG+i, MG+i, MG+i, "quad_perm:[1,0,3,2]")
        untag(range(OG+4, OG+8))
        for i in range(2): dpp("v_or_b32", MG+i, MG+i, MG+i, "quad_perm:[2,3,0,1]")
        e(f"v_max_f32 v{T0}, v{MG}, v{MG+1}")
        xlane("v_max_f32", [T0], [T1], ["r4", "r8", "p16", "p32"])
        for i in range(2): e(f"v_sub_f32 v{MG+i}, v{MG+i}, v{T0}")
        for i in range(2): e(f"v_exp_f32 v{MG+i}, v{MG+i}")
        for c in range(0, 4, 2): e(f"v_pk_mul_f32 {vr(OG+c,2)}, {vr(OG+c,2)}, {vr(MG,2)} op_sel_hi:[1,0]")
        for c in range(0, 4, 2): e(f"v_pk_fma_f32 {vr(OG+c,2)}, {vr(OG+4+c,2)}, {vr(MG,2)}, {vr(OG+c,2)} op_sel:[0,1,0] op_sel_hi:[1,1,1]")
        e(f"v_add_f32 v{T1}, v{MG}, v{MG+1}")
        e(f"v_mov_b32 v{T4}, v{T1}")
        e(f"v_permlane32_swap_b32 v{OG}, v{OG+2}"); e(f"v_permlane32_swap_b32 v{OG+1}, v{OG+3}"); e(f"v_permlane32_swap_b32 v{T1}, v{T4}")
        e(f"v_add_f32 v{T1}, v{T1}, v{T4}"); e(f"v_add_f32 v{OG}, v{OG}, v{OG+2}"); e(f"v_add_f32 v{OG+1}, v{OG+1}, v{OG+3}")
        e(f"v_mov_b32 v{T4}, v{T1}")
        e(f"v_permlane16_swap_b32 v{OG}, v{OG+1}"); e(f"v_permlane16_swap_b32 v{T1}, v{T4}")
        e(f"v_add_f32 v{OG}, v{OG}, v{OG+1}"); e(f"v_add_f32 v{T1}, v{T1}, v{T4}")
        for st in (8, 4):
            dpp("v_add_f32", OG, OG, OG, f"row_ror:{st}"); dpp("v_add_f32", T1, T1, T1, f"row_ror:{st}")
        e(f"v_rcp_f32 v{T0}, v{T1}")
        e(f"v_mul_f32 v{OG}, v{OG}, v{T0}")
        e(f"v_cvt_pk_bf16_f32 v{OG}, v{OG}, v{OG}")
        e("s_mov_b32 exec_lo, 0x000f000f"); e("s_mov_b32 exec_hi, 0x000f000f")
        e(f"ds_write_b16 v{OLW}, v{OG} offset:{L_OL}")
        e("s_mov_b64 exec, -1")
        e("s_waitcnt lgkmcnt(0)")
    e("s_barrier")
    e(f"ds_read_b128 {vr(AD)}, v{ADA} offset:{L_OL}")
    e("s_waitcnt lgkmcnt(0)")
    down_mfma_publish(AD, WP, ACC, SLOT(3))
    stamp(11)
    e("s_branch L_fini")
    e.label(LF)
    if late_ffn:
      with cond(f"s_cmp_eq_u32 {S_HASF}, 0", "s_cbranch_scc1"):
        e(f"ds_read_b128 {vr(AD)}, v{ADA} offset:{L_OL}")
        late_dn(LF_)
        e("s_waitcnt lgkmcnt(0)")
        down_mfma_publish(AD, WP, SLOT(2), SLOT(3))
      stamp(11)
    VA, VX = VA3, VX3
    G = SLOT(1)
    def ga_issue(): e(f"buffer_load_dwordx4 {vr(G)}, v{VA}, {R_WS}, s16 offen sc1", tag="g")
    def tred(R):
        e(f"v_permlane32_swap_b32 v{R}, v{R+2}"); e(f"v_permlane32_swap_b32 v{R+1}, v{R+3}")
        e(f"v_add_f32 v{R}, v{R}, v{R+2}"); e(f"v_add_f32 v{R+1}, v{R+1}, v{R+3}")
        e(f"v_permlane16_swap_b32 v{R}, v{R+1}")
        e(f"v_add_f32 v{R}, v{R}, v{R+1}")
        dpp("v_add_f32", R, R, R, "row_ror:8"); dpp("v_add_f32", R, R, R, "row_ror:4")
    VL = T0
    e(f"v_lshrrev_b32 v{VL}, 4, v{V_LANE}"); e(f"v_lshl_add_u32 v{VL}, v{VL}, 2, v{VL3}")
    e("s_mov_b32 s24, 0x000f000f"); e("s_mov_b32 s25, 0x000f000f")
    if EF:
        with cond(f"s_cmp_eq_u32 {S_HASF}, 0", "s_cbranch_scc1"):
            if fx == 2: dn_at(range(8))
            if fx == 4: dn_at(range(4, 8))
            e(f"ds_read_b128 {vr(AD)}, v{ADA} offset:{L_OL}")
            e("s_waitcnt vmcnt(0)")
            perms32(SLOT(2), KB)
            e("s_waitcnt lgkmcnt(0)")
            down_mfma_publish(AD, KB, ACC, SC)
        stamp(11)
        FV, XV, VR, VS = G + 8, G + 9, G + 10, G + 11
        e(f"s_cmp_eq_u32 {S_W}, 7"); e("s_cselect_b32 s17, s16, s17"); e("s_cselect_b32 s19, 0, -1")
        def gb_issue(): ga_issue(); gf_issue()
        def gb_check(): tagcheck(G, T3, True, T5); tagcheck(GF, T3, False, T5)
        with cond(f"s_cmp_lg_u32 {S_W}, 0", "s_cbranch_scc1"):
            e(f"v_lshlrev_b32 v{VR}, 2, v{V_LANE}")
            e(f"v_and_b32 v{VS}, 12, v{V_LANE}"); e(f"v_lshlrev_b32 v{VS}, 2, v{VS}"); e(f"v_and_b32 v{T1}, 3, v{V_LANE}"); e(f"v_lshl_add_u32 v{VS}, v{T1}, 1, v{VS}")
            e(f"buffer_load_ushort v{XV}, v{VS}, {R_X}, s18 offen", tag="xq")
            Lr, Lx = newlab("sp"), newlab("spx")
            e("s_mov_b32 exec_lo, 0x11111111"); e("s_mov_b32 exec_hi, 0x11111111")
            e(f"s_mov_b32 {S_CNT}, 0")
            e.label(Lr)
            ga_issue()
            e(f"s_add_u32 {S_CNT}, {S_CNT}, 1"); e(f"s_cmp_gt_u32 {S_CNT}, {POLL_LIMIT}")
            e("s_waitcnt vmcnt(0)")
            e(f"s_cbranch_scc1 {Lx}")
            tagcheck(G, T3, True, T5)
            e(f"v_cmp_eq_u32 vcc, 0, v{T5}")
            e("s_bcnt1_i32_b64 s7, vcc")
            e(f"s_cmp_ge_u32 s7, {THR}"); e(f"s_cbranch_scc1 {Lx}")
            if slp_pre: e(f"s_sleep {slp_pre}")
            e(f"s_branch {Lr}")
            e.label(Lx)
            e("s_mov_b64 exec, -1")
            e(f"v_lshlrev_b32 v{XV}, 16, v{XV}")
        e("s_and_b32 s19, s19, s23")
        e("s_barrier")
        gb_issue()
        poll(gb_issue, gb_check, lambda: e("s_waitcnt vmcnt(0)"), "ga", sleep=slp_g)
        stamp(12)
        untag(range(G, G+4))
        for r in range(GF, GF+4): e(f"v_and_b32 v{r}, s19, v{r}")
        tred(G); tred(GF)
        e("s_mov_b64 exec, s[24:25]")
        e(f"ds_write_b32 v{VL}, v{G} offset:{L_REDQ}")
        e(f"ds_write_b32 v{VL}, v{GF} offset:{L_REDQ+512}")
        e("s_waitcnt lgkmcnt(0)")
        e("s_barrier")
        e(f"s_cmp_lg_u32 {S_W}, 0"); e("s_cbranch_scc1 L_fini")
        e("s_mov_b64 exec, -1")
        e(f"ds_read2_b32 {vr(G,2)}, v{VR} offset0:{L_REDQ//4} offset1:{(L_REDQ+256)//4}")
        e(f"ds_read2_b32 {vr(G+2,2)}, v{VR} offset0:{(L_REDQ+512)//4} offset1:{(L_REDQ+768)//4}")
        e("s_waitcnt lgkmcnt(0)")
        e(f"v_add_f32 v{G}, v{G}, v{G+1}"); e(f"v_add_f32 v{FV}, v{G+2}, v{G+3}")
        xlane("v_add_f32", [G, FV], [G+1, G+2], ["p16", "p32"])
        rnd2(G, FV, G+1)
        e(f"v_add_f32 v{G}, v{XV}, v{G}")
        e(f"v_cvt_pk_bf16_f32 v{G}, v{G}, v{G}"); e(f"v_and_b32 v{G}, {S_MASKH}, v{G}")
        e(f"v_add_f32 v{G}, v{G}, v{FV}")
        e(f"v_cvt_pk_bf16_f32 v{G}, v{G}, v{G}")
    else:
        Lz, Lz2 = newlab("zf"), newlab("zf2")
        e(f"s_cmp_eq_u32 {S_W}, 7"); e(f"s_cbranch_scc1 {Lz}")
        poll(gf_issue, lambda: tagcheck(GF, T3, True, T5), lambda: e("s_waitcnt vmcnt(0)"), "gf", sleep=2)
        untag(range(GF, GF+4))
        tred(GF)
        e(f"s_branch {Lz2}")
        e.label(Lz)
        e(f"v_mov_b32 v{GF}, 0")
        e.label(Lz2)
        e("s_mov_b64 exec, s[24:25]")
        e(f"ds_write_b32 v{VL}, v{GF} offset:{L_REDQ+512}")
        e("s_mov_b64 exec, -1")
        e("s_waitcnt lgkmcnt(0)")
        e("s_barrier")
        FV, XV, VR, VS = G + 8, G + 9, G + 10, G + 11
        with cond(f"s_cmp_lg_u32 {S_W}, 0", "s_cbranch_scc1"):
            e(f"v_lshlrev_b32 v{VR}, 2, v{V_LANE}")
            e(f"ds_read2_b32 {vr(G+12,2)}, v{VR} offset0:{(L_REDQ+512)//4} offset1:{(L_REDQ+512+256)//4}")
            e(f"v_and_b32 v{VS}, 12, v{V_LANE}"); e(f"v_lshlrev_b32 v{VS}, 2, v{VS}"); e(f"v_and_b32 v{T1}, 3, v{V_LANE}"); e(f"v_lshl_add_u32 v{VS}, v{T1}, 1, v{VS}")
            e(f"buffer_load_ushort v{XV}, v{VS}, {R_X}, s18 offen", tag="xq")
            e("s_waitcnt lgkmcnt(0)")
            e(f"v_add_f32 v{FV}, v{G+12}, v{G+13}")
            xlane("v_add_f32", [FV], [T1], ["p16", "p32"])
            e(f"v_cvt_pk_bf16_f32 v{FV}, v{FV}, v{FV}"); e(f"v_and_b32 v{FV}, {S_MASKH}, v{FV}")
            e("s_waitcnt vmcnt(0)")
            e(f"v_lshlrev_b32 v{XV}, 16, v{XV}")
            Lr, Lx = newlab("sp"), newlab("spx")
            e("s_mov_b32 exec_lo, 0x11111111"); e("s_mov_b32 exec_hi, 0x11111111")
            e(f"s_mov_b32 {S_CNT}, 0")
            e.label(Lr)
            ga_issue()
            e(f"s_add_u32 {S_CNT}, {S_CNT}, 1"); e(f"s_cmp_gt_u32 {S_CNT}, {POLL_LIMIT}")
            e("s_waitcnt vmcnt(0)")
            e(f"s_cbranch_scc1 {Lx}")
            tagcheck(G, T3, True, T5)
            e(f"v_cmp_eq_u32 vcc, 0, v{T5}")
            e("s_bcnt1_i32_b64 s7, vcc")
            e(f"s_cmp_ge_u32 s7, {THR}"); e(f"s_cbranch_scc1 {Lx}")
            if slp_pre: e(f"s_sleep {slp_pre}")
            e(f"s_branch {Lr}")
            e.label(Lx)
            e("s_mov_b64 exec, -1")
        e("s_barrier")
        if dly_g: e(f"s_sleep {dly_g}")
        ga_issue()
        poll(ga_issue, lambda: tagcheck(G, T3, True, T5), lambda: e("s_waitcnt vmcnt(0)"), "ga", sleep=slp_g)
        stamp(12)
        untag(range(G, G+4))
        tred(G)
        e("s_mov_b64 exec, s[24:25]")
        e(f"ds_write_b32 v{VL}, v{G} offset:{L_REDQ}")
        e("s_waitcnt lgkmcnt(0)")
        e("s_barrier")
        e(f"s_cmp_lg_u32 {S_W}, 0"); e("s_cbranch_scc1 L_fini")
        e("s_mov_b64 exec, -1")
        e(f"ds_read2_b32 {vr(G,2)}, v{VR} offset0:{L_REDQ//4} offset1:{(L_REDQ+256)//4}")
        e("s_waitcnt lgkmcnt(0)")
        e(f"v_add_f32 v{G}, v{G}, v{G+1}")
        xlane("v_add_f32", [G], [G+1], ["p16", "p32"])
        e(f"v_cvt_pk_bf16_f32 v{G}, v{G}, v{G}"); e(f"v_and_b32 v{G}, {S_MASKH}, v{G}")
        e(f"v_add_f32 v{G}, v{XV}, v{G}")
        e(f"v_cvt_pk_bf16_f32 v{G}, v{G}, v{G}"); e(f"v_and_b32 v{G}, {S_MASKH}, v{G}")
        e(f"v_add_f32 v{G}, v{G}, v{FV}")
        e(f"v_cvt_pk_bf16_f32 v{G}, v{G}, v{G}")
    e("s_mov_b64 exec, 0xffff")
    e(f"buffer_store_short v{G}, v{VS}, {R_OUT}, s18 offen")
    e(f"s_cmp_lg_u32 {S_IDX}, 0"); e("s_cbranch_scc1 L_fini")
    e("s_mov_b64 exec, 1")
    e(f"buffer_store_dword v{V_T}, off, {R_WS}, 0")
    e.cond_depth -= 1
    e.label("L_fini")
    if dbgt:
        e("s_memrealtime s[72:73]"); e("s_waitcnt lgkmcnt(0)")
        e("s_cmp_lg_u32 s3, 0"); e("s_cbranch_scc1 L_dbg1")
        e("s_atomic_umax s72, s[34:35], 4"); e("s_waitcnt lgkmcnt(0)")
        e.label("L_dbg1")
    if dbgt:
        e("s_cmp_lg_u32 s3, 0"); e("s_cbranch_scc1 L_end")
        e("s_atomic_umax s16, s[34:35], 12")
        e("s_not_b32 s72, s90"); e("s_atomic_umax s72, s[34:35], 0"); e("s_atomic_umax s90, s[34:35], 8"); e("s_waitcnt lgkmcnt(0)")
    if stamps:
        e("s_mov_b64 exec, -1")
        stamp(13)
        e("s_mov_b64 exec, 0xffff")
        e(f"v_lshlrev_b32 v{T0}, 2, v{V_LANE}")
        e("s_lshl_b32 s7, s2, 3"); e(f"s_add_u32 s7, s7, {S_W}"); e("s_lshl_b32 s7, s7, 6"); e(f"s_add_u32 s7, s7, {WS_SIZE}")
        e("s_mov_b32 s58, 0x1000000")
        e(f"buffer_store_dword v0, v{T0}, {R_WS}, s7 offen")
    e.label("L_end")
    e("s_endpgm")

    out = HEADER
    out += f"; @launch grid=(256,1,1) block=(512,1,1) lds={LDS_BYTES}\n"
    out += DOC + '.amdgcn_target "amdgcn-amd-amdhsa--gfx950"\n.text\n'
    out += f".globl {KNAME}\n.p2align 8\n.type {KNAME},@function\n{KNAME}:\n"
    out += e.text()
    out += f""".section .rodata,"a"
.p2align 6
.amdhsa_kernel {KNAME}
  .amdhsa_next_free_vgpr 256
  .amdhsa_next_free_sgpr 102
  .amdhsa_accum_offset 256
  .amdhsa_group_segment_fixed_size 0
  .amdhsa_kernarg_size 88
  .amdhsa_user_sgpr_count 2
  .amdhsa_user_sgpr_kernarg_segment_ptr 1
  .amdhsa_system_sgpr_workgroup_id_x 1
.end_amdhsa_kernel
"""
    return out

if __name__ == "__main__":
    import argparse
    ap = argparse.ArgumentParser()
    ap.add_argument("-o", default="parallel_sum__gqa_block_cached__dense_activation_silu__decode.s")
    ap.add_argument("--inf", type=int, default=5)
    ap.add_argument("--stamps", action="store_true")
    ap.add_argument("--kw", default="")
    a = ap.parse_args()
    kw = eval("dict(%s)" % a.kw)
    open(a.o, "w").write(gen(INF=a.inf, stamps=a.stamps, **kw))
```

```python
import sys
from emit import Emit
KNAME = "parallel_sum__gqa_block_cached__dense_activation_silu__decode_kernel"
HEADER = open("parallel_sum__gqa_block_cached__dense_activation_silu__decode.s.ref").read().split("; Override launch geometry")[0]

DOC = "; ---------------------------------------------------------------------------------------------\n; ---------------------------------------------------------------------------------------------\n"
WS_QP = 0x1000
QP_B = 7680 * 4
QP_K = 2 * QP_B
WS_ML = 0x40000
WS_CT = 0x50000
WS_OP = 0x80000
WS_AP = 0x200000
WS_SIZE = 0x400000
L_REDQ = 0
L_REDH = 4096
L_Q = 8192
L_MX = 10240
L_OL = 10752
L_FA = 11008; L_FH = 11040; L_FQ = 11072
L_S2 = 0
L_S2M = 1024
L_ORED = 12288
LDS_BYTES = L_ORED + 8 * 4096
V_LANE, V_K, V_V, V_UP, V_DN, V_T, V_AL, V_ML, V_L = 1, 2, 3, 4, 5, 6, 7, 8, 9
T0, T1, T2, T3, T4, T5 = 10, 11, 12, 13, 14, 15
ACC = 16
Q0, Q1 = 48, 52
P = 56
AD = 60
SC = 64
def SLOT(k): return 96 + 32 * k
S_W, S_TYPE, S_IDX, S_T = "s3", "s4", "s5", "s6"
S_LO, S_HI = "s8", "s9"
S_TI = ["s10", "s11", "s12", "s13"]
S_G2 = "s14"
S_CNT = "s15"
R_K, R_V, R_UP, R_DN, R_WS, R_X, R_OUT, R_W1 = "s[40:43]", "s[44:47]", "s[48:51]", "s[52:55]", "s[56:59]", "s[60:63]", "s[64:67]", "s[28:31]"
S_KV, S_UPQ, S_UPH, S_DNB = "s68", "s69", "s70", "s71"
S_LOG2E, S_SCALE, S_MASKH, S_HASF, S_HASH, S_KS = "s82", "s83", "s84", "s85", "s86", "s87"
S_N8 = "s[88:89]"
S_CBH = "s39"
POLL_LIMIT = 1 << 17
def vr(a, n=4): return f"v[{a}:{a+n-1}]"

def gen(INF=5, stamps=False, NS=5, HF=8, pf=False, prio=True, slp_o=0, slp_g=0, slp_pre=2, prepoll=True, late_ffn=False, LA=0, LF_=0, pbar=False, dbgt=False, dly_o=8, dly_g=0, pre1=True, upfirst=False, lite=False, early=1, early_k=4, pmap=0, EA=8, xmode=0, THR=6, THO=6, tlb=True, tlb0=0, EF=True, fx=4, bar_early=True, t4early=False, LC=5, LS=2, PC=2, PB=64, PS_=0):
    e = Emit()
    lab = [0]
    def newlab(p):
        lab[0] += 1
        return f"L_{p}_{lab[0]}"
    def stamp(k):
        if not stamps: return
        if lite and k not in (7, 13): return
        e("s_memrealtime s[90:91]"); e("s_waitcnt lgkmcnt(0)"); e(f"v_writelane_b32 v0, s90, {k}")
    def throttle():
        if INF: e(f"s_waitcnt vmcnt({INF-1})")
    def setprio(n):
        if prio: e(f"s_setprio {n}")
    def dpp(op, d, a, b, ctl):
        e(f"{op}_dpp v{d}, v{a}, v{b} {ctl} row_mask:0xf bank_mask:0xf")
    def xlane(op, regs, tmps, steps):
        for st in steps:
            if st[0] == "r":
                for r in regs: dpp(op, r, r, r, f"row_ror:{st[1:]}")
            else:
                for r, t in zip(regs, tmps): e(f"v_mov_b32 v{t}, v{r}")
                for r, t in zip(regs, tmps): e(f"v_permlane{st[1:]}_swap_b32 v{r}, v{t}")
                for r, t in zip(regs, tmps): e(f"{op} v{r}, v{r}, v{t}")
    def tagcheck(g, tmp, first, accum):
        e(f"v_perm_b32 v{tmp}, v{g+1}, v{g}, {S_G2}")
        e(f"v_perm_b32 v{tmp+1}, v{g+3}, v{g+2}, {S_G2}")
        e(f"v_perm_b32 v{tmp}, v{tmp+1}, v{tmp}, {S_LO}")
        if first: e(f"v_xor_b32 v{accum}, v{tmp}, v{V_T}")
        else:
            e(f"v_xor_b32 v{tmp}, v{tmp}, v{V_T}")
            e(f"v_or_b32 v{accum}, v{accum}, v{tmp}")
    def untag(regs):
        for r in regs: e(f"v_and_b32 v{r}, s23, v{r}")
    def tagput(dst, srcs):
        for i, s in enumerate(srcs): e(f"v_perm_b32 v{dst+i}, v{s}, v{V_T}, {S_TI[i]}")
    def rnd2(a, b_, tmp):
        e(f"v_cvt_pk_bf16_f32 v{tmp}, v{a}, v{b_}")
        e(f"v_lshlrev_b32 v{a}, 16, v{tmp}")
        e(f"v_and_b32 v{b_}, {S_MASKH}, v{tmp}")
    def poll(issue, check0, waitfirst, name, sleep=0):
        Lr, Ld, Lx = newlab(name + "_retry"), newlab(name + "_done"), newlab(name + "_exit")
        def check():
            check0()
            dpp("v_or_b32", T5, T5, T5, "quad_perm:[1,0,3,2]")
            dpp("v_or_b32", T5, T5, T5, "quad_perm:[2,3,0,1]")
        waitfirst()
        check()
        e(f"v_cmp_ne_u32 vcc, 0, v{T5}")
        e(f"s_cbranch_vccz {Ld}")
        e(f"s_mov_b32 {S_CNT}, 0")
        e("s_mov_b64 s[80:81], exec")
        e.label(Lr)
        e("s_mov_b64 exec, vcc")
        if sleep: e(f"s_sleep {sleep}")
        e("s_nop 4")
        e.cond_depth += 1
        issue()
        e.cond_depth -= 1
        e(f"s_add_u32 {S_CNT}, {S_CNT}, 1")
        e(f"s_cmp_gt_u32 {S_CNT}, {POLL_LIMIT}")
        e("s_waitcnt vmcnt(0)")
        e(f"s_cbranch_scc1 {Lx}")
        check()
        e(f"v_cmp_ne_u32 vcc, 0, v{T5}")
        e(f"s_cbranch_vccnz {Lr}")
        e.label(Lx)
        e("s_mov_b64 exec, s[80:81]")
        e.label(Ld)
    def setflag(base, idx=None):
        if idx is None:
            e(f"s_lshl_b32 s7, {S_W}, 2"); e(f"v_mov_b32 v{T1}, s7")
        else: e(f"v_mov_b32 v{T1}, {4*idx}")
        e("s_waitcnt lgkmcnt(0)")
        e("s_mov_b64 exec, 1")
        e(f"v_mov_b32 v{T2}, 1")
        e(f"ds_write_b32 v{T1}, v{T2} offset:{base}")
        e("s_mov_b64 exec, -1")
    def waitflags(base, n, name):
        Lr, Lx = newlab(name), newlab(name + "x")
        e(f"v_and_b32 v{T1}, {n-1}, v{V_LANE}"); e(f"v_lshlrev_b32 v{T1}, 2, v{T1}")
        e(f"s_mov_b32 {S_CNT}, 0")
        e.label(Lr)
        e(f"ds_read_b32 v{T2}, v{T1} offset:{base}")
        e(f"s_add_u32 {S_CNT}, {S_CNT}, 1"); e(f"s_cmp_gt_u32 {S_CNT}, {POLL_LIMIT*4}")
        e("s_waitcnt lgkmcnt(0)")
        e(f"s_cbranch_scc1 {Lx}")
        e(f"v_cmp_ne_u32 vcc, 1, v{T2}")
        e(f"s_cbranch_vccnz {Lr}")
        e.label(Lx)
    def srd(base, lo, hi, n):
        e(f"s_mov_b32 s{base}, {lo}"); e(f"s_mov_b32 s{base+1}, {hi}"); e(f"s_mov_b32 s{base+2}, {n}"); e(f"s_mov_b32 s{base+3}, 0x00020000")
    class cond:
        def __init__(self, cmp, br):
            self.L = newlab("skip"); self.cmp = cmp if isinstance(cmp, list) else [cmp]; self.br = br
        def __enter__(self):
            for c in self.cmp:
                e(c); e(f"{self.br} {self.L}")
            e.cond_depth += 1
        def __exit__(self, *a):
            e.cond_depth -= 1; e.label(self.L)

    if stamps or dbgt: e("s_memrealtime s[90:91]")
    e("s_cmp_ge_u32 s2, 256")
    e("s_cbranch_scc1 L_end")
    e("s_load_dwordx2 s[48:49], s[0:1], 24")
    e("s_load_dwordx2 s[60:61], s[0:1], 0")
    e("s_load_dwordx4 s[16:19], s[0:1], 8")
    e("s_load_dwordx2 s[28:29], s[0:1], 48")
    setprio(3)
    e(f"v_lshrrev_b32 v{T0}, 6, v0")
    e(f"v_and_b32 v{V_LANE}, 63, v0")
    e(f"v_readfirstlane_b32 {S_W}, v{T0}")
    if stamps: e("v_mov_b32 v0, 0")
    e(f"v_lshrrev_b32 v{T0}, 3, v{V_LANE}"); e(f"v_and_b32 v{T1}, 7, v{V_LANE}"); e(f"v_lshlrev_b32 v{T1}, 4, v{T1}")
    e(f"v_lshl_add_u32 v{V_UP}, v{T0}, 15, v{T1}")
    e("s_and_b32 s7, s2, 3"); e("s_lshl_b32 s72, s7, 8"); e(f"s_lshl_b32 s73, {S_W}, 5"); e("s_add_u32 s72, s72, s73")
    e("s_lshr_b32 s73, s2, 2")
    e(f"s_lshl_b32 {S_UPQ}, s72, 13"); e("s_lshl_b32 s74, s73, 7"); e(f"s_add_u32 {S_UPQ}, {S_UPQ}, s74")
    e(f"s_mov_b32 s50, {8<<20}"); e("s_mov_b32 s51, 0x00020000"); e("s_movk_i32 s62, 4096"); e("s_mov_b32 s63, s51")
    e(f"v_lshlrev_b32 v{T3}, 5, v{V_LANE}")
    e("s_waitcnt lgkmcnt(0)")
    if stamps:
        e("v_writelane_b32 v0, s90, 15"); stamp(14)
    XF, XR = SC, SC + 16
    UPS = SLOT(4)
    def xl():
        for b in range(2):
            for hf in range(2):
                e(f"buffer_load_dwordx4 {vr(XF+8*b+4*hf)}, v{T3}, {R_X}, 0 offen offset:{b*2048+hf*16}", tag="xf")
    def ul():
        for i in range(4):
            e(f"buffer_load_dwordx4 {vr(UPS+4*i)}, v{V_UP}, {R_UP}, {S_UPQ} offen nt", tag="upq")
            if i < 3: e(f"s_add_u32 {S_UPQ}, {S_UPQ}, 8192")
    if upfirst: ul(); xl()
    else: xl(); ul()
    e(f"v_lshlrev_b32 v{T4}, 2, v{V_LANE}"); e(f"v_mov_b32 v{T5}, 0")
    e(f"ds_write_b32 v{T4}, v{T5} offset:{L_FA}")
    if bar_early:
        e("s_waitcnt lgkmcnt(0)")
        e("s_barrier")
    if pf:
        e("s_getpc_b64 s[78:79]")
        e.raw("L_pc:")
        e("s_bfe_u32 s76, s2, 0x20003"); e("s_lshl_b32 s76, s76, 3"); e(f"s_add_u32 s76, s76, {S_W}"); e("s_lshl_b32 s76, s76, 9")
        e(f"v_lshlrev_b32 v{T4}, 3, v{V_LANE}"); e(f"v_add_u32 v{T4}, s76, v{T4}")
        e(f"v_min_u32 v{T4}, L_end-L_pc-8, v{T4}")
        e(f"global_load_dwordx2 {vr(SLOT(1),2)}, v{T4}, s[78:79]", tag="pf")
    e(f"s_lshr_b32 {S_TYPE}, s2, 3"); e(f"s_xor_b32 {S_TYPE}, {S_TYPE}, s2"); e(f"s_and_b32 {S_TYPE}, {S_TYPE}, 1")
    e("s_load_dwordx2 s[56:57], s[0:1], 80")
    e(f"s_mul_i32 s76, {S_TYPE}, 24"); e("s_add_u32 s76, s76, 32")
    e("s_load_dwordx2 s[52:53], s[0:1], s76")
    e("s_load_dwordx2 s[64:65], s[0:1], 64")
    if dbgt: e("s_load_dwordx2 s[34:35], s[0:1], 72")
    e(f"v_lshlrev_b32 v{T2}, 3, v{T0}"); e("s_lshl_b32 s74, s72, 1"); e(f"v_add_u32 v{T2}, s74, v{T2}")
    for b in range(2):
        e(f"buffer_load_dwordx2 {vr(XR+2*b,2)}, v{T2}, {R_X}, 0 offen offset:{b*2048}", tag="xr")
    e(f"v_mul_u32_u24 v{V_DN}, {4*7168}, v{T0}"); e(f"v_add_u32 v{V_DN}, v{V_DN}, v{T1}")
    e("s_lshl_b32 s7, s7, 1"); e("s_add_u32 s7, s7, 1"); e("s_and_b32 s74, s73, 7")
    e("s_cmp_lg_u32 s74, s7"); e(f"s_cselect_b32 {S_HASH}, 1, 0")
    e("s_lshr_b32 s75, s73, 3"); e("s_mul_i32 s75, s75, 7"); e("s_add_u32 s75, s75, s74")
    e("s_cmp_gt_u32 s74, s7"); e(f"s_subb_u32 {S_CBH}, s75, 0")
    e(f"s_mul_i32 {S_UPH}, s72, 7168"); e(f"s_lshl_b32 s74, {S_CBH}, 7"); e(f"s_add_u32 {S_UPH}, {S_UPH}, s74")
    e(f"s_mul_i32 s30, {S_HASH}, {7<<20}"); e("s_mov_b32 s31, 0x00020000")
    def uh():
        for i in range(4):
            e(f"buffer_load_dwordx4 {vr(UPS+16+4*i)}, v{V_DN}, {R_W1}, {S_UPH} offen nt", tag="uph")
            if i < 3: e(f"s_add_u32 {S_UPH}, {S_UPH}, 7168")
    if early >= 1: uh()
    srd(40, "s16", "s17", 64 << 20)
    srd(44, "s18", "s19", 64 << 20)
    e(f"v_lshlrev_b32 v{V_V}, 4, v{V_LANE}")
    e(f"v_bfe_u32 v{T0}, v{V_LANE}, 1, 1"); e(f"v_bfe_u32 v{T1}, v{V_LANE}, 2, 2")
    e(f"v_lshl_add_u32 v{T0}, v{T0}, 2, v{T1}"); e(f"v_lshlrev_b32 v{V_K}, 8, v{T0}")
    e(f"v_lshrrev_b32 v{T1}, 4, v{V_LANE}"); e(f"v_lshl_add_u32 v{V_K}, v{T1}, 5, v{V_K}")
    e(f"v_and_b32 v{T1}, 1, v{V_LANE}"); e(f"v_lshl_add_u32 v{V_K}, v{T1}, 4, v{V_K}")
    e(f"s_lshl_b32 {S_KV}, s2, 18"); e(f"s_lshl_b32 s7, {S_W}, 12"); e(f"s_add_u32 {S_KV}, {S_KV}, s7")
    for base, n in ((56, WS_SIZE), (64, 4096)):
        e(f"s_mov_b32 s{base+2}, {n}"); e(f"s_mov_b32 s{base+3}, 0x00020000")
    e("s_waitcnt lgkmcnt(0)")
    e("s_load_dword s6, s[56:57], 0")
    if not bar_early: e("s_barrier")
    for i in range(early_k):
        e(f"buffer_load_dwordx4 {vr(SLOT(0)+4*i)}, v{V_K}, {R_K}, {S_KV} offen offset:{(i>>1)*2048 + (i&1)*128} nt", tag="k0")
    e(f"s_mov_b32 {S_MASKH}, 0xffff0000")
    e(f"s_lshr_b32 {S_IDX}, s2, 1"); e(f"s_and_b32 s7, {S_IDX}, 7")
    e(f"s_sub_u32 s54, 8, {S_TYPE}"); e("s_lshl_b32 s54, s54, 20")
    e("s_mov_b32 s55, 0x00020000")
    e("s_cmp_lg_u32 s7, 7"); e(f"s_cselect_b32 {S_HASF}, {S_TYPE}, 0")
    e(f"s_lshr_b32 s7, {S_IDX}, 3"); e(f"s_mul_i32 s7, s7, {S_TYPE}"); e(f"s_sub_u32 {S_KS}, {S_IDX}, s7")
    e(f"s_cmp_eq_u32 {S_TYPE}, {S_HASF}")
    e("s_cselect_b32 s54, s54, 0")
    e(f"s_mov_b32 {S_LO}, 0x05040100"); e(f"s_mov_b32 {S_HI}, 0x07060302")
    for i in range(4): e(f"s_mov_b32 {S_TI[i]}, 0x{0x07060500 + i:08x}")
    e(f"s_mov_b32 {S_G2}, 0x0c0c0400"); e("s_mov_b32 s23, 0xffffff00")
    e(f"s_mov_b32 {S_LOG2E}, 0x3fb8aa3b"); e(f"s_mov_b32 {S_SCALE}, 0x3db504f3")
    e("s_mov_b32 s88, 0x00ff00ff"); e("s_mov_b32 s89, 0x00ff00ff")
    e(f"s_lshl_b32 {S_DNB}, {S_KS}, 16"); e(f"s_lshl_b32 s7, {S_W}, 8"); e(f"s_add_u32 {S_DNB}, {S_DNB}, s7")
    if tlb0:
        with cond(f"s_cmp_lg_u32 {S_W}, {tlb0 - 1}", "s_cbranch_scc1"):
            e("s_mov_b64 exec, 1")
            e(f"buffer_load_dword v{P}, off, {R_V}, {S_KV} nt", tag="tl")
            e(f"buffer_load_dword v{P+1}, off, {R_DN}, {S_DNB} nt", tag="tl")
            e(f"s_mov_b32 s7, {WS_CT + 0x8000}")
            e(f"buffer_load_dword v{P+2}, off, {R_WS}, s7", tag="tl")
            e(f"s_mov_b32 s7, {WS_SIZE - 256}")
            e(f"buffer_load_dword v{P+3}, off, {R_WS}, s7", tag="tl")
            e(f"buffer_load_dword v{AD}, off, {R_OUT}, 0", tag="tl")
            e("s_mov_b64 exec, -1")

    def kload(u, slot, i, thr=True):
        beta, t = i >> 1, i & 1
        if i % 4 == 0: e(f"s_add_u32 s74, {S_KV}, {(2*u + (beta >> 1)) * 32768}")
        if thr: throttle()
        e(f"buffer_load_dwordx4 {vr(SLOT(slot)+4*i)}, v{V_K}, {R_K}, s74 offen offset:{(beta&1)*2048 + t*128} nt", tag=f"k{u}")
    def vload(u, slot, j, thr=True):
        if j % 4 == 0: e(f"s_add_u32 s75, {S_KV}, {(2*u + (j >> 2)) * 32768}")
        if thr: throttle()
        e(f"buffer_load_dwordx4 {vr(SLOT(slot)+4*j)}, v{V_V}, {R_V}, s75 offen offset:{(j&3)*1024} nt", tag=f"v{u}")
    def issueK(u, slot, lo=0, hi=8):
        for i in range(lo, hi): kload(u, slot, i)
    def issueV(u, slot, lo=0, hi=8):
        for j in range(lo, hi): vload(u, slot, j)
    def issueDN(slot, lo=0, hi=8):
        for jj in range(lo, hi):
            a_on, f_on = jj < 8 - LA - EA, jj < 8 - LF_
            e(f"s_add_u32 s76, {S_DNB}, {(8*(jj&3) + (jj>>2))*2048}")
            if not a_on and not f_on: e("s_mov_b32 s76, 0x40000000")
            elif a_on != f_on:
                e(f"s_cmp_eq_u32 {S_TYPE}, {0 if a_on else 1}"); e("s_cselect_b32 s76, s76, 0x40000000")
            throttle()
            e(f"buffer_load_dwordx4 {vr(SLOT(slot)+4*jj)}, v{V_DN}, {R_DN}, s76 offen nt", tag="dn")

    stamp(0)
    U = SLOT(3)
    e.wait_vm("xf")
    if early < 1: uh()
    pend = [("k", i) for i in range(early_k, 8)] + [("v", j) for j in range(8)]
    def more(n):
        for _ in range(n):
            if not pend: return
            t, i = pend.pop(0)
            if t == "k":
                if i % 4 and i == early_k: e(f"s_mov_b32 s74, {S_KV}")
                kload(0, 0, i)
            else: vload(0, 1, i)
    for b in range(2):
        for d in range(8):
            e(f"v_lshlrev_b32 v{U+16*b+2*d}, 16, v{XF+8*b+d}")
            e(f"v_and_b32 v{U+16*b+2*d+1}, {S_MASKH}, v{XF+8*b+d}")
    SUM = [T0, T1]; TMP = [T2, T3]; VAR = [T4, T5]
    for b in range(2):
        e(f"v_pk_add_f32 {vr(XF+4*b,2)}, {vr(U+16*b,2)}, {vr(U+16*b+2,2)}")
        e(f"v_pk_add_f32 {vr(XF+4*b+2,2)}, {vr(U+16*b+4,2)}, {vr(U+16*b+6,2)}")
    for i in range(4, 8):
        for b in range(2):
            e(f"v_pk_add_f32 {vr(XF+4*b+2*(i&1),2)}, {vr(XF+4*b+2*(i&1),2)}, {vr(U+16*b+2*i,2)}")
    for b in range(2): e(f"v_pk_add_f32 {vr(XF+4*b,2)}, {vr(XF+4*b,2)}, {vr(XF+4*b+2,2)}")
    for b in range(2): e(f"v_add_f32 v{SUM[b]}, v{XF+4*b}, v{XF+4*b+1}")
    xlane("v_add_f32", SUM, TMP, ["r8", "r4", "r2", "r1", "p16", "p32"])
    for b in range(2): e(f"v_mul_f32 v{SUM[b]}, 0x3a800000, v{SUM[b]}")
    more(2)
    for i in range(8):
        for b in range(2):
            e(f"v_pk_add_f32 {vr(U+16*b+2*i,2)}, {vr(U+16*b+2*i,2)}, {vr(T0,2)} op_sel:[0,{b}] op_sel_hi:[1,{b}] neg_lo:[0,1] neg_hi:[0,1]")
    for b in range(2): e(f"v_pk_mul_f32 {vr(XF+4*b,2)}, {vr(U+16*b,2)}, {vr(U+16*b,2)}")
    for i in range(1, 8):
        for b in range(2): e(f"v_pk_fma_f32 {vr(XF+4*b,2)}, {vr(U+16*b+2*i,2)}, {vr(U+16*b+2*i,2)}, {vr(XF+4*b,2)}")
    for b in range(2): e(f"v_add_f32 v{VAR[b]}, v{XF+4*b}, v{XF+4*b+1}")
    xlane("v_add_f32", VAR, TMP, ["r8", "r4", "r2", "r1", "p16", "p32"])
    more(2)
    for b in range(2): e(f"v_mul_f32 v{VAR[b]}, 0x3a800000, v{VAR[b]}")
    rnd2(SUM[0], SUM[1], T2)
    rnd2(VAR[0], VAR[1], T3)
    for b in range(2): e(f"v_add_f32 v{VAR[b]}, 0x3727c5ac, v{VAR[b]}")
    rnd2(VAR[0], VAR[1], T3)
    for b in range(2): e(f"v_sqrt_f32 v{VAR[b]}, v{VAR[b]}")
    rnd2(VAR[0], VAR[1], T3)
    for b in range(2): e(f"v_rcp_f32 v{VAR[b]}, v{VAR[b]}")
    XN = ACC + 16
    e.wait_vm("xr")
    for b in range(2):
        for d in range(2):
            e(f"v_lshlrev_b32 v{XN+4*b+2*d}, 16, v{XR+2*b+d}")
            e(f"v_and_b32 v{XN+4*b+2*d+1}, {S_MASKH}, v{XR+2*b+d}")
    for b in range(2):
        for i in range(4): e(f"v_sub_f32 v{XN+4*b+i}, v{XN+4*b+i}, v{SUM[b]}")
    for d in range(4): rnd2(XN+2*d, XN+2*d+1, U+d)
    for b in range(2):
        for i in range(4): e(f"v_mul_f32 v{XN+4*b+i}, v{XN+4*b+i}, v{VAR[b]}")
    for d in range(4): rnd2(XN+2*d, XN+2*d+1, U+d)
    e("s_waitcnt lgkmcnt(0)")
    e(f"s_mul_i32 {S_T}, {S_T}, 1664525"); e(f"s_add_u32 {S_T}, {S_T}, 1013904223")
    e(f"v_mov_b32 v{V_T}, {S_T}")
    stamp(1)
    e(f"v_lshrrev_b32 v{T0}, 5, v{V_LANE}"); e(f"v_lshlrev_b32 v{T0}, 8, v{T0}")
    e(f"v_and_b32 v{T1}, 7, v{V_LANE}"); e(f"v_lshl_add_u32 v{T0}, v{T1}, 5, v{T0}")
    e(f"v_and_b32 v{T1}, 16, v{V_LANE}"); e(f"v_add_u32 v{T0}, v{T0}, v{T1}")
    e(f"s_lshl_b32 s7, {S_W}, 9"); e(f"v_add_u32 v{V_AL}, s7, v{T0}")
    def up_compute(src, tag, lbase, fbase, between):
        for i in range(4):
            e.wait_vm_idx(tag, i)
            for d in range(4):
                e(f"v_lshlrev_b32 v{U+2*d}, 16, v{src+4*i+d}")
                e(f"v_and_b32 v{U+2*d+1}, {S_MASKH}, v{src+4*i+d}")
            for b in range(2):
                for c in range(0, 8, 2):
                    xr = XN + 4*b + i
                    base = xr & ~1; sel = xr & 1
                    if i == 0: e(f"v_pk_mul_f32 {vr(ACC+8*b+c,2)}, {vr(U+c,2)}, {vr(base,2)} op_sel:[0,{sel}] op_sel_hi:[1,{sel}]")
                    else: e(f"v_pk_fma_f32 {vr(ACC+8*b+c,2)}, {vr(U+c,2)}, {vr(base,2)}, {vr(ACC+8*b+c,2)} op_sel:[0,{sel},0] op_sel_hi:[1,{sel},1]")
            between(i)
        for c in range(8): e(f"v_permlane32_swap_b32 v{ACC+c}, v{ACC+8+c}")
        for c in range(8): e(f"v_add_f32 v{ACC+c}, v{ACC+c}, v{ACC+8+c}")
        for c in range(4): e(f"v_permlane16_swap_b32 v{ACC+c}, v{ACC+4+c}")
        for c in range(4): e(f"v_add_f32 v{ACC+c}, v{ACC+c}, v{ACC+4+c}")
        for c in range(4): dpp("v_add_f32", ACC+c, ACC+c, ACC+c, "row_ror:8")
        e(f"ds_write_b128 v{V_AL}, {vr(ACC)} offset:{lbase}")
        setflag(fbase)
    def up_publish(lbase, fbase, colreg_expr, name):
        waitflags(fbase, 8, name)
        e("s_mov_b32 exec_hi, 0")
        for w in range(8): e(f"ds_read_b128 {vr(U+4*w)}, v{V_V} offset:{lbase + w*512}")
        e(f"v_lshrrev_b32 v{T0}, 4, v{V_LANE}"); e(f"v_mul_u32_u24 v{T0}, {QP_B}, v{T0}")
        e(f"v_and_b32 v{T1}, 15, v{V_LANE}"); e(f"v_lshl_add_u32 v{T0}, v{T1}, 4, v{T0}")
        e("s_and_b32 s7, s2, 3"); e(f"s_mul_i32 s7, s7, {QP_K}")
        colreg_expr()
        e("s_add_u32 s7, s7, s72")
        e("s_waitcnt lgkmcnt(0)")
        for w in range(1, 8):
            e(f"v_pk_add_f32 {vr(U,2)}, {vr(U,2)}, {vr(U+4*w,2)}"); e(f"v_pk_add_f32 {vr(U+2,2)}, {vr(U+2,2)}, {vr(U+4*w+2,2)}")
        for c in range(4): e(f"v_add_u32 v{U+c}, 0x80, v{U+c}")
        tagput(U+4, [U, U+1, U+2, U+3])
        e(f"buffer_store_dwordx4 {vr(U+4)}, v{T0}, {R_WS}, s7 offen sc1", tag="pub")
        e("s_mov_b64 exec, -1")
    up_compute(UPS, "upq", L_REDQ, L_FA, lambda i: None)
    stamp(2)
    with cond(f"s_cmp_lg_u32 {S_W}, 7", "s_cbranch_scc1"):
        up_publish(L_REDQ, L_FA, lambda: (e("s_lshr_b32 s72, s2, 2"), e("s_lshl_b32 s72, s72, 8"), e(f"s_add_u32 s72, s72, {WS_QP}")), "wfa")
    stamp(3)
    setprio(2)
    e(f"s_lshr_b32 s7, s2, {LC}"); e(f"s_lshl_b32 s7, s7, {LS}"); e(f"s_and_b32 s27, {S_W}, {(1<<LS)-1}"); e("s_add_u32 s7, s7, s27")
    e("s_lshl_b32 s7, s7, 8"); e(f"s_add_u32 s7, s7, {WS_CT}")
    e("s_add_u32 s92, s56, s7"); e("s_addc_u32 s93, s57, 0")
    e(f"s_and_b32 s72, s2, {(1<<LC)-1}"); e(f"s_lshr_b32 s73, {S_W}, {LS}"); e("s_or_b32 s72, s72, s73")
    with cond("s_cmp_lg_u32 s72, 0", "s_cbranch_scc1"):
        e("s_mov_b64 exec, 1")
        e(f"v_mov_b32 v{U+8}, 0"); e(f"v_mov_b32 v{U+9}, {S_T}")
        e(f"buffer_store_dwordx2 {vr(U+8,2)}, off, {R_WS}, s7 sc1", tag="ct")
        e("s_mov_b64 exec, -1")
    up_compute(UPS+16, "uph", L_REDH, L_FH, lambda i: more(1))
    e(f"v_lshrrev_b32 v{T0}, 4, v{V_LANE}"); e(f"v_lshlrev_b32 v{V_DN}, 12, v{T0}")
    e(f"v_and_b32 v{T1}, 15, v{V_LANE}"); e(f"v_lshl_add_u32 v{V_DN}, v{T1}, 4, v{V_DN}")
    more(16)
    with cond([f"s_cmp_lg_u32 {S_W}, 6", f"s_cmp_eq_u32 {S_HASH}, 0"], "s_cbranch_scc1"):
        up_publish(L_REDH, L_FH, lambda: (e(f"s_lshl_b32 s72, {S_CBH}, 8"), e(f"s_add_u32 s72, s72, {WS_QP + 4096*4}")), "wfh")
    issueK(1, 2)
    KB, VB = (SLOT(4), SLOT(4) + 16) if t4early else (SLOT(0), SLOT(0) + 16)
    def tileK(sreg, tag, sreg2=None, thr=False):
        for i in range(4):
            if thr: throttle()
            e(f"buffer_load_dwordx4 {vr(KB+4*i)}, v{V_K}, {R_K}, {sreg if (i < 2 or not sreg2) else sreg2} offen offset:{(i>>1)*2048 + (i&1)*128} nt", tag=tag)
    def tileV(sreg, tag, sreg2=None, thr=False):
        for j in range(4):
            if thr: throttle()
            e(f"buffer_load_dwordx4 {vr(VB+4*j)}, v{V_V}, {R_V}, {sreg if (j < 2 or not sreg2) else sreg2} offen offset:{j*1024} nt", tag=tag)
    if EF and t4early:
        issueV(1, 3)
        setprio(1)
        e(f"s_add_u32 s74, {S_KV}, {4*32768}")
        tileK("s74", "k4", thr=True)
    elif EF:
        issueV(1, 3, 0, 4)
        setprio(1)
    else:
        issueV(1, 3)
        setprio(1)
        issueDN(4, 0, 4)
    QG = SC
    e("s_lshr_b32 s77, s2, 7"); e(f"s_mul_i32 s77, s77, {QP_B}")
    e("s_lshr_b32 s7, s2, 5"); e("s_and_b32 s7, s7, 3"); e("s_lshl_b32 s7, s7, 12"); e("s_add_u32 s77, s77, s7")
    e(f"s_lshl_b32 s7, {S_W}, 10"); e("s_add_u32 s77, s77, s7"); e(f"s_add_u32 s77, s77, {WS_QP}")
    e(f"s_add_u32 s78, s77, {2*QP_K}")
    VQ2 = Q0
    e(f"v_add_u32 v{VQ2}, {QP_K}, v{V_V}")
    def q_issue():
        for kq in range(4):
            e(f"buffer_load_dwordx4 {vr(QG+4*kq)}, v{VQ2 if kq & 1 else V_V}, {R_WS}, s{77 + (kq >> 1)} offen sc1", tag="qp")
    def q_check():
        for kq in range(4): tagcheck(QG+4*kq, T3, kq == 0, T5)
    VH = Q0 + 1
    e(f"v_lshrrev_b32 v{T0}, 3, v{V_LANE}"); e(f"v_mul_u32_u24 v{VH}, {QP_B}, v{T0}")
    e(f"v_and_b32 v{T1}, 7, v{V_LANE}"); e(f"v_lshl_add_u32 v{VH}, v{T1}, 4, v{VH}")
    e(f"s_lshl_b32 s79, {S_KS}, 7"); e(f"s_add_u32 s79, s79, {WS_QP + 4096*4}")
    def h_issue(): e(f"buffer_load_dwordx4 {vr(QG)}, v{VH}, {R_WS}, s79 offen sc1", tag="hp")
    def h_check(): tagcheck(QG, T3, True, T5)
    with cond(f"s_cmp_ge_u32 {S_W}, 4", "s_cbranch_scc1"): q_issue()
    with cond([f"s_cmp_lg_u32 {S_W}, 4", f"s_cmp_eq_u32 {S_HASF}, 0"], "s_cbranch_scc1"): h_issue()
    if EF and t4early: tileV("s74", "v4", thr=True)
    elif EF: issueV(1, 3, 4, 8)
    else: issueDN(4, 4, 8)
    with cond(f"s_cmp_ge_u32 {S_W}, 4", "s_cbranch_scc1"):
        poll(q_issue, q_check, lambda: e("s_waitcnt vmcnt(4)"), "q")
        untag(range(QG, QG+16))
        for kq in range(1, 4):
            e(f"v_pk_add_f32 {vr(QG,2)}, {vr(QG,2)}, {vr(QG+4*kq,2)}"); e(f"v_pk_add_f32 {vr(QG+2,2)}, {vr(QG+2,2)}, {vr(QG+4*kq+2,2)}")
        e(f"v_cvt_pk_bf16_f32 v{QG}, v{QG}, v{QG+1}")
        e(f"v_cvt_pk_bf16_f32 v{QG+1}, v{QG+2}, v{QG+3}")
        e(f"v_lshlrev_b32 v{T0}, 3, v{V_LANE}"); e(f"s_lshl_b32 s7, {S_W}, 9"); e(f"v_add_u32 v{T0}, s7, v{T0}")
        e(f"ds_write_b64 v{T0}, {vr(QG,2)} offset:{L_Q}")
        setflag(L_FQ)
    with cond([f"s_cmp_lg_u32 {S_W}, 4", f"s_cmp_eq_u32 {S_HASF}, 0"], "s_cbranch_scc1"):
        poll(h_issue, h_check, lambda: e("s_waitcnt vmcnt(4)"), "h")
        HG = QG
        untag(range(HG, HG+4))
        xlane("v_add_f32", [HG, HG+1, HG+2, HG+3], [HG+4, HG+5, HG+6, HG+7], ["p16", "p32"])
        for d in range(2): rnd2(HG+2*d, HG+2*d+1, HG+8+d)
        for i in range(4): e(f"v_mul_f32 v{HG+8+i}, {S_LOG2E}, v{HG+i}")
        for i in range(4): e(f"v_exp_f32 v{HG+8+i}, -v{HG+8+i}")
        for i in range(4): e(f"v_add_f32 v{HG+8+i}, 1.0, v{HG+8+i}")
        for i in range(4): e(f"v_rcp_f32 v{HG+8+i}, v{HG+8+i}")
        for i in range(4): e(f"v_mul_f32 v{HG+i}, v{HG+i}, v{HG+8+i}")
        for d in range(2): e(f"v_cvt_pk_bf16_f32 v{HG+4+d}, v{HG+2*d}, v{HG+2*d+1}")
        e(f"v_and_b32 v{T0}, 1, v{V_LANE}"); e(f"v_lshlrev_b32 v{T0}, 5, v{T0}")
        e(f"v_bfe_u32 v{T1}, v{V_LANE}, 1, 2"); e(f"v_lshl_add_u32 v{T0}, v{T1}, 1, v{T0}")
        e(f"v_bfe_u32 v{T1}, v{V_LANE}, 3, 1"); e(f"v_lshl_add_u32 v{T0}, v{T1}, 6, v{T0}")
        e("s_mov_b64 exec, 0xffff")
        for d in range(2):
            e(f"ds_write_b16 v{T0}, v{HG+4+d} offset:{L_OL + 16*d}")
            e(f"ds_write_b16_d16_hi v{T0}, v{HG+4+d} offset:{L_OL + 16*d + 8}")
        e("s_mov_b64 exec, -1")
        setflag(L_FQ)
    stamp(4)
    e(f"v_and_b32 v{T0}, 7, v{V_LANE}"); e(f"v_lshlrev_b32 v{T0}, 8, v{T0}")
    e(f"v_lshrrev_b32 v{T1}, 4, v{V_LANE}"); e(f"v_lshl_add_u32 v{T0}, v{T1}, 5, v{T0}")
    e(f"v_bfe_u32 v{T1}, v{V_LANE}, 3, 1"); e(f"v_lshl_add_u32 v{T0}, v{T1}, 4, v{T0}")
    waitflags(L_FQ, 4, "wfq")
    e(f"ds_read_b128 {vr(Q0)}, v{T0} offset:{L_Q}")
    e(f"ds_read_b128 {vr(Q1)}, v{T0} offset:{L_Q+128}")
    stamp(5)

    def S_phase(u, slot):
        K = SLOT(slot)
        e.wait_vm(f"k{u}", " lgkmcnt(0)" if u == 0 else "")
        for t in range(2):
            for beta in range(4):
                c = "0" if t == 0 else vr(SC+4*beta)
                e(f"v_mfma_f32_16x16x32_bf16 {vr(SC+4*beta)}, {vr(K+8*beta+4*t)}, {vr(Q0 if t == 0 else Q1)}, {c}")
        yield
        S = SC + 16
        for beta in range(4):
            for eps in range(2):
                dpp("v_add_f32", S+2*beta+eps, SC+4*beta+2*eps+1, SC+4*beta+2*eps, "row_ror:8")
        for d in range(4): rnd2(S+2*d, S+2*d+1, SC+24+d)
        for i in range(8): e(f"v_mul_f32 v{S+i}, {S_SCALE}, v{S+i}")
        for d in range(4): rnd2(S+2*d, S+2*d+1, SC+24+d)
        e(f"v_max3_f32 v{T0}, v{S}, v{S+1}, v{S+2}")
        e(f"v_max3_f32 v{T1}, v{S+3}, v{S+4}, v{S+5}")
        e(f"v_max3_f32 v{T0}, v{T0}, v{S+6}, v{S+7}")
        e(f"v_max_f32 v{T0}, v{T0}, v{T1}")
        xlane("v_max_f32", [T0], [T1], ["p16", "p32"])
        e(f"v_mul_f32 v{T0}, {S_LOG2E}, v{T0}")
        if u > 0:
            e(f"v_max_f32 v{T0}, v{T0}, v{V_ML}")
            e(f"v_sub_f32 v{V_AL}, v{V_ML}, v{T0}")
            e(f"v_exp_f32 v{V_AL}, v{V_AL}")
        e(f"v_mov_b32 v{V_ML}, v{T0}")
        for i in range(8): e(f"v_fma_f32 v{S+i}, v{S+i}, {S_LOG2E}, -v{T0}")
        for i in range(8): e(f"v_exp_f32 v{S+i}, v{S+i}")
        if u > 0:
            e(f"v_mul_f32 v{V_L}, v{V_L}, v{V_AL}")
            for i in range(32): e(f"v_mul_f32 v{ACC+i}, v{ACC+i}, v{V_AL}")
        for d in range(4): e(f"v_cvt_pk_bf16_f32 v{P+d}, v{S+2*d}, v{S+2*d+1}")
        if u == 0: e(f"v_add_f32 v{V_L}, v{S}, v{S+1}")
        else:
            e(f"v_add_f32 v{V_L}, v{V_L}, v{S}"); e(f"v_add_f32 v{V_L}, v{V_L}, v{S+1}")
        for i in range(2, 8): e(f"v_add_f32 v{V_L}, v{V_L}, v{S+i}")
        yield
    def perms32(src, dst):
        for p in range(4):
            for d in range(4):
                for x in range(2):
                    e(f"v_perm_b32 v{dst+4*(2*d+x)+p}, v{src+4*(2*p+1)+d}, v{src+4*(2*p)+d}, {S_HI if x else S_LO}")
    def PV_phase(u, slot):
        e.wait_vm(f"v{u}")
        perms32(SLOT(slot), SC)
        for ee in range(8):
            c = "0" if u == 0 else vr(ACC+4*ee)
            e(f"v_mfma_f32_16x16x32_bf16 {vr(ACC+4*ee)}, {vr(SC+4*ee)}, {vr(P)}, {c}")
    WP = SLOT(1)
    def down_mfma_publish(A, W, D, ST):
        for ee in range(8):
            e(f"v_mfma_f32_16x16x32_bf16 {vr(D+4*ee)}, {vr(A)}, {vr(W+4*ee)}, 0")
        e("s_mov_b64 exec, 0xffff")
        for q4 in range(4):
            b, eh = q4 >> 1, q4 & 1
            tagput(ST+4*q4, [D+4*(4*eh+i)+b for i in range(4)])
            e(f"buffer_store_dwordx4 {vr(ST+4*q4)}, v{V_V}, {R_WS}, s38 offen offset:{q4*256} sc1", tag="pubD")
        e("s_mov_b64 exec, -1")
    g = S_phase(0, 0); next(g)
    e("s_load_dwordx2 s[94:95], s[92:93], 0 glc")
    if not t4early:
        e(f"s_add_u32 s74, {S_KV}, {4*32768}")
        tileK("s74", "k4"); tileV("s74", "v4")
    next(g)
    PV_phase(0, 1)
    Lc1, Lc2 = newlab("ctpoll"), newlab("ctok")
    e(f"s_mov_b32 {S_CNT}, 0")
    e.label(Lc1)
    e("s_waitcnt lgkmcnt(0)")
    e(f"s_cmp_eq_u32 s95, {S_T}"); e(f"s_cbranch_scc1 {Lc2}")
    e(f"s_add_u32 {S_CNT}, {S_CNT}, 1"); e(f"s_cmp_gt_u32 {S_CNT}, {POLL_LIMIT}"); e(f"s_cbranch_scc1 {Lc2}")
    e("s_load_dwordx2 s[94:95], s[92:93], 0 glc")
    e(f"s_branch {Lc1}")
    e.label(Lc2)
    S_NX, S_ST = "s96", "s97"
    def grab():
        e(f"s_mov_b32 {S_NX}, 1")
        e(f"s_atomic_add {S_NX}, s[92:93], 0 glc")
    for _ in S_phase(1, 2): pass
    PV_phase(1, 3)
    if not EF:
        e.wait_vm("dn")
        perms32(SLOT(4), WP)
    WA = SLOT(0) if t4early else SLOT(4)
    e(f"v_and_b32 v{T0}, 15, v{V_LANE}"); e(f"v_mul_u32_u24 v{WA}, {512+16}, v{T0}")
    e(f"v_lshrrev_b32 v{T1}, 4, v{V_LANE}"); e(f"v_lshl_add_u32 v{WA}, v{T1}, 7, v{WA}")
    e(f"s_lshl_b32 s7, {S_W}, 12"); e(f"v_add_u32 v{WA}, s7, v{WA}")
    for ee in range(1, 8): e(f"v_xor_b32 v{WA+ee}, {ee*16}, v{WA}")
    RA, GA, VO, VM, MA, MW, ADA, OLW = WA + 8, WA + 9, WA + 10, WA + 11, WA + 12, WA + 13, WA + 14, WA + 15
    e(f"s_lshl_b32 s7, {S_W}, 6"); e(f"v_add_u32 v{T0}, s7, v{V_LANE}")
    e(f"v_lshlrev_b32 v{GA}, 4, v{T0}")
    e(f"v_lshrrev_b32 v{T1}, 5, v{T0}"); e(f"v_and_b32 v{T1}, 7, v{T1}"); e(f"v_lshlrev_b32 v{MA}, 6, v{T1}"); e(f"v_lshlrev_b32 v{T1}, 4, v{T1}")
    e(f"v_xor_b32 v{RA}, v{GA}, v{T1}")
    e(f"v_lshlrev_b32 v{MW}, 6, v{V_LANE}"); e(f"s_lshl_b32 s7, {S_W}, 3"); e(f"v_add_u32 v{MW}, s7, v{MW}")
    e(f"v_and_b32 v{T0}, 1, v{V_LANE}"); e(f"v_lshlrev_b32 v{T0}, 6, v{T0}")
    e(f"v_and_b32 v{T1}, 48, v{V_LANE}"); e(f"v_add_u32 v{ADA}, v{T0}, v{T1}")
    e(f"s_and_b32 s7, {S_W}, 1"); e("s_lshl_b32 s7, s7, 6"); e(f"s_lshr_b32 s78, {S_W}, 1"); e("s_lshl_b32 s78, s78, 5"); e("s_add_u32 s7, s7, s78")
    e(f"v_and_b32 v{OLW}, 3, v{V_LANE}"); e(f"v_lshlrev_b32 v{OLW}, 3, v{OLW}"); e(f"v_lshrrev_b32 v{T0}, 4, v{V_LANE}"); e(f"v_lshl_add_u32 v{OLW}, v{T0}, 1, v{OLW}"); e(f"v_add_u32 v{OLW}, s7, v{OLW}")
    e(f"s_lshr_b32 s7, {S_IDX}, 5"); e(f"s_and_b32 s79, {S_W}, 1"); e("s_lshl_b32 s79, s79, 2"); e("s_add_u32 s7, s7, s79"); e("s_lshl_b32 s7, s7, 17")
    e("s_lshl_b32 s78, s78, 1"); e("s_add_u32 s78, s78, s7")
    e(f"s_and_b32 s7, {S_IDX}, 31"); e("s_lshl_b32 s7, s7, 7"); e("s_add_u32 s78, s78, s7"); e(f"s_add_u32 s78, s78, {WS_OP}")
    e(f"s_add_u32 s79, s78, {16*4096}")
    e(f"v_lshrrev_b32 v{T0}, 2, v{V_LANE}"); e(f"v_and_b32 v{T1}, 3, v{V_LANE}")
    e(f"v_lshlrev_b32 v{VO}, 12, v{T0}"); e(f"v_lshl_add_u32 v{VO}, v{T1}, 4, v{VO}")
    e("s_lshl_b32 s100, s2, 12"); e(f"s_add_u32 s100, s100, {WS_OP - 4096}")
    e("s_lshl_b32 s101, s2, 7"); e(f"s_add_u32 s101, s101, {WS_ML}")
    e(f"s_lshl_b32 s38, {S_TYPE}, 7"); e(f"s_add_u32 s38, s38, {S_KS}"); e("s_lshl_b32 s38, s38, 13")
    e(f"s_lshl_b32 s7, {S_W}, 10"); e("s_add_u32 s38, s38, s7"); e(f"s_add_u32 s38, s38, {WS_AP}")
    VA3, VX3, VL3, SH4 = WA + 18, WA + 19, WA + 20, WA + 21
    GF = SLOT(3)
    XQ = SLOT(3) + 4
    e(f"v_lshrrev_b32 v{VA3}, 2, v{V_LANE}"); e(f"v_lshlrev_b32 v{VA3}, 13, v{VA3}")
    e(f"v_and_b32 v{VX3}, 3, v{V_LANE}"); e(f"v_lshlrev_b32 v{SH4}, 3, v{VX3}"); e(f"v_lshlrev_b32 v{VX3}, 4, v{VX3}"); e(f"v_add_u32 v{VA3}, v{VA3}, v{VX3}")
    e(f"s_lshl_b32 s7, {S_W}, 6"); e(f"v_add_u32 v{VL3}, s7, v{VX3}")
    e(f"s_lshl_b32 s16, {S_IDX}, 6"); e(f"s_add_u32 s16, s16, {WS_AP}"); e(f"s_lshl_b32 s7, {S_W}, 17"); e("s_add_u32 s16, s16, s7")
    e(f"s_add_u32 s17, s16, {128*8192}")
    e(f"s_lshr_b32 s7, {S_IDX}, 3"); e("s_and_b32 s7, s7, 1"); e("s_lshl_b32 s18, s7, 11")
    e(f"s_lshr_b32 s7, {S_IDX}, 4"); e("s_lshl_b32 s7, s7, 8"); e("s_add_u32 s18, s18, s7")
    e(f"s_and_b32 s7, {S_IDX}, 3"); e("s_lshl_b32 s7, s7, 6"); e("s_add_u32 s18, s18, s7")
    e(f"s_and_b32 s7, {S_IDX}, 4"); e("s_lshl_b32 s7, s7, 1"); e("s_add_u32 s18, s18, s7")
    e(f"s_cmp_lg_u32 {S_W}, 7"); e(f"s_cselect_b32 s19, {S_TYPE}, 0")
    e(f"s_and_b32 s20, {S_T}, 0xffffff"); e("s_mov_b32 s21, 0x0c040100")
    def gf_issue(): e(f"buffer_load_dwordx4 {vr(GF)}, v{VA3}, {R_WS}, s17 offen sc1", tag="g")
    FR = 64 - 8*NS - HF
    P1 = (FR >> LS) << LC
    POOL = P1 + ((HF >> LS) << (LC + 1))
    assert NS == 5
    e(f"s_and_b32 s98, s2, {0x100 - (1<<LC)}"); e("s_lshl_b32 s98, s98, 18"); e(f"s_add_u32 s98, s98, {NS*8*4096}")
    if not late_ffn and not EF:
      with cond(f"s_cmp_eq_u32 {S_HASF}, 0", "s_cbranch_scc1"):
        waitflags(L_FQ + 16, 1, "wfh2")
        e(f"ds_read_b128 {vr(AD)}, v{ADA} offset:{L_OL}")
        e("s_waitcnt lgkmcnt(0)")
        down_mfma_publish(AD, WP, SLOT(2), SC)
    if tlb:
        with cond(f"s_cmp_lg_u32 {S_W}, 1", "s_cbranch_scc1"):
            e("s_mov_b64 exec, 1")
            e(f"buffer_load_dword v{SLOT(3)+8}, off, {R_DN}, {S_DNB}", tag="tl")
            e(f"buffer_load_dword v{SLOT(3)+9}, off, {R_WS}, s17", tag="tl")
            e(f"buffer_load_dword v{SLOT(3)+10}, off, {R_OUT}, s18", tag="tl")
            e("s_mov_b64 exec, -1")
    grab()
    stamp(6)
    setprio(0)
    Lloop, Lskip = newlab("loop"), newlab("noresc")
    e("s_mov_b32 s99, 0")
    e("s_mov_b32 s26, 0"); e("s_mov_b32 s28, 0x7fffffff"); e("s_mov_b32 s29, 0")
    e.label(Lloop)
    e("s_waitcnt vmcnt(4)")
    for t in range(2):
        for beta in range(2):
            c = "0" if t == 0 else vr(SC+4*beta)
            e(f"v_mfma_f32_16x16x32_bf16 {vr(SC+4*beta)}, {vr(KB+8*beta+4*t)}, {vr(Q0 if t == 0 else Q1)}, {c}")
    def decode():
        e("s_waitcnt lgkmcnt(0)")
        if pmap == 0:
            e(f"s_and_b32 s74, {S_NX}, {(1<<LC)-1}"); e("s_lshl_b32 s74, s74, 18"); e("s_add_u32 s74, s74, s98")
            e(f"s_lshr_b32 s75, {S_NX}, {LC}")
            if LS: e(f"s_lshl_b32 s75, s75, {LS}"); e("s_add_u32 s75, s75, s27")
            e("s_lshl_b32 s76, s75, 12"); e("s_lshl_b32 s75, s75, 11"); e(f"s_add_u32 s75, s75, {FR*4096 - FR*2048}")
        else:
            assert FR % 8 == 0 and HF == 8
            e(f"s_and_b32 s74, {S_NX}, 7"); e("s_lshl_b32 s74, s74, 12"); e("s_add_u32 s74, s74, s98")
            e(f"s_bfe_u32 s75, {S_NX}, 0x30003"); e("s_lshl_b32 s75, s75, 18"); e("s_add_u32 s74, s74, s75")
            e(f"s_lshr_b32 s75, {S_NX}, 6"); e("s_lshl_b32 s76, s75, 15"); e("s_lshl_b32 s75, s75, 11"); e(f"s_add_u32 s75, s75, {FR*4096 - (FR//8)*2048}")
        e(f"s_cmp_lt_u32 {S_NX}, {P1}"); e("s_cselect_b32 s75, s76, s75"); e("s_cselect_b32 s77, 0, 0xff800000"); e("s_cselect_b32 s76, 0, 0x40000000")
        e("s_add_u32 s74, s74, s75"); e("s_add_u32 s76, s76, s74")
        e(f"s_cmp_lt_u32 {S_NX}, {POOL}"); e("s_cselect_b32 s74, s74, 0x40000000"); e("s_cselect_b32 s75, 1, 0")
    decode()
    with cond("s_cmp_eq_u32 s26, 0", "s_cbranch_scc1"):
        grab()
    def dn_at(jjs):
        for jj in jjs:
            e(f"s_add_u32 s22, {S_DNB}, {(8*(jj&3) + (jj>>2))*2048}")
            e(f"buffer_load_dwordx4 {vr(SLOT(2)+4*jj)}, v{V_DN}, {R_DN}, s22 offen nt", tag="dn3")
    ea = list(range(8 - LA - EA, 8 - LA))
    ea_exit = []
    if xmode == 1: ea_exit = ea; ea = []
    if xmode == 2: ea_exit = ea[4:]; ea = ea[:4]
    if EA >= 4 and xmode == 0:
        Lk, Lk2 = newlab("kdn"), newlab("kdn2")
        e("s_or_b32 s30, s75, s29"); e(f"s_cbranch_scc1 {Lk}")
        e.cond_depth += 1; dn_at(ea[:4]); e.cond_depth -= 1
        e(f"s_branch {Lk2}")
        e.label(Lk)
        tileK("s74", "kl", "s76")
        e.label(Lk2)
        ea = ea[4:]
    else:
        tileK("s74", "kl", "s76")
    S = SC + 8
    for beta in range(2):
        for eps in range(2):
            dpp("v_add_f32", S+2*beta+eps, SC+4*beta+2*eps+1, SC+4*beta+2*eps, "row_ror:8")
    for d in range(2): rnd2(S+2*d, S+2*d+1, SC+12+d)
    for i in range(4): e(f"v_mul_f32 v{S+i}, {S_SCALE}, v{S+i}")
    for d in range(2): rnd2(S+2*d, S+2*d+1, SC+12+d)
    e(f"v_add_f32 v{S+2}, s99, v{S+2}"); e(f"v_add_f32 v{S+3}, s99, v{S+3}")
    e("s_mov_b32 s99, s77")
    e(f"v_max3_f32 v{T0}, v{S}, v{S+1}, v{S+2}")
    e(f"v_max_f32 v{T0}, v{T0}, v{S+3}")
    xlane("v_max_f32", [T0], [T1], ["p16", "p32"])
    e(f"v_mul_f32 v{T0}, {S_LOG2E}, v{T0}")
    e(f"v_cmp_gt_f32 vcc, v{T0}, v{V_ML}")
    e(f"s_and_b64 vcc, vcc, {S_N8}")
    e(f"s_cbranch_scc0 {Lskip}")
    e(f"v_max_f32 v{T0}, v{T0}, v{V_ML}")
    e(f"v_sub_f32 v{V_AL}, v{V_ML}, v{T0}")
    e(f"v_exp_f32 v{V_AL}, v{V_AL}")
    e(f"v_mov_b32 v{V_ML}, v{T0}")
    e(f"v_mul_f32 v{V_L}, v{V_L}, v{V_AL}")
    for i in range(32): e(f"v_mul_f32 v{ACC+i}, v{ACC+i}, v{V_AL}")
    e.label(Lskip)
    for i in range(4): e(f"v_fma_f32 v{S+i}, v{S+i}, {S_LOG2E}, -v{V_ML}")
    for i in range(4): e(f"v_exp_f32 v{S+i}, v{S+i}")
    for d in range(2): e(f"v_cvt_pk_bf16_f32 v{P+d}, v{S+2*d}, v{S+2*d+1}")
    for i in range(4): e(f"v_add_f32 v{V_L}, v{V_L}, v{S+i}")
    PS = SC + 16
    for p in range(2):
        e(f"s_waitcnt vmcnt({6 - 2*p})")
        for d in range(4):
            for x in range(2):
                e(f"v_perm_b32 v{PS+2*(2*d+x)+p}, v{VB+4*(2*p+1)+d}, v{VB+4*(2*p)+d}, {S_HI if x else S_LO}")
    with cond("s_cmp_eq_u32 s75, 0", "s_cbranch_scc1"):
        tileV("s74", "vl", "s76")
        e(f"s_sub_i32 s7, {S_NX}, s28"); e(f"s_mov_b32 s28, {S_NX}")
        e(f"s_mul_i32 s22, s7, {PC+1}"); e(f"s_add_i32 s22, s22, {S_NX}")
        e(f"s_cmp_gt_i32 s7, {PB}"); e("s_cselect_b32 s22, s22, 0")
        Lpp, Lpq = newlab("pp"), newlab("pq")
        e(f"s_cmp_ge_i32 s22, {POOL + PC*PB - PS_}"); e(f"s_cbranch_scc1 {Lpp}")
        grab()
        e(f"s_branch {Lpq}")
        e.label(Lpp)
        e("s_mov_b32 s26, 1"); e(f"s_mov_b32 {S_NX}, {POOL}")
        e.label(Lpq)
    if ea:
        with cond(f"s_or_b32 s22, s30, {S_TYPE}", "s_cbranch_scc1"): dn_at(ea)
    if not EF:
      with cond("s_cmp_le_u32 s19, s75", "s_cbranch_scc1"):
        gf_issue()
    for ee in range(8):
        e(f"v_mfma_f32_16x16x16_bf16 {vr(ACC+4*ee)}, {vr(PS+2*ee,2)}, {vr(P,2)}, {vr(ACC+4*ee)}")
    e("s_cmp_lg_u32 s75, 0"); e(f"s_cbranch_scc1 {Lloop}")
    Lout = newlab("out")
    e("s_cmp_eq_u32 s26, 0"); e(f"s_cbranch_scc1 {Lout}")
    decode()
    e("s_cmp_eq_u32 s75, 0"); e(f"s_cbranch_scc1 {Lout}")
    e("s_mov_b32 s26, 0"); e("s_mov_b32 s29, 1"); e("s_mov_b32 s99, s77"); e("s_mov_b32 s28, 0x7fffffff")
    e.cond_depth += 1
    tileK("s74", "kl", "s76"); tileV("s74", "vl", "s76")
    e.cond_depth -= 1
    grab()
    e(f"s_branch {Lloop}")
    e.label(Lout)
    stamp(7)
    xlane("v_add_f32", [V_L], [T1], ["p16", "p32"])
    e("s_mov_b64 exec, 0xff")
    e(f"ds_write_b64 v{MW}, {vr(V_ML,2)} offset:{L_MX}")
    e(f"s_mov_b64 exec, {S_N8}")
    for ee in range(8): e(f"ds_write_b128 v{WA+ee}, {vr(ACC+4*ee)} offset:{L_ORED}")
    e("s_mov_b64 exec, -1")
    if ea_exit:
        with cond(f"s_cmp_eq_u32 {S_TYPE}, 1", "s_cbranch_scc1"): dn_at(ea_exit)
    if EF and fx in (1, 3):
        with cond(f"s_cmp_eq_u32 {S_TYPE}, 0", "s_cbranch_scc1"): dn_at(range(8) if fx == 1 else range(4, 8))
    stamp(8)
    e("s_waitcnt lgkmcnt(0)")
    e("s_barrier")
    L4, Lp = newlab("w4"), newlab("pubdone")
    ML8 = SC
    def wg_factors():
        e(f"v_max3_f32 v{T0}, v{ML8}, v{ML8+2}, v{ML8+4}")
        e(f"v_max3_f32 v{T1}, v{ML8+6}, v{ML8+8}, v{ML8+10}")
        e(f"v_max3_f32 v{T0}, v{T0}, v{ML8+12}, v{ML8+14}")
        e(f"v_max_f32 v{T0}, v{T0}, v{T1}")
        for w in range(8): e(f"v_sub_f32 v{ML8+2*w}, v{ML8+2*w}, v{T0}")
        for w in range(8): e(f"v_exp_f32 v{ML8+2*w}, v{ML8+2*w}")
    e(f"s_cmp_lt_u32 {S_W}, 4"); e(f"s_cbranch_scc1 {Lp}")
    e.cond_depth += 1
    for i in range(4): e(f"ds_read_b128 {vr(ML8+4*i)}, v{MA} offset:{L_MX + 16*i}")
    for w in range(8): e(f"ds_read_b128 {vr(ACC+4*w)}, v{RA} offset:{L_ORED - 4096 + w*4096}")
    e("s_waitcnt lgkmcnt(8)")
    wg_factors()
    e(f"v_mul_f32 v{T2}, v{ML8+1}, v{ML8}")
    e(f"v_mul_f32 v{T3}, v{ML8+3}, v{ML8+2}")
    for w in range(2, 8): e(f"v_fmac_f32 v{T2 + (w & 1)}, v{ML8+2*w+1}, v{ML8+2*w}")
    e(f"v_add_f32 v{T2}, v{T2}, v{T3}")
    e(f"v_log_f32 v{T3}, v{T2}")
    e(f"v_rcp_f32 v{T2}, v{T2}")
    for w in range(8):
        e(f"s_waitcnt lgkmcnt({7-w})")
        for c in range(0, 4, 2):
            if w == 0: e(f"v_pk_mul_f32 {vr(ACC+c,2)}, {vr(ACC+c,2)}, {vr(ML8,2)} op_sel_hi:[1,0]")
            else: e(f"v_pk_fma_f32 {vr(ACC+c,2)}, {vr(ACC+4*w+c,2)}, {vr(ML8+2*w,2)}, {vr(ACC+c,2)} op_sel_hi:[1,0,1]")
        if w == 1:
            e(f"v_add_f32 v{T3}, v{T3}, v{T0}")
            e(f"v_lshrrev_b32 v{T3}, v{SH4}, v{T3}")
    for c in range(0, 4, 2): e(f"v_pk_mul_f32 {vr(ACC+c,2)}, {vr(ACC+c,2)}, {vr(T2,2)} op_sel_hi:[1,0]")
    tagput(ACC+4, [ACC, ACC+1, ACC+2])
    e(f"v_perm_b32 v{ACC+7}, v{ACC+3}, v{T3}, {S_TI[0]}")
    e(f"buffer_store_dwordx4 {vr(ACC+4)}, v{GA}, {R_WS}, s100 offen sc1", tag="pubO")
    e.cond_depth -= 1
    e.label(Lp)
    stamp(9)
    if dbgt:
        e("s_memrealtime s[16:17]"); e("s_waitcnt lgkmcnt(0)")
    def late_dn(L):
        for jj in range(8 - L, 8):
            e(f"s_add_u32 s76, {S_DNB}, {(8*(jj&3) + (jj>>2))*2048}")
            e(f"buffer_load_dwordx4 {vr(SLOT(0)+4*jj)}, v{V_DN}, {R_DN}, s76 offen nt", tag="dn2")
        for p in range((8 - L) // 2, 4):
            e(f"s_waitcnt vmcnt({6-2*p})")
            for d in range(4):
                for x in range(2):
                    e(f"v_perm_b32 v{WP+4*(2*d+x)+p}, v{SLOT(0)+4*(2*p+1)+d}, v{SLOT(0)+4*(2*p)+d}, {S_HI if x else S_LO}")
    if pbar: e("s_barrier")
    LF = newlab("ftype")
    e(f"s_cmp_eq_u32 {S_TYPE}, 1"); e(f"s_cbranch_scc1 {LF}")
    e.cond_depth += 1
    OG, MG = ACC + 16, ACC + 24
    def o_issue():
        e(f"buffer_load_dwordx4 {vr(OG)}, v{VO}, {R_WS}, s78 offen sc1", tag="og")
        e(f"buffer_load_dwordx4 {vr(OG+4)}, v{VO}, {R_WS}, s79 offen sc1", tag="og")
    def o_check():
        e(f"v_perm_b32 v{T3}, v{OG+1}, v{OG}, {S_G2}")
        e(f"v_perm_b32 v{T4}, v{OG+5}, v{OG+4}, {S_G2}")
        e(f"v_perm_b32 v{T3}, v{OG+2}, v{T3}, s21")
        e(f"v_perm_b32 v{T4}, v{OG+6}, v{T4}, s21")
        e(f"v_xor_b32 v{T3}, s20, v{T3}"); e(f"v_xor_b32 v{T4}, s20, v{T4}")
        e(f"v_or_b32 v{T5}, v{T3}, v{T4}")
    if EA:
        if not LA: e("s_waitcnt vmcnt(0)")
        else: e("s_waitcnt vmcnt(0)")
        for p in range((8 - LA - EA) // 2, (8 - LA) // 2):
            for d in range(4):
                for x in range(2):
                    e(f"v_perm_b32 v{WP+4*(2*d+x)+p}, v{SLOT(2)+4*(2*p+1)+d}, v{SLOT(2)+4*(2*p)+d}, {S_HI if x else S_LO}")
    late_dn(LA)
    if THO:
        with cond(f"s_cmp_lg_u32 {S_W}, 0", "s_cbranch_scc1"):
            Lr, Lx = newlab("so"), newlab("sox")
            e("s_mov_b32 exec_lo, 0x01010101"); e("s_mov_b32 exec_hi, 0x01010101")
            e(f"s_mov_b32 {S_CNT}, 0")
            e.label(Lr)
            e(f"buffer_load_dwordx4 {vr(OG)}, v{VO}, {R_WS}, s78 offen sc1", tag="og")
            e(f"s_add_u32 {S_CNT}, {S_CNT}, 1"); e(f"s_cmp_gt_u32 {S_CNT}, {POLL_LIMIT}")
            e("s_waitcnt vmcnt(0)")
            e(f"s_cbranch_scc1 {Lx}")
            e(f"v_perm_b32 v{T3}, v{OG+1}, v{OG}, {S_G2}")
            e(f"v_perm_b32 v{T3}, v{OG+2}, v{T3}, s21")
            e(f"v_cmp_eq_u32 vcc, s20, v{T3}")
            e("s_bcnt1_i32_b64 s7, vcc")
            e(f"s_cmp_ge_u32 s7, {THO}"); e(f"s_cbranch_scc1 {Lx}")
            e("s_sleep 1")
            e(f"s_branch {Lr}")
            e.label(Lx)
            e("s_mov_b64 exec, -1")
        e("s_barrier")
    with cond(f"s_cmp_ge_u32 {S_W}, 4", "s_cbranch_scc1"):
        if dly_o and not THO: e(f"s_sleep {dly_o}")
        o_issue()
        poll(o_issue, o_check, lambda: e("s_waitcnt vmcnt(0)"), "o", sleep=slp_o)
        stamp(10)
        for i in range(2): e(f"v_and_b32 v{MG+i}, 0xff, v{OG+4*i+3}")
        for i in range(2): e(f"v_lshlrev_b32 v{MG+i}, v{SH4}, v{MG+i}")
        untag(range(OG, OG+4))
        for i in range(2): dpp("v_or_b32", MG+i, MG+i, MG+i, "quad_perm:[1,0,3,2]")
        untag(range(OG+4, OG+8))
        for i in range(2): dpp("v_or_b32", MG+i, MG+i, MG+i, "quad_perm:[2,3,0,1]")
        e(f"v_max_f32 v{T0}, v{MG}, v{MG+1}")
        xlane("v_max_f32", [T0], [T1], ["r4", "r8", "p16", "p32"])
        for i in range(2): e(f"v_sub_f32 v{MG+i}, v{MG+i}, v{T0}")
        for i in range(2): e(f"v_exp_f32 v{MG+i}, v{MG+i}")
        for c in range(0, 4, 2): e(f"v_pk_mul_f32 {vr(OG+c,2)}, {vr(OG+c,2)}, {vr(MG,2)} op_sel_hi:[1,0]")
        for c in range(0, 4, 2): e(f"v_pk_fma_f32 {vr(OG+c,2)}, {vr(OG+4+c,2)}, {vr(MG,2)}, {vr(OG+c,2)} op_sel:[0,1,0] op_sel_hi:[1,1,1]")
        e(f"v_add_f32 v{T1}, v{MG}, v{MG+1}")
        e(f"v_mov_b32 v{T4}, v{T1}")
        e(f"v_permlane32_swap_b32 v{OG}, v{OG+2}"); e(f"v_permlane32_swap_b32 v{OG+1}, v{OG+3}"); e(f"v_permlane32_swap_b32 v{T1}, v{T4}")
        e(f"v_add_f32 v{T1}, v{T1}, v{T4}"); e(f"v_add_f32 v{OG}, v{OG}, v{OG+2}"); e(f"v_add_f32 v{OG+1}, v{OG+1}, v{OG+3}")
        e(f"v_mov_b32 v{T4}, v{T1}")
        e(f"v_permlane16_swap_b32 v{OG}, v{OG+1}"); e(f"v_permlane16_swap_b32 v{T1}, v{T4}")
        e(f"v_add_f32 v{OG}, v{OG}, v{OG+1}"); e(f"v_add_f32 v{T1}, v{T1}, v{T4}")
        for st in (8, 4):
            dpp("v_add_f32", OG, OG, OG, f"row_ror:{st}"); dpp("v_add_f32", T1, T1, T1, f"row_ror:{st}")
        e(f"v_rcp_f32 v{T0}, v{T1}")
        e(f"v_mul_f32 v{OG}, v{OG}, v{T0}")
        e(f"v_cvt_pk_bf16_f32 v{OG}, v{OG}, v{OG}")
        e("s_mov_b32 exec_lo, 0x000f000f"); e("s_mov_b32 exec_hi, 0x000f000f")
        e(f"ds_write_b16 v{OLW}, v{OG} offset:{L_OL}")
        e("s_mov_b64 exec, -1")
        e("s_waitcnt lgkmcnt(0)")
    e("s_barrier")
    e(f"ds_read_b128 {vr(AD)}, v{ADA} offset:{L_OL}")
    e("s_waitcnt lgkmcnt(0)")
    down_mfma_publish(AD, WP, ACC, SLOT(3))
    stamp(11)
    e("s_branch L_fini")
    e.label(LF)
    if late_ffn:
      with cond(f"s_cmp_eq_u32 {S_HASF}, 0", "s_cbranch_scc1"):
        e(f"ds_read_b128 {vr(AD)}, v{ADA} offset:{L_OL}")
        late_dn(LF_)
        e("s_waitcnt lgkmcnt(0)")
        down_mfma_publish(AD, WP, SLOT(2), SLOT(3))
      stamp(11)
    VA, VX = VA3, VX3
    G = SLOT(1)
    def ga_issue(): e(f"buffer_load_dwordx4 {vr(G)}, v{VA}, {R_WS}, s16 offen sc1", tag="g")
    def tred(R):
        e(f"v_permlane32_swap_b32 v{R}, v{R+2}"); e(f"v_permlane32_swap_b32 v{R+1}, v{R+3}")
        e(f"v_add_f32 v{R}, v{R}, v{R+2}"); e(f"v_add_f32 v{R+1}, v{R+1}, v{R+3}")
        e(f"v_permlane16_swap_b32 v{R}, v{R+1}")
        e(f"v_add_f32 v{R}, v{R}, v{R+1}")
        dpp("v_add_f32", R, R, R, "row_ror:8"); dpp("v_add_f32", R, R, R, "row_ror:4")
    VL = T0
    e(f"v_lshrrev_b32 v{VL}, 4, v{V_LANE}"); e(f"v_lshl_add_u32 v{VL}, v{VL}, 2, v{VL3}")
    e("s_mov_b32 s24, 0x000f000f"); e("s_mov_b32 s25, 0x000f000f")
    if EF:
        with cond(f"s_cmp_eq_u32 {S_HASF}, 0", "s_cbranch_scc1"):
            if fx == 2: dn_at(range(8))
            if fx == 4: dn_at(range(4, 8))
            e(f"ds_read_b128 {vr(AD)}, v{ADA} offset:{L_OL}")
            e("s_waitcnt vmcnt(0)")
            perms32(SLOT(2), KB)
            e("s_waitcnt lgkmcnt(0)")
            down_mfma_publish(AD, KB, ACC, SC)
        stamp(11)
        FV, XV, VR, VS = G + 8, G + 9, G + 10, G + 11
        e(f"s_cmp_eq_u32 {S_W}, 7"); e("s_cselect_b32 s17, s16, s17"); e("s_cselect_b32 s19, 0, -1")
        def gb_issue(): ga_issue(); gf_issue()
        def gb_check(): tagcheck(G, T3, True, T5); tagcheck(GF, T3, False, T5)
        with cond(f"s_cmp_lg_u32 {S_W}, 0", "s_cbranch_scc1"):
            e(f"v_lshlrev_b32 v{VR}, 2, v{V_LANE}")
            e(f"v_and_b32 v{VS}, 12, v{V_LANE}"); e(f"v_lshlrev_b32 v{VS}, 2, v{VS}"); e(f"v_and_b32 v{T1}, 3, v{V_LANE}"); e(f"v_lshl_add_u32 v{VS}, v{T1}, 1, v{VS}")
            e(f"buffer_load_ushort v{XV}, v{VS}, {R_X}, s18 offen", tag="xq")
            Lr, Lx = newlab("sp"), newlab("spx")
            e("s_mov_b32 exec_lo, 0x11111111"); e("s_mov_b32 exec_hi, 0x11111111")
            e(f"s_mov_b32 {S_CNT}, 0")
            e.label(Lr)
            ga_issue()
            e(f"s_add_u32 {S_CNT}, {S_CNT}, 1"); e(f"s_cmp_gt_u32 {S_CNT}, {POLL_LIMIT}")
            e("s_waitcnt vmcnt(0)")
            e(f"s_cbranch_scc1 {Lx}")
            tagcheck(G, T3, True, T5)
            e(f"v_cmp_eq_u32 vcc, 0, v{T5}")
            e("s_bcnt1_i32_b64 s7, vcc")
            e(f"s_cmp_ge_u32 s7, {THR}"); e(f"s_cbranch_scc1 {Lx}")
            if slp_pre: e(f"s_sleep {slp_pre}")
            e(f"s_branch {Lr}")
            e.label(Lx)
            e("s_mov_b64 exec, -1")
            e(f"v_lshlrev_b32 v{XV}, 16, v{XV}")
        e("s_and_b32 s19, s19, s23")
        e("s_barrier")
        gb_issue()
        poll(gb_issue, gb_check, lambda: e("s_waitcnt vmcnt(0)"), "ga", sleep=slp_g)
        stamp(12)
        untag(range(G, G+4))
        for r in range(GF, GF+4): e(f"v_and_b32 v{r}, s19, v{r}")
        tred(G); tred(GF)
        e("s_mov_b64 exec, s[24:25]")
        e(f"ds_write_b32 v{VL}, v{G} offset:{L_REDQ}")
        e(f"ds_write_b32 v{VL}, v{GF} offset:{L_REDQ+512}")
        e("s_waitcnt lgkmcnt(0)")
        e("s_barrier")
        e(f"s_cmp_lg_u32 {S_W}, 0"); e("s_cbranch_scc1 L_fini")
        e("s_mov_b64 exec, -1")
        e(f"ds_read2_b32 {vr(G,2)}, v{VR} offset0:{L_REDQ//4} offset1:{(L_REDQ+256)//4}")
        e(f"ds_read2_b32 {vr(G+2,2)}, v{VR} offset0:{(L_REDQ+512)//4} offset1:{(L_REDQ+768)//4}")
        e("s_waitcnt lgkmcnt(0)")
        e(f"v_add_f32 v{G}, v{G}, v{G+1}"); e(f"v_add_f32 v{FV}, v{G+2}, v{G+3}")
        xlane("v_add_f32", [G, FV], [G+1, G+2], ["p16", "p32"])
        rnd2(G, FV, G+1)
        e(f"v_add_f32 v{G}, v{XV}, v{G}")
        e(f"v_cvt_pk_bf16_f32 v{G}, v{G}, v{G}"); e(f"v_and_b32 v{G}, {S_MASKH}, v{G}")
        e(f"v_add_f32 v{G}, v{G}, v{FV}")
        e(f"v_cvt_pk_bf16_f32 v{G}, v{G}, v{G}")
    else:
        Lz, Lz2 = newlab("zf"), newlab("zf2")
        e(f"s_cmp_eq_u32 {S_W}, 7"); e(f"s_cbranch_scc1 {Lz}")
        poll(gf_issue, lambda: tagcheck(GF, T3, True, T5), lambda: e("s_waitcnt vmcnt(0)"), "gf", sleep=2)
        untag(range(GF, GF+4))
        tred(GF)
        e(f"s_branch {Lz2}")
        e.label(Lz)
        e(f"v_mov_b32 v{GF}, 0")
        e.label(Lz2)
        e("s_mov_b64 exec, s[24:25]")
        e(f"ds_write_b32 v{VL}, v{GF} offset:{L_REDQ+512}")
        e("s_mov_b64 exec, -1")
        e("s_waitcnt lgkmcnt(0)")
        e("s_barrier")
        FV, XV, VR, VS = G + 8, G + 9, G + 10, G + 11
        with cond(f"s_cmp_lg_u32 {S_W}, 0", "s_cbranch_scc1"):
            e(f"v_lshlrev_b32 v{VR}, 2, v{V_LANE}")
            e(f"ds_read2_b32 {vr(G+12,2)}, v{VR} offset0:{(L_REDQ+512)//4} offset1:{(L_REDQ+512+256)//4}")
            e(f"v_and_b32 v{VS}, 12, v{V_LANE}"); e(f"v_lshlrev_b32 v{VS}, 2, v{VS}"); e(f"v_and_b32 v{T1}, 3, v{V_LANE}"); e(f"v_lshl_add_u32 v{VS}, v{T1}, 1, v{VS}")
            e(f"buffer_load_ushort v{XV}, v{VS}, {R_X}, s18 offen", tag="xq")
            e("s_waitcnt lgkmcnt(0)")
            e(f"v_add_f32 v{FV}, v{G+12}, v{G+13}")
            xlane("v_add_f32", [FV], [T1], ["p16", "p32"])
            e(f"v_cvt_pk_bf16_f32 v{FV}, v{FV}, v{FV}"); e(f"v_and_b32 v{FV}, {S_MASKH}, v{FV}")
            e("s_waitcnt vmcnt(0)")
            e(f"v_lshlrev_b32 v{XV}, 16, v{XV}")
            Lr, Lx = newlab("sp"), newlab("spx")
            e("s_mov_b32 exec_lo, 0x11111111"); e("s_mov_b32 exec_hi, 0x11111111")
            e(f"s_mov_b32 {S_CNT}, 0")
            e.label(Lr)
            ga_issue()
            e(f"s_add_u32 {S_CNT}, {S_CNT}, 1"); e(f"s_cmp_gt_u32 {S_CNT}, {POLL_LIMIT}")
            e("s_waitcnt vmcnt(0)")
            e(f"s_cbranch_scc1 {Lx}")
            tagcheck(G, T3, True, T5)
            e(f"v_cmp_eq_u32 vcc, 0, v{T5}")
            e("s_bcnt1_i32_b64 s7, vcc")
            e(f"s_cmp_ge_u32 s7, {THR}"); e(f"s_cbranch_scc1 {Lx}")
            if slp_pre: e(f"s_sleep {slp_pre}")
            e(f"s_branch {Lr}")
            e.label(Lx)
            e("s_mov_b64 exec, -1")
        e("s_barrier")
        if dly_g: e(f"s_sleep {dly_g}")
        ga_issue()
        poll(ga_issue, lambda: tagcheck(G, T3, True, T5), lambda: e("s_waitcnt vmcnt(0)"), "ga", sleep=slp_g)
        stamp(12)
        untag(range(G, G+4))
        tred(G)
        e("s_mov_b64 exec, s[24:25]")
        e(f"ds_write_b32 v{VL}, v{G} offset:{L_REDQ}")
        e("s_waitcnt lgkmcnt(0)")
        e("s_barrier")
        e(f"s_cmp_lg_u32 {S_W}, 0"); e("s_cbranch_scc1 L_fini")
        e("s_mov_b64 exec, -1")
        e(f"ds_read2_b32 {vr(G,2)}, v{VR} offset0:{L_REDQ//4} offset1:{(L_REDQ+256)//4}")
        e("s_waitcnt lgkmcnt(0)")
        e(f"v_add_f32 v{G}, v{G}, v{G+1}")
        xlane("v_add_f32", [G], [G+1], ["p16", "p32"])
        e(f"v_cvt_pk_bf16_f32 v{G}, v{G}, v{G}"); e(f"v_and_b32 v{G}, {S_MASKH}, v{G}")
        e(f"v_add_f32 v{G}, v{XV}, v{G}")
        e(f"v_cvt_pk_bf16_f32 v{G}, v{G}, v{G}"); e(f"v_and_b32 v{G}, {S_MASKH}, v{G}")
        e(f"v_add_f32 v{G}, v{G}, v{FV}")
        e(f"v_cvt_pk_bf16_f32 v{G}, v{G}, v{G}")
    e("s_mov_b64 exec, 0xffff")
    e(f"buffer_store_short v{G}, v{VS}, {R_OUT}, s18 offen")
    e(f"s_cmp_lg_u32 {S_IDX}, 0"); e("s_cbranch_scc1 L_fini")
    e("s_mov_b64 exec, 1")
    e(f"buffer_store_dword v{V_T}, off, {R_WS}, 0")
    e.cond_depth -= 1
    e.label("L_fini")
    if dbgt:
        e("s_memrealtime s[72:73]"); e("s_waitcnt lgkmcnt(0)")
        e("s_cmp_lg_u32 s3, 0"); e("s_cbranch_scc1 L_dbg1")
        e("s_atomic_umax s72, s[34:35], 4"); e("s_waitcnt lgkmcnt(0)")
        e.label("L_dbg1")
    if dbgt:
        e("s_cmp_lg_u32 s3, 0"); e("s_cbranch_scc1 L_end")
        e("s_atomic_umax s16, s[34:35], 12")
        e("s_not_b32 s72, s90"); e("s_atomic_umax s72, s[34:35], 0"); e("s_atomic_umax s90, s[34:35], 8"); e("s_waitcnt lgkmcnt(0)")
    if stamps:
        e("s_mov_b64 exec, -1")
        stamp(13)
        e("s_mov_b64 exec, 0xffff")
        e(f"v_lshlrev_b32 v{T0}, 2, v{V_LANE}")
        e("s_lshl_b32 s7, s2, 3"); e(f"s_add_u32 s7, s7, {S_W}"); e("s_lshl_b32 s7, s7, 6"); e(f"s_add_u32 s7, s7, {WS_SIZE}")
        e("s_mov_b32 s58, 0x1000000")
        e(f"buffer_store_dword v0, v{T0}, {R_WS}, s7 offen")
    e.label("L_end")
    e("s_endpgm")

    out = HEADER
    out += f"; @launch grid=(256,1,1) block=(512,1,1) lds={LDS_BYTES}\n"
    out += DOC + '.amdgcn_target "amdgcn-amd-amdhsa--gfx950"\n.text\n'
    out += f".globl {KNAME}\n.p2align 8\n.type {KNAME},@function\n{KNAME}:\n"
    out += e.text()
    out += f""".section .rodata,"a"
.p2align 6
.amdhsa_kernel {KNAME}
  .amdhsa_next_free_vgpr 256
  .amdhsa_next_free_sgpr 102
  .amdhsa_accum_offset 256
  .amdhsa_group_segment_fixed_size 0
  .amdhsa_kernarg_size 88
  .amdhsa_user_sgpr_count 2
  .amdhsa_user_sgpr_kernarg_segment_ptr 1
  .amdhsa_system_sgpr_workgroup_id_x 1
.end_amdhsa_kernel
"""
    return out

if __name__ == "__main__":
    import argparse
    ap = argparse.ArgumentParser()
    ap.add_argument("-o", default="parallel_sum__gqa_block_cached__dense_activation_silu__decode.s")
    ap.add_argument("--inf", type=int, default=5)
    ap.add_argument("--stamps", action="store_true")
    ap.add_argument("--kw", default="")
    a = ap.parse_args()
    kw = eval("dict(%s)" % a.kw)
    open(a.o, "w").write(gen(INF=a.inf, stamps=a.stamps, **kw))
```
